```python
import torch

def _softmax(x, axis=-1):
    return torch.softmax(x, dim=axis)
def _gelu(x):
    return torch.nn.functional.gelu(x, approximate="tanh")
def _silu(x):
    return torch.nn.functional.silu(x)
def _sigmoid(x):
    return torch.sigmoid(x)
def _layernorm(x, axis=-1, eps=1e-5):
    m = x.mean(dim=axis, keepdim=True)
    v = x.var(dim=axis, keepdim=True, unbiased=False)
    return (x - m) / torch.sqrt(v + eps)
def _scatter_add(tgt, idx, src, axis=0):
    return tgt.clone().index_add_(axis, idx, src)
def _segment_sum(src, seg, n):
    out = torch.zeros((n,) + src.shape[1:], dtype=src.dtype)
    return out.index_add_(0, seg, src)
def _pad(x, pw):
    flat = tuple(v for pair in reversed(pw) for v in pair)
    return torch.nn.functional.pad(x, flat)

kernel_name = 'parallel_sum__compressed_kv_cla__dense_activation_silu__decode'

def setup_inputs():

    _w = (lambda a: (lambda t: t.to(torch.bfloat16) if t.is_floating_point() else t)(torch.as_tensor(a)))
    def _A_setup():
        B, H, Sq, Sk, D, M = 2, 32, 1, 4096, 128, 512
        Dc = 4 * D
        return {
            "x": _w((lambda *s: torch.randn(*s, dtype=torch.bfloat16) * 0.05)(B, Sq, M)),
            "c_kv": _w((lambda *s: torch.randn(*s, dtype=torch.bfloat16) * 0.8)(B, Sk, Dc)),
            "w_q": _w((lambda *s: torch.randn(*s, dtype=torch.bfloat16) * 3.2)(M, H, D) * (M ** -0.5)),
            "w_uk": _w((lambda *s: torch.randn(*s, dtype=torch.bfloat16) * 3.2)(Dc, H, D) * (Dc ** -0.5)),
            "w_uv": _w((lambda *s: torch.randn(*s, dtype=torch.bfloat16) * 0.8)(Dc, H, D) * (Dc ** -0.5)),
            "w_o": _w((lambda *s: torch.randn(*s, dtype=torch.bfloat16) * 0.8)(H, D, M) * ((H * D) ** -0.5)),
        }
    _A_in = _A_setup()

    def _B_setup():
        B, S, D, F = 2, 1, 512, 1376
        return {
            "x": _w((lambda *s: torch.randn(*s, dtype=torch.bfloat16) * 0.05)(B, S, D)),
            "w1": _w((lambda *s: torch.randn(*s, dtype=torch.bfloat16) * 3.2)(D, F) * (D ** -0.5)),
            "w2": _w((lambda *s: torch.randn(*s, dtype=torch.bfloat16) * 0.2)(F, D) * (F ** -0.5)),
        }
    _B_in = _B_setup()

    return {
        "A_x": _A_in["x"],
        "A_c_kv": _A_in["c_kv"],
        "A_w_q": _A_in["w_q"],
        "A_w_uk": _A_in["w_uk"],
        "A_w_uv": _A_in["w_uv"],
        "A_w_o": _A_in["w_o"],
        "B_x": _B_in["x"],
        "B_w1": _B_in["w1"],
        "B_w2": _B_in["w2"],
    }

def reference(A_x, A_c_kv, A_w_q, A_w_uk, A_w_uv, A_w_o, B_x, B_w1, B_w2):
    def _A_ref(x, c_kv, w_q, w_uk, w_uv, w_o):
        B, Sq, M = x.shape[0], x.shape[1], x.shape[2]
        Sk = c_kv.shape[1]
        H, D = w_q.shape[1], w_q.shape[2]
        q = torch.einsum("bqm,mhd->bhqd", x, w_q)
        k = torch.einsum("bkc,chd->bhkd", c_kv, w_uk)
        v = torch.einsum("bkc,chd->bhkd", c_kv, w_uv)
        scores = torch.einsum("bhqd,bhkd->bhqk", q, k) * (D ** -0.5)
        off = Sk - Sq
        qi = torch.arange(Sq)[:, None]
        kj = torch.arange(Sk)[None, :]
        cmask = kj <= (qi + off)
        scores = torch.where(cmask[None, None], scores, -1e9)
        p = _softmax(scores, axis=-1)
        ctx = torch.einsum("bhqk,bhkd->bhqd", p, v)
        return torch.einsum("bhqd,hdm->bqm", ctx, w_o)

    def _B_ref(x, w1, w2):
        h = torch.einsum("bsd,df->bsf", x, w1)
        h = _silu(h)
        out = torch.einsum("bsf,fd->bsd", h, w2)
        return out

    x = A_x
    xn = _layernorm(x, axis=-1)
    return x + _A_ref(xn, A_c_kv, A_w_q, A_w_uk, A_w_uv, A_w_o) + _B_ref(xn, B_w1, B_w2)
```

```python
import sys, struct

KNAME = "parallel_sum__compressed_kv_cla__dense_activation_silu__decode_kernel"

QP, CP, QA, ST, OP, PO, TS = 0x10000, 0x30000, 0x50000, 0x60000, 0x80000, 0x100000, 0x300000
WS_REC = 0x400000
OOB = 0x40000000
L_WQ, L_WUV, L_WO, L_W1, L_W2, L_XN, L_LAT, L_H = 0, 0x8000, 0x10000, 0x18000, 0x1C000, 0x20000, 0x20900, 0x20E00
XNP = 1056
L_QA, L_P, L_MX = 0x20000, 0x24000, 0x25200
LDS_BYTES = 0x25400
SPIN = 20000

def f2u(x): return struct.unpack("<I", struct.pack("<f", x))[0]
KSCALE = f2u(128 ** -0.5 * 1.4426950408889634)

class G:
    def __init__(self, debug=False):
        self.L = []; self.debug = debug; self.nv = 0; self.names = {}; self.nstamp = 0; self.lq = []; self.maxv = 0
    def __call__(self, s):
        for ln in s.strip().split("\n"):
            self.L.append("    " + ln.strip())
    def label(self, s): self.L.append(s + ":")
    def c(self, s): self.L.append("    ; " + s)
    def reset_v(self, start): self.nv = start
    def v(self, n=1, al=None):
        if al is None: al = 1 if n == 1 else 2
        self.nv = (self.nv + al - 1) // al * al
        r = self.nv; self.nv += n; self.maxv = max(self.maxv, self.nv)
        assert self.nv <= 255, "out of VGPRs"
        return r
    def stamp(self, i):
        if self.debug:
            assert i < 15
            self(f"s_memrealtime s[{72+2*i}:{73+2*i}]")
    def lds(self, s, tag=None):
        if len(self.lq) >= 15:
            self.lwait(self.lq[len(self.lq) - 15])
        self(s); self.lq.append(tag if tag is not None else object())
    def lwait(self, tag):
        if tag not in self.lq: return
        k = max(i for i, t in enumerate(self.lq) if t == tag)
        n = len(self.lq) - 1 - k
        self(f"s_waitcnt lgkmcnt({n})")
        self.lq = self.lq[k + 1:]
    def lwait0(self):
        self("s_waitcnt lgkmcnt(0)"); self.lq = []

def vr(a, n): return f"v[{a}:{a+n-1}]" if n > 1 else f"v{a}"
def ar(a, n): return f"a[{a}:{a+n-1}]"

sW, sS, sX, sH, sQT = "s3", "s4", "s5", "s6", "s7"
WS, X, WQ, WUK, WUV, WO, W1, W2, DBG, CKV, OUT = ("s[8:11]", "s[12:15]", "s[16:19]", "s[20:23]", "s[24:27]", "s[28:31]",
                                                  "s[32:35]", "s[36:39]", "s[44:47]", "s[48:51]", "s[52:55]")
sT, sE = "s42", "s43"
sHG, sSP = "s6", "s7"
DPPF = "row_mask:0xf bank_mask:0xf"

def reduce32(g, op, s, t):
    for k in (8, 4, 2, 1):
        g(f"v_{op}_f32_dpp v{s}, v{s}, v{s} row_ror:{k} {DPPF}")
        g("s_nop 1")
    g(f"v_mov_b32 v{t}, v{s}")
    g("s_nop 1")
    g(f"v_permlane16_swap_b32 v{t}, v{s}")
    g("s_nop 0")
    g(f"v_{op}_f32 v{s}, v{s}, v{t}")

def flag_wait(g, name, off, cnt, vt):
    g(f"s_load_dwordx16 s[56:71], s[44:45], {off}")
    g.lwait0()
    for k in range(58, 72, 2):
        g(f"s_and_b64 s[56:57], s[56:57], s[{k}:{k+1}]")
    g("s_and_b32 s56, s56, s57")
    g("s_cmp_eq_u32 s56, 0x01010101")
    g(f"s_cbranch_scc1 {name}_x")
    g(f"v_and_b32 v{vt}, 15, v1"); g(f"v_lshlrev_b32 v{vt}, 2, v{vt}")
    g(f"s_mov_b32 {cnt}, 0"); g(f"s_mov_b32 s57, {off}")
    g.label(name)
    g(f"buffer_load_dword v{vt+1}, v{vt}, {DBG}, s57 offen sc1")
    g(f"s_add_u32 {cnt}, {cnt}, 1")
    g(f"s_cmp_gt_u32 {cnt}, {SPIN}")
    g(f"s_cbranch_scc1 {name}_y")
    g("s_waitcnt vmcnt(0)")
    g(f"v_cmp_ne_u32 vcc, 0x01010101, v{vt+1}")
    g(f"s_cbranch_vccnz {name}")
    g.label(name + "_y")
    g("s_waitcnt vmcnt(0)")
    g.label(name + "_x")

def dump_stamps(g):
    if not g.debug: return
    g.lwait0()
    g(f"s_lshl_b32 s56, s2, 2"); g(f"s_add_u32 s56, s56, {sW}"); g("s_lshl_b32 s56, s56, 6"); g(f"s_add_u32 s56, s56, {TS}")
    g("s_mov_b64 exec, -1")
    g("v_mov_b32 v2, 0")
    for i in range(15): g(f"v_writelane_b32 v2, s{72+2*i}, {i}")
    g("s_getreg_b32 s57, hwreg(HW_REG_XCC_ID)")
    g("v_writelane_b32 v2, s57, 15")
    g("v_lshlrev_b32 v3, 2, v1")
    g("s_mov_b64 exec, 0xffff")
    g(f"buffer_store_dword v2, v3, {WS}, s56 offen")

def build(debug=False):
    g = G(debug)
    if debug:
        for i in range(15): g(f"s_mov_b64 s[{72+2*i}:{73+2*i}], 0")
    g.stamp(0)
    g("""
    s_load_dwordx2 s[12:13], s[0:1], 0
    s_load_dwordx2 s[16:17], s[0:1], 16
    s_load_dwordx2 s[8:9], s[0:1], 88
    s_load_dwordx2 s[48:49], s[0:1], 8
    s_load_dwordx2 s[20:21], s[0:1], 24
    s_load_dwordx2 s[44:45], s[0:1], 80
    s_load_dwordx2 s[24:25], s[0:1], 32
    s_load_dwordx2 s[28:29], s[0:1], 40
    s_load_dwordx2 s[32:33], s[0:1], 56
    s_load_dwordx2 s[36:37], s[0:1], 64
    s_load_dwordx2 s[52:53], s[0:1], 72
    s_cmp_ge_u32 s2, 256
    s_cbranch_scc1 L_end
    v_lshrrev_b32 v2, 6, v0
    v_and_b32 v1, 63, v0
    s_lshr_b32 s4, s2, 3
    v_readfirstlane_b32 s3, v2
    s_and_b32 s5, s2, 7
    """)
    g("""
    s_getpc_b64 s[40:41]
L_pc:
    v_lshlrev_b32 v2, 7, v1
    s_and_b32 s56, s4, 15
    v_add_u32 v3, 0x2000, v2
    s_or_b32 s56, s56, s3
    v_min_u32 v3, L_end-L_pc, v3
    s_cmp_eq_u32 s56, 0
    s_cselect_b64 exec, -1, 0
    global_load_dword v255, v2, s[40:41]
    global_load_dword v255, v3, s[40:41]
    s_mov_b64 exec, -1
    """)
    for k, sz in ((8, WS_REC), (12, 2048), (16, 4 << 20), (48, 8 << 20)):
        g(f"s_mov_b32 s{k+2}, {sz}"); g(f"s_mov_b32 s{k+3}, 0x20000")
    g("s_cmp_ge_u32 s4, 16")
    g("s_cbranch_scc1 L_A")

    def lanes():
        n, gg, r, c4 = g.v(), g.v(), g.v(), g.v()
        g(f"v_and_b32 v{n}, 15, v1"); g(f"v_lshrrev_b32 v{gg}, 4, v1"); g(f"v_bfe_u32 v{r}, v1, 2, 2"); g(f"v_and_b32 v{c4}, 3, v1")
        return n, gg, r, c4

    g.reset_v(4)
    vx, vq = g.v(), g.v()
    xa = g.v(8, 4); xt = g.v(2)
    g(f"v_lshlrev_b32 v{vx}, 5, v1")
    g(f"v_lshrrev_b32 v{vq}, 2, v1")
    g(f"v_and_b32 v2, 3, v1")
    g(f"v_lshlrev_b32 v{vq}, 13, v{vq}")
    g(f"v_lshl_or_b32 v{vq}, v2, 4, v{vq}")
    g(f"""
    s_lshr_b32 s6, s4, 2
    s_lshl2_add_u32 s6, s5, s6
    s_and_b32 s7, s4, 3
    s_lshl_b32 s57, s3, 3
    s_lshl_b32 s58, s7, 20
    s_lshl_b32 s59, s6, 8
    s_add_u32 s58, s58, s59
    s_lshl_b32 s59, s3, 6
    s_add_u32 s58, s58, s59
    s_lshl_b32 s60, s3, 13
    s_mov_b32 m0, s60
    s_mov_b32 s61, s58
    s_waitcnt lgkmcnt(0)
    """)
    g(f"buffer_load_dwordx4 {vr(xa,4)}, v{vx}, {X}, 0 offen")
    g(f"buffer_load_dwordx4 {vr(xa+4,4)}, v{vx}, {X}, 0 offen offset:16")
    g(f"buffer_load_dwordx2 {vr(xt,2)}, v{vx}, {X}, s57 offen")
    for j in range(8):
        g(f"buffer_load_dwordx4 v{vq}, {WQ}, s61 offen nt lds")
        if j < 7:
            g("s_add_u32 m0, m0, 0x400"); g("s_add_u32 s61, s61, 0x20000")
    g(f"s_load_dword {sE}, s[8:9], 0")
    g.stamp(1)
    for k, sz in ((20, 4 << 20), (24, 4 << 20), (28, 4 << 20), (32, 512 * 1376 * 2), (36, 512 * 1376 * 2), (44, 256)):
        g(f"s_mov_b32 s{k+2}, {sz}"); g(f"s_mov_b32 s{k+3}, 0x20000")
    n, gg, r, c4 = lanes()
    sent = g.v(4, 4)
    vqa, vop = g.v(), g.v()
    for k in range(4): g(f"v_mov_b32 v{sent+k}, -1")
    g(f"v_bfe_u32 v{vqa}, v1, 2, 1"); g(f"v_lshlrev_b32 v{vqa}, 15, v{vqa}"); g(f"v_lshl_or_b32 v{vqa}, v{gg}, 4, v{vqa}")
    g(f"""
    s_lshr_b32 s62, s6, 4
    s_lshl_b32 s62, s62, 14
    s_lshl2_add_u32 s63, s7, s3
    s_lshl_b32 s63, s63, 10
    s_add_u32 s62, s62, s63
    s_and_b32 s63, s6, 15
    s_lshl_b32 s63, s63, 6
    s_add_u32 s62, s62, s63
    s_add_u32 s62, s62, {QA}
    """)
    g(f"v_lshrrev_b32 v{vop}, 1, v1"); g(f"v_lshlrev_b32 v{vop}, 12, v{vop}"); g(f"v_and_b32 v2, 1, v1"); g(f"v_lshl_or_b32 v{vop}, v2, 4, v{vop}")
    g(f"""
    s_lshl4_add_u32 s64, s5, s4
    s_lshl_b32 s64, s64, 5
    s_lshl_b32 s63, s3, 17
    s_add_u32 s64, s64, s63
    s_add_u32 s64, s64, {OP}
    """)
    g("s_mov_b32 exec_lo, 0x00110011"); g("s_mov_b32 exec_hi, 0x00110011")
    g(f"buffer_store_dwordx4 {vr(sent,4)}, v{vqa}, {WS}, s62 offen sc1")
    g("s_mov_b64 exec, -1")
    g(f"buffer_store_dwordx4 {vr(sent,4)}, v{vop}, {WS}, s64 offen sc1")
    sQAo, sOPo, sQoff = "s40", "s41", "s0"
    g(f"s_mov_b32 {sQAo}, s62"); g(f"s_mov_b32 {sOPo}, s64"); g(f"s_mov_b32 {sQoff}, s58")
    vxw, vxf, vtr, vk, vqps, vqpl = g.v(), g.v(), g.v(), g.v(), g.v(), g.v()
    g(f"v_lshrrev_b32 v2, 5, v1"); g(f"v_add_lshl_u32 v{vxw}, v1, v2, 5"); g(f"s_add_u32 s63, s57, {L_XN}"); g(f"v_add_u32 v{vxw}, s63, v{vxw}")
    vxf0 = g.v()
    g(f"v_and_b32 v2, 1, v1"); g(f"v_mul_u32_u24 v{vxf0}, {XNP}, v2"); g(f"v_lshl_add_u32 v{vxf0}, v{gg}, 4, v{vxf0}")
    g(f"s_lshl_b32 s63, s7, 8"); g(f"s_add_u32 s63, s63, {L_XN}"); g(f"v_add_u32 v{vxf}, s63, v{vxf0}")
    g(f"v_lshl_add_u32 v{vtr}, v{gg}, 3, v{r}"); g(f"v_lshlrev_b32 v{vtr}, 6, v{vtr}"); g(f"v_lshl_add_u32 v{vtr}, v{c4}, 4, v{vtr}"); g(f"v_add_u32 v{vtr}, s60, v{vtr}")
    g(f"v_lshl_add_u32 v{vk}, v{r}, 3, v{c4}"); g(f"v_lshlrev_b32 v{vk}, 13, v{vk}"); g(f"v_lshl_add_u32 v{vk}, v{gg}, 4, v{vk}")
    g(f"""
    s_lshl2_add_u32 s65, s7, s3
    s_lshl_b32 s65, s65, 18
    s_lshl_b32 s63, s6, 8
    s_add_u32 s65, s65, s63
    s_add_u32 s66, s65, 0x8000
    """)
    g(f"v_lshlrev_b32 v{vqps}, 9, v{n}"); g(f"v_lshl_add_u32 v{vqps}, v{gg}, 5, v{vqps}")
    g(f"v_bfe_u32 v2, v1, 2, 1"); g(f"v_lshl_add_u32 v{vqpl}, v{c4}, 1, v2"); g(f"v_lshlrev_b32 v{vqpl}, 9, v{vqpl}"); g(f"v_lshl_add_u32 v{vqpl}, v{gg}, 5, v{vqpl}")
    g(f"""
    s_lshl_b32 s68, s6, 12
    s_add_u32 s68, s68, {QP}
    s_lshl_b32 s63, s7, 10
    s_add_u32 s67, s68, s63
    s_lshl_b32 s63, s3, 7
    s_add_u32 s67, s67, s63
    """)
    f = g.v(16, 2); m = g.v(2); t = g.v(); tf = g.v(4, 2)
    g("s_waitcnt vmcnt(10)")
    g.stamp(2)
    for k in range(8):
        g(f"v_lshlrev_b32 v{f+2*k}, 16, v{xa+k}"); g(f"v_and_b32 v{f+2*k+1}, 0xffff0000, v{xa+k}")
    s2 = g.v(8, 2)
    for k in range(4): g(f"v_pk_add_f32 {vr(s2+2*k,2)}, {vr(f+4*k,2)}, {vr(f+4*k+2,2)}")
    g(f"v_pk_add_f32 {vr(s2,2)}, {vr(s2,2)}, {vr(s2+2,2)}"); g(f"v_pk_add_f32 {vr(s2+4,2)}, {vr(s2+4,2)}, {vr(s2+6,2)}")
    g(f"v_pk_add_f32 {vr(s2,2)}, {vr(s2,2)}, {vr(s2+4,2)}")
    g(f"v_add_f32 v{m}, v{s2}, v{s2+1}")
    g(f"v_lshlrev_b32 v{tf}, 16, v{xt}"); g(f"v_and_b32 v{tf+1}, 0xffff0000, v{xt}")
    reduce32(g, "add", m, t)
    g(f"v_mul_f32 v{m}, {f2u(1/512):#x}, v{m}")
    for k in range(8): g(f"v_pk_add_f32 {vr(f+2*k,2)}, {vr(f+2*k,2)}, {vr(m,2)} op_sel_hi:[1,0] neg_lo:[0,1] neg_hi:[0,1]")
    g(f"v_pk_mul_f32 {vr(s2,2)}, {vr(f,2)}, {vr(f,2)}"); g(f"v_pk_mul_f32 {vr(s2+2,2)}, {vr(f+2,2)}, {vr(f+2,2)}")
    for k in range(2, 8): g(f"v_pk_fma_f32 {vr(s2+2*(k&1),2)}, {vr(f+2*k,2)}, {vr(f+2*k,2)}, {vr(s2+2*(k&1),2)}")
    g(f"v_pk_add_f32 {vr(s2,2)}, {vr(s2,2)}, {vr(s2+2,2)}")
    va = s2 + 4
    g(f"v_add_f32 v{va}, v{s2}, v{s2+1}")
    g(f"v_lshlrev_b32 v{tf+2}, 16, v{xt+1}"); g(f"v_and_b32 v{tf+3}, 0xffff0000, v{xt+1}")
    reduce32(g, "add", va, t)
    g(f"v_mul_f32 v{va}, {f2u(1/512):#x}, v{va}")
    g(f"v_cvt_pk_bf16_f32 v{t}, v{m}, v{va}")
    g(f"v_and_b32 v{va}, 0xffff0000, v{t}"); g(f"v_lshlrev_b32 v{m}, 16, v{t}")
    g(f"v_add_f32 v{va}, {f2u(1e-5):#x}, v{va}")
    g(f"v_pk_add_f32 {vr(tf,2)}, {vr(tf,2)}, {vr(m,2)} op_sel_hi:[1,0] neg_lo:[0,1] neg_hi:[0,1]")
    g(f"v_cvt_pk_bf16_f32 v{va}, v{va}, v{va}")
    g(f"v_pk_add_f32 {vr(tf+2,2)}, {vr(tf+2,2)}, {vr(m,2)} op_sel_hi:[1,0] neg_lo:[0,1] neg_hi:[0,1]")
    g(f"v_and_b32 v{va}, 0xffff0000, v{va}")
    g(f"v_sqrt_f32 v{va}, v{va}")
    g(f"v_cvt_pk_bf16_f32 v{s2}, v{tf}, v{tf+1}"); g(f"v_cvt_pk_bf16_f32 v{s2+1}, v{tf+2}, v{tf+3}")
    g(f"v_cvt_pk_bf16_f32 v{va}, v{va}, v{va}")
    g(f"v_lshlrev_b32 v{tf}, 16, v{s2}"); g(f"v_and_b32 v{tf+1}, 0xffff0000, v{s2}")
    g(f"v_and_b32 v{m}, 0xffff0000, v{va}")
    g(f"v_rcp_f32 v{m}, v{m}")
    g(f"v_lshlrev_b32 v{tf+2}, 16, v{s2+1}"); g(f"v_and_b32 v{tf+3}, 0xffff0000, v{s2+1}")
    g(f"v_pk_mul_f32 {vr(tf,2)}, {vr(tf,2)}, {vr(m,2)} op_sel_hi:[1,0]"); g(f"v_pk_mul_f32 {vr(tf+2,2)}, {vr(tf+2,2)}, {vr(m,2)} op_sel_hi:[1,0]")
    g(f"v_cvt_pk_bf16_f32 v{s2}, v{tf}, v{tf+1}"); g(f"v_cvt_pk_bf16_f32 v{s2+1}, v{tf+2}, v{tf+3}")
    g(f"ds_write_b64 v{vxw}, {vr(s2,2)}")
    g.lwait0()
    g("s_barrier")
    g.stamp(3)
    g(f"s_mul_i32 {sT}, {sE}, 0x9E3779B1"); g(f"s_add_u32 {sT}, {sT}, 0x7F4A7C15")
    xb = g.v(16, 4); wk = g.v(32, 4); ta = g.v(16, 4); Da = g.v(4, 4); Db = g.v(4, 4)
    Ga = g.v(4, 4); Gb = g.v(4, 4)
    for u in range(4): g.lds(f"ds_read_b128 {vr(xb+4*u,4)}, v{vxf} offset:{u*64}", ("xb", u))
    g(f"v_mov_b32 v{Ga+1}, {sT}"); g(f"v_mov_b32 v{Gb+2}, {sT}")
    for u in range(4):
        g("s_waitcnt vmcnt(8)")
        tt = ta + 8 * (u & 1)
        for T in range(2):
            for hf in range(2):
                g.lds(f"ds_read_b64_tr_b16 {vr(tt+4*T+2*hf,2)}, v{vtr} offset:{L_WQ + u*2048 + hf*256 + T*8}", ("tr", u, T))
        for T in range(2):
            g(f"buffer_load_dwordx4 {vr(wk+16*T+4*u,4)}, v{vk}, {WUK}, s{65+T} offen offset:{u*64} nt")
        g.lwait(("tr", u, 0))
        g(f"v_mfma_f32_16x16x32_bf16 {vr(Da,4)}, {vr(tt,4)}, {vr(xb+4*u,4)}, {vr(Da,4) if u else 0}")
        g.lwait(("tr", u, 1))
        g(f"v_mfma_f32_16x16x32_bf16 {vr(Db,4)}, {vr(tt+4,4)}, {vr(xb+4*u,4)}, {vr(Db,4) if u else 0}")
    g("s_mov_b32 exec_lo, 0x00030003"); g("s_mov_b32 exec_hi, 0x00030003")
    g("s_nop 4")
    g(f"v_cvt_pk_bf16_f32 v{Ga+2}, v{Da}, v{Da+1}"); g(f"v_cvt_pk_bf16_f32 v{Ga+3}, v{Da+2}, v{Da+3}")
    g(f"v_cvt_pk_bf16_f32 v{Gb}, v{Db}, v{Db+1}"); g(f"v_cvt_pk_bf16_f32 v{Gb+1}, v{Db+2}, v{Db+3}")
    g(f"buffer_store_dwordx4 {vr(Ga,4)}, v{vqps}, {WS}, s67 offen sc1")
    g(f"buffer_store_dwordx4 {vr(Gb,4)}, v{vqps}, {WS}, s67 offen offset:16 sc1")
    g.stamp(4)
    g("s_waitcnt vmcnt(10)")
    g("s_barrier")
    g("s_mov_b64 exec, -1")
    g("v_mov_b32 v2, 1"); g("v_mov_b32 v3, 0")
    g(f"s_lshl2_add_u32 s63, s6, s7")
    g(f"s_cmp_eq_u32 {sW}, 0"); g("s_cselect_b64 exec, 1, 0")
    g(f"buffer_store_byte v2, v3, {DBG}, s63 offen sc0 sc1")
    g("s_mov_b64 exec, -1")
    qf = g.v(32, 4); chk = g.v()
    g("s_mov_b32 s63, 0")
    g.label("L_Wa")
    for u in range(4):
        g(f"buffer_load_dwordx4 {vr(qf+8*u,4)}, v{vqpl}, {WS}, s68 offen offset:{u*128} sc1")
        g(f"buffer_load_dwordx4 {vr(qf+8*u+4,4)}, v{vqpl}, {WS}, s68 offen offset:{u*128+16} sc1")
    g("s_add_u32 s63, s63, 1"); g(f"s_cmp_gt_u32 s63, {SPIN}"); g("s_cbranch_scc1 L_Wa_x")
    g("s_waitcnt vmcnt(0)")
    for u in range(4):
        g(f"v_sad_u32 v{chk}, v{qf+8*u+1}, {sT}, {('v%d' % chk) if u else 0}")
        g(f"v_sad_u32 v{chk}, v{qf+8*u+6}, {sT}, v{chk}")
    g(f"v_cmp_ne_u32 vcc, 0, v{chk}")
    g("s_cbranch_vccnz L_Wa")
    g.label("L_Wa_x")
    g("s_waitcnt vmcnt(0)")
    g.stamp(5)
    for u in range(4):
        g(f"v_mfma_f32_16x16x32_bf16 {vr(Da,4)}, {vr(wk+4*u,4)}, {vr(qf+8*u+2,4)}, {vr(Da,4) if u else 0}")
        g(f"v_mfma_f32_16x16x32_bf16 {vr(Db,4)}, {vr(wk+16+4*u,4)}, {vr(qf+8*u+2,4)}, {vr(Db,4) if u else 0}")
    g("s_nop 6")
    for k in range(8): g(f"v_add_f32_dpp v{Da+k}, v{Da+k}, v{Da+k} quad_perm:[1,0,3,2] {DPPF}")
    assert Db == Da + 4
    for k in range(8): g(f"v_add_f32_dpp v{Da+k}, v{Da+k}, v{Da+k} quad_perm:[2,3,0,1] {DPPF}")
    qo = g.v(4, 4)
    for k in range(4): g(f"v_cvt_pk_bf16_f32 v{qo+k}, v{Da+2*k}, v{Da+2*k+1}")
    g("s_mov_b32 exec_lo, 0x00110011"); g("s_mov_b32 exec_hi, 0x00110011")
    g(f"buffer_store_dwordx4 {vr(qo,4)}, v{vqa}, {WS}, {sQAo} offen sc1")
    g("s_mov_b64 exec, -1")
    g.stamp(6)
    vA, vB = g.v(), g.v()
    g(f"v_lshlrev_b32 v2, 1, v{gg}"); g(f"v_xor_b32 v2, v2, v{n}"); g(f"v_lshlrev_b32 v2, 4, v2"); g(f"v_lshl_add_u32 v{vA}, v{gg}, 10, v2"); g(f"v_xor_b32 v{vB}, 0x80, v{vA}")
    acc = g.v(16, 4)
    sFS = "s1"
    g(f"s_mul_i32 {sFS}, s5, 11"); g(f"s_add_u32 {sFS}, {sFS}, s4")
    g("s_cmp_lt_u32 s4, 11"); g(f"s_cselect_b32 {sFS}, {sFS}, 100")
    g(f"s_lshl_b32 s60, {sW}, 13"); g(f"s_lshl_b32 s59, {sW}, 12"); g(f"s_lshl_b32 s58, {sW}, 8")
    g(f"s_cmp_ge_u32 {sFS}, 86"); g("s_cbranch_scc1 L_Wnf1")
    v1o = g.v()
    g(f"v_lshrrev_b32 v2, 1, v1"); g(f"v_mul_u32_u24 v{v1o}, 2752, v2"); g(f"v_and_b32 v2, 1, v1"); g(f"v_lshl_add_u32 v{v1o}, v2, 4, v{v1o}")
    g(f"s_mul_i32 s61, {sW}, {128*2752}"); g(f"s_lshl_b32 s62, {sFS}, 5"); g("s_add_u32 s61, s61, s62")
    g(f"s_add_u32 m0, s59, {L_W1}")
    for j in range(4):
        if j: g("s_add_u32 m0, m0, 0x400")
        if j: g(f"s_add_u32 s61, s61, {32*2752}")
        else: g("s_nop 0")
        g(f"buffer_load_dwordx4 v{v1o}, {W1}, s61 offen nt lds")
    g(f"s_lshl_b32 s61, {sFS}, 14"); g("s_add_u32 s61, s61, s58")
    g(f"s_add_u32 m0, s59, {L_W2}")
    for j in range(4):
        if j: g("s_add_u32 m0, m0, 0x400")
        if j: g("s_add_u32 s61, s61, 0x1000")
        else: g("s_nop 0")
        g(f"buffer_load_dwordx4 v{vB if j & 1 else vA}, {W2}, s61 offen nt lds")
    g.label("L_Wnf1")
    g(f"s_add_u32 m0, s60, {L_WUV}"); g(f"s_mov_b32 s61, {sQoff}")
    for j in range(8):
        if j: g("s_add_u32 m0, m0, 0x400"); g("s_add_u32 s61, s61, 0x20000")
        g(f"buffer_load_dwordx4 v{vq}, {WUV}, s61 offen nt lds")
    hf_ = g.v(4, 4); hlo = g.v(2); hhi = g.v(2); vt1 = g.v(); vh = g.v()
    g(f"s_cmp_ge_u32 {sFS}, 86"); g("s_cbranch_scc1 L_Wnf2")
    g(f"v_lshl_add_u32 v{vt1}, v{gg}, 3, v{r}"); g(f"v_lshlrev_b32 v{vt1}, 5, v{vt1}"); g(f"v_lshl_add_u32 v{vt1}, v{c4}, 3, v{vt1}")
    g(f"s_add_u32 s62, s59, {L_W1}"); g(f"v_add_u32 v{vt1}, s62, v{vt1}")
    g(f"s_add_u32 s62, s58, {L_XN}"); g(f"v_add_u32 v{vxf}, s62, v{vxf0}")
    for u in range(4): g.lds(f"ds_read_b128 {vr(xb+4*u,4)}, v{vxf} offset:{u*64}")
    g("s_waitcnt vmcnt(12)")
    for u in range(4):
        for hf in range(2): g.lds(f"ds_read_b64_tr_b16 {vr(ta+4*u+2*hf,2)}, v{vt1} offset:{u*1024+hf*128}")
    g(f"v_and_b32 v2, 1, v1"); g(f"v_lshlrev_b32 v2, 4, v2"); g(f"v_lshl_add_u32 v{vh}, v{gg}, 5, v2"); g(f"v_add_u32 v{vh}, {L_H}, v{vh}")
    g(f"s_lshl_b32 s62, {sW}, 7"); g(f"v_add_u32 v2, s62, v{vh}")
    g.lwait0()
    for u in range(4): g(f"v_mfma_f32_16x16x32_bf16 {vr(hf_,4)}, {vr(ta+4*u,4)}, {vr(xb+4*u,4)}, {vr(hf_,4) if u else 0}")
    g("s_nop 7")
    g(f"ds_write_b128 v2, {vr(hf_,4)}")
    g.lwait0()
    g("s_barrier")
    g.label("L_Wnf2")
    g(f"s_lshl_b32 s61, s6, 2"); g("s_add_u32 s61, s61, s7"); g("s_lshl_b32 s61, s61, 15"); g("s_add_u32 s61, s61, s58")
    g(f"s_add_u32 m0, s60, {L_WO}")
    for j in range(8):
        if j: g("s_add_u32 m0, m0, 0x400")
        if j: g("s_add_u32 s61, s61, 0x1000")
        else: g("s_nop 0")
        g(f"buffer_load_dwordx4 v{vB if (j >> 1) & 1 else vA}, {WO}, s61 offen nt lds")
    vwo = f; vf = g.v()
    g(f"v_and_b32 v2, 1, v{gg}"); g(f"v_lshl_or_b32 v2, v2, 2, v{r}"); g(f"v_lshlrev_b32 v2, 5, v2"); g(f"v_lshl_or_b32 v{vf}, v{c4}, 3, v2")
    for k in range(16): g(f"v_mov_b32 v{acc+k}, 0")
    g(f"s_cmp_ge_u32 {sFS}, 86"); g("s_cbranch_scc1 L_Wnf3")
    hp = ta
    for k in range(4): g.lds(f"ds_read_b128 {vr(hp+4*k,4)}, v{vh} offset:{k*128}")
    g(f"v_lshl_add_u32 v2, v{gg}, 2, v{r}"); g(f"v_lshlrev_b32 v2, 8, v2"); g(f"s_add_u32 s62, s59, {L_W2}"); g(f"v_add_u32 v2, s62, v2")
    for tl in range(8):
        g(f"v_xor_b32 v{vwo+tl}, {tl*32}, v{vf}"); g(f"v_add_u32 v{vwo+tl}, v{vwo+tl}, v2")
    g.lwait0()
    for k in range(2):
        g(f"v_pk_add_f32 {vr(hp+2*k,2)}, {vr(hp+2*k,2)}, {vr(hp+4+2*k,2)}"); g(f"v_pk_add_f32 {vr(hp+8+2*k,2)}, {vr(hp+8+2*k,2)}, {vr(hp+12+2*k,2)}")
    for k in range(2): g(f"v_pk_add_f32 {vr(hp+2*k,2)}, {vr(hp+2*k,2)}, {vr(hp+8+2*k,2)}")
    g(f"v_cvt_pk_bf16_f32 v{hp+4}, v{hp}, v{hp+1}"); g(f"v_cvt_pk_bf16_f32 v{hp+5}, v{hp+2}, v{hp+3}")
    g(f"v_lshlrev_b32 v{hp}, 16, v{hp+4}"); g(f"v_and_b32 v{hp+1}, 0xffff0000, v{hp+4}")
    g(f"v_lshlrev_b32 v{hp+2}, 16, v{hp+5}"); g(f"v_and_b32 v{hp+3}, 0xffff0000, v{hp+5}")
    for k in range(4): g(f"v_mul_f32 v{hp+8+k}, {f2u(-1.4426950408889634):#x}, v{hp+k}")
    for k in range(4): g(f"v_exp_f32 v{hp+8+k}, v{hp+8+k}")
    g("s_nop 0")
    for k in range(4): g(f"v_add_f32 v{hp+8+k}, 1.0, v{hp+8+k}")
    for k in range(4): g(f"v_rcp_f32 v{hp+8+k}, v{hp+8+k}")
    g("s_nop 0")
    for k in range(4): g(f"v_mul_f32 v{hp+k}, v{hp+k}, v{hp+8+k}")
    g(f"v_cvt_pk_bf16_f32 v{hp+4}, v{hp}, v{hp+1}"); g(f"v_cvt_pk_bf16_f32 v{hp+5}, v{hp+2}, v{hp+3}")
    g("s_mov_b32 s62, 0x00030003"); g("s_mov_b32 s63, s62"); g("s_lshl_b64 s[64:65], s[62:63], 8")
    for k in range(2):
        g(f"v_cndmask_b32 v{hlo+k}, 0, v{hp+4+k}, s[62:63]"); g(f"v_cndmask_b32 v{hhi+k}, 0, v{hp+4+k}, s[64:65]")
    w2f = qf
    g("s_waitcnt vmcnt(16)")
    for tl in range(8): g.lds(f"ds_read_b64_tr_b16 {vr(w2f+2*tl,2)}, v{vwo+tl}")
    g.lwait0()
    TLO = (0, 1, 4, 5); THI = (2, 3, 6, 7)
    for k in range(4): g(f"v_mfma_f32_16x16x16_bf16 {vr(acc+4*k,4)}, {vr(hlo,2)}, {vr(w2f+2*TLO[k],2)}, {vr(acc+4*k,4)}")
    for k in range(4): g(f"v_mfma_f32_16x16x16_bf16 {vr(acc+4*k,4)}, {vr(hhi,2)}, {vr(w2f+2*THI[k],2)}, {vr(acc+4*k,4)}")
    g.label("L_Wnf3")
    uv = wk; wo = 0
    g(f"v_lshl_add_u32 v2, v{gg}, 3, v{r}"); g(f"v_lshlrev_b32 v2, 8, v2"); g(f"s_add_u32 s62, s60, {L_WO}"); g(f"v_add_u32 v2, s62, v2")
    for tl in range(8):
        g(f"v_xor_b32 v{vwo+tl}, {tl*32}, v{vf}"); g(f"v_add_u32 v{vwo+tl}, v{vwo+tl}, v2")
    l16, vlw, vlr, vcs, vclo, vchi, vbp = g.v(), g.v(), g.v(), g.v(), g.v(), g.v(), g.v()
    mk = f + 8
    g(f"v_lshlrev_b32 v{l16}, 4, v1")
    g(f"v_lshlrev_b32 v{vlw}, 6, v{r}"); g(f"v_lshl_add_u32 v{vlw}, v{gg}, 5, v{vlw}"); g(f"v_lshl_add_u32 v{vlw}, v{c4}, 3, v{vlw}")
    g(f"s_mul_i32 s62, {sW}, 288"); g(f"s_add_u32 s62, s62, {L_LAT}"); g(f"v_add_u32 v{vlw}, s62, v{vlw}")
    g(f"v_mul_u32_u24 v{vlr}, 288, v{c4}"); g(f"v_lshl_add_u32 v{vlr}, v{gg}, 4, v{vlr}"); g(f"v_add_u32 v{vlr}, {L_LAT}, v{vlr}")
    g(f"v_bfe_u32 v{vcs}, v1, 1, 1"); g(f"v_lshlrev_b32 v{vcs}, 9, v{vcs}"); g(f"v_lshl_add_u32 v{vcs}, v{gg}, 5, v{vcs}")
    g(f"v_and_b32 v2, 7, v1"); g(f"v_lshlrev_b32 v2, 9, v2"); g(f"v_lshl_add_u32 v2, v{gg}, 5, v2"); g(f"v_mov_b32 v3, {OOB}")
    g("s_mov_b32 s62, 0x00ff00ff"); g("s_mov_b32 s63, s62")
    g(f"v_cndmask_b32 v{vclo}, v3, v2, s[62:63]"); g(f"v_cndmask_b32 v{vchi}, v2, v3, s[62:63]")
    g(f"s_lshl_b32 s62, {sW}, 6"); g(f"v_lshlrev_b32 v{vbp}, 2, v{gg}"); g(f"v_add_u32 v{vbp}, s62, v{vbp}")
    g(f"v_and_b32 v2, 1, v1"); g(f"v_lshlrev_b32 v2, 4, v2"); g(f"v_mov_b32 v3, 0xffff"); g(f"v_lshlrev_b32 v3, v2, v3"); g(f"v_bfe_u32 v2, v1, 1, 2")
    for k in range(4):
        g(f"v_cmp_eq_u32 vcc, {k}, v2"); g("s_nop 1"); g(f"v_cndmask_b32 v{mk+k}, 0, v3, vcc")
    g("s_waitcnt vmcnt(8)")
    for u in range(4):
        for T in range(2):
            for hf in range(2):
                g.lds(f"ds_read_b64_tr_b16 {vr(uv+16*T+4*u+2*hf,2)}, v{vtr} offset:{L_WUV + u*2048 + hf*256 + T*8}")
    g.stamp(7)
    g("s_waitcnt vmcnt(0)")
    g.stamp(8)
    for tl in range(8):
        for hf in range(2): g.lds(f"ds_read_b64_tr_b16 {ar(wo+4*tl+2*hf,2)}, v{vwo+tl} offset:{hf*1024}")
    sSTo, sPOo, sCPs, sCPl, sCnt, sBl, sRL = "s16", "s17", "s18", "s19", "s20", "s21", "s22"
    g(f"s_lshl_b32 {sSTo}, s6, 10"); g(f"s_add_u32 {sSTo}, {sSTo}, {ST}")
    g(f"s_lshl2_add_u32 {sPOo}, s6, s7"); g(f"s_lshl2_add_u32 {sPOo}, {sPOo}, {sW}"); g(f"s_lshl_b32 {sPOo}, {sPOo}, 12"); g(f"s_add_u32 {sPOo}, {sPOo}, {PO}")
    g(f"s_lshl_b32 s62, s6, 12"); g(f"s_add_u32 s62, s62, {CP}")
    g(f"s_lshl_b32 s63, s7, 7"); g(f"s_add_u32 {sCPl}, s62, s63")
    g(f"s_lshl_b32 s63, s7, 10"); g(f"s_add_u32 {sCPs}, s62, s63"); g(f"s_lshl_b32 s63, {sW}, 7"); g(f"s_add_u32 {sCPs}, {sCPs}, s63")
    g(f"s_lshr_b32 {sBl}, {sW}, 1"); g(f"s_lshl_b32 {sBl}, {sBl}, 5")
    g(f"s_lshr_b32 s23, s6, 4"); g("s_lshl_b32 s23, s23, 6"); g("s_add_u32 s23, s23, 128")
    flag_wait(g, "L_Wf", "s23", sCnt, 2)
    stt = xa; pf = qf; af = ta; wd = xa + 4; mx = xa + 5; wb = f + 12
    g(f"s_mov_b32 {sCnt}, 0")
    g.label("L_Ws")
    g(f"buffer_load_dwordx4 {vr(stt,4)}, v{l16}, {WS}, {sSTo} offen sc1")
    g(f"s_add_u32 {sCnt}, {sCnt}, 1"); g(f"s_cmp_gt_u32 {sCnt}, {SPIN}"); g("s_cbranch_scc1 L_Ws_x")
    g("s_waitcnt vmcnt(0)")
    g(f"v_cmp_ne_u32 vcc, {sT}, v{stt+2}")
    g("s_cbranch_vccnz L_Ws")
    g.label("L_Ws_x")
    g("s_waitcnt vmcnt(0)")
    g.stamp(9)
    for u in range(4): g(f"buffer_load_dwordx4 {vr(pf+4*u,4)}, v{l16}, {WS}, {sPOo} offen offset:{u*1024} sc1")
    g(f"v_mov_b32 v{mx}, v{stt}"); g("s_nop 1")
    reduce32(g, "max", mx, t)
    g(f"v_sub_f32 v{mx}, v{stt}, v{mx}")
    g(f"v_exp_f32 v{mx}, v{mx}")
    g("s_nop 0")
    g(f"v_cvt_pk_bf16_f32 v{wd}, v{mx}, v{mx}")
    for u in range(4): g.lds(f"ds_bpermute_b32 v{wb+u}, v{vbp}, v{wd} offset:{16*u}")
    g(f"v_and_b32 v{mx}, 0xffff0000, v{wd}")
    g(f"v_mul_f32 v{mx}, v{mx}, v{stt+1}"); g("s_nop 1")
    reduce32(g, "add", mx, t)
    g(f"v_rcp_f32 v{mx}, v{mx}")
    g.lwait0()
    for u in range(4):
        for k in range(4): g(f"v_and_b32 v{af+4*u+k}, v{wb+u}, v{mk+k}")
    g(f"v_readlane_b32 {sRL}, v{mx}, {sBl}")
    g(f"s_mov_b32 {sCnt}, 0")
    g("s_branch L_Wp_c")
    g.label("L_Wp")
    for u in range(4): g(f"buffer_load_dwordx4 {vr(pf+4*u,4)}, v{l16}, {WS}, {sPOo} offen offset:{u*1024} sc1")
    g.label("L_Wp_c")
    g(f"s_add_u32 {sCnt}, {sCnt}, 1"); g(f"s_cmp_gt_u32 {sCnt}, {SPIN}"); g("s_cbranch_scc1 L_Wp_x")
    g("s_waitcnt vmcnt(0)")
    g(f"v_max3_u32 v{chk}, v{pf+3}, v{pf+7}, v{pf+11}"); g(f"v_max_u32 v{chk}, v{chk}, v{pf+15}")
    g(f"v_cmp_eq_u32 vcc, -1, v{chk}")
    g("s_cbranch_vccnz L_Wp")
    g.label("L_Wp_x")
    g("s_waitcnt vmcnt(0)")
    g.stamp(10)
    for u in range(4): g(f"v_mfma_f32_16x16x32_bf16 {vr(Da,4)}, {vr(af+4*u,4)}, {vr(pf+4*u,4)}, {vr(Da,4) if u else 0}")
    g("s_mov_b32 exec_hi, 0")
    g("s_nop 6")
    for k in range(4): g(f"v_mul_f32 v{Da+k}, {sRL}, v{Da+k}")
    g(f"v_cvt_pk_bf16_f32 v{qo}, v{Da}, v{Da+1}"); g(f"v_cvt_pk_bf16_f32 v{qo+1}, v{Da+2}, v{Da+3}")
    g(f"ds_write_b64 v{vlw}, {vr(qo,2)}")
    g("s_mov_b64 exec, -1")
    g.lwait0()
    g("s_barrier")
    for u in range(4): g.lds(f"ds_read_b128 {vr(xb+4*u,4)}, v{vlr} offset:{u*64}", ("lf", u))
    for u in range(4):
        g.lwait(("lf", u))
        g(f"v_mfma_f32_16x16x32_bf16 {vr(Da,4)}, {vr(uv+4*u,4)}, {vr(xb+4*u,4)}, {vr(Da,4) if u else 0}")
        g(f"v_mfma_f32_16x16x32_bf16 {vr(Db,4)}, {vr(uv+16+4*u,4)}, {vr(xb+4*u,4)}, {vr(Db,4) if u else 0}")
    g("s_nop 6")
    for k in range(8): g(f"v_add_f32_dpp v{Da+k}, v{Da+k}, v{Da+k} quad_perm:[1,0,3,2] {DPPF}")
    g("s_mov_b32 exec_lo, 0x00050005"); g("s_mov_b32 exec_hi, 0x00050005")
    g(f"v_cvt_pk_bf16_f32 v{Ga+2}, v{Da}, v{Da+1}"); g(f"v_cvt_pk_bf16_f32 v{Ga+3}, v{Da+2}, v{Da+3}")
    g(f"v_cvt_pk_bf16_f32 v{Gb}, v{Db}, v{Db+1}"); g(f"v_cvt_pk_bf16_f32 v{Gb+1}, v{Db+2}, v{Db+3}")
    g(f"buffer_store_dwordx4 {vr(Ga,4)}, v{vcs}, {WS}, {sCPs} offen sc1")
    g(f"buffer_store_dwordx4 {vr(Gb,4)}, v{vcs}, {WS}, {sCPs} offen offset:16 sc1")
    g("s_mov_b64 exec, -1")
    g.stamp(11)
    cl, ch = pf, pf + 8
    g(f"s_mov_b32 {sCnt}, 0")
    g.label("L_Wd")
    g(f"buffer_load_dwordx4 {vr(cl,4)}, v{vclo}, {WS}, {sCPl} offen sc1")
    g(f"buffer_load_dwordx4 {vr(cl+4,4)}, v{vclo}, {WS}, {sCPl} offen offset:16 sc1")
    g(f"buffer_load_dwordx4 {vr(ch,4)}, v{vchi}, {WS}, {sCPl} offen sc1")
    g(f"buffer_load_dwordx4 {vr(ch+4,4)}, v{vchi}, {WS}, {sCPl} offen offset:16 sc1")
    g(f"s_add_u32 {sCnt}, {sCnt}, 1"); g(f"s_cmp_gt_u32 {sCnt}, {SPIN}"); g("s_cbranch_scc1 L_Wd_x")
    g("s_waitcnt vmcnt(0)")
    g(f"v_or_b32 v2, v{cl+1}, v{ch+1}"); g(f"v_or_b32 v3, v{cl+6}, v{ch+6}")
    g(f"v_sad_u32 v{chk}, v2, {sT}, 0"); g(f"v_sad_u32 v{chk}, v3, {sT}, v{chk}")
    g(f"v_cmp_ne_u32 vcc, 0, v{chk}")
    g("s_cbranch_vccnz L_Wd")
    g.label("L_Wd_x")
    g("s_waitcnt vmcnt(0)")
    g.stamp(12)
    for k in range(4): g(f"v_mfma_f32_16x16x32_bf16 {vr(acc+4*k,4)}, {vr(cl+2,4)}, {ar(wo+4*TLO[k],4)}, {vr(acc+4*k,4)}")
    for k in range(4): g(f"v_mfma_f32_16x16x32_bf16 {vr(acc+4*k,4)}, {vr(ch+2,4)}, {ar(wo+4*THI[k],4)}, {vr(acc+4*k,4)}")
    g("s_nop 4")
    R = qo; U = Da
    g(f"v_pk_add_f32 {vr(R,2)}, {vr(acc,2)}, {vr(acc+2,2)}")
    g(f"v_pk_add_f32 {vr(U,2)}, {vr(acc+4,2)}, {vr(acc+6,2)}")
    g(f"v_pk_add_f32 {vr(R+2,2)}, {vr(acc+8,2)}, {vr(acc+10,2)}")
    g(f"v_pk_add_f32 {vr(U+2,2)}, {vr(acc+12,2)}, {vr(acc+14,2)}")
    g("s_nop 0")
    for k in range(4): g(f"v_permlane16_swap_b32 v{R+k}, v{U+k}")
    g("s_nop 0")
    g(f"v_pk_add_f32 {vr(R,2)}, {vr(R,2)}, {vr(U,2)}"); g(f"v_pk_add_f32 {vr(R+2,2)}, {vr(R+2,2)}, {vr(U+2,2)}")
    g(f"buffer_store_dwordx4 {vr(R,4)}, v{vop}, {WS}, {sOPo} offen sc1")
    g.stamp(13)
    dump_stamps(g)
    g("s_endpgm")

    g.label("L_A")
    g.lq = []
    g.reset_v(4)
    n, gg, r, c4 = lanes()
    sent = g.v(4, 4); vpo = g.v(); vj = g.v(16)
    g(f"""
    s_sub_u32 s56, s4, 16
    s_and_b32 s6, s56, 1
    s_lshr_b32 s56, s56, 1
    s_lshl3_add_u32 s7, s5, s56
    """)
    for k in range(4): g(f"v_mov_b32 v{sent+k}, -1")
    g(f"v_lshlrev_b32 v{vpo}, 16, v{n}"); g(f"v_lshl_add_u32 v{vpo}, v{gg}, 4, v{vpo}")
    sPOs, sRow, sCnt, sRid = "s18", "s19", "s22", "s23"
    g(f"""
    s_lshl_b32 {sPOs}, s6, 20
    s_lshl_b32 s56, s3, 14
    s_add_u32 {sPOs}, {sPOs}, s56
    s_lshl_b32 s56, s7, 8
    s_add_u32 {sPOs}, {sPOs}, s56
    s_add_u32 {sPOs}, {sPOs}, {PO}
    s_lshl2_add_u32 {sRow}, s6, s3
    s_lshl_b32 {sRow}, {sRow}, 14
    s_lshl_b32 s57, s7, 17
    """)
    g(f"v_lshlrev_b32 v{vj}, 4, v1")
    for j in range(1, 16): g(f"v_xor_b32 v{vj+j}, {j*16}, v{vj}")
    for k, sz in ((44, 256), (52, 2048)):
        g(f"s_mov_b32 s{k+2}, {sz}"); g(f"s_mov_b32 s{k+3}, 0x20000")
    g("s_waitcnt lgkmcnt(0)")
    for b in range(4): g(f"buffer_store_dwordx4 {vr(sent,4)}, v{vpo}, {WS}, {sPOs} offen offset:{b*64} sc1")
    g(f"s_load_dword {sE}, s[8:9], 0")
    for half in range(2):
        if half == 0: g(f"s_mov_b32 s58, {sRow}")
        else: g(f"s_xor_b32 s58, {sRow}, 0x10000")
        for j in range(16):
            if j % 4 == 0:
                if j: g("s_add_u32 s58, s58, 0x1000")
                g("s_mov_b32 m0, s58"); g("s_add_u32 s59, s58, s57")
            g(f"buffer_load_dwordx4 v{vj+j}, {CKV}, s59 offen offset:{(j&3)*1024} nt lds")
        g.stamp(1 + half)
    vro, xr = g.v(), g.v()
    g(f"v_and_b32 v2, 1, v{gg}"); g(f"v_lshlrev_b32 v{vro}, 10, v2"); g(f"v_lshrrev_b32 v2, 1, v{gg}"); g(f"v_lshl_add_u32 v{vro}, v2, 7, v{vro}")
    g(f"v_and_b32 v2, 1, v1"); g(f"v_lshl_add_u32 v{vro}, v2, 1, v{vro}")
    sRo = "s26"
    g(f"""
    s_sub_u32 s56, s4, 16
    s_lshl4_add_u32 {sRid}, s5, s56
    s_lshr_b32 s56, {sRid}, 5
    s_lshl_b32 {sRo}, s56, 8
    s_bfe_u32 s56, {sRid}, 0x20003
    s_lshl_b32 s56, s56, 5
    s_add_u32 {sRo}, {sRo}, s56
    s_and_b32 s56, {sRid}, 7
    s_lshl2_add_u32 {sRo}, s56, {sRo}
    """)
    g(f"buffer_load_ushort v{xr}, v{vro}, {X}, {sRo} offen")
    vkq = g.v(4); vpv = g.v(16); vpw = g.v(2); vpr = g.v(2); vmx = g.v(); vqd = g.v(); vqr = g.v(); vqc = g.v(); vst = g.v()
    for k in range(4):
        g(f"v_add_u32 v2, {4*k}, v{gg}"); g(f"v_xor_b32 v2, v2, v{n}"); g(f"v_lshlrev_b32 v2, 4, v2"); g(f"v_lshl_add_u32 v2, v{n}, 10, v2"); g(f"v_add_u32 v{vkq+k}, {sRow}, v2")
    g(f"v_and_b32 v2, 1, v{gg}"); g(f"v_lshlrev_b32 v2, 2, v2"); g(f"v_add_lshl_u32 v2, v2, v{r}, 1")
    g(f"v_lshrrev_b32 v3, 1, v{c4}"); g(f"v_xor_b32 v2, v2, v3"); g(f"v_lshlrev_b32 v2, 4, v2")
    g(f"v_and_b32 v3, 1, v1"); g(f"v_lshl_add_u32 v2, v3, 3, v2")
    g(f"v_lshl_add_u32 v3, v{gg}, 2, v{r}"); g(f"v_lshl_add_u32 v2, v3, 11, v2")
    g(f"s_lshl_b32 s56, s6, 16"); g(f"s_lshl_b32 s58, s3, 8"); g("s_add_u32 s56, s56, s58"); g(f"v_add_u32 v2, s56, v2")
    for T in range(8):
        g(f"v_xor_b32 v{vpv+2*T}, {T*32}, v2")
        g(f"v_xor_b32 v3, {T*32+16}, v2"); g(f"v_add_u32 v{vpv+2*T+1}, 0x400, v3")
    g(f"v_mul_u32_u24 v2, 272, v{n}"); g(f"v_lshrrev_b32 v3, 1, v{gg}"); g(f"v_lshl_add_u32 v{vpw}, v3, 4, v2"); g(f"v_and_b32 v3, 1, v{gg}"); g(f"v_lshl_add_u32 v{vpw}, v3, 2, v{vpw}")
    g(f"s_lshl_b32 s56, s6, 7"); g(f"s_xor_b32 s58, s56, 0x80"); g(f"s_lshl_b32 s59, s3, 5"); g(f"s_add_u32 s59, s59, {L_P}")
    g("s_add_u32 s60, s58, s59"); g("s_add_u32 s59, s56, s59")
    g(f"v_add_u32 v{vpw+1}, s60, v{vpw}"); g(f"v_add_u32 v{vpw}, s59, v{vpw}")
    g(f"v_lshl_add_u32 v2, v{gg}, 4, v2"); g(f"s_add_u32 s56, s56, {L_P}"); g(f"s_add_u32 s58, s58, {L_P}")
    g(f"v_add_u32 v{vpr}, s56, v2"); g(f"v_add_u32 v{vpr+1}, s58, v2")
    g(f"v_lshlrev_b32 v{vmx}, 2, v{n}"); g(f"v_add_u32 v{vmx}, {L_MX}, v{vmx}")
    g(f"v_lshlrev_b32 v{vqd}, 6, v{n}"); g(f"v_lshl_add_u32 v{vqd}, v{gg}, 4, v{vqd}")
    g(f"v_add_u32 v{vqr}, {L_QA}, v{vj}")
    sQAl, sQAm, sSTs = "s27", "s30", "s31"
    g(f"""
    s_lshl_b32 {sQAm}, s3, 12
    s_lshr_b32 s56, s7, 5
    s_lshl1_add_u32 s56, s56, s6
    s_lshl_b32 s56, s56, 14
    s_add_u32 {sQAl}, s56, {sQAm}
    s_add_u32 {sQAl}, {sQAl}, {QA}
    s_add_u32 {sQAm}, {sQAm}, {L_QA}
    s_lshl_b32 {sSTs}, s6, 14
    s_lshl4_add_u32 {sSTs}, s7, {sSTs}
    s_add_u32 {sSTs}, {sSTs}, {ST}
    """)
    g(f"v_add_u32 v{vqc}, {sQAm}, v{vj}")
    g(f"v_lshlrev_b32 v{vst}, 10, v{n}")
    ones = g.v(4, 4)
    for k in range(4): g(f"v_mov_b32 v{ones+k}, 0x3f803f80")
    g(f"v_mov_b32 v2, 0xff800000")
    g(f"ds_write_b32 v{vmx}, v2")
    g.lwait0()
    g(f"s_mul_i32 {sT}, {sE}, 0x9E3779B1"); g(f"s_add_u32 {sT}, {sT}, 0x7F4A7C15")
    g("s_waitcnt vmcnt(17)")
    g.stamp(3)
    for u in range(16): g.lds(f"ds_read_b128 {ar(4*u,4)}, v{vkq+(u&3)} offset:{(u>>2)*256}")
    g("s_barrier")
    g(f"s_lshl_b32 s56, s6, 6"); g("s_add_u32 s56, s56, s7"); g("s_add_u32 s56, s56, 128")
    g("v_mov_b32 v2, 1"); g("v_mov_b32 v3, 0")
    g(f"s_cmp_eq_u32 {sW}, 0"); g("s_cselect_b64 exec, 1, 0")
    g(f"buffer_store_byte v2, v3, {DBG}, s56 offen sc0 sc1")
    g("s_mov_b64 exec, -1")
    for ks in range(2):
        for T in range(8):
            for hf in range(2):
                g.lds(f"ds_read_b64_tr_b16 {ar(128+(ks*8+T)*4+2*hf,2)}, v{vpv+2*T+hf} offset:{ks*32768}")
    for k in range(4): g(f"v_xor_b32 v{vkq+k}, 0x10000, v{vkq+k}")
    g.lwait0()
    for k in range(16): g(f"v_xor_b32 v{vpv+k}, 0x10000, v{vpv+k}")
    g("s_lshl_b32 s34, s6, 6")
    flag_wait(g, "L_Af0", "s34", sCnt, 2)
    g.stamp(4)
    qf = g.v(64, 4); chk = g.v()
    g(f"s_mov_b32 m0, {sQAm}")
    g(f"s_mov_b32 {sCnt}, 0")
    for j in range(4): g(f"buffer_load_dwordx4 v{vqd}, {WS}, {sQAl} offen offset:{j*1024} sc1 lds")
    g("s_waitcnt vmcnt(6)")
    g.stamp(5)
    for u in range(16): g.lds(f"ds_read_b128 {ar(64+4*u,4)}, v{vkq+(u&3)} offset:{(u>>2)*256}")
    g("s_branch L_Aq_c")
    g.label("L_Aq")
    for j in range(4): g(f"buffer_load_dwordx4 v{vqd}, {WS}, {sQAl} offen offset:{j*1024} sc1 lds")
    g.label("L_Aq_c")
    g(f"s_add_u32 {sCnt}, {sCnt}, 1"); g(f"s_cmp_gt_u32 {sCnt}, {SPIN}"); g("s_cbranch_scc1 L_Aq_x")
    g("s_waitcnt vmcnt(0) lgkmcnt(8)")
    for j in range(4): g(f"ds_read_b128 {vr(qf+4*j,4)}, v{vqc} offset:{j*1024}")
    g.lwait0()
    g(f"v_max3_u32 v{chk}, v{qf+3}, v{qf+7}, v{qf+11}"); g(f"v_max_u32 v{chk}, v{chk}, v{qf+15}")
    g(f"v_cmp_eq_u32 vcc, -1, v{chk}")
    g("s_cbranch_vccnz L_Aq")
    g.label("L_Aq_x")
    g("s_waitcnt vmcnt(0) lgkmcnt(0)")
    g("s_barrier")
    g.stamp(6)
    SX = g.v(4, 4); SY = g.v(4, 4); O = g.v(32, 4); pfr = g.v(16, 4); LD = g.v(4, 4); pk = g.v(16, 4)
    trY = [(ks, T, hf) for ks in range(2) for T in range(8) for hf in range(2)]
    def try_(k):
        ks, T, hf = trY[k]
        g.lds(f"ds_read_b64_tr_b16 {ar(128+((ks+2)*8+T)*4+2*hf,2)}, v{vpv+2*T+hf} offset:{ks*32768}")
    AHEAD = 8
    for u in range(AHEAD): g.lds(f"ds_read_b128 {vr(qf+4*u,4)}, v{vqr} offset:{u*1024}", ("q", u))
    for u in range(16):
        g.lwait(("q", u))
        g(f"v_mfma_f32_16x16x32_bf16 {vr(SX,4)}, {ar(4*u,4)}, {vr(qf+4*u,4)}, {vr(SX,4) if u else 0}")
        if u + AHEAD < 16: g.lds(f"ds_read_b128 {vr(qf+4*(u+AHEAD),4)}, v{vqr} offset:{(u+AHEAD)*1024}", ("q", u + AHEAD))
        else: try_(2 * (u + AHEAD - 16))
        g(f"v_mfma_f32_16x16x32_bf16 {vr(SY,4)}, {ar(64+4*u,4)}, {vr(qf+4*u,4)}, {vr(SY,4) if u else 0}")
        if u + AHEAD >= 16: try_(2 * (u + AHEAD - 16) + 1)
    ntr = 16
    mxv, t2 = g.v(), g.v()
    g("s_nop 5")
    g(f"v_max3_f32 v{mxv}, v{SX}, v{SX+1}, v{SX+2}")
    g(f"v_max3_f32 v{t2}, v{SX+3}, v{SY}, v{SY+1}")
    g(f"v_max3_f32 v{mxv}, v{mxv}, v{SY+2}, v{SY+3}")
    g(f"v_max_f32 v{mxv}, v{mxv}, v{t2}")
    g(f"ds_max_f32 v{vmx}, v{mxv}")
    g.lwait0()
    g("s_barrier")
    g(f"ds_read_b32 v{mxv}, v{vmx}")
    g(f"s_mov_b32 s56, {KSCALE:#x}")
    g.lwait0()
    STG = g.v(4, 4)
    g(f"v_mul_f32 v{STG}, s56, v{mxv}")
    assert SY == SX + 4
    for k in range(8): g(f"v_fma_f32 v{SX+k}, v{SX+k}, s56, -v{STG}")
    for k in range(8): g(f"v_exp_f32 v{SX+k}, v{SX+k}")
    g(f"v_mov_b32 v{STG+2}, {sT}")
    for H in range(2):
        g(f"v_cvt_pk_bf16_f32 v{pk+2*H}, v{SX+4*H}, v{SX+4*H+2}"); g(f"v_cvt_pk_bf16_f32 v{pk+2*H+1}, v{SX+4*H+1}, v{SX+4*H+3}")
        g(f"ds_write2_b32 v{vpw+H}, v{pk+2*H}, v{pk+2*H+1} offset1:2")
    g.lwait0()
    g("s_barrier")
    g.stamp(7)
    for ks in range(4): g.lds(f"ds_read_b128 {vr(pfr+4*ks,4)}, v{vpr+(ks>>1)} offset:{(ks&1)*64}", ("p", ks))
    for k in range(ntr, ntr + 8): try_(k)
    g(f"s_cmp_lg_u32 {sW}, 0"); g("s_cbranch_scc1 L_Anol")
    save = list(g.lq)
    g.lwait(("p", 3))
    for ks in range(4): g(f"v_mfma_f32_16x16x32_bf16 {vr(LD,4)}, {vr(ones,4)}, {vr(pfr+4*ks,4)}, {vr(LD,4) if ks else 0}")
    g.label("L_Anol")
    g.lq = save
    g.lwait(("p", 1))
    for T in range(8):
        g(f"v_mfma_f32_16x16x32_bf16 {vr(O+4*T,4)}, {ar(128+T*4,4)}, {vr(pfr,4)}, 0")
        try_(ntr + 8 + T)
    g(f"s_cmp_lg_u32 {sW}, 0"); g("s_cbranch_scc1 L_Anos")
    g(f"v_mov_b32 v{STG+1}, v{LD}")
    g("s_mov_b64 exec, 0xffff")
    g(f"buffer_store_dwordx4 {vr(STG,4)}, v{vst}, {WS}, {sSTs} offen sc1")
    g("s_mov_b64 exec, -1")
    g.label("L_Anos")
    for T in range(8): g(f"v_mfma_f32_16x16x32_bf16 {vr(O+4*T,4)}, {ar(128+(8+T)*4,4)}, {vr(pfr+4,4)}, {vr(O+4*T,4)}")
    g.lwait0()
    def epi(b):
        for q in range(2):
            g(f"v_cvt_pk_bf16_f32 v{pk+4*b+2*q}, v{O+8*b+4*q}, v{O+8*b+4*q+1}")
            g(f"v_cvt_pk_bf16_f32 v{pk+4*b+2*q+1}, v{O+8*b+4*q+2}, v{O+8*b+4*q+3}")
        g(f"buffer_store_dwordx4 {vr(pk+4*b,4)}, v{vpo}, {WS}, {sPOs} offen offset:{b*64} sc1")
    for b in range(4):
        for ks in (2, 3):
            for T in (2 * b, 2 * b + 1):
                g(f"v_mfma_f32_16x16x32_bf16 {vr(O+4*T,4)}, {ar(128+(ks*8+T)*4,4)}, {vr(pfr+4*ks,4)}, {vr(O+4*T,4)}")
        if b >= 2: epi(b - 2)
    g("s_nop 2")
    epi(2)
    g("s_nop 1")
    epi(3)
    g.stamp(8)
    g(f"s_cmp_lg_u32 {sW}, 0"); g("s_cbranch_scc1 L_Aend")
    op = qf
    g("s_xor_b32 s34, s34, 64")
    flag_wait(g, "L_Af1", "s34", sCnt, 2)
    g(f"s_lshl_b32 s56, {sRid}, 12"); g(f"s_add_u32 s56, s56, {OP}")
    g(f"v_lshlrev_b32 v{xr}, 16, v{xr}")
    g(f"s_mov_b32 {sCnt}, 0")
    g.label("L_R")
    for j in range(4): g(f"buffer_load_dwordx4 {vr(op+4*j,4)}, v{vj}, {WS}, s56 offen offset:{j*1024} sc1")
    g(f"s_add_u32 {sCnt}, {sCnt}, 1"); g(f"s_cmp_gt_u32 {sCnt}, {SPIN}"); g("s_cbranch_scc1 L_R_x")
    g("s_waitcnt vmcnt(0)")
    g(f"v_max3_u32 v{chk}, v{op+3}, v{op+7}, v{op+11}"); g(f"v_max_u32 v{chk}, v{chk}, v{op+15}")
    g(f"v_cmp_eq_u32 vcc, -1, v{chk}")
    g("s_cbranch_vccnz L_R")
    g.label("L_R_x")
    g("s_waitcnt vmcnt(0)")
    g.stamp(9)
    for k in range(2):
        g(f"v_pk_add_f32 {vr(op+2*k,2)}, {vr(op+2*k,2)}, {vr(op+4+2*k,2)}"); g(f"v_pk_add_f32 {vr(op+8+2*k,2)}, {vr(op+8+2*k,2)}, {vr(op+12+2*k,2)}")
    for k in range(2): g(f"v_pk_add_f32 {vr(op+2*k,2)}, {vr(op+2*k,2)}, {vr(op+8+2*k,2)}")
    g("s_nop 1")
    g(f"v_permlane16_swap_b32 v{op}, v{op+1}"); g(f"v_permlane16_swap_b32 v{op+2}, v{op+3}")
    g("s_nop 0")
    g(f"v_add_f32 v{op}, v{op}, v{op+1}"); g(f"v_add_f32 v{op+2}, v{op+2}, v{op+3}")
    g("s_nop 1")
    g(f"v_permlane32_swap_b32 v{op}, v{op+2}")
    g("s_nop 0")
    g(f"v_add_f32 v{op}, v{op}, v{op+2}")
    for k in (2, 4, 8):
        g("s_nop 1"); g(f"v_add_f32_dpp v{op}, v{op}, v{op} row_ror:{k} {DPPF}")
    g(f"v_add_f32 v{op}, v{op}, v{xr}")
    g("s_mov_b32 exec_lo, 0x00030003"); g("s_mov_b32 exec_hi, 0x00030003")
    g(f"v_cvt_pk_bf16_f32 v{op}, v{op}, v{op}")
    g(f"buffer_store_short v{op}, v{vro}, {OUT}, {sRo} offen")
    g(f"s_cmp_lg_u32 {sRid}, 0"); g("s_cbranch_scc1 L_Aend")
    g("s_mov_b64 exec, 1"); g(f"v_mov_b32 v2, {sT}"); g("v_mov_b32 v3, 0")
    g(f"buffer_store_dword v2, v3, {WS}, 0 offen sc1")
    g.label("L_Aend")
    g.stamp(10)
    dump_stamps(g)
    g.label("L_end")
    body = "\n".join(g.L)
    hdr = open("parallel_sum__compressed_kv_cla__dense_activation_silu__decode.s.ref").read().split("; Override launch")[0]
    return f"""{hdr}; @launch grid=(256,1,1) block=(256,1,1) lds={LDS_BYTES}
.amdgcn_target "amdgcn-amd-amdhsa--gfx950"
.text
.globl {KNAME}
.p2align 8
.type {KNAME},@function
{KNAME}:
{body}
    s_endpgm
.section .rodata,"a"
.p2align 6
.amdhsa_kernel {KNAME}
  .amdhsa_next_free_vgpr 512
  .amdhsa_next_free_sgpr 102
  .amdhsa_accum_offset 256
  .amdhsa_group_segment_fixed_size 0
  .amdhsa_kernarg_size 96
  .amdhsa_user_sgpr_count 2
  .amdhsa_user_sgpr_kernarg_segment_ptr 1
  .amdhsa_system_sgpr_workgroup_id_x 1
.end_amdhsa_kernel
"""

if __name__ == "__main__":
    dbg = "--debug" in sys.argv
    out = [a for a in sys.argv[1:] if not a.startswith("--")][0]
    open(out, "w").write(build(dbg))
```

```python
import sys, struct

KNAME = "parallel_sum__compressed_kv_cla__dense_activation_silu__decode_kernel"

QP, CP, QA, ST, OP, PO, TS = 0x10000, 0x30000, 0x50000, 0x60000, 0x80000, 0x100000, 0x300000
FL1, FL2, HP = 0x68000, 0x6C000, 0x70000
WS_REC = 0x400000
OOB = 0x40000000
L_WQ, L_WUK, L_WUV, L_WO, L_W1, L_W2, L_XN, L_LAT = 0, 0x8000, 0, 0x10000, 0x18000, 0x1C000, 0x20000, 0x20900
XNP = 1056
L_QA, L_P, L_MX = 0x20000, 0x24000, 0x25200
LDS_BYTES = 0x25400
SPIN = 20000

def f2u(x): return struct.unpack("<I", struct.pack("<f", x))[0]
KSCALE = f2u(128 ** -0.5 * 1.4426950408889634)

class G:
    def __init__(self, debug=False):
        self.L = []; self.debug = debug; self.nv = 0; self.names = {}; self.nstamp = 0; self.lq = []; self.maxv = 0
    def __call__(self, s):
        for ln in s.strip().split("\n"):
            self.L.append("    " + ln.strip())
    def label(self, s): self.L.append(s + ":")
    def c(self, s): self.L.append("    ; " + s)
    def reset_v(self, start): self.nv = start
    def v(self, n=1, al=None):
        if al is None: al = 1 if n == 1 else 2
        self.nv = (self.nv + al - 1) // al * al
        r = self.nv; self.nv += n; self.maxv = max(self.maxv, self.nv)
        assert self.nv <= 255, "out of VGPRs"
        return r
    def stamp(self, i):
        if self.debug:
            assert i < 15
            self(f"s_memrealtime s[{72+2*i}:{73+2*i}]")
    def lds(self, s, tag=None):
        if len(self.lq) >= 15:
            self.lwait(self.lq[len(self.lq) - 15])
        self(s); self.lq.append(tag if tag is not None else object())
    def lwait(self, tag):
        if tag not in self.lq: return
        k = max(i for i, t in enumerate(self.lq) if t == tag)
        n = len(self.lq) - 1 - k
        self(f"s_waitcnt lgkmcnt({n})")
        self.lq = self.lq[k + 1:]
    def lwait0(self):
        self("s_waitcnt lgkmcnt(0)"); self.lq = []

def vr(a, n): return f"v[{a}:{a+n-1}]" if n > 1 else f"v{a}"
def ar(a, n): return f"a[{a}:{a+n-1}]"

sW, sS, sX, sH, sQT = "s3", "s4", "s5", "s6", "s7"
WS, X, WQ, WUK, WUV, WO, W1, W2, DBG, CKV, OUT = ("s[8:11]", "s[12:15]", "s[16:19]", "s[20:23]", "s[24:27]", "s[28:31]",
                                                  "s[32:35]", "s[36:39]", "s[44:47]", "s[48:51]", "s[52:55]")
sT, sE = "s42", "s43"
sHG, sSP = "s6", "s7"
DPPF = "row_mask:0xf bank_mask:0xf"

def reduce32(g, op, s, t):
    for k in (8, 4, 2, 1):
        g(f"v_{op}_f32_dpp v{s}, v{s}, v{s} row_ror:{k} {DPPF}")
        g("s_nop 1")
    g(f"v_mov_b32 v{t}, v{s}")
    g("s_nop 1")
    g(f"v_permlane16_swap_b32 v{t}, v{s}")
    g("s_nop 0")
    g(f"v_{op}_f32 v{s}, v{s}, v{t}")

def reduce64(g, op, s, t):
    reduce32(g, op, s, t)
    g(f"v_mov_b32 v{t}, v{s}")
    g("s_nop 1")
    g(f"v_permlane32_swap_b32 v{t}, v{s}")
    g("s_nop 0")
    g(f"v_{op}_f32 v{s}, v{s}, v{t}")

def flag_fallback(g, name, vfl, vfo, soff, cnt):
    g.label(name)
    g(f"s_mov_b32 {cnt}, 0")
    g.label(name + "_l")
    g("s_sleep 2")
    g(f"buffer_load_dword v{vfl}, v{vfo}, {WS}, {soff} offen sc1")
    g(f"s_add_u32 {cnt}, {cnt}, 1"); g(f"s_cmp_gt_u32 {cnt}, {SPIN}"); g(f"s_cbranch_scc1 {name}_x")
    g("s_waitcnt vmcnt(0)")
    g(f"v_cmp_ne_u32 vcc, {sT}, v{vfl}")
    g(f"s_cbranch_vccnz {name}_l")
    g(f"s_branch {name}_x")

def dump_stamps(g):
    if not g.debug: return
    g.lwait0()
    g(f"s_lshl_b32 s56, s2, 2"); g(f"s_add_u32 s56, s56, {sW}"); g("s_lshl_b32 s56, s56, 6"); g(f"s_add_u32 s56, s56, {TS}")
    g("s_mov_b64 exec, -1")
    g("v_mov_b32 v2, 0")
    for i in range(15): g(f"v_writelane_b32 v2, s{72+2*i}, {i}")
    g("s_getreg_b32 s57, hwreg(HW_REG_XCC_ID)")
    g("v_writelane_b32 v2, s57, 15")
    g("v_lshlrev_b32 v3, 2, v1")
    g("s_mov_b64 exec, 0xffff")
    g(f"buffer_store_dword v2, v3, {WS}, s56 offen")

def build(debug=False, thr=(16, 0), swap=1):
    g = G(debug)
    g.stamp(0)
    g("""
    s_load_dwordx2 s[16:17], s[0:1], 16
    s_load_dwordx2 s[48:49], s[0:1], 8
    s_load_dwordx2 s[12:13], s[0:1], 0
    s_load_dwordx2 s[8:9], s[0:1], 88
    s_cmp_ge_u32 s2, 256
    s_cbranch_scc1 L_end
    v_lshrrev_b32 v2, 6, v0
    v_and_b32 v1, 63, v0
    s_lshr_b32 s4, s2, 3
    v_readfirstlane_b32 s3, v2
    s_and_b32 s5, s2, 7
    v_lshlrev_b32 v4, 4, v1
    s_cmp_ge_u32 s4, 16
    s_cbranch_scc1 L_A
    """)
    l16 = 4
    def srd(k, sz):
        g(f"s_mov_b32 s{k+2}, {sz}"); g(f"s_mov_b32 s{k+3}, 0x20000")
    def dbg_init():
        if debug:
            for i in range(1, 15): g(f"s_mov_b64 s[{72+2*i}:{73+2*i}], 0")
    g.reset_v(5)
    n, gg = g.v(), g.v()
    vqA, vqB = g.v(), g.v(); vq4 = g.v(4)
    xa = g.v(8, 4)
    sQAo, sOPo, sQoff = "s38", "s39", "s35"
    g(f"v_and_b32 v{n}, 15, v1"); g(f"v_lshrrev_b32 v{gg}, 4, v1")
    g(f"v_lshlrev_b32 v2, 1, v{gg}"); g(f"v_xor_b32 v2, v2, v{n}"); g(f"v_lshlrev_b32 v2, 4, v2"); g(f"v_lshl_add_u32 v{vqA}, v{gg}, 13, v2"); g(f"v_xor_b32 v{vqB}, 0x80, v{vqA}")
    g(f"v_add_u32 v{vq4+1}, {31744}, v{vqA}"); g(f"v_add_u32 v{vq4+2}, {2*31744}, v{vqB}"); g(f"v_add_u32 v{vq4+3}, {3*31744}, v{vqB}")
    srd(16, 4 << 20); srd(12, 2048)
    g(f"""
    s_lshr_b32 s6, s4, 2
    s_lshl2_add_u32 s6, s5, s6
    s_and_b32 s7, s4, 3
    s_lshl2_add_u32 s61, s7, s3
    s_lshl_b32 s61, s61, 18
    s_lshl_b32 s59, s6, 8
    s_add_u32 {sQoff}, s61, s59
    s_lshl_b32 s60, s3, 13
    s_mov_b32 m0, s60
    s_lshl_b32 s57, s3, 10
    s_cmp_lt_u32 s3, 2
    s_cselect_b64 exec, -1, 0
    s_waitcnt lgkmcnt(0)
    """)
    def quad(srdname, soff):
        g(f"buffer_load_dwordx4 v{vqA}, {srdname}, {soff} offen nt lds")
        for k in range(1, 4): g(f"buffer_load_dwordx4 v{vq4+k}, {srdname}, {soff} offen offset:{k*1024} nt lds")
    g(f"buffer_load_dwordx4 {vr(xa,4)}, v{l16}, {X}, s57 offen")
    g("s_mov_b64 exec, -1")
    quad(WQ, sQoff)
    g("s_add_u32 m0, m0, 0x1000"); g(f"s_add_u32 s61, {sQoff}, 0x20000")
    quad(WQ, "s61")
    g("s_branch L_W2")
    wv = g.nv
    g.label("L_A")
    vt4 = 8
    sPOs, sRow, sCnt, sRid = "s18", "s19", "s22", "s23"
    g(f"""
    s_and_b32 s6, s4, 1
    s_bfe_u32 s56, s4, 0x30001
    s_lshl3_add_u32 s7, s5, s56
    s_lshl_b32 s57, s7, 17
    """)
    if swap: g(f"s_lshl2_add_u32 {sRow}, s6, s3"); g(f"s_lshl_b32 {sRow}, {sRow}, 14")
    else: g(f"s_lshl_b32 {sRow}, s3, 14")
    srd(48, 8 << 20)
    g(f"s_mov_b32 m0, {sRow}"); g(f"s_add_u32 s59, {sRow}, s57")
    def abody(a, half):
        if a == 0:
            for k in range(1, 4): g(f"v_xor_b32 v{vt4+k}, {k*16}, v{l16}")
            regs = [l16, vt4 + 1, vt4 + 2, vt4 + 3]
        else:
            for k in range(4): g(f"v_xor_b32 v{vt4+k}, {(4*a+k)*16}, v{l16}")
            regs = [vt4 + k for k in range(4)]
        if a == 0 and half == 0: g("s_waitcnt lgkmcnt(0)")
        for k in range(4):
            j = 4 * a + k
            if half == 0 and thr[0] <= j < thr[1] + thr[0]: g(f"s_waitcnt vmcnt({thr[0]-1})")
            g(f"buffer_load_dwordx4 v{regs[k]}, {CKV}, s59 offen offset:{k*1024} nt lds")
        if a < 3: g("s_add_u32 m0, m0, 0x1000"); g("s_add_u32 s59, s59, 0x1000")
    abody(0, 0); abody(1, 0)
    g(f"""
    s_getpc_b64 s[40:41]
L_pc:
    v_lshlrev_b32 v2, 3, v4
    s_lshl2_add_u32 s56, s4, s3
    v_add_u32 v3, 0x2000, v2
    v_min_u32 v3, L_end-L_pc, v3
    s_cmp_eq_u32 s56, 64
    s_cselect_b64 exec, -1, 0
    global_load_dword v255, v2, s[40:41]
    global_load_dword v255, v3, s[40:41]
    s_mov_b64 exec, -1
    s_branch L_A2
    """)

    g.label("L_W2")
    g.reset_v(wv)
    g("""
    s_load_dwordx2 s[20:21], s[0:1], 24
    s_load_dword s43, s[8:9], 0
    s_load_dwordx2 s[24:25], s[0:1], 32
    s_load_dwordx2 s[28:29], s[0:1], 40
    s_load_dwordx2 s[32:33], s[0:1], 56
    s_load_dwordx2 s[36:37], s[0:1], 64
    """)
    dbg_init()
    g.stamp(1)
    srd(8, WS_REC); srd(20, 4 << 20)
    sent = g.v(4, 4); vqa, vop = g.v(), g.v()
    for k in range(4): g(f"v_mov_b32 v{sent+k}, -1")
    vk = g.v(8); vkr = g.v(4)
    g(f"v_xor_b32 v2, v{n}, v{gg}"); g(f"v_lshlrev_b32 v2, 4, v2"); g(f"v_lshl_add_u32 v{vk}, v{gg}, 13, v2")
    for k in range(1, 8):
        g(f"v_xor_b32 v{vk+k}, {(k>>1)*64}, v{vk}")
        if k & 3: g(f"v_add_u32 v{vk+k}, {(k&3)*31744}, v{vk+k}")
    g(f"""
    s_lshr_b32 s62, s6, 4
    s_lshl2_add_u32 s62, s62, s7
    s_lshl_b32 s62, s62, 6
    s_and_b32 s63, s6, 15
    s_add_u32 s62, s62, s63
    s_lshl_b32 s62, s62, 6
    s_add_u32 s62, s62, {QA}
    s_add_u32 {sQAo}, s62, s57
    s_cmp_lt_u32 s3, 2
    s_cbranch_scc1 L_W_c
    """)
    g(f"v_lshrrev_b32 v3, 3, v1"); g(f"v_lshlrev_b32 v3, 10, v3"); g(f"v_and_b32 v{vop}, 4, v1"); g(f"v_lshl_add_u32 v3, v{vop}, 13, v3"); g(f"v_and_b32 v{vop}, 3, v1"); g(f"v_lshl_add_u32 v3, v{vop}, 4, v3")
    g("s_cmp_eq_u32 s3, 2"); g("s_cselect_b32 exec_lo, -1, 0"); g("s_mov_b32 exec_hi, 0")
    g(f"buffer_store_dwordx4 {vr(sent,4)}, v3, {WS}, s62 offen sc1")
    g("s_mov_b64 exec, -1")
    g(f"""
    s_and_b32 s63, s3, 1
    s_lshl_b32 s58, s63, 14
    s_add_u32 m0, s58, {L_WUK}
    s_lshl_b32 s58, s7, 1
    s_add_u32 s58, s58, s63
    s_lshl_b32 s58, s58, 19
    s_add_u32 s61, s58, s59
    s_waitcnt lgkmcnt(0)
    """)
    for a in range(4):
        for k in range(4): g(f"buffer_load_dwordx4 v{vk+4*(a&1)+k}, {WUK}, s61 offen offset:{k*1024} nt lds")
        if a < 3: g("s_add_u32 m0, m0, 0x1000"); g("s_add_u32 s61, s61, 0x20000")
    g.label("L_W_c")
    r, c4 = g.v(), g.v()
    g(f"v_bfe_u32 v{r}, v1, 2, 2"); g(f"v_and_b32 v{c4}, 3, v1")
    vxf, vtr, vqps, vqpl, vf = g.v(), g.v(), g.v(), g.v(), g.v()
    g(f"v_lshl_add_u32 v3, v{r}, 3, v{c4}"); g(f"v_lshl_add_u32 v2, v3, 8, v2"); g(f"s_add_u32 s64, s60, {L_WUK}"); g(f"v_add_u32 v{vkr}, s64, v2")
    for k in range(1, 4): g(f"v_xor_b32 v{vkr+k}, {k*64}, v{vkr}")
    g(f"v_lshlrev_b32 v{vqa}, 13, v1"); g(f"v_and_b32 v{vqa}, 0x8000, v{vqa}"); g(f"v_lshl_or_b32 v{vqa}, v{gg}, 4, v{vqa}")
    g(f"v_and_b32 v2, 1, v1"); g(f"v_mul_u32_u24 v{vxf}, {XNP}, v2"); g(f"v_lshl_add_u32 v{vxf}, v{gg}, 4, v{vxf}")
    g(f"s_lshl_b32 s63, s7, 8"); g(f"s_add_u32 s63, s63, {L_XN}"); g(f"v_add_u32 v{vxf}, s63, v{vxf}")
    g(f"v_lshlrev_b32 v{vqps}, 9, v2"); g(f"v_lshl_add_u32 v{vqps}, v{gg}, 5, v{vqps}"); g(f"v_and_b32 v2, 2, v1"); g(f"v_lshl_add_u32 v{vqps}, v2, 3, v{vqps}")
    g(f"v_and_b32 v2, 1, v{gg}"); g(f"v_lshl_or_b32 v2, v2, 2, v{r}"); g(f"v_lshlrev_b32 v{vf}, 5, v2")
    g(f"s_lshl_b32 s63, s3, 6"); g(f"v_lshl_or_b32 v2, v{c4}, 4, s63"); g(f"v_xor_b32 v2, v2, v{vf}")
    g(f"v_lshl_add_u32 v{vtr}, v{gg}, 3, v{r}"); g(f"v_lshl_add_u32 v{vtr}, v{vtr}, 8, v2")
    g(f"v_bfe_u32 v2, v1, 2, 1"); g(f"v_lshl_add_u32 v{vqpl}, v{c4}, 1, v2"); g(f"v_lshlrev_b32 v{vqpl}, 9, v{vqpl}"); g(f"v_lshl_add_u32 v{vqpl}, v{gg}, 5, v{vqpl}")
    g(f"v_and_b32 v2, 8, v1"); g(f"v_lshl_add_u32 v{vqpl}, v2, 1, v{vqpl}")
    g(f"""
    s_lshl_b32 s68, s6, 12
    s_add_u32 s68, s68, {QP}
    s_lshl_b32 s63, s7, 10
    s_add_u32 s67, s68, s63
    s_lshl_b32 s63, s3, 7
    s_add_u32 s67, s67, s63
    s_mov_b32 s70, 0xcccccccc
    s_mov_b32 s71, s70
    s_waitcnt lgkmcnt(0)
    s_lshl2_add_u32 s1, s6, s7
    s_lshl_b32 s44, s1, 7
    s_add_u32 s44, s44, {FL1}
    """)
    Ga = g.v(4, 4); vT = Ga
    f = g.v(16, 2); m = g.v(2); t = g.v(); s2 = g.v(8, 2)
    g(f"s_mul_i32 {sT}, {sE}, 0x9E3779B1"); g(f"s_add_u32 {sT}, {sT}, 0x7F4A7C15")
    g(f"v_mov_b32 v{vT}, {sT}")
    g("s_cmp_lt_u32 s3, 2"); g("s_cbranch_scc1 L_W_ln")
    g("v_lshlrev_b32 v3, 2, v1")
    g("s_cmp_eq_u32 s3, 2"); g("s_cselect_b32 exec_lo, 0xffff, 0"); g("s_mov_b32 exec_hi, 0")
    g("s_waitcnt vmcnt(16)")
    g(f"buffer_store_dword v{vT}, v3, {WS}, s44 offen sc1")
    g("s_mov_b64 exec, -1")
    g("s_branch L_W_b0")
    g.label("L_W_ln")
    g(f"s_mul_i32 s63, s3, {XNP}"); g(f"s_add_u32 s63, s63, {L_XN}"); g(f"v_add_u32 v3, s63, v{l16}")
    g("s_waitcnt vmcnt(8)")
    d = f + 8
    for k in range(4):
        g(f"v_lshlrev_b32 v{f+2*k}, 16, v{xa+k}"); g(f"v_and_b32 v{f+2*k+1}, 0xffff0000, v{xa+k}")
    g(f"v_pk_add_f32 {vr(s2,2)}, {vr(f,2)}, {vr(f+2,2)}"); g(f"v_pk_add_f32 {vr(s2+2,2)}, {vr(f+4,2)}, {vr(f+6,2)}")
    g(f"v_pk_add_f32 {vr(s2,2)}, {vr(s2,2)}, {vr(s2+2,2)}")
    g(f"v_add_f32 v{m}, v{s2}, v{s2+1}"); g("s_nop 1")
    reduce64(g, "add", m, t)
    g(f"v_mul_f32 v{m}, {f2u(1/512):#x}, v{m}")
    for k in range(4): g(f"v_pk_add_f32 {vr(d+2*k,2)}, {vr(f+2*k,2)}, {vr(m,2)} op_sel_hi:[1,0] neg_lo:[0,1] neg_hi:[0,1]")
    g(f"v_pk_mul_f32 {vr(s2,2)}, {vr(d,2)}, {vr(d,2)}"); g(f"v_pk_mul_f32 {vr(s2+2,2)}, {vr(d+2,2)}, {vr(d+2,2)}")
    g(f"v_pk_fma_f32 {vr(s2,2)}, {vr(d+4,2)}, {vr(d+4,2)}, {vr(s2,2)}"); g(f"v_pk_fma_f32 {vr(s2+2,2)}, {vr(d+6,2)}, {vr(d+6,2)}, {vr(s2+2,2)}")
    g(f"v_pk_add_f32 {vr(s2,2)}, {vr(s2,2)}, {vr(s2+2,2)}")
    va = s2 + 4
    g(f"v_add_f32 v{va}, v{s2}, v{s2+1}")
    g(f"v_cvt_pk_bf16_f32 v{m}, v{m}, v{m}"); g(f"v_and_b32 v{m}, 0xffff0000, v{m}")
    reduce64(g, "add", va, t)
    g(f"v_mul_f32 v{va}, {f2u(1/512):#x}, v{va}")
    for k in range(2): g(f"v_pk_add_f32 {vr(f+2*k,2)}, {vr(f+2*k,2)}, {vr(m,2)} op_sel_hi:[1,0] neg_lo:[0,1] neg_hi:[0,1]")
    g(f"v_cvt_pk_bf16_f32 v{va}, v{va}, v{va}")
    for k in range(2, 4): g(f"v_pk_add_f32 {vr(f+2*k,2)}, {vr(f+2*k,2)}, {vr(m,2)} op_sel_hi:[1,0] neg_lo:[0,1] neg_hi:[0,1]")
    g(f"v_and_b32 v{va}, 0xffff0000, v{va}")
    g(f"v_add_f32 v{va}, {f2u(1e-5):#x}, v{va}")
    g(f"v_cvt_pk_bf16_f32 v{xa}, v{f}, v{f+1}")
    g(f"v_cvt_pk_bf16_f32 v{va}, v{va}, v{va}")
    g(f"v_cvt_pk_bf16_f32 v{xa+1}, v{f+2}, v{f+3}")
    g(f"v_and_b32 v{va}, 0xffff0000, v{va}")
    g(f"v_sqrt_f32 v{va}, v{va}")
    g(f"v_cvt_pk_bf16_f32 v{xa+2}, v{f+4}, v{f+5}"); g(f"v_cvt_pk_bf16_f32 v{xa+3}, v{f+6}, v{f+7}")
    g(f"v_cvt_pk_bf16_f32 v{va}, v{va}, v{va}")
    for k in range(2):
        g(f"v_lshlrev_b32 v{f+2*k}, 16, v{xa+k}"); g(f"v_and_b32 v{f+2*k+1}, 0xffff0000, v{xa+k}")
    g(f"v_and_b32 v{m}, 0xffff0000, v{va}")
    g(f"v_rcp_f32 v{m}, v{m}")
    for k in range(2, 4):
        g(f"v_lshlrev_b32 v{f+2*k}, 16, v{xa+k}"); g(f"v_and_b32 v{f+2*k+1}, 0xffff0000, v{xa+k}")
    for k in range(4): g(f"v_pk_mul_f32 {vr(f+2*k,2)}, {vr(f+2*k,2)}, {vr(m,2)} op_sel_hi:[1,0]")
    for k in range(4): g(f"v_cvt_pk_bf16_f32 v{xa+k}, v{f+2*k}, v{f+2*k+1}")
    g(f"ds_write_b128 v3, {vr(xa,4)}")
    g.stamp(3)
    g("s_waitcnt vmcnt(0) lgkmcnt(0)"); g.lq = []
    g.label("L_W_b0")
    g("s_barrier")
    g.stamp(13)
    xb = g.v(16, 4); wk = g.v(32, 4); ta = g.v(16, 4); Da = g.v(4, 4); Db = g.v(4, 4)
    qf = g.v(32, 4); chk = g.v()
    tq = qf
    for u in range(4):
        g.lds(f"ds_read_b128 {vr(xb+4*u,4)}, v{vxf} offset:{u*64}")
        for T in range(2):
            for hf in range(2):
                g.lds(f"ds_read_b64_tr_b16 {vr(tq+8*u+4*T+2*hf,2)}, v{vtr} offset:{L_WQ + u*8192 + hf*1024 + T*8}", ("tr", u, T))
    for u in range(4):
        g.lwait(("tr", u, 0))
        g(f"v_mfma_f32_16x16x32_bf16 {vr(Da,4)}, {vr(tq+8*u,4)}, {vr(xb+4*u,4)}, {vr(Da,4) if u else 0}")
        g.lwait(("tr", u, 1))
        g(f"v_mfma_f32_16x16x32_bf16 {vr(Db,4)}, {vr(tq+8*u+4,4)}, {vr(xb+4*u,4)}, {vr(Db,4) if u else 0}")
    def pack_granule(msk):
        g(f"v_cvt_pk_bf16_f32 v{Ga+2}, v{Da}, v{Da+1}"); g(f"v_cvt_pk_bf16_f32 v{Ga+3}, v{Da+2}, v{Da+3}")
        g(f"v_cvt_pk_bf16_f32 v2, v{Db}, v{Db+1}"); g(f"v_cvt_pk_bf16_f32 v3, v{Db+2}, v{Db+3}")
        g(f"v_cndmask_b32 v{Ga+2}, v{Ga+2}, v2, {msk}"); g(f"v_cndmask_b32 v{Ga+3}, v{Ga+3}, v3, {msk}")
    g("s_mov_b32 exec_lo, 0x000f000f"); g("s_mov_b32 exec_hi, 0x000f000f")
    g("s_nop 4")
    pack_granule("s[70:71]")
    g(f"buffer_store_dwordx4 {vr(Ga,4)}, v{vqps}, {WS}, s67 offen sc1")
    g("s_mov_b64 exec, -1")
    g.stamp(4)
    def qp_loads():
        for u in range(4): g(f"buffer_load_dwordx4 {vr(qf+8*u,4)}, v{vqpl}, {WS}, s68 offen offset:{u*128} sc1")
    g("s_mov_b32 s63, 0")
    g("s_cmp_ge_u32 s3, 2"); g("s_cbranch_scc1 L_W_b1")
    g("s_waitcnt vmcnt(0)")
    g.label("L_W_b1")
    g("s_barrier")
    qp_loads()
    g("s_waitcnt vmcnt(5)")
    g("s_barrier")
    g.stamp(12)
    for u in range(4):
        for T in range(2): g.lds(f"ds_read_b128 {vr(wk+16*T+4*u,4)}, v{vkr+u} offset:{T*1024}")
    g("s_branch L_Wa_c")
    g.label("L_Wa")
    qp_loads()
    g.label("L_Wa_c")
    g("s_add_u32 s63, s63, 1"); g(f"s_cmp_gt_u32 s63, {SPIN}"); g("s_cbranch_scc1 L_Wa_x")
    g("s_waitcnt vmcnt(0)")
    for u in range(4): g(f"v_sad_u32 v{chk}, v{qf+8*u}, {sT}, {('v%d' % chk) if u else 0}")
    g(f"v_cmp_ne_u32 vcc, 0, v{chk}")
    g("s_cbranch_vccnz L_Wa")
    g.label("L_Wa_x")
    g("s_waitcnt vmcnt(0)")
    for u in range(4):
        for k in range(2): g(f"v_mov_b32_dpp v{qf+8*u+4+k}, v{qf+8*u+2+k} row_ror:8 {DPPF}")
    g.lwait0()
    g.stamp(5)
    for u in range(4):
        g(f"v_mfma_f32_16x16x32_bf16 {vr(Da,4)}, {vr(wk+4*u,4)}, {vr(qf+8*u+2,4)}, {vr(Da,4) if u else 0}")
        g(f"v_mfma_f32_16x16x32_bf16 {vr(Db,4)}, {vr(wk+16+4*u,4)}, {vr(qf+8*u+2,4)}, {vr(Db,4) if u else 0}")
    g("s_nop 6")
    for k in range(8): g(f"v_add_f32_dpp v{Da+k}, v{Da+k}, v{Da+k} quad_perm:[1,0,3,2] {DPPF}")
    assert Db == Da + 4
    for k in range(8): g(f"v_add_f32_dpp v{Da+k}, v{Da+k}, v{Da+k} quad_perm:[2,3,0,1] {DPPF}")
    qo = g.v(4, 4)
    for k in range(4): g(f"v_cvt_pk_bf16_f32 v{qo+k}, v{Da+2*k}, v{Da+2*k+1}")
    g("s_mov_b32 exec_lo, 0x00110011"); g("s_mov_b32 exec_hi, 0x00110011")
    g(f"buffer_store_dwordx4 {vr(qo,4)}, v{vqa}, {WS}, {sQAo} offen sc1")
    g("s_mov_b64 exec, -1")
    g.stamp(6)
    sPOo = "s17"
    g(f"s_lshl2_add_u32 {sPOo}, s1, {sW}"); g(f"s_lshl_b32 {sPOo}, {sPOo}, 12"); g(f"s_add_u32 {sPOo}, {sPOo}, {PO}")
    for u in range(4): g(f"buffer_store_dwordx4 {vr(sent,4)}, v{l16}, {WS}, {sPOo} offen offset:{u*1024} sc1")
    g(f"v_lshrrev_b32 v{vop}, 1, v1"); g(f"v_lshlrev_b32 v{vop}, 12, v{vop}"); g(f"v_and_b32 v2, 1, v1"); g(f"v_lshl_or_b32 v{vop}, v2, 4, v{vop}")
    g(f"""
    s_lshl4_add_u32 s64, s5, s4
    s_lshl_b32 s64, s64, 5
    s_lshl_b32 s63, s3, 17
    s_add_u32 s64, s64, s63
    s_add_u32 {sOPo}, s64, {OP}
    """)
    g(f"buffer_store_dwordx4 {vr(sent,4)}, v{vop}, {WS}, {sOPo} offen sc1")
    vA, vB = vk, vk + 1
    g(f"v_and_b32 v2, 0xff, v{vqA}"); g(f"v_lshl_add_u32 v{vA}, v{gg}, 10, v2"); g(f"v_xor_b32 v{vB}, 0x80, v{vA}")
    g(f"v_add_u32 v{vk+2}, 3072, v{vA}"); g(f"v_add_u32 v{vk+3}, 3072, v{vB}"); g(f"v_add_u32 v{vk+4}, 6144, v{vA}"); g(f"v_add_u32 v{vk+5}, 6144, v{vB}"); g(f"v_add_u32 v{vk+6}, 9216, v{vB}")
    sCB = "s0"
    g(f"s_lshr_b32 {sCB}, s4, 2"); g(f"s_lshl3_add_u32 {sCB}, {sCB}, s5")
    g(f"s_lshl_b32 s59, {sW}, 12"); g(f"s_lshl_b32 s58, {sW}, 8")
    hpv = g.v(4, 4); hlo = g.v(2); hhi = g.v(2); vt1 = g.v(); vh = g.v()
    vwo = f
    g(f"s_cmp_ge_u32 {sCB}, 22"); g("s_cbranch_scc1 L_Wnf1")
    W1c, W2c = "s[64:67]", "s[68:71]"
    g("s_mov_b64 s[64:65], s[32:33]"); g(f"s_mov_b32 s66, {512*1376*2}"); g("s_mov_b32 s67, 0x20000")
    g("s_mov_b64 s[68:69], s[36:37]"); g(f"s_mov_b32 s70, {512*1376*2}"); g("s_mov_b32 s71, 0x20000")
    g(f"v_lshrrev_b32 v2, 3, v1"); g(f"v_mul_u32_u24 v{vt1}, 2752, v2"); g(f"v_and_b32 v2, 7, v1"); g(f"v_lshl_add_u32 v{vt1}, v2, 4, v{vt1}")
    g(f"s_lshl2_add_u32 s61, s7, {sW}"); g(f"s_mul_i32 s61, s61, {32*2752}"); g(f"s_lshl_b32 s62, {sCB}, 7"); g("s_add_u32 s61, s61, s62")
    g(f"s_add_u32 m0, s59, {L_W1}")
    for j in range(4):
        if j: g("s_add_u32 m0, m0, 0x400")
        if j: g(f"s_add_u32 s61, s61, {8*2752}")
        else: g("s_nop 0")
        g(f"buffer_load_dwordx4 v{vt1}, {W1c}, s61 offen nt lds")
    g(f"s_add_u32 m0, s59, {L_W2}")
    g(f"s_lshl2_add_u32 s61, {sCB}, s7"); g(f"s_lshl_b32 s61, s61, 14"); g("s_add_u32 s61, s61, s58")
    for j, rg in enumerate((vA, vk + 3, vk + 4, vk + 6)):
        g(f"buffer_load_dwordx4 v{rg}, {W2c}, s61 offen offset:{j*1024} nt lds")
    g.label("L_Wnf1")
    srd(24, 4 << 20); srd(28, 4 << 20)
    acc = g.v(16, 4)
    for k in range(16): g(f"v_mov_b32 v{acc+k}, 0")
    uv = wk; wo = 0
    vlw, vlr, vcs, vclo, vbp = g.v(), g.v(), g.v(), g.v(), g.v()
    mk = f + 8
    g(f"v_lshl_or_b32 v{vf}, v{c4}, 3, v{vf}")
    g(f"v_lshlrev_b32 v{vlw}, 6, v{r}"); g(f"v_lshl_add_u32 v{vlw}, v{gg}, 5, v{vlw}"); g(f"v_lshl_add_u32 v{vlw}, v{c4}, 3, v{vlw}")
    g(f"s_mul_i32 s62, {sW}, 288"); g(f"s_add_u32 s62, s62, {L_LAT}"); g(f"v_add_u32 v{vlw}, s62, v{vlw}")
    g(f"v_mul_u32_u24 v{vlr}, 288, v{c4}"); g(f"v_lshl_add_u32 v{vlr}, v{gg}, 4, v{vlr}"); g(f"v_add_u32 v{vlr}, {L_LAT}, v{vlr}")
    g(f"v_bfe_u32 v{vcs}, v1, 1, 1"); g(f"v_lshlrev_b32 v{vcs}, 9, v{vcs}"); g(f"v_lshl_add_u32 v{vcs}, v{gg}, 5, v{vcs}"); g(f"v_and_b32 v2, 1, v1"); g(f"v_lshl_add_u32 v{vcs}, v2, 4, v{vcs}")
    g(f"v_and_b32 v2, 7, v1"); g(f"v_lshlrev_b32 v{vh}, 6, v2"); g(f"v_lshlrev_b32 v2, 9, v2"); g(f"v_lshl_add_u32 v2, v{gg}, 5, v2")
    g(f"v_and_b32 v3, 8, v1"); g(f"v_lshl_add_u32 v{vclo}, v3, 1, v2")
    g(f"v_lshl_add_u32 v{vh}, v{gg}, 4, v{vh}")
    g(f"s_lshl_b32 s62, {sW}, 6"); g(f"v_lshlrev_b32 v{vbp}, 2, v{gg}"); g(f"v_add_u32 v{vbp}, s62, v{vbp}")
    g(f"v_and_b32 v2, 1, v1"); g(f"v_lshlrev_b32 v2, 4, v2"); g(f"v_mov_b32 v3, 0xffff"); g(f"v_lshlrev_b32 v3, v2, v3"); g(f"v_bfe_u32 v2, v1, 1, 2")
    for k in range(4):
        g(f"v_cmp_eq_u32 vcc, {k}, v2"); g("s_nop 1"); g(f"v_cndmask_b32 v{mk+k}, 0, v3, vcc")
    g(f"s_add_u32 m0, s60, {L_WUV}"); g(f"s_add_u32 s61, {sQoff}, 0x20000")
    quad(WUV, sQoff)
    g("s_add_u32 m0, m0, 0x1000"); g("v_lshlrev_b32 v3, 2, v1")
    quad(WUV, "s61")
    g(f"s_add_u32 s44, s44, {FL2-FL1}")
    g("s_waitcnt vmcnt(12)")
    g(f"s_cmp_lt_u32 {sCB}, 22"); g("s_cbranch_scc1 L_Wnf2")
    g("s_waitcnt vmcnt(8)")
    g.label("L_Wnf2")
    g("s_barrier")
    g(f"s_cmp_eq_u32 {sW}, 0"); g("s_cselect_b32 exec_lo, 0xffff, 0"); g("s_mov_b32 exec_hi, 0")
    g(f"buffer_store_dword v{vT}, v3, {WS}, s44 offen sc1")
    g("s_mov_b64 exec, -1")
    g.stamp(14)
    sHP, sWOo = "s23", "s46"
    g(f"s_lshl_b32 {sWOo}, s1, 15"); g(f"s_add_u32 {sWOo}, {sWOo}, s58")
    g(f"s_cmp_ge_u32 {sCB}, 22"); g("s_cbranch_scc1 L_Wnf3")
    g(f"v_lshl_add_u32 v{vt1}, v{gg}, 3, v{r}"); g(f"v_lshlrev_b32 v{vt1}, 7, v{vt1}"); g(f"v_lshl_add_u32 v{vt1}, v{c4}, 3, v{vt1}")
    g(f"s_lshl_b32 s62, {sW}, 5"); g(f"s_add_u32 s62, s62, {L_W1}"); g(f"v_add_u32 v{vt1}, s62, v{vt1}")
    for u in range(4):
        for hf in range(2): g.lds(f"ds_read_b64_tr_b16 {vr(ta+4*u+2*hf,2)}, v{vt1} offset:{u*4096+hf*512}")
    g(f"s_lshl_b32 {sHP}, s6, 11"); g(f"s_add_u32 {sHP}, {sHP}, {HP}")
    g(f"s_lshl_b32 s62, {sW}, 9"); g(f"s_add_u32 s62, s62, {sHP}"); g("s_lshl_b32 s63, s7, 7"); g("s_add_u32 s62, s62, s63")
    g("s_lshl_b32 s63, s7, 9"); g(f"s_add_u32 {sHP}, {sHP}, s63")
    g.lwait0()
    for u in range(4): g(f"v_mfma_f32_16x16x32_bf16 {vr(Da,4)}, {vr(ta+4*u,4)}, {vr(xb+4*u,4)}, {vr(Da,4) if u else 0}")
    g(f"v_mov_b32 v{hpv+2}, v{vT}")
    g("s_mov_b32 exec_lo, 0x00030003"); g("s_mov_b32 exec_hi, 0x00030003")
    g("s_nop 4")
    g(f"v_cvt_pk_bf16_f32 v{hpv}, v{Da}, v{Da+1}"); g(f"v_cvt_pk_bf16_f32 v{hpv+1}, v{Da+2}, v{Da+3}")
    g(f"buffer_store_dwordx4 {vr(hpv,4)}, v{vh}, {WS}, s62 offen sc1")
    g("s_mov_b64 exec, -1")
    g.label("L_Wnf3")
    hp = ta
    def wo_quad():
        for j, rg in enumerate((vA, vk + 2, vk + 5, vk + 6)):
            g(f"buffer_load_dwordx4 v{rg}, {WO}, {sWOo} offen offset:{j*1024} nt lds")
    g(f"s_add_u32 m0, s60, {L_WO}"); g("s_nop 0")
    wo_quad()
    g("s_add_u32 m0, m0, 0x1000"); g(f"s_add_u32 {sWOo}, {sWOo}, 0x4000")
    g(f"s_cmp_ge_u32 {sCB}, 22"); g("s_cbranch_scc1 L_Wnf3b")
    g(f"buffer_load_dwordx4 {vr(hp+4,4)}, v{vh}, {WS}, {sHP} offen sc1")
    g.label("L_Wnf3b")
    wo_quad()
    g("s_waitcnt vmcnt(8)")
    g("s_barrier")
    g.stamp(7)
    for u in range(4):
        for T in range(2):
            for hf in range(2):
                g.lds(f"ds_read_b64_tr_b16 {vr(uv+16*T+4*u+2*hf,2)}, v{vtr} offset:{L_WUV + u*8192 + hf*1024 + T*8}")
    g(f"s_cmp_ge_u32 {sCB}, 22"); g("s_cbranch_scc1 L_Wnf4")
    g(f"v_lshl_add_u32 v2, v{gg}, 2, v{r}"); g(f"v_lshlrev_b32 v2, 8, v2"); g(f"s_add_u32 s62, s59, {L_W2}"); g(f"v_add_u32 v2, s62, v2")
    for tl in range(8):
        g(f"v_xor_b32 v{vwo+tl}, {tl*32}, v{vf}"); g(f"v_add_u32 v{vwo+tl}, v{vwo+tl}, v2")
    w2f = qf
    for tl in range(8): g.lds(f"ds_read_b64_tr_b16 {vr(w2f+2*tl,2)}, v{vwo+tl}")
    g("s_mov_b32 s63, 0")
    g("s_waitcnt vmcnt(4)")
    g("s_branch L_Wh_c")
    g.label("L_Wh")
    g(f"buffer_load_dwordx4 {vr(hp+4,4)}, v{vh}, {WS}, {sHP} offen sc1")
    g("s_add_u32 s63, s63, 1"); g(f"s_cmp_gt_u32 s63, {SPIN}"); g("s_cbranch_scc1 L_Wh_x")
    g("s_waitcnt vmcnt(0)")
    g.label("L_Wh_c")
    g(f"v_cmp_ne_u32 vcc, {sT}, v{hp+6}")
    g("s_cbranch_vccnz L_Wh")
    g("s_branch L_Wh_y")
    g.label("L_Wh_x")
    g("s_waitcnt vmcnt(0)")
    g.label("L_Wh_y")
    g(f"v_lshlrev_b32 v{hp}, 16, v{hp+4}"); g(f"v_and_b32 v{hp+1}, 0xffff0000, v{hp+4}")
    g(f"v_lshlrev_b32 v{hp+2}, 16, v{hp+5}"); g(f"v_and_b32 v{hp+3}, 0xffff0000, v{hp+5}")
    for k in range(4): g(f"v_add_f32_dpp v{hp+k}, v{hp+k}, v{hp+k} quad_perm:[2,3,0,1] {DPPF}")
    for k in range(4): g(f"v_add_f32_dpp v{hp+k}, v{hp+k}, v{hp+k} row_ror:4 {DPPF}")
    g(f"v_cvt_pk_bf16_f32 v{hp+4}, v{hp}, v{hp+1}"); g(f"v_cvt_pk_bf16_f32 v{hp+5}, v{hp+2}, v{hp+3}")
    g(f"v_lshlrev_b32 v{hp}, 16, v{hp+4}"); g(f"v_and_b32 v{hp+1}, 0xffff0000, v{hp+4}")
    g(f"v_lshlrev_b32 v{hp+2}, 16, v{hp+5}"); g(f"v_and_b32 v{hp+3}, 0xffff0000, v{hp+5}")
    for k in range(4): g(f"v_mul_f32 v{hp+8+k}, {f2u(-1.4426950408889634):#x}, v{hp+k}")
    for k in range(4): g(f"v_exp_f32 v{hp+8+k}, v{hp+8+k}")
    g("s_nop 0")
    for k in range(4): g(f"v_add_f32 v{hp+8+k}, 1.0, v{hp+8+k}")
    for k in range(4): g(f"v_rcp_f32 v{hp+8+k}, v{hp+8+k}")
    g("s_nop 0")
    for k in range(4): g(f"v_mul_f32 v{hp+k}, v{hp+k}, v{hp+8+k}")
    g(f"v_cvt_pk_bf16_f32 v{hp+4}, v{hp}, v{hp+1}"); g(f"v_cvt_pk_bf16_f32 v{hp+5}, v{hp+2}, v{hp+3}")
    g("s_mov_b32 s62, 0x00030003"); g("s_mov_b32 s63, s62"); g("s_lshl_b64 s[64:65], s[62:63], 8")
    for k in range(2):
        g(f"v_cndmask_b32 v{hlo+k}, 0, v{hp+4+k}, s[62:63]"); g(f"v_cndmask_b32 v{hhi+k}, 0, v{hp+4+k}, s[64:65]")
    g.lwait0()
    TLO = (0, 1, 4, 5); THI = (2, 3, 6, 7)
    for k in range(4): g(f"v_mfma_f32_16x16x16_bf16 {vr(acc+4*k,4)}, {vr(hlo,2)}, {vr(w2f+2*TLO[k],2)}, {vr(acc+4*k,4)}")
    for k in range(4): g(f"v_mfma_f32_16x16x16_bf16 {vr(acc+4*k,4)}, {vr(hhi,2)}, {vr(w2f+2*THI[k],2)}, {vr(acc+4*k,4)}")
    g.label("L_Wnf4")
    g.lwait0()
    g(f"v_lshl_add_u32 v2, v{gg}, 3, v{r}"); g(f"v_lshlrev_b32 v2, 8, v2"); g(f"s_add_u32 s62, s60, {L_WO}"); g(f"v_add_u32 v2, s62, v2")
    for tl in range(8):
        g(f"v_xor_b32 v{vwo+tl}, {tl*32}, v{vf}"); g(f"v_add_u32 v{vwo+tl}, v{vwo+tl}, v2")
    g("s_waitcnt vmcnt(0)")
    g.stamp(8)
    for tl in range(8):
        for hf in range(2): g.lds(f"ds_read_b64_tr_b16 {ar(wo+4*tl+2*hf,2)}, v{vwo+tl} offset:{hf*1024}")
    sSTo, sCPs, sCPl, sCnt, sBl, sRL = "s16", "s18", "s19", "s20", "s21", "s22"
    g(f"s_lshl_b32 {sSTo}, s6, 10"); g(f"s_add_u32 {sSTo}, {sSTo}, {ST}")
    g(f"s_lshl_b32 s62, s6, 12"); g(f"s_add_u32 s62, s62, {CP}")
    g(f"s_lshl_b32 s63, s7, 7"); g(f"s_add_u32 {sCPl}, s62, s63")
    g(f"s_lshl_b32 s63, s7, 10"); g(f"s_add_u32 {sCPs}, s62, s63"); g(f"s_lshl_b32 s63, {sW}, 7"); g(f"s_add_u32 {sCPs}, {sCPs}, s63")
    g(f"s_lshr_b32 {sBl}, {sW}, 1"); g(f"s_lshl_b32 {sBl}, {sBl}, 5")
    g("s_mov_b32 s70, 0xaaaaaaaa"); g("s_mov_b32 s71, s70")
    stt = xa; pf = qf; af = ta; wd = xa + 4; mx = xa + 5; wb = f + 12
    g(f"s_mov_b32 {sCnt}, 0")
    g.label("L_Ws")
    g(f"buffer_load_dwordx4 {vr(stt,4)}, v{l16}, {WS}, {sSTo} offen sc1")
    g(f"s_add_u32 {sCnt}, {sCnt}, 1"); g(f"s_cmp_gt_u32 {sCnt}, {SPIN}"); g("s_cbranch_scc1 L_Ws_x")
    g("s_waitcnt vmcnt(0)")
    g(f"v_cmp_ne_u32 vcc, {sT}, v{stt+2}")
    g("s_cbranch_vccnz L_Ws")
    g.label("L_Ws_x")
    g("s_waitcnt vmcnt(0)")
    g.stamp(9)
    for u in range(4): g(f"buffer_load_dwordx4 {vr(pf+4*u,4)}, v{l16}, {WS}, {sPOo} offen offset:{u*1024} sc1")
    g(f"v_mov_b32 v{mx}, v{stt}"); g("s_nop 1")
    reduce32(g, "max", mx, t)
    g(f"v_sub_f32 v{mx}, v{stt}, v{mx}")
    g(f"v_exp_f32 v{mx}, v{mx}")
    g("s_nop 0")
    g(f"v_cvt_pk_bf16_f32 v{wd}, v{mx}, v{mx}")
    for u in range(4): g.lds(f"ds_bpermute_b32 v{wb+u}, v{vbp}, v{wd} offset:{16*u}")
    g(f"v_and_b32 v{mx}, 0xffff0000, v{wd}")
    g(f"v_mul_f32 v{mx}, v{mx}, v{stt+1}"); g("s_nop 1")
    reduce32(g, "add", mx, t)
    g(f"v_rcp_f32 v{mx}, v{mx}")
    g.lwait0()
    for u in range(4):
        for k in range(4): g(f"v_and_b32 v{af+4*u+k}, v{wb+u}, v{mk+k}")
    g(f"v_readlane_b32 {sRL}, v{mx}, {sBl}")
    g(f"s_mov_b32 {sCnt}, 0")
    g("s_branch L_Wp_c")
    g.label("L_Wp")
    for u in range(4): g(f"buffer_load_dwordx4 {vr(pf+4*u,4)}, v{l16}, {WS}, {sPOo} offen offset:{u*1024} sc1")
    g.label("L_Wp_c")
    g(f"s_add_u32 {sCnt}, {sCnt}, 1"); g(f"s_cmp_gt_u32 {sCnt}, {SPIN}"); g("s_cbranch_scc1 L_Wp_x")
    g("s_waitcnt vmcnt(0)")
    g(f"v_max3_u32 v{chk}, v{pf+3}, v{pf+7}, v{pf+11}"); g(f"v_max_u32 v{chk}, v{chk}, v{pf+15}")
    g(f"v_cmp_eq_u32 vcc, -1, v{chk}")
    g("s_cbranch_vccnz L_Wp")
    g.label("L_Wp_x")
    g("s_waitcnt vmcnt(0)")
    g.stamp(10)
    for u in range(4): g(f"v_mfma_f32_16x16x32_bf16 {vr(Da,4)}, {vr(af+4*u,4)}, {vr(pf+4*u,4)}, {vr(Da,4) if u else 0}")
    g("s_mov_b32 exec_hi, 0")
    g("s_nop 6")
    for k in range(4): g(f"v_mul_f32 v{Da+k}, {sRL}, v{Da+k}")
    g(f"v_cvt_pk_bf16_f32 v{qo}, v{Da}, v{Da+1}"); g(f"v_cvt_pk_bf16_f32 v{qo+1}, v{Da+2}, v{Da+3}")
    g(f"ds_write_b64 v{vlw}, {vr(qo,2)}")
    g("s_mov_b64 exec, -1")
    g.lwait0()
    g("s_barrier")
    for u in range(4): g.lds(f"ds_read_b128 {vr(xb+4*u,4)}, v{vlr} offset:{u*64}", ("lf", u))
    for u in range(4):
        g.lwait(("lf", u))
        g(f"v_mfma_f32_16x16x32_bf16 {vr(Da,4)}, {vr(uv+4*u,4)}, {vr(xb+4*u,4)}, {vr(Da,4) if u else 0}")
        g(f"v_mfma_f32_16x16x32_bf16 {vr(Db,4)}, {vr(uv+16+4*u,4)}, {vr(xb+4*u,4)}, {vr(Db,4) if u else 0}")
    g("s_nop 6")
    for k in range(8): g(f"v_add_f32_dpp v{Da+k}, v{Da+k}, v{Da+k} quad_perm:[1,0,3,2] {DPPF}")
    g("s_mov_b32 exec_lo, 0x000f000f"); g("s_mov_b32 exec_hi, 0x000f000f")
    pack_granule("s[70:71]")
    g(f"buffer_store_dwordx4 {vr(Ga,4)}, v{vcs}, {WS}, {sCPs} offen sc1")
    g("s_mov_b64 exec, -1")
    g.stamp(11)
    for k in range(8): g(f"v_mov_b32 v{pf+8+k}, 0")
    cl, ch = pf, pf + 8
    g(f"s_mov_b32 {sCnt}, 0")
    g("s_waitcnt vmcnt(0)")
    g.label("L_Wd")
    g(f"buffer_load_dwordx4 {vr(cl,4)}, v{vclo}, {WS}, {sCPl} offen sc1")
    g(f"s_add_u32 {sCnt}, {sCnt}, 1"); g(f"s_cmp_gt_u32 {sCnt}, {SPIN}"); g("s_cbranch_scc1 L_Wd_x")
    g("s_waitcnt vmcnt(0)")
    g(f"v_cmp_ne_u32 vcc, {sT}, v{cl}")
    g("s_cbranch_vccnz L_Wd")
    g.label("L_Wd_x")
    g("s_waitcnt vmcnt(0)")
    AL, AH = pf + 8, pf + 12
    for k in range(2):
        g(f"v_mov_b32_dpp v{AL+k}, v{cl+2+k} quad_perm:[0,1,2,3] row_mask:0xf bank_mask:0x3")
        g(f"v_mov_b32_dpp v{AL+2+k}, v{cl+2+k} row_ror:8 row_mask:0xf bank_mask:0x3")
        g(f"v_mov_b32_dpp v{AH+k}, v{cl+2+k} row_ror:8 row_mask:0xf bank_mask:0xc")
        g(f"v_mov_b32_dpp v{AH+2+k}, v{cl+2+k} quad_perm:[0,1,2,3] row_mask:0xf bank_mask:0xc")
    g("s_nop 0")
    g("s_nop 0")
    for k in range(4): g(f"v_mfma_f32_16x16x32_bf16 {vr(acc+4*k,4)}, {vr(AL,4)}, {ar(wo+4*TLO[k],4)}, {vr(acc+4*k,4)}")
    for k in range(4): g(f"v_mfma_f32_16x16x32_bf16 {vr(acc+4*k,4)}, {vr(AH,4)}, {ar(wo+4*THI[k],4)}, {vr(acc+4*k,4)}")
    g("s_nop 4")
    R = qo; U = Da
    g(f"v_pk_add_f32 {vr(R,2)}, {vr(acc,2)}, {vr(acc+2,2)}")
    g(f"v_pk_add_f32 {vr(U,2)}, {vr(acc+4,2)}, {vr(acc+6,2)}")
    g(f"v_pk_add_f32 {vr(R+2,2)}, {vr(acc+8,2)}, {vr(acc+10,2)}")
    g(f"v_pk_add_f32 {vr(U+2,2)}, {vr(acc+12,2)}, {vr(acc+14,2)}")
    g("s_nop 0")
    for k in range(4): g(f"v_permlane16_swap_b32 v{R+k}, v{U+k}")
    g("s_nop 0")
    g(f"v_pk_add_f32 {vr(R,2)}, {vr(R,2)}, {vr(U,2)}"); g(f"v_pk_add_f32 {vr(R+2,2)}, {vr(R+2,2)}, {vr(U+2,2)}")
    g(f"buffer_store_dwordx4 {vr(R,4)}, v{vop}, {WS}, {sOPo} offen sc1")
    g.stamp(2)
    dump_stamps(g)
    g("s_endpgm")

    g.label("L_A2")
    g.lq = []
    g("""
    s_load_dword s43, s[8:9], 0
    s_load_dwordx2 s[52:53], s[0:1], 72
    """)
    dbg_init()
    g.reset_v(12)
    vj = l16
    vpo, vfl, vfo = g.v(), g.v(), g.v()
    abody(2, 0); abody(3, 0)
    g.stamp(1)
    srd(8, WS_REC); srd(12, 2048); srd(52, 2048)
    g(f"s_xor_b32 s58, {sRow}, 0x10000"); g("s_mov_b32 m0, s58"); g("s_add_u32 s59, s58, s57")
    abody(0, 1); abody(1, 1); abody(2, 1)
    g(f"v_lshlrev_b32 v{vfo}, 7, v1"); g("s_lshl_b32 s34, s6, 13"); g(f"s_add_u32 s34, s34, {FL1}")
    g(f"buffer_load_dword v{vfl}, v{vfo}, {WS}, s34 offen sc1")
    abody(3, 1)
    g.stamp(2)
    n, gg, r, c4 = g.v(), g.v(), g.v(), g.v()
    g(f"v_and_b32 v{n}, 15, v1"); g(f"v_lshrrev_b32 v{gg}, 4, v1"); g(f"v_bfe_u32 v{r}, v1, 2, 2"); g(f"v_and_b32 v{c4}, 3, v1")
    g(f"""
    s_lshl_b32 {sPOs}, s6, 20
    s_lshl_b32 s56, s3, 14
    s_add_u32 {sPOs}, {sPOs}, s56
    s_lshl_b32 s56, s7, 8
    s_add_u32 {sPOs}, {sPOs}, s56
    s_add_u32 {sPOs}, {sPOs}, {PO}
    """)
    sHX = "s35"
    g(f"s_mov_b32 {sHX}, {'s6' if swap else 0}")
    g(f"v_lshlrev_b32 v{vpo}, 16, v{n}"); g(f"v_lshl_add_u32 v{vpo}, v{gg}, 4, v{vpo}")
    vro, xr = g.v(), g.v()
    g(f"v_and_b32 v2, 1, v{gg}"); g(f"v_lshlrev_b32 v{vro}, 10, v2"); g(f"v_lshrrev_b32 v2, 1, v{gg}"); g(f"v_lshl_add_u32 v{vro}, v2, 7, v{vro}")
    g(f"v_and_b32 v2, 1, v1"); g(f"v_lshl_add_u32 v{vro}, v2, 1, v{vro}")
    sRo = "s26"
    g(f"""
    s_sub_u32 s56, s4, 16
    s_lshl4_add_u32 {sRid}, s5, s56
    s_lshr_b32 s56, {sRid}, 5
    s_lshl_b32 {sRo}, s56, 8
    s_bfe_u32 s56, {sRid}, 0x20003
    s_lshl_b32 s56, s56, 5
    s_add_u32 {sRo}, {sRo}, s56
    s_and_b32 s56, {sRid}, 7
    s_lshl2_add_u32 {sRo}, s56, {sRo}
    """)
    g(f"buffer_load_ushort v{xr}, v{vro}, {X}, {sRo} offen")
    vkq = g.v(4); vpv = g.v(16); vpw = g.v(2); vpr = g.v(2); vmx = g.v(); vqd = g.v(); vqr = g.v(); vqc = g.v(); vst = g.v()
    for k in range(4):
        g(f"v_add_u32 v2, {4*k}, v{gg}"); g(f"v_xor_b32 v2, v2, v{n}"); g(f"v_lshlrev_b32 v2, 4, v2"); g(f"v_lshl_add_u32 v2, v{n}, 10, v2"); g(f"v_add_u32 v{vkq+k}, {sRow}, v2")
    g(f"v_and_b32 v2, 1, v{gg}"); g(f"v_lshlrev_b32 v2, 2, v2"); g(f"v_add_lshl_u32 v2, v2, v{r}, 1")
    g(f"v_lshrrev_b32 v3, 1, v{c4}"); g(f"v_xor_b32 v2, v2, v3"); g(f"v_lshlrev_b32 v2, 4, v2")
    g(f"v_and_b32 v3, 1, v1"); g(f"v_lshl_add_u32 v2, v3, 3, v2")
    g(f"v_lshl_add_u32 v3, v{gg}, 2, v{r}"); g(f"v_lshl_add_u32 v2, v3, 11, v2")
    g(f"s_lshl_b32 s56, {sHX}, 16"); g(f"s_lshl_b32 s58, s3, 8"); g("s_add_u32 s56, s56, s58"); g(f"v_add_u32 v2, s56, v2")
    for T in range(8):
        g(f"v_xor_b32 v{vpv+2*T}, {T*32}, v2")
        g(f"v_xor_b32 v3, {T*32+16}, v2"); g(f"v_add_u32 v{vpv+2*T+1}, 0x400, v3")
    g(f"v_mul_u32_u24 v2, 272, v{n}"); g(f"v_lshrrev_b32 v3, 1, v{gg}"); g(f"v_lshl_add_u32 v{vpw}, v3, 4, v2"); g(f"v_and_b32 v3, 1, v{gg}"); g(f"v_lshl_add_u32 v{vpw}, v3, 2, v{vpw}")
    g(f"s_lshl_b32 s56, {sHX}, 7"); g(f"s_xor_b32 s58, s56, 0x80"); g(f"s_lshl_b32 s59, s3, 5"); g(f"s_add_u32 s59, s59, {L_P}")
    g("s_add_u32 s60, s58, s59"); g("s_add_u32 s59, s56, s59")
    g(f"v_add_u32 v{vpw+1}, s60, v{vpw}"); g(f"v_add_u32 v{vpw}, s59, v{vpw}")
    g(f"v_lshl_add_u32 v2, v{gg}, 4, v2"); g(f"s_add_u32 s56, s56, {L_P}"); g(f"s_add_u32 s58, s58, {L_P}")
    g(f"v_add_u32 v{vpr}, s56, v2"); g(f"v_add_u32 v{vpr+1}, s58, v2")
    g(f"v_lshlrev_b32 v{vmx}, 2, v{n}"); g(f"v_add_u32 v{vmx}, {L_MX}, v{vmx}")
    g(f"v_lshlrev_b32 v{vqd}, 6, v{n}"); g(f"v_lshl_add_u32 v{vqd}, v{gg}, 4, v{vqd}")
    g(f"v_add_u32 v{vqr}, {L_QA}, v{vj}")
    sQAl, sQAm, sSTs = "s27", "s30", "s31"
    g(f"""
    s_lshl_b32 {sQAm}, s3, 12
    s_lshr_b32 s56, s7, 5
    s_lshl1_add_u32 s56, s56, s6
    s_lshl_b32 s56, s56, 14
    s_add_u32 {sQAl}, s56, {sQAm}
    s_add_u32 {sQAl}, {sQAl}, {QA}
    s_add_u32 {sQAm}, {sQAm}, {L_QA}
    s_lshl_b32 {sSTs}, s6, 14
    s_lshl4_add_u32 {sSTs}, s7, {sSTs}
    s_add_u32 {sSTs}, {sSTs}, {ST}
    """)
    g(f"v_add_u32 v{vqc}, {sQAm}, v{vj}")
    g(f"v_lshlrev_b32 v{vst}, 10, v{n}")
    ones = g.v(4, 4)
    for k in range(4): g(f"v_mov_b32 v{ones+k}, 0x3f803f80")
    g(f"v_mov_b32 v2, 0xff800000")
    g(f"ds_write_b32 v{vmx}, v2")
    g.lwait0()
    g(f"s_mul_i32 {sT}, {sE}, 0x9E3779B1"); g(f"s_add_u32 {sT}, {sT}, 0x7F4A7C15")
    g("s_waitcnt vmcnt(18)")
    g.stamp(3)
    for u in range(16): g.lds(f"ds_read_b128 {ar(4*u,4)}, v{vkq+(u&3)} offset:{(u>>2)*256}")
    g("s_barrier")
    for ks in range(2):
        for T in range(8):
            for hf in range(2):
                g.lds(f"ds_read_b64_tr_b16 {ar(128+(ks*8+T)*4+2*hf,2)}, v{vpv+2*T+hf} offset:{ks*32768}")
    for k in range(4): g(f"v_xor_b32 v{vkq+k}, 0x10000, v{vkq+k}")
    g.lwait0()
    for k in range(16): g(f"v_xor_b32 v{vpv+k}, 0x10000, v{vpv+k}")
    g("s_waitcnt vmcnt(5)")
    g(f"v_cmp_ne_u32 vcc, {sT}, v{vfl}")
    g("s_cbranch_vccnz L_Af1")
    g.label("L_Af1_x")
    g.stamp(4)
    qf = g.v(64, 4); chk = g.v()
    g(f"s_mov_b32 m0, {sQAm}")
    g(f"s_mov_b32 {sCnt}, 0")
    for j in range(4): g(f"buffer_load_dwordx4 v{vqd}, {WS}, {sQAl} offen offset:{j*1024} sc1 lds")
    g("s_waitcnt vmcnt(5)")
    g.stamp(5)
    for u in range(16): g.lds(f"ds_read_b128 {ar(64+4*u,4)}, v{vkq+(u&3)} offset:{(u>>2)*256}")
    g("s_branch L_Aq_c")
    g.label("L_Aq")
    for j in range(4): g(f"buffer_load_dwordx4 v{vqd}, {WS}, {sQAl} offen offset:{j*1024} sc1 lds")
    g.label("L_Aq_c")
    g(f"s_add_u32 {sCnt}, {sCnt}, 1"); g(f"s_cmp_gt_u32 {sCnt}, {SPIN}"); g("s_cbranch_scc1 L_Aq_x")
    g("s_waitcnt vmcnt(0) lgkmcnt(8)")
    for j in range(4): g(f"ds_read_b128 {vr(qf+4*j,4)}, v{vqc} offset:{j*1024}")
    g.lwait0()
    g(f"v_max3_u32 v{chk}, v{qf+3}, v{qf+7}, v{qf+11}"); g(f"v_max_u32 v{chk}, v{chk}, v{qf+15}")
    g(f"v_cmp_eq_u32 vcc, -1, v{chk}")
    g("s_cbranch_vccnz L_Aq")
    g.label("L_Aq_x")
    g("s_waitcnt vmcnt(0) lgkmcnt(0)")
    g("s_barrier")
    g.stamp(6)
    SX = g.v(4, 4); SY = g.v(4, 4); O = g.v(32, 4); pfr = g.v(16, 4); LD = g.v(4, 4); pk = g.v(16, 4)
    trY = [(ks, T, hf) for ks in range(2) for T in range(8) for hf in range(2)]
    def try_(k):
        ks, T, hf = trY[k]
        g.lds(f"ds_read_b64_tr_b16 {ar(128+((ks+2)*8+T)*4+2*hf,2)}, v{vpv+2*T+hf} offset:{ks*32768}")
    AHEAD = 8
    g(f"s_add_u32 s34, s34, {FL2-FL1}")
    g(f"buffer_load_dword v{vfl}, v{vfo}, {WS}, s34 offen sc1")
    for u in range(AHEAD): g.lds(f"ds_read_b128 {vr(qf+4*u,4)}, v{vqr} offset:{u*1024}", ("q", u))
    for u in range(16):
        g.lwait(("q", u))
        g(f"v_mfma_f32_16x16x32_bf16 {vr(SX,4)}, {ar(4*u,4)}, {vr(qf+4*u,4)}, {vr(SX,4) if u else 0}")
        if u + AHEAD < 16: g.lds(f"ds_read_b128 {vr(qf+4*(u+AHEAD),4)}, v{vqr} offset:{(u+AHEAD)*1024}", ("q", u + AHEAD))
        else: try_(2 * (u + AHEAD - 16))
        g(f"v_mfma_f32_16x16x32_bf16 {vr(SY,4)}, {ar(64+4*u,4)}, {vr(qf+4*u,4)}, {vr(SY,4) if u else 0}")
        if u + AHEAD >= 16: try_(2 * (u + AHEAD - 16) + 1)
    ntr = 16
    mxv, t2 = g.v(), g.v()
    g("s_nop 5")
    g(f"v_max3_f32 v{mxv}, v{SX}, v{SX+1}, v{SX+2}")
    g(f"v_max3_f32 v{t2}, v{SX+3}, v{SY}, v{SY+1}")
    g(f"v_max3_f32 v{mxv}, v{mxv}, v{SY+2}, v{SY+3}")
    g(f"v_max_f32 v{mxv}, v{mxv}, v{t2}")
    g(f"ds_max_f32 v{vmx}, v{mxv}")
    g.lwait0()
    g("s_barrier")
    g(f"ds_read_b32 v{mxv}, v{vmx}")
    g(f"s_mov_b32 s56, {KSCALE:#x}")
    g.lwait0()
    STG = g.v(4, 4)
    g(f"v_mul_f32 v{STG}, s56, v{mxv}")
    assert SY == SX + 4
    for k in range(8): g(f"v_fma_f32 v{SX+k}, v{SX+k}, s56, -v{STG}")
    for k in range(8): g(f"v_exp_f32 v{SX+k}, v{SX+k}")
    g(f"v_mov_b32 v{STG+2}, {sT}")
    for H in range(2):
        g(f"v_cvt_pk_bf16_f32 v{pk+2*H}, v{SX+4*H}, v{SX+4*H+2}"); g(f"v_cvt_pk_bf16_f32 v{pk+2*H+1}, v{SX+4*H+1}, v{SX+4*H+3}")
        g(f"ds_write2_b32 v{vpw+H}, v{pk+2*H}, v{pk+2*H+1} offset1:2")
    g.lwait0()
    g("s_barrier")
    g.stamp(7)
    for ks in range(4): g.lds(f"ds_read_b128 {vr(pfr+4*ks,4)}, v{vpr+(ks>>1)} offset:{(ks&1)*64}", ("p", ks))
    for k in range(ntr, ntr + 8): try_(k)
    g(f"s_cmp_lg_u32 {sW}, 0"); g("s_cbranch_scc1 L_Anol")
    save = list(g.lq)
    g.lwait(("p", 3))
    for ks in range(4): g(f"v_mfma_f32_16x16x32_bf16 {vr(LD,4)}, {vr(ones,4)}, {vr(pfr+4*ks,4)}, {vr(LD,4) if ks else 0}")
    g.label("L_Anol")
    g.lq = save
    g.lwait(("p", 1))
    for T in range(8):
        g(f"v_mfma_f32_16x16x32_bf16 {vr(O+4*T,4)}, {ar(128+T*4,4)}, {vr(pfr,4)}, 0")
        try_(ntr + 8 + T)
    g("s_waitcnt vmcnt(0)")
    g(f"v_cmp_ne_u32 vcc, {sT}, v{vfl}")
    g("s_cbranch_vccnz L_Af2")
    g.label("L_Af2_x")
    g(f"s_cmp_lg_u32 {sW}, 0"); g("s_cbranch_scc1 L_Anos")
    g(f"v_mov_b32 v{STG+1}, v{LD}")
    g("s_mov_b64 exec, 0xffff")
    g(f"buffer_store_dwordx4 {vr(STG,4)}, v{vst}, {WS}, {sSTs} offen sc1")
    g("s_mov_b64 exec, -1")
    g.label("L_Anos")
    for T in range(8): g(f"v_mfma_f32_16x16x32_bf16 {vr(O+4*T,4)}, {ar(128+(8+T)*4,4)}, {vr(pfr+4,4)}, {vr(O+4*T,4)}")
    g.lwait0()
    def epi(b):
        for q in range(2):
            g(f"v_cvt_pk_bf16_f32 v{pk+4*b+2*q}, v{O+8*b+4*q}, v{O+8*b+4*q+1}")
            g(f"v_cvt_pk_bf16_f32 v{pk+4*b+2*q+1}, v{O+8*b+4*q+2}, v{O+8*b+4*q+3}")
        g(f"buffer_store_dwordx4 {vr(pk+4*b,4)}, v{vpo}, {WS}, {sPOs} offen offset:{b*64} sc1")
    for b in range(4):
        for ks in (2, 3):
            for T in (2 * b, 2 * b + 1):
                g(f"v_mfma_f32_16x16x32_bf16 {vr(O+4*T,4)}, {ar(128+(ks*8+T)*4,4)}, {vr(pfr+4*ks,4)}, {vr(O+4*T,4)}")
        if b >= 2: epi(b - 2)
    g("s_nop 2")
    epi(2)
    g("s_nop 1")
    epi(3)
    g.stamp(8)
    g(f"s_cmp_lg_u32 {sW}, 0"); g("s_cbranch_scc1 L_Aend")
    op = qf
    g("s_xor_b32 s34, s34, 0x2000")
    g(f"buffer_load_dword v{vfl}, v{vfo}, {WS}, s34 offen sc1")
    g("s_waitcnt vmcnt(0)")
    g(f"v_cmp_ne_u32 vcc, {sT}, v{vfl}")
    g("s_cbranch_vccnz L_Af3")
    g.label("L_Af3_x")
    g(f"s_lshl_b32 s56, {sRid}, 12"); g(f"s_add_u32 s56, s56, {OP}")
    g(f"v_lshlrev_b32 v{xr}, 16, v{xr}")
    g(f"s_mov_b32 {sCnt}, 0")
    g.label("L_R")
    for j in range(4): g(f"buffer_load_dwordx4 {vr(op+4*j,4)}, v{vj}, {WS}, s56 offen offset:{j*1024} sc1")
    g(f"s_add_u32 {sCnt}, {sCnt}, 1"); g(f"s_cmp_gt_u32 {sCnt}, {SPIN}"); g("s_cbranch_scc1 L_R_x")
    g("s_waitcnt vmcnt(0)")
    g(f"v_max3_u32 v{chk}, v{op+3}, v{op+7}, v{op+11}"); g(f"v_max_u32 v{chk}, v{chk}, v{op+15}")
    g(f"v_cmp_eq_u32 vcc, -1, v{chk}")
    g("s_cbranch_vccnz L_R")
    g.label("L_R_x")
    g("s_waitcnt vmcnt(0)")
    g.stamp(9)
    for k in range(2):
        g(f"v_pk_add_f32 {vr(op+2*k,2)}, {vr(op+2*k,2)}, {vr(op+4+2*k,2)}"); g(f"v_pk_add_f32 {vr(op+8+2*k,2)}, {vr(op+8+2*k,2)}, {vr(op+12+2*k,2)}")
    for k in range(2): g(f"v_pk_add_f32 {vr(op+2*k,2)}, {vr(op+2*k,2)}, {vr(op+8+2*k,2)}")
    g("s_nop 1")
    g(f"v_permlane16_swap_b32 v{op}, v{op+1}"); g(f"v_permlane16_swap_b32 v{op+2}, v{op+3}")
    g("s_nop 0")
    g(f"v_add_f32 v{op}, v{op}, v{op+1}"); g(f"v_add_f32 v{op+2}, v{op+2}, v{op+3}")
    g("s_nop 1")
    g(f"v_permlane32_swap_b32 v{op}, v{op+2}")
    g("s_nop 0")
    g(f"v_add_f32 v{op}, v{op}, v{op+2}")
    for k in (2, 4, 8):
        g("s_nop 1"); g(f"v_add_f32_dpp v{op}, v{op}, v{op} row_ror:{k} {DPPF}")
    g(f"v_add_f32 v{op}, v{op}, v{xr}")
    g("s_mov_b32 exec_lo, 0x00030003"); g("s_mov_b32 exec_hi, 0x00030003")
    g(f"v_cvt_pk_bf16_f32 v{op}, v{op}, v{op}")
    g(f"buffer_store_short v{op}, v{vro}, {OUT}, {sRo} offen")
    g(f"s_cmp_lg_u32 {sRid}, 0"); g("s_cbranch_scc1 L_Aend")
    g("s_mov_b64 exec, 1"); g(f"v_mov_b32 v2, {sT}"); g("v_mov_b32 v3, 0")
    g(f"buffer_store_dword v2, v3, {WS}, 0 offen sc1")
    g.label("L_Aend")
    g.stamp(10)
    dump_stamps(g)
    g("s_endpgm")
    for nm in ("L_Af1", "L_Af2", "L_Af3"): flag_fallback(g, nm, vfl, vfo, "s34", sCnt)
    g.label("L_end")
    body = "\n".join(g.L)
    hdr = open("parallel_sum__compressed_kv_cla__dense_activation_silu__decode.s.ref").read().split("; Override launch")[0]
    return f"""{hdr}; @launch grid=(256,1,1) block=(256,1,1) lds={LDS_BYTES}
.amdgcn_target "amdgcn-amd-amdhsa--gfx950"
.text
.globl {KNAME}
.p2align 8
.type {KNAME},@function
{KNAME}:
{body}
    s_endpgm
.section .rodata,"a"
.p2align 6
.amdhsa_kernel {KNAME}
  .amdhsa_next_free_vgpr 512
  .amdhsa_next_free_sgpr 102
  .amdhsa_accum_offset 256
  .amdhsa_group_segment_fixed_size 0
  .amdhsa_kernarg_size 96
  .amdhsa_user_sgpr_count 2
  .amdhsa_user_sgpr_kernarg_segment_ptr 1
  .amdhsa_system_sgpr_workgroup_id_x 1
.end_amdhsa_kernel
"""

if __name__ == "__main__":
    dbg = "--debug" in sys.argv
    out = [a for a in sys.argv[1:] if not a.startswith("--")][0]
    kw = {}
    for a in sys.argv[1:]:
        if a.startswith("--thr="): kw["thr"] = tuple(int(x) for x in a[6:].split(","))
        if a.startswith("--swap="): kw["swap"] = int(a[7:])
    open(out, "w").write(build(dbg, **kw))
```

```python
import sys, struct

KNAME = "parallel_sum__compressed_kv_cla__dense_activation_silu__decode_kernel"

QP, CP, QA, ST, OP, PO, TS = 0x10000, 0x30000, 0x50000, 0x60000, 0x80000, 0x100000, 0x300000
FL1, FL2, HP = 0x68000, 0x6C000, 0x70000
WS_REC = 0x400000
OOB = 0x40000000
L_WQ, L_WUK, L_WUV, L_WO, L_W1, L_W2, L_XN, L_LAT = 0, 0x8000, 0, 0x10000, 0x18000, 0x1C000, 0x20000, 0x20900
XNP = 1056
L_QA, L_P, L_MX = 0x20000, 0x24000, 0x25200
LDS_BYTES = 0x25400
SPIN = 20000

def f2u(x): return struct.unpack("<I", struct.pack("<f", x))[0]
KSCALE = f2u(128 ** -0.5 * 1.4426950408889634)

class G:
    def __init__(self, debug=False):
        self.L = []; self.debug = debug; self.nv = 0; self.names = {}; self.nstamp = 0; self.lq = []; self.maxv = 0
    def __call__(self, s):
        for ln in s.strip().split("\n"):
            self.L.append("    " + ln.strip())
    def label(self, s): self.L.append(s + ":")
    def c(self, s): self.L.append("    ; " + s)
    def reset_v(self, start): self.nv = start
    def v(self, n=1, al=None):
        if al is None: al = 1 if n == 1 else 2
        self.nv = (self.nv + al - 1) // al * al
        r = self.nv; self.nv += n; self.maxv = max(self.maxv, self.nv)
        assert self.nv <= 255, "out of VGPRs"
        return r
    def stamp(self, i):
        if self.debug == 2:
            if i == 11: return
            if i == 14: i = 11
        if self.debug:
            assert i < 15
            self(f"s_memrealtime s[{72+2*i}:{73+2*i}]")
    def lds(self, s, tag=None):
        if len(self.lq) >= 15:
            self.lwait(self.lq[len(self.lq) - 15])
        self(s); self.lq.append(tag if tag is not None else object())
    def lwait(self, tag):
        if tag not in self.lq: return
        k = max(i for i, t in enumerate(self.lq) if t == tag)
        n = len(self.lq) - 1 - k
        self(f"s_waitcnt lgkmcnt({n})")
        self.lq = self.lq[k + 1:]
    def lwait0(self):
        self("s_waitcnt lgkmcnt(0)"); self.lq = []

def vr(a, n): return f"v[{a}:{a+n-1}]" if n > 1 else f"v{a}"
def ar(a, n): return f"a[{a}:{a+n-1}]"

sW, sS, sX, sH, sQT = "s3", "s4", "s5", "s6", "s7"
WS, X, WQ, WUK, WUV, WO, W1, W2, DBG, CKV, OUT = ("s[8:11]", "s[12:15]", "s[16:19]", "s[20:23]", "s[24:27]", "s[28:31]",
                                                  "s[32:35]", "s[36:39]", "s[44:47]", "s[48:51]", "s[52:55]")
sT, sE = "s42", "s43"
sHG, sSP = "s6", "s7"
DPPF = "row_mask:0xf bank_mask:0xf"

def reduce32(g, op, s, t):
    for k in (8, 4, 2, 1):
        g(f"v_{op}_f32_dpp v{s}, v{s}, v{s} row_ror:{k} {DPPF}")
        g("s_nop 1")
    g(f"v_mov_b32 v{t}, v{s}")
    g("s_nop 1")
    g(f"v_permlane16_swap_b32 v{t}, v{s}")
    g("s_nop 0")
    g(f"v_{op}_f32 v{s}, v{s}, v{t}")

def reduce64(g, op, s, t):
    reduce32(g, op, s, t)
    g(f"v_mov_b32 v{t}, v{s}")
    g("s_nop 1")
    g(f"v_permlane32_swap_b32 v{t}, v{s}")
    g("s_nop 0")
    g(f"v_{op}_f32 v{s}, v{s}, v{t}")

def flag_fallback(g, name, vfl, vfo, soff, cnt):
    g.label(name)
    g(f"s_mov_b32 {cnt}, 0")
    g.label(name + "_l")
    g("s_sleep 2")
    g(f"buffer_load_dword v{vfl}, v{vfo}, {WS}, {soff} offen sc1")
    g(f"s_add_u32 {cnt}, {cnt}, 1"); g(f"s_cmp_gt_u32 {cnt}, {SPIN}"); g(f"s_cbranch_scc1 {name}_x")
    g("s_waitcnt vmcnt(0)")
    g(f"v_cmp_ne_u32 vcc, {sT}, v{vfl}")
    g(f"s_cbranch_vccnz {name}_l")
    g(f"s_branch {name}_x")

def dump_stamps(g, role=None):
    if not g.debug: return
    g.lwait0()
    if g.debug == 2:
        wg, sel, base = (0, (1, 13, 12, 6, 11, 8, 10, 2), 0) if role == "W" else (128 + 3, (1, 2, 5, 6, 7, 8, 9, 10), 32)
        g(f"s_lshl2_add_u32 s56, s2, {sW}"); g(f"s_cmp_lg_u32 s56, {wg*4}"); g(f"s_cbranch_scc1 L_nod{role}")
        g("s_mov_b64 exec, -1"); g("v_mov_b32 v2, 0")
        for i, k in enumerate(sel):
            g(f"s_sub_u32 s57, s{72+2*k}, s72"); g(f"v_writelane_b32 v2, s57, {i}")
        g("s_mov_b32 s102, 0" if False else "s_nop 0")
        g("s_mov_b32 s58, 256"); g("s_mov_b32 s59, 0x20000"); g("s_mov_b64 s[56:57], s[100:101]")
        g("v_lshlrev_b32 v3, 2, v1"); g("s_mov_b64 exec, 0xff")
        g(f"buffer_store_dword v2, v3, s[56:59], 0 offen offset:{base}")
        g.label(f"L_nod{role}")
        return
    g(f"s_lshl_b32 s56, s2, 2"); g(f"s_add_u32 s56, s56, {sW}"); g("s_lshl_b32 s56, s56, 6"); g(f"s_add_u32 s56, s56, {TS}")
    g("s_mov_b64 exec, -1")
    g("v_mov_b32 v2, 0")
    for i in range(15): g(f"v_writelane_b32 v2, s{72+2*i}, {i}")
    g("s_getreg_b32 s57, hwreg(HW_REG_XCC_ID)")
    g("v_writelane_b32 v2, s57, 15")
    g("v_lshlrev_b32 v3, 2, v1")
    g("s_mov_b64 exec, 0xffff")
    g(f"buffer_store_dword v2, v3, {WS}, s56 offen")

def build(debug=False, thr=(16, 0), swap=1):
    g = G(debug)
    g.stamp(0)
    g("""
    s_load_dwordx2 s[16:17], s[0:1], 16
    s_load_dwordx2 s[48:49], s[0:1], 8
    s_load_dwordx2 s[12:13], s[0:1], 0
    s_load_dwordx2 s[8:9], s[0:1], 88
    s_cmp_ge_u32 s2, 256
    s_cbranch_scc1 L_end
    v_lshrrev_b32 v2, 6, v0
    v_and_b32 v1, 63, v0
    s_lshr_b32 s4, s2, 3
    v_readfirstlane_b32 s3, v2
    s_and_b32 s5, s2, 7
    v_lshlrev_b32 v4, 4, v1
    s_cmp_ge_u32 s4, 16
    s_cbranch_scc1 L_A
    """)
    l16 = 4
    def srd(k, sz):
        g(f"s_mov_b32 s{k+2}, {sz}"); g(f"s_mov_b32 s{k+3}, 0x20000")
    def dbg_init():
        if debug:
            for i in range(1, 14): g(f"s_mov_b64 s[{72+2*i}:{73+2*i}], 0")
            if debug == 2: g("s_load_dwordx2 s[100:101], s[0:1], 80")
            else: g("s_mov_b64 s[100:101], 0")
    g.reset_v(5)
    n, gg = g.v(), g.v()
    vqA, vqB = g.v(), g.v(); vq4 = g.v(4)
    xa = g.v(8, 4)
    sQAo, sOPo, sQoff = "s38", "s39", "s35"
    g(f"v_and_b32 v{n}, 15, v1"); g(f"v_lshrrev_b32 v{gg}, 4, v1")
    g(f"v_lshlrev_b32 v2, 1, v{gg}"); g(f"v_xor_b32 v2, v2, v{n}"); g(f"v_lshlrev_b32 v2, 4, v2"); g(f"v_lshl_add_u32 v{vqA}, v{gg}, 13, v2"); g(f"v_xor_b32 v{vqB}, 0x80, v{vqA}")
    g(f"v_add_u32 v{vq4+1}, {31744}, v{vqA}"); g(f"v_add_u32 v{vq4+2}, {2*31744}, v{vqB}"); g(f"v_add_u32 v{vq4+3}, {3*31744}, v{vqB}")
    srd(16, 4 << 20); srd(12, 2048)
    g(f"""
    s_lshr_b32 s6, s4, 2
    s_lshl2_add_u32 s6, s5, s6
    s_and_b32 s7, s4, 3
    s_lshl2_add_u32 s61, s7, s3
    s_lshl_b32 s61, s61, 18
    s_lshl_b32 s59, s6, 8
    s_add_u32 {sQoff}, s61, s59
    s_lshl_b32 s60, s3, 13
    s_mov_b32 m0, s60
    s_lshl_b32 s57, s3, 10
    s_cmp_lt_u32 s3, 2
    s_cselect_b64 exec, -1, 0
    s_waitcnt lgkmcnt(0)
    """)
    def quad(srdname, soff):
        g(f"buffer_load_dwordx4 v{vqA}, {srdname}, {soff} offen nt lds")
        for k in range(1, 4): g(f"buffer_load_dwordx4 v{vq4+k}, {srdname}, {soff} offen offset:{k*1024} nt lds")
    g(f"buffer_load_dwordx4 {vr(xa,4)}, v{l16}, {X}, s57 offen")
    g("s_mov_b64 exec, -1")
    quad(WQ, sQoff)
    g("s_add_u32 m0, m0, 0x1000"); g(f"s_add_u32 s61, {sQoff}, 0x20000")
    quad(WQ, "s61")
    g("s_branch L_W2")
    wv = g.nv
    g.label("L_A")
    vt4 = 8
    sPOs, sRow, sCnt, sRid = "s18", "s19", "s22", "s23"
    g(f"""
    s_and_b32 s6, s4, 1
    s_bfe_u32 s56, s4, 0x30001
    s_lshl3_add_u32 s7, s5, s56
    s_lshl_b32 s57, s7, 17
    """)
    if swap: g(f"s_lshl2_add_u32 {sRow}, s6, s3"); g(f"s_lshl_b32 {sRow}, {sRow}, 14")
    else: g(f"s_lshl_b32 {sRow}, s3, 14")
    srd(48, 8 << 20)
    g(f"s_mov_b32 m0, {sRow}"); g(f"s_add_u32 s59, {sRow}, s57")
    def abody(a, half):
        if a == 0:
            for k in range(1, 4): g(f"v_xor_b32 v{vt4+k}, {k*16}, v{l16}")
            regs = [l16, vt4 + 1, vt4 + 2, vt4 + 3]
        else:
            for k in range(4): g(f"v_xor_b32 v{vt4+k}, {(4*a+k)*16}, v{l16}")
            regs = [vt4 + k for k in range(4)]
        if a == 0 and half == 0: g("s_waitcnt lgkmcnt(0)")
        for k in range(4):
            j = 4 * a + k
            if half == 0 and thr[0] <= j < thr[1] + thr[0]: g(f"s_waitcnt vmcnt({thr[0]-1})")
            g(f"buffer_load_dwordx4 v{regs[k]}, {CKV}, s59 offen offset:{k*1024} nt lds")
        if a < 3: g("s_add_u32 m0, m0, 0x1000"); g("s_add_u32 s59, s59, 0x1000")
    abody(0, 0); abody(1, 0)
    g(f"""
    s_getpc_b64 s[40:41]
L_pc:
    v_lshlrev_b32 v2, 3, v4
    s_lshl2_add_u32 s56, s4, s3
    v_add_u32 v3, 0x2000, v2
    v_min_u32 v3, L_end-L_pc, v3
    s_cmp_eq_u32 s56, 64
    s_cselect_b64 exec, -1, 0
    global_load_dword v255, v2, s[40:41]
    global_load_dword v255, v3, s[40:41]
    s_mov_b64 exec, -1
    s_branch L_A2
    """)

    g.label("L_W2")
    g.reset_v(wv)
    g("""
    s_load_dwordx2 s[20:21], s[0:1], 24
    s_load_dword s43, s[8:9], 0
    s_load_dwordx2 s[24:25], s[0:1], 32
    s_load_dwordx2 s[28:29], s[0:1], 40
    s_load_dwordx2 s[32:33], s[0:1], 56
    s_load_dwordx2 s[36:37], s[0:1], 64
    """)
    dbg_init()
    g.stamp(1)
    srd(8, WS_REC); srd(20, 4 << 20)
    sent = g.v(4, 4); vqa, vop = g.v(), g.v()
    for k in range(4): g(f"v_mov_b32 v{sent+k}, -1")
    vk = g.v(8); vkr = g.v(4)
    g(f"v_xor_b32 v2, v{n}, v{gg}"); g(f"v_lshlrev_b32 v2, 4, v2"); g(f"v_lshl_add_u32 v{vk}, v{gg}, 13, v2")
    for k in range(1, 8):
        g(f"v_xor_b32 v{vk+k}, {(k>>1)*64}, v{vk}")
        if k & 3: g(f"v_add_u32 v{vk+k}, {(k&3)*31744}, v{vk+k}")
    g(f"""
    s_lshr_b32 s62, s6, 4
    s_lshl2_add_u32 s62, s62, s7
    s_lshl_b32 s62, s62, 6
    s_and_b32 s63, s6, 15
    s_add_u32 s62, s62, s63
    s_lshl_b32 s62, s62, 6
    s_add_u32 s62, s62, {QA}
    s_add_u32 {sQAo}, s62, s57
    s_cmp_lt_u32 s3, 2
    s_cbranch_scc1 L_W_c
    """)
    g(f"v_lshrrev_b32 v3, 3, v1"); g(f"v_lshlrev_b32 v3, 10, v3"); g(f"v_and_b32 v{vop}, 4, v1"); g(f"v_lshl_add_u32 v3, v{vop}, 13, v3"); g(f"v_and_b32 v{vop}, 3, v1"); g(f"v_lshl_add_u32 v3, v{vop}, 4, v3")
    g("s_cmp_eq_u32 s3, 2"); g("s_cselect_b32 exec_lo, -1, 0"); g("s_mov_b32 exec_hi, 0")
    g(f"buffer_store_dwordx4 {vr(sent,4)}, v3, {WS}, s62 offen sc1")
    g("s_mov_b64 exec, -1")
    g(f"""
    s_and_b32 s63, s3, 1
    s_lshl_b32 s58, s63, 14
    s_add_u32 m0, s58, {L_WUK}
    s_lshl_b32 s58, s7, 1
    s_add_u32 s58, s58, s63
    s_lshl_b32 s58, s58, 19
    s_add_u32 s61, s58, s59
    s_waitcnt lgkmcnt(0)
    """)
    for a in range(4):
        for k in range(4): g(f"buffer_load_dwordx4 v{vk+4*(a&1)+k}, {WUK}, s61 offen offset:{k*1024} nt lds")
        if a < 3: g("s_add_u32 m0, m0, 0x1000"); g("s_add_u32 s61, s61, 0x20000")
    g.label("L_W_c")
    r, c4 = g.v(), g.v()
    g(f"v_bfe_u32 v{r}, v1, 2, 2"); g(f"v_and_b32 v{c4}, 3, v1")
    vxf, vtr, vqps, vqpl, vf = g.v(), g.v(), g.v(), g.v(), g.v()
    g(f"v_lshl_add_u32 v3, v{r}, 3, v{c4}"); g(f"v_lshl_add_u32 v2, v3, 8, v2"); g(f"s_add_u32 s64, s60, {L_WUK}"); g(f"v_add_u32 v{vkr}, s64, v2")
    for k in range(1, 4): g(f"v_xor_b32 v{vkr+k}, {k*64}, v{vkr}")
    g(f"v_lshlrev_b32 v{vqa}, 13, v1"); g(f"v_and_b32 v{vqa}, 0x8000, v{vqa}"); g(f"v_lshl_or_b32 v{vqa}, v{gg}, 4, v{vqa}")
    g(f"v_and_b32 v2, 1, v1"); g(f"v_mul_u32_u24 v{vxf}, {XNP}, v2"); g(f"v_lshl_add_u32 v{vxf}, v{gg}, 4, v{vxf}")
    g(f"s_lshl_b32 s63, s7, 8"); g(f"s_add_u32 s63, s63, {L_XN}"); g(f"v_add_u32 v{vxf}, s63, v{vxf}")
    g(f"v_lshlrev_b32 v{vqps}, 9, v2"); g(f"v_lshl_add_u32 v{vqps}, v{gg}, 5, v{vqps}"); g(f"v_and_b32 v2, 2, v1"); g(f"v_lshl_add_u32 v{vqps}, v2, 3, v{vqps}")
    g(f"v_and_b32 v2, 1, v{gg}"); g(f"v_lshl_or_b32 v2, v2, 2, v{r}"); g(f"v_lshlrev_b32 v{vf}, 5, v2")
    g(f"s_lshl_b32 s63, s3, 6"); g(f"v_lshl_or_b32 v2, v{c4}, 4, s63"); g(f"v_xor_b32 v2, v2, v{vf}")
    g(f"v_lshl_add_u32 v{vtr}, v{gg}, 3, v{r}"); g(f"v_lshl_add_u32 v{vtr}, v{vtr}, 8, v2")
    g(f"v_bfe_u32 v2, v1, 2, 1"); g(f"v_lshl_add_u32 v{vqpl}, v{c4}, 1, v2"); g(f"v_lshlrev_b32 v{vqpl}, 9, v{vqpl}"); g(f"v_lshl_add_u32 v{vqpl}, v{gg}, 5, v{vqpl}")
    g(f"v_and_b32 v2, 8, v1"); g(f"v_lshl_add_u32 v{vqpl}, v2, 1, v{vqpl}")
    g(f"""
    s_lshl_b32 s68, s6, 12
    s_add_u32 s68, s68, {QP}
    s_lshl_b32 s63, s7, 10
    s_add_u32 s67, s68, s63
    s_lshl_b32 s63, s3, 7
    s_add_u32 s67, s67, s63
    s_mov_b32 s70, 0xcccccccc
    s_mov_b32 s71, s70
    s_lshl2_add_u32 s69, s6, s7
    s_lshl_b32 s44, s69, 7
    s_add_u32 s44, s44, {FL1}
    """)
    Ga = g.v(4, 4); vT = Ga
    f = g.v(16, 2); m = g.v(2); t = g.v(); s2 = g.v(8, 2)
    g("s_cmp_lt_u32 s3, 2"); g("s_cbranch_scc1 L_W_ln")
    g(f"s_mul_i32 {sT}, {sE}, 0x9E3779B1"); g(f"s_add_u32 {sT}, {sT}, 0x7F4A7C15")
    g(f"v_mov_b32 v{vT}, {sT}")
    g("v_lshlrev_b32 v3, 2, v1")
    g("s_cmp_eq_u32 s3, 2"); g("s_cselect_b32 exec_lo, 0xffff, 0"); g("s_mov_b32 exec_hi, 0")
    g("s_waitcnt vmcnt(16)")
    g(f"buffer_store_dword v{vT}, v3, {WS}, s44 offen sc1")
    g("s_mov_b64 exec, -1")
    g("s_branch L_W_b0")
    g.label("L_W_ln")
    g(f"s_mul_i32 s63, s3, {XNP}"); g(f"s_add_u32 s63, s63, {L_XN}"); g(f"v_add_u32 v3, s63, v{l16}")
    g("s_waitcnt vmcnt(8)")
    d = f + 8
    for k in range(4):
        g(f"v_lshlrev_b32 v{f+2*k}, 16, v{xa+k}"); g(f"v_and_b32 v{f+2*k+1}, 0xffff0000, v{xa+k}")
    g(f"v_pk_add_f32 {vr(s2,2)}, {vr(f,2)}, {vr(f+2,2)}"); g(f"v_pk_add_f32 {vr(s2+2,2)}, {vr(f+4,2)}, {vr(f+6,2)}")
    g(f"v_pk_add_f32 {vr(s2,2)}, {vr(s2,2)}, {vr(s2+2,2)}")
    g(f"v_add_f32 v{m}, v{s2}, v{s2+1}"); g("s_nop 1")
    reduce64(g, "add", m, t)
    g(f"v_mul_f32 v{m}, {f2u(1/512):#x}, v{m}")
    for k in range(4): g(f"v_pk_add_f32 {vr(d+2*k,2)}, {vr(f+2*k,2)}, {vr(m,2)} op_sel_hi:[1,0] neg_lo:[0,1] neg_hi:[0,1]")
    g(f"v_pk_mul_f32 {vr(s2,2)}, {vr(d,2)}, {vr(d,2)}"); g(f"v_pk_mul_f32 {vr(s2+2,2)}, {vr(d+2,2)}, {vr(d+2,2)}")
    g(f"v_pk_fma_f32 {vr(s2,2)}, {vr(d+4,2)}, {vr(d+4,2)}, {vr(s2,2)}"); g(f"v_pk_fma_f32 {vr(s2+2,2)}, {vr(d+6,2)}, {vr(d+6,2)}, {vr(s2+2,2)}")
    g(f"v_pk_add_f32 {vr(s2,2)}, {vr(s2,2)}, {vr(s2+2,2)}")
    va = s2 + 4
    g(f"v_add_f32 v{va}, v{s2}, v{s2+1}")
    g(f"v_cvt_pk_bf16_f32 v{m}, v{m}, v{m}"); g(f"v_and_b32 v{m}, 0xffff0000, v{m}")
    reduce64(g, "add", va, t)
    g(f"v_mul_f32 v{va}, {f2u(1/512):#x}, v{va}")
    for k in range(2): g(f"v_pk_add_f32 {vr(f+2*k,2)}, {vr(f+2*k,2)}, {vr(m,2)} op_sel_hi:[1,0] neg_lo:[0,1] neg_hi:[0,1]")
    g(f"v_cvt_pk_bf16_f32 v{va}, v{va}, v{va}")
    for k in range(2, 4): g(f"v_pk_add_f32 {vr(f+2*k,2)}, {vr(f+2*k,2)}, {vr(m,2)} op_sel_hi:[1,0] neg_lo:[0,1] neg_hi:[0,1]")
    g(f"v_and_b32 v{va}, 0xffff0000, v{va}")
    g(f"v_add_f32 v{va}, {f2u(1e-5):#x}, v{va}")
    g(f"v_cvt_pk_bf16_f32 v{xa}, v{f}, v{f+1}")
    g(f"v_cvt_pk_bf16_f32 v{va}, v{va}, v{va}")
    g(f"v_cvt_pk_bf16_f32 v{xa+1}, v{f+2}, v{f+3}")
    g(f"v_and_b32 v{va}, 0xffff0000, v{va}")
    g(f"v_sqrt_f32 v{va}, v{va}")
    g(f"v_cvt_pk_bf16_f32 v{xa+2}, v{f+4}, v{f+5}"); g(f"v_cvt_pk_bf16_f32 v{xa+3}, v{f+6}, v{f+7}")
    g(f"v_cvt_pk_bf16_f32 v{va}, v{va}, v{va}")
    for k in range(2):
        g(f"v_lshlrev_b32 v{f+2*k}, 16, v{xa+k}"); g(f"v_and_b32 v{f+2*k+1}, 0xffff0000, v{xa+k}")
    g(f"v_and_b32 v{m}, 0xffff0000, v{va}")
    g(f"v_rcp_f32 v{m}, v{m}")
    for k in range(2, 4):
        g(f"v_lshlrev_b32 v{f+2*k}, 16, v{xa+k}"); g(f"v_and_b32 v{f+2*k+1}, 0xffff0000, v{xa+k}")
    for k in range(4): g(f"v_pk_mul_f32 {vr(f+2*k,2)}, {vr(f+2*k,2)}, {vr(m,2)} op_sel_hi:[1,0]")
    for k in range(4): g(f"v_cvt_pk_bf16_f32 v{xa+k}, v{f+2*k}, v{f+2*k+1}")
    g(f"ds_write_b128 v3, {vr(xa,4)}")
    g.stamp(3)
    g("s_waitcnt lgkmcnt(0)"); g.lq = []
    g(f"s_mul_i32 {sT}, {sE}, 0x9E3779B1"); g(f"s_add_u32 {sT}, {sT}, 0x7F4A7C15")
    g(f"v_mov_b32 v{vT}, {sT}")
    g("s_waitcnt vmcnt(0)")
    g.label("L_W_b0")
    g("s_mov_b32 s1, s69")
    g("s_barrier")
    g.stamp(13)
    xb = g.v(16, 4); wk = g.v(32, 4); ta = g.v(16, 4); Da = g.v(4, 4); Db = g.v(4, 4)
    qf = g.v(32, 4); chk = g.v()
    tq = qf
    for u in range(4):
        g.lds(f"ds_read_b128 {vr(xb+4*u,4)}, v{vxf} offset:{u*64}")
        for T in range(2):
            for hf in range(2):
                g.lds(f"ds_read_b64_tr_b16 {vr(tq+8*u+4*T+2*hf,2)}, v{vtr} offset:{L_WQ + u*8192 + hf*1024 + T*8}", ("tr", u, T))
    for u in range(4):
        g.lwait(("tr", u, 0))
        g(f"v_mfma_f32_16x16x32_bf16 {vr(Da,4)}, {vr(tq+8*u,4)}, {vr(xb+4*u,4)}, {vr(Da,4) if u else 0}")
        g.lwait(("tr", u, 1))
        g(f"v_mfma_f32_16x16x32_bf16 {vr(Db,4)}, {vr(tq+8*u+4,4)}, {vr(xb+4*u,4)}, {vr(Db,4) if u else 0}")
    def pack_granule(msk):
        g(f"v_cvt_pk_bf16_f32 v{Ga+2}, v{Da}, v{Da+1}"); g(f"v_cvt_pk_bf16_f32 v{Ga+3}, v{Da+2}, v{Da+3}")
        g(f"v_cvt_pk_bf16_f32 v2, v{Db}, v{Db+1}"); g(f"v_cvt_pk_bf16_f32 v3, v{Db+2}, v{Db+3}")
        g(f"v_cndmask_b32 v{Ga+2}, v{Ga+2}, v2, {msk}"); g(f"v_cndmask_b32 v{Ga+3}, v{Ga+3}, v3, {msk}")
    g("s_mov_b32 exec_lo, 0x000f000f"); g("s_mov_b32 exec_hi, 0x000f000f")
    g("s_nop 4")
    pack_granule("s[70:71]")
    g(f"buffer_store_dwordx4 {vr(Ga,4)}, v{vqps}, {WS}, s67 offen sc1")
    g("s_mov_b64 exec, -1")
    g.stamp(4)
    def qp_loads():
        for u in range(4): g(f"buffer_load_dwordx4 {vr(qf+8*u,4)}, v{vqpl}, {WS}, s68 offen offset:{u*128} sc1")
    g("s_mov_b32 s63, 0")
    g("s_cmp_ge_u32 s3, 2"); g("s_cbranch_scc1 L_W_b1")
    g("s_waitcnt vmcnt(0)")
    g.label("L_W_b1")
    g("s_barrier")
    qp_loads()
    g("s_waitcnt vmcnt(5)")
    g("s_barrier")
    g.stamp(12)
    for u in range(4):
        for T in range(2): g.lds(f"ds_read_b128 {vr(wk+16*T+4*u,4)}, v{vkr+u} offset:{T*1024}")
    g("s_branch L_Wa_c")
    g.label("L_Wa")
    qp_loads()
    g.label("L_Wa_c")
    g("s_add_u32 s63, s63, 1"); g(f"s_cmp_gt_u32 s63, {SPIN}"); g("s_cbranch_scc1 L_Wa_x")
    g("s_waitcnt vmcnt(0)")
    for u in range(4): g(f"v_sad_u32 v{chk}, v{qf+8*u}, {sT}, {('v%d' % chk) if u else 0}")
    g(f"v_cmp_ne_u32 vcc, 0, v{chk}")
    g("s_cbranch_vccnz L_Wa")
    g.label("L_Wa_x")
    g("s_waitcnt vmcnt(0)")
    for u in range(4):
        for k in range(2): g(f"v_mov_b32_dpp v{qf+8*u+4+k}, v{qf+8*u+2+k} row_ror:8 {DPPF}")
    g.lwait0()
    g.stamp(5)
    for u in range(4):
        g(f"v_mfma_f32_16x16x32_bf16 {vr(Da,4)}, {vr(wk+4*u,4)}, {vr(qf+8*u+2,4)}, {vr(Da,4) if u else 0}")
        g(f"v_mfma_f32_16x16x32_bf16 {vr(Db,4)}, {vr(wk+16+4*u,4)}, {vr(qf+8*u+2,4)}, {vr(Db,4) if u else 0}")
    g("s_nop 6")
    for k in range(8): g(f"v_add_f32_dpp v{Da+k}, v{Da+k}, v{Da+k} quad_perm:[1,0,3,2] {DPPF}")
    assert Db == Da + 4
    for k in range(8): g(f"v_add_f32_dpp v{Da+k}, v{Da+k}, v{Da+k} quad_perm:[2,3,0,1] {DPPF}")
    qo = g.v(4, 4)
    for k in range(4): g(f"v_cvt_pk_bf16_f32 v{qo+k}, v{Da+2*k}, v{Da+2*k+1}")
    g("s_mov_b32 exec_lo, 0x00110011"); g("s_mov_b32 exec_hi, 0x00110011")
    g(f"buffer_store_dwordx4 {vr(qo,4)}, v{vqa}, {WS}, {sQAo} offen sc1")
    g("s_mov_b64 exec, -1")
    g.stamp(6)
    sPOo = "s17"
    g(f"s_lshl2_add_u32 {sPOo}, s1, {sW}"); g(f"s_lshl_b32 {sPOo}, {sPOo}, 12"); g(f"s_add_u32 {sPOo}, {sPOo}, {PO}")
    for u in range(4): g(f"buffer_store_dwordx4 {vr(sent,4)}, v{l16}, {WS}, {sPOo} offen offset:{u*1024} sc1")
    g(f"v_lshrrev_b32 v{vop}, 1, v1"); g(f"v_lshlrev_b32 v{vop}, 12, v{vop}"); g(f"v_and_b32 v2, 1, v1"); g(f"v_lshl_or_b32 v{vop}, v2, 4, v{vop}")
    g(f"""
    s_lshl4_add_u32 s64, s5, s4
    s_lshl_b32 s64, s64, 5
    s_lshl_b32 s63, s3, 17
    s_add_u32 s64, s64, s63
    s_add_u32 {sOPo}, s64, {OP}
    """)
    g(f"buffer_store_dwordx4 {vr(sent,4)}, v{vop}, {WS}, {sOPo} offen sc1")
    vA, vB = vk, vk + 1
    g(f"v_and_b32 v2, 0xff, v{vqA}"); g(f"v_lshl_add_u32 v{vA}, v{gg}, 10, v2"); g(f"v_xor_b32 v{vB}, 0x80, v{vA}")
    g(f"v_add_u32 v{vk+2}, 3072, v{vA}"); g(f"v_add_u32 v{vk+3}, 3072, v{vB}"); g(f"v_add_u32 v{vk+4}, 6144, v{vA}"); g(f"v_add_u32 v{vk+5}, 6144, v{vB}"); g(f"v_add_u32 v{vk+6}, 9216, v{vB}")
    sCB = "s0"
    g(f"s_lshr_b32 {sCB}, s4, 2"); g(f"s_lshl3_add_u32 {sCB}, {sCB}, s5")
    g(f"s_lshl_b32 s59, {sW}, 12"); g(f"s_lshl_b32 s58, {sW}, 8")
    hpv = g.v(4, 4); hlo = g.v(2); hhi = g.v(2); vt1 = g.v(); vh = g.v()
    vwo = f
    g(f"s_cmp_ge_u32 {sCB}, 22"); g("s_cbranch_scc1 L_Wnf1")
    W1c, W2c = "s[64:67]", "s[68:71]"
    g("s_mov_b64 s[64:65], s[32:33]"); g(f"s_mov_b32 s66, {512*1376*2}"); g("s_mov_b32 s67, 0x20000")
    g("s_mov_b64 s[68:69], s[36:37]"); g(f"s_mov_b32 s70, {512*1376*2}"); g("s_mov_b32 s71, 0x20000")
    g(f"v_lshrrev_b32 v2, 3, v1"); g(f"v_mul_u32_u24 v{vt1}, 2752, v2"); g(f"v_and_b32 v2, 7, v1"); g(f"v_lshl_add_u32 v{vt1}, v2, 4, v{vt1}")
    g(f"s_lshl2_add_u32 s61, s7, {sW}"); g(f"s_mul_i32 s61, s61, {32*2752}"); g(f"s_lshl_b32 s62, {sCB}, 7"); g("s_add_u32 s61, s61, s62")
    g(f"s_add_u32 m0, s59, {L_W1}")
    for j in range(4):
        if j: g("s_add_u32 m0, m0, 0x400")
        if j: g(f"s_add_u32 s61, s61, {8*2752}")
        else: g("s_nop 0")
        g(f"buffer_load_dwordx4 v{vt1}, {W1c}, s61 offen nt lds")
    g(f"s_add_u32 m0, s59, {L_W2}")
    g(f"s_lshl2_add_u32 s61, {sCB}, s7"); g(f"s_lshl_b32 s61, s61, 14"); g("s_add_u32 s61, s61, s58")
    for j, rg in enumerate((vA, vk + 3, vk + 4, vk + 6)):
        g(f"buffer_load_dwordx4 v{rg}, {W2c}, s61 offen offset:{j*1024} nt lds")
    g.label("L_Wnf1")
    srd(24, 4 << 20); srd(28, 4 << 20)
    acc = g.v(16, 4)
    for k in range(16): g(f"v_mov_b32 v{acc+k}, 0")
    uv = wk; wo = 0
    vlw, vlr, vcs, vclo, vbp = g.v(), g.v(), g.v(), g.v(), g.v()
    mk = f + 8
    g(f"v_lshl_or_b32 v{vf}, v{c4}, 3, v{vf}")
    g(f"v_lshlrev_b32 v{vlw}, 6, v{r}"); g(f"v_lshl_add_u32 v{vlw}, v{gg}, 5, v{vlw}"); g(f"v_lshl_add_u32 v{vlw}, v{c4}, 3, v{vlw}")
    g(f"s_mul_i32 s62, {sW}, 288"); g(f"s_add_u32 s62, s62, {L_LAT}"); g(f"v_add_u32 v{vlw}, s62, v{vlw}")
    g(f"v_mul_u32_u24 v{vlr}, 288, v{c4}"); g(f"v_lshl_add_u32 v{vlr}, v{gg}, 4, v{vlr}"); g(f"v_add_u32 v{vlr}, {L_LAT}, v{vlr}")
    g(f"v_bfe_u32 v{vcs}, v1, 1, 1"); g(f"v_lshlrev_b32 v{vcs}, 9, v{vcs}"); g(f"v_lshl_add_u32 v{vcs}, v{gg}, 5, v{vcs}"); g(f"v_and_b32 v2, 1, v1"); g(f"v_lshl_add_u32 v{vcs}, v2, 4, v{vcs}")
    g(f"v_and_b32 v2, 7, v1"); g(f"v_lshlrev_b32 v{vh}, 6, v2"); g(f"v_lshlrev_b32 v2, 9, v2"); g(f"v_lshl_add_u32 v2, v{gg}, 5, v2")
    g(f"v_and_b32 v3, 8, v1"); g(f"v_lshl_add_u32 v{vclo}, v3, 1, v2")
    g(f"v_lshl_add_u32 v{vh}, v{gg}, 4, v{vh}")
    g(f"s_lshl_b32 s62, {sW}, 6"); g(f"v_lshlrev_b32 v{vbp}, 2, v{gg}"); g(f"v_add_u32 v{vbp}, s62, v{vbp}")
    g(f"v_and_b32 v2, 1, v1"); g(f"v_lshlrev_b32 v2, 4, v2"); g(f"v_mov_b32 v3, 0xffff"); g(f"v_lshlrev_b32 v3, v2, v3"); g(f"v_bfe_u32 v2, v1, 1, 2")
    for k in range(4):
        g(f"v_cmp_eq_u32 vcc, {k}, v2"); g("s_nop 1"); g(f"v_cndmask_b32 v{mk+k}, 0, v3, vcc")
    g(f"s_add_u32 m0, s60, {L_WUV}"); g(f"s_add_u32 s61, {sQoff}, 0x20000")
    quad(WUV, sQoff)
    g("s_add_u32 m0, m0, 0x1000"); g("v_lshlrev_b32 v3, 2, v1")
    quad(WUV, "s61")
    g(f"s_add_u32 s44, s44, {FL2-FL1}")
    g("s_waitcnt vmcnt(12)")
    g(f"s_cmp_lt_u32 {sCB}, 22"); g("s_cbranch_scc1 L_Wnf2")
    g("s_waitcnt vmcnt(8)")
    g.label("L_Wnf2")
    g("s_barrier")
    g(f"s_cmp_eq_u32 {sW}, 0"); g("s_cselect_b32 exec_lo, 0xffff, 0"); g("s_mov_b32 exec_hi, 0")
    g(f"buffer_store_dword v{vT}, v3, {WS}, s44 offen sc1")
    g("s_mov_b64 exec, -1")
    g.stamp(14)
    sHP, sWOo = "s23", "s46"
    g(f"s_lshl_b32 {sWOo}, s1, 15"); g(f"s_add_u32 {sWOo}, {sWOo}, s58")
    g(f"s_cmp_ge_u32 {sCB}, 22"); g("s_cbranch_scc1 L_Wnf3")
    g(f"v_lshl_add_u32 v{vt1}, v{gg}, 3, v{r}"); g(f"v_lshlrev_b32 v{vt1}, 7, v{vt1}"); g(f"v_lshl_add_u32 v{vt1}, v{c4}, 3, v{vt1}")
    g(f"s_lshl_b32 s62, {sW}, 5"); g(f"s_add_u32 s62, s62, {L_W1}"); g(f"v_add_u32 v{vt1}, s62, v{vt1}")
    for u in range(4):
        for hf in range(2): g.lds(f"ds_read_b64_tr_b16 {vr(ta+4*u+2*hf,2)}, v{vt1} offset:{u*4096+hf*512}")
    g(f"s_lshl_b32 {sHP}, s6, 11"); g(f"s_add_u32 {sHP}, {sHP}, {HP}")
    g(f"s_lshl_b32 s62, {sW}, 9"); g(f"s_add_u32 s62, s62, {sHP}"); g("s_lshl_b32 s63, s7, 7"); g("s_add_u32 s62, s62, s63")
    g("s_lshl_b32 s63, s7, 9"); g(f"s_add_u32 {sHP}, {sHP}, s63")
    g.lwait0()
    for u in range(4): g(f"v_mfma_f32_16x16x32_bf16 {vr(Da,4)}, {vr(ta+4*u,4)}, {vr(xb+4*u,4)}, {vr(Da,4) if u else 0}")
    g(f"v_mov_b32 v{hpv+2}, v{vT}")
    g("s_mov_b32 exec_lo, 0x00030003"); g("s_mov_b32 exec_hi, 0x00030003")
    g("s_nop 4")
    g(f"v_cvt_pk_bf16_f32 v{hpv}, v{Da}, v{Da+1}"); g(f"v_cvt_pk_bf16_f32 v{hpv+1}, v{Da+2}, v{Da+3}")
    g(f"buffer_store_dwordx4 {vr(hpv,4)}, v{vh}, {WS}, s62 offen sc1")
    g("s_mov_b64 exec, -1")
    g.label("L_Wnf3")
    hp = ta
    def wo_quad():
        for j, rg in enumerate((vA, vk + 2, vk + 5, vk + 6)):
            g(f"buffer_load_dwordx4 v{rg}, {WO}, {sWOo} offen offset:{j*1024} nt lds")
    g(f"s_add_u32 m0, s60, {L_WO}"); g("s_nop 0")
    wo_quad()
    g("s_add_u32 m0, m0, 0x1000"); g(f"s_add_u32 {sWOo}, {sWOo}, 0x4000")
    g(f"s_cmp_ge_u32 {sCB}, 22"); g("s_cbranch_scc1 L_Wnf3b")
    g(f"buffer_load_dwordx4 {vr(hp+4,4)}, v{vh}, {WS}, {sHP} offen sc1")
    g.label("L_Wnf3b")
    wo_quad()
    g("s_waitcnt vmcnt(8)")
    g("s_barrier")
    g.stamp(7)
    for u in range(4):
        for T in range(2):
            for hf in range(2):
                g.lds(f"ds_read_b64_tr_b16 {vr(uv+16*T+4*u+2*hf,2)}, v{vtr} offset:{L_WUV + u*8192 + hf*1024 + T*8}")
    g(f"s_cmp_ge_u32 {sCB}, 22"); g("s_cbranch_scc1 L_Wnf4")
    g(f"v_lshl_add_u32 v2, v{gg}, 2, v{r}"); g(f"v_lshlrev_b32 v2, 8, v2"); g(f"s_add_u32 s62, s59, {L_W2}"); g(f"v_add_u32 v2, s62, v2")
    for tl in range(8):
        g(f"v_xor_b32 v{vwo+tl}, {tl*32}, v{vf}"); g(f"v_add_u32 v{vwo+tl}, v{vwo+tl}, v2")
    w2f = qf
    for tl in range(8): g.lds(f"ds_read_b64_tr_b16 {vr(w2f+2*tl,2)}, v{vwo+tl}")
    g("s_mov_b32 s63, 0")
    g("s_waitcnt vmcnt(4)")
    g("s_branch L_Wh_c")
    g.label("L_Wh")
    g(f"buffer_load_dwordx4 {vr(hp+4,4)}, v{vh}, {WS}, {sHP} offen sc1")
    g("s_add_u32 s63, s63, 1"); g(f"s_cmp_gt_u32 s63, {SPIN}"); g("s_cbranch_scc1 L_Wh_x")
    g("s_waitcnt vmcnt(0)")
    g.label("L_Wh_c")
    g(f"v_cmp_ne_u32 vcc, {sT}, v{hp+6}")
    g("s_cbranch_vccnz L_Wh")
    g("s_branch L_Wh_y")
    g.label("L_Wh_x")
    g("s_waitcnt vmcnt(0)")
    g.label("L_Wh_y")
    g(f"v_lshlrev_b32 v{hp}, 16, v{hp+4}"); g(f"v_and_b32 v{hp+1}, 0xffff0000, v{hp+4}")
    g(f"v_lshlrev_b32 v{hp+2}, 16, v{hp+5}"); g(f"v_and_b32 v{hp+3}, 0xffff0000, v{hp+5}")
    for k in range(4): g(f"v_add_f32_dpp v{hp+k}, v{hp+k}, v{hp+k} quad_perm:[2,3,0,1] {DPPF}")
    for k in range(4): g(f"v_add_f32_dpp v{hp+k}, v{hp+k}, v{hp+k} row_ror:4 {DPPF}")
    g(f"v_cvt_pk_bf16_f32 v{hp+4}, v{hp}, v{hp+1}"); g(f"v_cvt_pk_bf16_f32 v{hp+5}, v{hp+2}, v{hp+3}")
    g(f"v_lshlrev_b32 v{hp}, 16, v{hp+4}"); g(f"v_and_b32 v{hp+1}, 0xffff0000, v{hp+4}")
    g(f"v_lshlrev_b32 v{hp+2}, 16, v{hp+5}"); g(f"v_and_b32 v{hp+3}, 0xffff0000, v{hp+5}")
    for k in range(4): g(f"v_mul_f32 v{hp+8+k}, {f2u(-1.4426950408889634):#x}, v{hp+k}")
    for k in range(4): g(f"v_exp_f32 v{hp+8+k}, v{hp+8+k}")
    g("s_nop 0")
    for k in range(4): g(f"v_add_f32 v{hp+8+k}, 1.0, v{hp+8+k}")
    for k in range(4): g(f"v_rcp_f32 v{hp+8+k}, v{hp+8+k}")
    g("s_nop 0")
    for k in range(4): g(f"v_mul_f32 v{hp+k}, v{hp+k}, v{hp+8+k}")
    g(f"v_cvt_pk_bf16_f32 v{hp+4}, v{hp}, v{hp+1}"); g(f"v_cvt_pk_bf16_f32 v{hp+5}, v{hp+2}, v{hp+3}")
    g("s_mov_b32 s62, 0x00030003"); g("s_mov_b32 s63, s62"); g("s_lshl_b64 s[64:65], s[62:63], 8")
    for k in range(2):
        g(f"v_cndmask_b32 v{hlo+k}, 0, v{hp+4+k}, s[62:63]"); g(f"v_cndmask_b32 v{hhi+k}, 0, v{hp+4+k}, s[64:65]")
    g.lwait0()
    TLO = (0, 1, 4, 5); THI = (2, 3, 6, 7)
    for k in range(4): g(f"v_mfma_f32_16x16x16_bf16 {vr(acc+4*k,4)}, {vr(hlo,2)}, {vr(w2f+2*TLO[k],2)}, {vr(acc+4*k,4)}")
    for k in range(4): g(f"v_mfma_f32_16x16x16_bf16 {vr(acc+4*k,4)}, {vr(hhi,2)}, {vr(w2f+2*THI[k],2)}, {vr(acc+4*k,4)}")
    g.label("L_Wnf4")
    g.lwait0()
    g(f"v_lshl_add_u32 v2, v{gg}, 3, v{r}"); g(f"v_lshlrev_b32 v2, 8, v2"); g(f"s_add_u32 s62, s60, {L_WO}"); g(f"v_add_u32 v2, s62, v2")
    for tl in range(8):
        g(f"v_xor_b32 v{vwo+tl}, {tl*32}, v{vf}"); g(f"v_add_u32 v{vwo+tl}, v{vwo+tl}, v2")
    g("s_waitcnt vmcnt(0)")
    g.stamp(8)
    for tl in range(8):
        for hf in range(2): g.lds(f"ds_read_b64_tr_b16 {ar(wo+4*tl+2*hf,2)}, v{vwo+tl} offset:{hf*1024}")
    sSTo, sCPs, sCPl, sCnt, sBl, sRL = "s16", "s18", "s19", "s20", "s21", "s22"
    g(f"s_lshl_b32 {sSTo}, s6, 10"); g(f"s_add_u32 {sSTo}, {sSTo}, {ST}")
    g(f"s_lshl_b32 s62, s6, 12"); g(f"s_add_u32 s62, s62, {CP}")
    g(f"s_lshl_b32 s63, s7, 7"); g(f"s_add_u32 {sCPl}, s62, s63")
    g(f"s_lshl_b32 s63, s7, 10"); g(f"s_add_u32 {sCPs}, s62, s63"); g(f"s_lshl_b32 s63, {sW}, 7"); g(f"s_add_u32 {sCPs}, {sCPs}, s63")
    g(f"s_lshr_b32 {sBl}, {sW}, 1"); g(f"s_lshl_b32 {sBl}, {sBl}, 5")
    g("s_mov_b32 s70, 0xaaaaaaaa"); g("s_mov_b32 s71, s70")
    stt = xa; pf = qf; af = ta; wd = xa + 4; mx = xa + 5; wb = f + 12
    g(f"s_mov_b32 {sCnt}, 0")
    g.label("L_Ws")
    g(f"buffer_load_dwordx4 {vr(stt,4)}, v{l16}, {WS}, {sSTo} offen sc1")
    g(f"s_add_u32 {sCnt}, {sCnt}, 1"); g(f"s_cmp_gt_u32 {sCnt}, {SPIN}"); g("s_cbranch_scc1 L_Ws_x")
    g("s_waitcnt vmcnt(0)")
    g(f"v_cmp_ne_u32 vcc, {sT}, v{stt+2}")
    g("s_cbranch_vccnz L_Ws")
    g.label("L_Ws_x")
    g("s_waitcnt vmcnt(0)")
    g.stamp(9)
    for u in range(4): g(f"buffer_load_dwordx4 {vr(pf+4*u,4)}, v{l16}, {WS}, {sPOo} offen offset:{u*1024} sc1")
    g(f"v_mov_b32 v{mx}, v{stt}"); g("s_nop 1")
    reduce32(g, "max", mx, t)
    g(f"v_sub_f32 v{mx}, v{stt}, v{mx}")
    g(f"v_exp_f32 v{mx}, v{mx}")
    g("s_nop 0")
    g(f"v_cvt_pk_bf16_f32 v{wd}, v{mx}, v{mx}")
    for u in range(4): g.lds(f"ds_bpermute_b32 v{wb+u}, v{vbp}, v{wd} offset:{16*u}")
    g(f"v_and_b32 v{mx}, 0xffff0000, v{wd}")
    g(f"v_mul_f32 v{mx}, v{mx}, v{stt+1}"); g("s_nop 1")
    reduce32(g, "add", mx, t)
    g(f"v_rcp_f32 v{mx}, v{mx}")
    g.lwait0()
    for u in range(4):
        for k in range(4): g(f"v_and_b32 v{af+4*u+k}, v{wb+u}, v{mk+k}")
    g(f"v_readlane_b32 {sRL}, v{mx}, {sBl}")
    g(f"s_mov_b32 {sCnt}, 0")
    g("s_branch L_Wp_c")
    g.label("L_Wp")
    for u in range(4): g(f"buffer_load_dwordx4 {vr(pf+4*u,4)}, v{l16}, {WS}, {sPOo} offen offset:{u*1024} sc1")
    g.label("L_Wp_c")
    g(f"s_add_u32 {sCnt}, {sCnt}, 1"); g(f"s_cmp_gt_u32 {sCnt}, {SPIN}"); g("s_cbranch_scc1 L_Wp_x")
    g("s_waitcnt vmcnt(0)")
    g(f"v_max3_u32 v{chk}, v{pf+3}, v{pf+7}, v{pf+11}"); g(f"v_max_u32 v{chk}, v{chk}, v{pf+15}")
    g(f"v_cmp_eq_u32 vcc, -1, v{chk}")
    g("s_cbranch_vccnz L_Wp")
    g.label("L_Wp_x")
    g("s_waitcnt vmcnt(0)")
    g.stamp(10)
    for u in range(4): g(f"v_mfma_f32_16x16x32_bf16 {vr(Da,4)}, {vr(af+4*u,4)}, {vr(pf+4*u,4)}, {vr(Da,4) if u else 0}")
    g("s_mov_b32 exec_hi, 0")
    g("s_nop 6")
    for k in range(4): g(f"v_mul_f32 v{Da+k}, {sRL}, v{Da+k}")
    g(f"v_cvt_pk_bf16_f32 v{qo}, v{Da}, v{Da+1}"); g(f"v_cvt_pk_bf16_f32 v{qo+1}, v{Da+2}, v{Da+3}")
    g(f"ds_write_b64 v{vlw}, {vr(qo,2)}")
    g("s_mov_b64 exec, -1")
    g.lwait0()
    g("s_barrier")
    for u in range(4): g.lds(f"ds_read_b128 {vr(xb+4*u,4)}, v{vlr} offset:{u*64}", ("lf", u))
    for u in range(4):
        g.lwait(("lf", u))
        g(f"v_mfma_f32_16x16x32_bf16 {vr(Da,4)}, {vr(uv+4*u,4)}, {vr(xb+4*u,4)}, {vr(Da,4) if u else 0}")
        g(f"v_mfma_f32_16x16x32_bf16 {vr(Db,4)}, {vr(uv+16+4*u,4)}, {vr(xb+4*u,4)}, {vr(Db,4) if u else 0}")
    g("s_nop 6")
    for k in range(8): g(f"v_add_f32_dpp v{Da+k}, v{Da+k}, v{Da+k} quad_perm:[1,0,3,2] {DPPF}")
    g("s_mov_b32 exec_lo, 0x000f000f"); g("s_mov_b32 exec_hi, 0x000f000f")
    pack_granule("s[70:71]")
    g(f"buffer_store_dwordx4 {vr(Ga,4)}, v{vcs}, {WS}, {sCPs} offen sc1")
    g("s_mov_b64 exec, -1")
    g.stamp(11)
    for k in range(8): g(f"v_mov_b32 v{pf+8+k}, 0")
    cl, ch = pf, pf + 8
    g(f"s_mov_b32 {sCnt}, 0")
    g("s_waitcnt vmcnt(0)")
    g.label("L_Wd")
    g(f"buffer_load_dwordx4 {vr(cl,4)}, v{vclo}, {WS}, {sCPl} offen sc1")
    g(f"s_add_u32 {sCnt}, {sCnt}, 1"); g(f"s_cmp_gt_u32 {sCnt}, {SPIN}"); g("s_cbranch_scc1 L_Wd_x")
    g("s_waitcnt vmcnt(0)")
    g(f"v_cmp_ne_u32 vcc, {sT}, v{cl}")
    g("s_cbranch_vccnz L_Wd")
    g.label("L_Wd_x")
    g("s_waitcnt vmcnt(0)")
    AL, AH = pf + 8, pf + 12
    for k in range(2):
        g(f"v_mov_b32_dpp v{AL+k}, v{cl+2+k} quad_perm:[0,1,2,3] row_mask:0xf bank_mask:0x3")
        g(f"v_mov_b32_dpp v{AL+2+k}, v{cl+2+k} row_ror:8 row_mask:0xf bank_mask:0x3")
        g(f"v_mov_b32_dpp v{AH+k}, v{cl+2+k} row_ror:8 row_mask:0xf bank_mask:0xc")
        g(f"v_mov_b32_dpp v{AH+2+k}, v{cl+2+k} quad_perm:[0,1,2,3] row_mask:0xf bank_mask:0xc")
    g("s_nop 0")
    g("s_nop 0")
    for k in range(4): g(f"v_mfma_f32_16x16x32_bf16 {vr(acc+4*k,4)}, {vr(AL,4)}, {ar(wo+4*TLO[k],4)}, {vr(acc+4*k,4)}")
    for k in range(4): g(f"v_mfma_f32_16x16x32_bf16 {vr(acc+4*k,4)}, {vr(AH,4)}, {ar(wo+4*THI[k],4)}, {vr(acc+4*k,4)}")
    g("s_nop 4")
    R = qo; U = Da
    g(f"v_pk_add_f32 {vr(R,2)}, {vr(acc,2)}, {vr(acc+2,2)}")
    g(f"v_pk_add_f32 {vr(U,2)}, {vr(acc+4,2)}, {vr(acc+6,2)}")
    g(f"v_pk_add_f32 {vr(R+2,2)}, {vr(acc+8,2)}, {vr(acc+10,2)}")
    g(f"v_pk_add_f32 {vr(U+2,2)}, {vr(acc+12,2)}, {vr(acc+14,2)}")
    g("s_nop 0")
    for k in range(4): g(f"v_permlane16_swap_b32 v{R+k}, v{U+k}")
    g("s_nop 0")
    g(f"v_pk_add_f32 {vr(R,2)}, {vr(R,2)}, {vr(U,2)}"); g(f"v_pk_add_f32 {vr(R+2,2)}, {vr(R+2,2)}, {vr(U+2,2)}")
    g(f"buffer_store_dwordx4 {vr(R,4)}, v{vop}, {WS}, {sOPo} offen sc1")
    g.stamp(2)
    dump_stamps(g, "W")
    g("s_endpgm")

    g.label("L_A2")
    g.lq = []
    g("""
    s_load_dword s43, s[8:9], 0
    s_load_dwordx2 s[52:53], s[0:1], 72
    """)
    dbg_init()
    g.reset_v(12)
    vj = l16
    vpo, vfl, vfo = g.v(), g.v(), g.v()
    abody(2, 0); abody(3, 0)
    g.stamp(1)
    srd(8, WS_REC); srd(12, 2048); srd(52, 2048)
    g(f"s_xor_b32 s58, {sRow}, 0x10000"); g("s_mov_b32 m0, s58"); g("s_add_u32 s59, s58, s57")
    abody(0, 1); abody(1, 1); abody(2, 1)
    g(f"v_lshlrev_b32 v{vfo}, 7, v1"); g("s_lshl_b32 s34, s6, 13"); g(f"s_add_u32 s34, s34, {FL1}")
    g(f"buffer_load_dword v{vfl}, v{vfo}, {WS}, s34 offen sc1")
    abody(3, 1)
    g.stamp(2)
    n, gg, r, c4 = g.v(), g.v(), g.v(), g.v()
    g(f"v_and_b32 v{n}, 15, v1"); g(f"v_lshrrev_b32 v{gg}, 4, v1"); g(f"v_bfe_u32 v{r}, v1, 2, 2"); g(f"v_and_b32 v{c4}, 3, v1")
    g(f"""
    s_lshl_b32 {sPOs}, s6, 20
    s_lshl_b32 s56, s3, 14
    s_add_u32 {sPOs}, {sPOs}, s56
    s_lshl_b32 s56, s7, 8
    s_add_u32 {sPOs}, {sPOs}, s56
    s_add_u32 {sPOs}, {sPOs}, {PO}
    """)
    sHX = "s35"
    g(f"s_mov_b32 {sHX}, {'s6' if swap else 0}")
    g(f"v_lshlrev_b32 v{vpo}, 16, v{n}"); g(f"v_lshl_add_u32 v{vpo}, v{gg}, 4, v{vpo}")
    vro, xr = g.v(), g.v()
    g(f"v_and_b32 v2, 1, v{gg}"); g(f"v_lshlrev_b32 v{vro}, 10, v2"); g(f"v_lshrrev_b32 v2, 1, v{gg}"); g(f"v_lshl_add_u32 v{vro}, v2, 7, v{vro}")
    g(f"v_and_b32 v2, 1, v1"); g(f"v_lshl_add_u32 v{vro}, v2, 1, v{vro}")
    sRo = "s26"
    g(f"""
    s_sub_u32 s56, s4, 16
    s_lshl4_add_u32 {sRid}, s5, s56
    s_lshr_b32 s56, {sRid}, 5
    s_lshl_b32 {sRo}, s56, 8
    s_bfe_u32 s56, {sRid}, 0x20003
    s_lshl_b32 s56, s56, 5
    s_add_u32 {sRo}, {sRo}, s56
    s_and_b32 s56, {sRid}, 7
    s_lshl2_add_u32 {sRo}, s56, {sRo}
    """)
    g(f"buffer_load_ushort v{xr}, v{vro}, {X}, {sRo} offen")
    vkq = g.v(4); vpv = g.v(16); vpw = g.v(2); vpr = g.v(2); vmx = g.v(); vqd = g.v(); vqr = g.v(); vqc = g.v(); vst = g.v()
    for k in range(4):
        g(f"v_add_u32 v2, {4*k}, v{gg}"); g(f"v_xor_b32 v2, v2, v{n}"); g(f"v_lshlrev_b32 v2, 4, v2"); g(f"v_lshl_add_u32 v2, v{n}, 10, v2"); g(f"v_add_u32 v{vkq+k}, {sRow}, v2")
    g(f"v_and_b32 v2, 1, v{gg}"); g(f"v_lshlrev_b32 v2, 2, v2"); g(f"v_add_lshl_u32 v2, v2, v{r}, 1")
    g(f"v_lshrrev_b32 v3, 1, v{c4}"); g(f"v_xor_b32 v2, v2, v3"); g(f"v_lshlrev_b32 v2, 4, v2")
    g(f"v_and_b32 v3, 1, v1"); g(f"v_lshl_add_u32 v2, v3, 3, v2")
    g(f"v_lshl_add_u32 v3, v{gg}, 2, v{r}"); g(f"v_lshl_add_u32 v2, v3, 11, v2")
    g(f"s_lshl_b32 s56, {sHX}, 16"); g(f"s_lshl_b32 s58, s3, 8"); g("s_add_u32 s56, s56, s58"); g(f"v_add_u32 v2, s56, v2")
    for T in range(8):
        g(f"v_xor_b32 v{vpv+2*T}, {T*32}, v2")
        g(f"v_xor_b32 v3, {T*32+16}, v2"); g(f"v_add_u32 v{vpv+2*T+1}, 0x400, v3")
    g(f"v_mul_u32_u24 v2, 272, v{n}"); g(f"v_lshrrev_b32 v3, 1, v{gg}"); g(f"v_lshl_add_u32 v{vpw}, v3, 4, v2"); g(f"v_and_b32 v3, 1, v{gg}"); g(f"v_lshl_add_u32 v{vpw}, v3, 2, v{vpw}")
    g(f"s_lshl_b32 s56, {sHX}, 7"); g(f"s_xor_b32 s58, s56, 0x80"); g(f"s_lshl_b32 s59, s3, 5"); g(f"s_add_u32 s59, s59, {L_P}")
    g("s_add_u32 s60, s58, s59"); g("s_add_u32 s59, s56, s59")
    g(f"v_add_u32 v{vpw+1}, s60, v{vpw}"); g(f"v_add_u32 v{vpw}, s59, v{vpw}")
    g(f"v_lshl_add_u32 v2, v{gg}, 4, v2"); g(f"s_add_u32 s56, s56, {L_P}"); g(f"s_add_u32 s58, s58, {L_P}")
    g(f"v_add_u32 v{vpr}, s56, v2"); g(f"v_add_u32 v{vpr+1}, s58, v2")
    g(f"v_lshlrev_b32 v{vmx}, 2, v{n}"); g(f"v_add_u32 v{vmx}, {L_MX}, v{vmx}")
    g(f"v_lshlrev_b32 v{vqd}, 6, v{n}"); g(f"v_lshl_add_u32 v{vqd}, v{gg}, 4, v{vqd}")
    g(f"v_add_u32 v{vqr}, {L_QA}, v{vj}")
    sQAl, sQAm, sSTs = "s27", "s30", "s31"
    g(f"""
    s_lshl_b32 {sQAm}, s3, 12
    s_lshr_b32 s56, s7, 5
    s_lshl1_add_u32 s56, s56, s6
    s_lshl_b32 s56, s56, 14
    s_add_u32 {sQAl}, s56, {sQAm}
    s_add_u32 {sQAl}, {sQAl}, {QA}
    s_add_u32 {sQAm}, {sQAm}, {L_QA}
    s_lshl_b32 {sSTs}, s6, 14
    s_lshl4_add_u32 {sSTs}, s7, {sSTs}
    s_add_u32 {sSTs}, {sSTs}, {ST}
    """)
    g(f"v_add_u32 v{vqc}, {sQAm}, v{vj}")
    g(f"v_lshlrev_b32 v{vst}, 10, v{n}")
    ones = g.v(4, 4)
    for k in range(4): g(f"v_mov_b32 v{ones+k}, 0x3f803f80")
    g(f"v_mov_b32 v2, 0xff800000")
    g(f"ds_write_b32 v{vmx}, v2")
    g.lwait0()
    g(f"s_mul_i32 {sT}, {sE}, 0x9E3779B1"); g(f"s_add_u32 {sT}, {sT}, 0x7F4A7C15")
    g("s_waitcnt vmcnt(18)")
    g.stamp(3)
    for u in range(16): g.lds(f"ds_read_b128 {ar(4*u,4)}, v{vkq+(u&3)} offset:{(u>>2)*256}")
    g("s_barrier")
    for ks in range(2):
        for T in range(8):
            for hf in range(2):
                g.lds(f"ds_read_b64_tr_b16 {ar(128+(ks*8+T)*4+2*hf,2)}, v{vpv+2*T+hf} offset:{ks*32768}")
    for k in range(4): g(f"v_xor_b32 v{vkq+k}, 0x10000, v{vkq+k}")
    g.lwait0()
    for k in range(16): g(f"v_xor_b32 v{vpv+k}, 0x10000, v{vpv+k}")
    g("s_waitcnt vmcnt(5)")
    g(f"v_cmp_ne_u32 vcc, {sT}, v{vfl}")
    g("s_cbranch_vccnz L_Af1")
    g.label("L_Af1_x")
    g.stamp(4)
    qf = g.v(64, 4); chk = g.v()
    g(f"s_mov_b32 m0, {sQAm}")
    g(f"s_mov_b32 {sCnt}, 0")
    for j in range(4): g(f"buffer_load_dwordx4 v{vqd}, {WS}, {sQAl} offen offset:{j*1024} sc1 lds")
    g("s_waitcnt vmcnt(5)")
    g.stamp(5)
    for u in range(16): g.lds(f"ds_read_b128 {ar(64+4*u,4)}, v{vkq+(u&3)} offset:{(u>>2)*256}")
    g("s_branch L_Aq_c")
    g.label("L_Aq")
    for j in range(4): g(f"buffer_load_dwordx4 v{vqd}, {WS}, {sQAl} offen offset:{j*1024} sc1 lds")
    g.label("L_Aq_c")
    g(f"s_add_u32 {sCnt}, {sCnt}, 1"); g(f"s_cmp_gt_u32 {sCnt}, {SPIN}"); g("s_cbranch_scc1 L_Aq_x")
    g("s_waitcnt vmcnt(0) lgkmcnt(8)")
    for j in range(4): g(f"ds_read_b128 {vr(qf+4*j,4)}, v{vqc} offset:{j*1024}")
    g.lwait0()
    g(f"v_max3_u32 v{chk}, v{qf+3}, v{qf+7}, v{qf+11}"); g(f"v_max_u32 v{chk}, v{chk}, v{qf+15}")
    g(f"v_cmp_eq_u32 vcc, -1, v{chk}")
    g("s_cbranch_vccnz L_Aq")
    g.label("L_Aq_x")
    g("s_waitcnt vmcnt(0) lgkmcnt(0)")
    g("s_barrier")
    g.stamp(6)
    SX = g.v(4, 4); SY = g.v(4, 4); O = g.v(32, 4); pfr = g.v(16, 4); LD = g.v(4, 4); pk = g.v(16, 4)
    trY = [(ks, T, hf) for ks in range(2) for T in range(8) for hf in range(2)]
    def try_(k):
        ks, T, hf = trY[k]
        g.lds(f"ds_read_b64_tr_b16 {ar(128+((ks+2)*8+T)*4+2*hf,2)}, v{vpv+2*T+hf} offset:{ks*32768}")
    AHEAD = 8
    g(f"s_add_u32 s34, s34, {FL2-FL1}")
    g(f"buffer_load_dword v{vfl}, v{vfo}, {WS}, s34 offen sc1")
    for u in range(AHEAD): g.lds(f"ds_read_b128 {vr(qf+4*u,4)}, v{vqr} offset:{u*1024}", ("q", u))
    for u in range(16):
        g.lwait(("q", u))
        g(f"v_mfma_f32_16x16x32_bf16 {vr(SX,4)}, {ar(4*u,4)}, {vr(qf+4*u,4)}, {vr(SX,4) if u else 0}")
        if u + AHEAD < 16: g.lds(f"ds_read_b128 {vr(qf+4*(u+AHEAD),4)}, v{vqr} offset:{(u+AHEAD)*1024}", ("q", u + AHEAD))
        else: try_(2 * (u + AHEAD - 16))
        g(f"v_mfma_f32_16x16x32_bf16 {vr(SY,4)}, {ar(64+4*u,4)}, {vr(qf+4*u,4)}, {vr(SY,4) if u else 0}")
        if u + AHEAD >= 16: try_(2 * (u + AHEAD - 16) + 1)
    ntr = 16
    mxv, t2 = g.v(), g.v()
    g("s_nop 5")
    g(f"v_max3_f32 v{mxv}, v{SX}, v{SX+1}, v{SX+2}")
    g(f"v_max3_f32 v{t2}, v{SX+3}, v{SY}, v{SY+1}")
    g(f"v_max3_f32 v{mxv}, v{mxv}, v{SY+2}, v{SY+3}")
    g(f"v_max_f32 v{mxv}, v{mxv}, v{t2}")
    g(f"ds_max_f32 v{vmx}, v{mxv}")
    g.lwait0()
    g("s_barrier")
    g(f"ds_read_b32 v{mxv}, v{vmx}")
    g(f"s_mov_b32 s56, {KSCALE:#x}")
    g.lwait0()
    STG = g.v(4, 4)
    g(f"v_mul_f32 v{STG}, s56, v{mxv}")
    assert SY == SX + 4
    for k in range(8): g(f"v_fma_f32 v{SX+k}, v{SX+k}, s56, -v{STG}")
    for k in range(8): g(f"v_exp_f32 v{SX+k}, v{SX+k}")
    g(f"v_mov_b32 v{STG+2}, {sT}")
    for H in range(2):
        g(f"v_cvt_pk_bf16_f32 v{pk+2*H}, v{SX+4*H}, v{SX+4*H+2}"); g(f"v_cvt_pk_bf16_f32 v{pk+2*H+1}, v{SX+4*H+1}, v{SX+4*H+3}")
        g(f"ds_write2_b32 v{vpw+H}, v{pk+2*H}, v{pk+2*H+1} offset1:2")
    g.lwait0()
    g("s_barrier")
    g.stamp(7)
    for ks in range(4): g.lds(f"ds_read_b128 {vr(pfr+4*ks,4)}, v{vpr+(ks>>1)} offset:{(ks&1)*64}", ("p", ks))
    for k in range(ntr, ntr + 8): try_(k)
    g(f"s_cmp_lg_u32 {sW}, 0"); g("s_cbranch_scc1 L_Anol")
    save = list(g.lq)
    g.lwait(("p", 3))
    for ks in range(4): g(f"v_mfma_f32_16x16x32_bf16 {vr(LD,4)}, {vr(ones,4)}, {vr(pfr+4*ks,4)}, {vr(LD,4) if ks else 0}")
    g.label("L_Anol")
    g.lq = save
    g.lwait(("p", 1))
    for T in range(8):
        g(f"v_mfma_f32_16x16x32_bf16 {vr(O+4*T,4)}, {ar(128+T*4,4)}, {vr(pfr,4)}, 0")
        try_(ntr + 8 + T)
    g("s_waitcnt vmcnt(0)")
    g(f"v_cmp_ne_u32 vcc, {sT}, v{vfl}")
    g("s_cbranch_vccnz L_Af2")
    g.label("L_Af2_x")
    g(f"s_cmp_lg_u32 {sW}, 0"); g("s_cbranch_scc1 L_Anos")
    g(f"v_mov_b32 v{STG+1}, v{LD}")
    g("s_mov_b64 exec, 0xffff")
    g(f"buffer_store_dwordx4 {vr(STG,4)}, v{vst}, {WS}, {sSTs} offen sc1")
    g("s_mov_b64 exec, -1")
    g.label("L_Anos")
    for T in range(8): g(f"v_mfma_f32_16x16x32_bf16 {vr(O+4*T,4)}, {ar(128+(8+T)*4,4)}, {vr(pfr+4,4)}, {vr(O+4*T,4)}")
    g.lwait0()
    def epi(b):
        for q in range(2):
            g(f"v_cvt_pk_bf16_f32 v{pk+4*b+2*q}, v{O+8*b+4*q}, v{O+8*b+4*q+1}")
            g(f"v_cvt_pk_bf16_f32 v{pk+4*b+2*q+1}, v{O+8*b+4*q+2}, v{O+8*b+4*q+3}")
        g(f"buffer_store_dwordx4 {vr(pk+4*b,4)}, v{vpo}, {WS}, {sPOs} offen offset:{b*64} sc1")
    for b in range(4):
        for ks in (2, 3):
            for T in (2 * b, 2 * b + 1):
                g(f"v_mfma_f32_16x16x32_bf16 {vr(O+4*T,4)}, {ar(128+(ks*8+T)*4,4)}, {vr(pfr+4*ks,4)}, {vr(O+4*T,4)}")
        if b >= 2: epi(b - 2)
    g("s_nop 2")
    epi(2)
    g("s_nop 1")
    epi(3)
    g.stamp(8)
    g(f"s_cmp_lg_u32 {sW}, 0"); g("s_cbranch_scc1 L_Aend")
    op = qf
    g("s_xor_b32 s34, s34, 0x2000")
    g(f"buffer_load_dword v{vfl}, v{vfo}, {WS}, s34 offen sc1")
    g("s_waitcnt vmcnt(0)")
    g(f"v_cmp_ne_u32 vcc, {sT}, v{vfl}")
    g("s_cbranch_vccnz L_Af3")
    g.label("L_Af3_x")
    g(f"s_lshl_b32 s56, {sRid}, 12"); g(f"s_add_u32 s56, s56, {OP}")
    g(f"v_lshlrev_b32 v{xr}, 16, v{xr}")
    g(f"s_mov_b32 {sCnt}, 0")
    g.label("L_R")
    for j in range(4): g(f"buffer_load_dwordx4 {vr(op+4*j,4)}, v{vj}, {WS}, s56 offen offset:{j*1024} sc1")
    g(f"s_add_u32 {sCnt}, {sCnt}, 1"); g(f"s_cmp_gt_u32 {sCnt}, {SPIN}"); g("s_cbranch_scc1 L_R_x")
    g("s_waitcnt vmcnt(0)")
    g(f"v_max3_u32 v{chk}, v{op+3}, v{op+7}, v{op+11}"); g(f"v_max_u32 v{chk}, v{chk}, v{op+15}")
    g(f"v_cmp_eq_u32 vcc, -1, v{chk}")
    g("s_cbranch_vccnz L_R")
    g.label("L_R_x")
    g("s_waitcnt vmcnt(0)")
    g.stamp(9)
    for k in range(2):
        g(f"v_pk_add_f32 {vr(op+2*k,2)}, {vr(op+2*k,2)}, {vr(op+4+2*k,2)}"); g(f"v_pk_add_f32 {vr(op+8+2*k,2)}, {vr(op+8+2*k,2)}, {vr(op+12+2*k,2)}")
    for k in range(2): g(f"v_pk_add_f32 {vr(op+2*k,2)}, {vr(op+2*k,2)}, {vr(op+8+2*k,2)}")
    g("s_nop 1")
    g(f"v_permlane16_swap_b32 v{op}, v{op+1}"); g(f"v_permlane16_swap_b32 v{op+2}, v{op+3}")
    g("s_nop 0")
    g(f"v_add_f32 v{op}, v{op}, v{op+1}"); g(f"v_add_f32 v{op+2}, v{op+2}, v{op+3}")
    g("s_nop 1")
    g(f"v_permlane32_swap_b32 v{op}, v{op+2}")
    g("s_nop 0")
    g(f"v_add_f32 v{op}, v{op}, v{op+2}")
    for k in (2, 4, 8):
        g("s_nop 1"); g(f"v_add_f32_dpp v{op}, v{op}, v{op} row_ror:{k} {DPPF}")
    g(f"v_add_f32 v{op}, v{op}, v{xr}")
    g("s_mov_b32 exec_lo, 0x00030003"); g("s_mov_b32 exec_hi, 0x00030003")
    g(f"v_cvt_pk_bf16_f32 v{op}, v{op}, v{op}")
    g(f"buffer_store_short v{op}, v{vro}, {OUT}, {sRo} offen")
    g(f"s_cmp_lg_u32 {sRid}, 0"); g("s_cbranch_scc1 L_Aend")
    g("s_mov_b64 exec, 1"); g(f"v_mov_b32 v2, {sT}"); g("v_mov_b32 v3, 0")
    g(f"buffer_store_dword v2, v3, {WS}, 0 offen sc1")
    g.label("L_Aend")
    g.stamp(10)
    dump_stamps(g, "A")
    g("s_endpgm")
    for nm in ("L_Af1", "L_Af2", "L_Af3"): flag_fallback(g, nm, vfl, vfo, "s34", sCnt)
    g.label("L_end")
    body = "\n".join(g.L)
    hdr = open("parallel_sum__compressed_kv_cla__dense_activation_silu__decode.s.ref").read().split("; Override launch")[0]
    return f"""{hdr}; @launch grid=(256,1,1) block=(256,1,1) lds={LDS_BYTES}
.amdgcn_target "amdgcn-amd-amdhsa--gfx950"
.text
.globl {KNAME}
.p2align 8
.type {KNAME},@function
{KNAME}:
{body}
    s_endpgm
.section .rodata,"a"
.p2align 6
.amdhsa_kernel {KNAME}
  .amdhsa_next_free_vgpr 512
  .amdhsa_next_free_sgpr 102
  .amdhsa_accum_offset 256
  .amdhsa_group_segment_fixed_size 0
  .amdhsa_kernarg_size 96
  .amdhsa_user_sgpr_count 2
  .amdhsa_user_sgpr_kernarg_segment_ptr 1
  .amdhsa_system_sgpr_workgroup_id_x 1
.end_amdhsa_kernel
"""

if __name__ == "__main__":
    dbg = 2 if "--debug2" in sys.argv else ("--debug" in sys.argv)
    out = [a for a in sys.argv[1:] if not a.startswith("--")][0]
    kw = {}
    for a in sys.argv[1:]:
        if a.startswith("--thr="): kw["thr"] = tuple(int(x) for x in a[6:].split(","))
        if a.startswith("--swap="): kw["swap"] = int(a[7:])
    open(out, "w").write(build(dbg, **kw))
```

```python
import sys, struct

KNAME = "parallel_sum__compressed_kv_cla__dense_activation_silu__decode_kernel"

QP, CP, QA, ST, OP, PO, TS = 0x10000, 0x30000, 0x50000, 0x380000, 0x80000, 0x100000, 0x340000
FL1, FL2, HP, HA, HW = 0x68000, 0x6C000, 0x70000, 0x60000, 0x64000
WS_REC = 0x400000
OOB = 0x40000000
L_WQ, L_WUK, L_WUV, L_WO, L_W1, L_W2, L_XN, L_LAT = 0, 0x8000, 0, 0x10000, 0x18000, 0x1C000, 0x20000, 0x20900
XNP = 1056
L_QA, L_P, L_MX = 0x20000, 0x24000, 0x25200
LDS_BYTES = 0x25400
SPIN = 20000

def f2u(x): return struct.unpack("<I", struct.pack("<f", x))[0]
KSCALE = f2u(128 ** -0.5 * 1.4426950408889634)

class G:
    def __init__(self, debug=False):
        self.L = []; self.debug = debug; self.nv = 0; self.names = {}; self.nstamp = 0; self.lq = []; self.maxv = 0
    def __call__(self, s):
        for ln in s.strip().split("\n"):
            self.L.append("    " + ln.strip())
    def label(self, s): self.L.append(s + ":")
    def c(self, s): self.L.append("    ; " + s)
    def reset_v(self, start): self.nv = start
    def v(self, n=1, al=None):
        if al is None: al = 1 if n == 1 else 2
        self.nv = (self.nv + al - 1) // al * al
        r = self.nv; self.nv += n; self.maxv = max(self.maxv, self.nv)
        assert self.nv <= 254, "out of VGPRs"
        return r
    def stamp(self, i):
        if self.debug == 3 and i not in (0, 10): return
        if self.debug == 2:
            if i == 11: return
            if i == 14: i = 11
        if self.debug == 1 and i == 13: return
        if self.debug:
            assert i < 15
            self(f"s_memrealtime s[{72+2*i}:{73+2*i}]")
    def count(self, cnt):
        if self.debug == 1:
            self(f"s_min_u32 s99, {cnt}, 63"); self("s_lshl_b32 s98, s98, 6"); self("s_or_b32 s98, s98, s99")
    def lds(self, s, tag=None):
        if len(self.lq) >= 15:
            self.lwait(self.lq[len(self.lq) - 15])
        self(s); self.lq.append(tag if tag is not None else object())
    def lwait(self, tag):
        if tag not in self.lq: return
        k = max(i for i, t in enumerate(self.lq) if t == tag)
        n = len(self.lq) - 1 - k
        self(f"s_waitcnt lgkmcnt({n})")
        self.lq = self.lq[k + 1:]
    def lwait0(self):
        self("s_waitcnt lgkmcnt(0)"); self.lq = []

def vr(a, n): return f"v[{a}:{a+n-1}]" if n > 1 else f"v{a}"
def ar(a, n): return f"a[{a}:{a+n-1}]"

sW, sS, sX, sH, sQT = "s3", "s4", "s5", "s6", "s7"
WS, X, WQ, WUK, WUV, WO, W1, W2, DBG, CKV, OUT = ("s[8:11]", "s[12:15]", "s[16:19]", "s[20:23]", "s[24:27]", "s[28:31]",
                                                  "s[32:35]", "s[36:39]", "s[44:47]", "s[48:51]", "s[52:55]")
sT, sE = "s42", "s43"
sHG, sSP = "s6", "s7"
DPPF = "row_mask:0xf bank_mask:0xf"

def reduce32(g, op, s, t):
    for k in (8, 4, 2, 1):
        g(f"v_{op}_f32_dpp v{s}, v{s}, v{s} row_ror:{k} {DPPF}")
        g("s_nop 1")
    g(f"v_mov_b32 v{t}, v{s}")
    g("s_nop 1")
    g(f"v_permlane16_swap_b32 v{t}, v{s}")
    g("s_nop 0")
    g(f"v_{op}_f32 v{s}, v{s}, v{t}")

def reduce64(g, op, s, t):
    reduce32(g, op, s, t)
    g(f"v_mov_b32 v{t}, v{s}")
    g("s_nop 1")
    g(f"v_permlane32_swap_b32 v{t}, v{s}")
    g("s_nop 0")
    g(f"v_{op}_f32 v{s}, v{s}, v{t}")

def flag_fallback(g, name, vfl, vfo, soff, cnt, pair=False):
    g.label(name)
    g(f"s_mov_b32 {cnt}, 0")
    g.label(name + "_l")
    g("s_sleep 2")
    if pair: g(f"buffer_load_dwordx2 {vr(vfl,2)}, v{vfo}, {WS}, {soff} offen sc1")
    else: g(f"buffer_load_dword v{vfl}, v{vfo}, {WS}, {soff} offen sc1")
    g(f"s_add_u32 {cnt}, {cnt}, 1"); g(f"s_cmp_gt_u32 {cnt}, {SPIN}"); g(f"s_cbranch_scc1 {name}_x")
    g("s_waitcnt vmcnt(0)")
    if pair: g(f"v_cmp_ne_u64 vcc, s[40:41], {vr(vfl,2)}")
    else: g(f"v_cmp_ne_u32 vcc, {sT}, v{vfl}")
    g(f"s_cbranch_vccnz {name}_l")
    g(f"s_branch {name}_x")

HINTN = 3000
def hint_wait(g, name, vt, vz, soff, off, cnt):
    g(f"s_mov_b32 {cnt}, 0")
    g.label(name)
    g(f"buffer_load_dword v{vt}, v{vz}, {WS}, {soff} offen offset:{off} sc1")
    g(f"s_add_u32 {cnt}, {cnt}, 1"); g(f"s_cmp_gt_u32 {cnt}, HINT_LIMIT"); g(f"s_cbranch_scc1 {name}_x")
    g("s_waitcnt vmcnt(0)")
    g(f"v_cmp_ne_u32 vcc, {sT}, v{vt}")
    g(f"s_cbranch_vccnz {name}")
    g.label(name + "_x")

def dump_stamps(g, role=None):
    if not g.debug: return
    g.lwait0()
    if g.debug == 3:
        lo = 0 if role == "W" else 128
        g(f"s_sub_u32 s56, s2, {lo}"); g("s_cmp_ge_u32 s56, 8"); g(f"s_cbranch_scc1 L_nod{role}"); g(f"s_cmp_lg_u32 {sW}, 0"); g(f"s_cbranch_scc1 L_nod{role}")
        g("s_lshl_b32 s60, s56, 2")
        g("s_mov_b64 exec, -1"); g(f"v_mov_b32 v2, s{72 if role == 'W' else 92}"); g("v_mov_b32 v3, 0")
        g("s_mov_b32 s58, 256"); g("s_mov_b32 s59, 0x20000"); g("s_mov_b64 s[56:57], s[100:101]"); g("s_mov_b64 exec, 1")
        g(f"buffer_store_dword v2, v3, s[56:59], s60 offen offset:{0 if role == 'W' else 32}")
        g.label(f"L_nod{role}")
        return
    if g.debug == 2:
        wg, sel, base = (0, (3, 1, 12, 6, 11, 8, 10, 2), 0) if role == "W" else (128 + 3, (1, 2, 5, 6, 7, 8, 9, 10), 32)
        g(f"s_lshl2_add_u32 s56, s2, {sW}"); g(f"s_cmp_lg_u32 s56, {wg*4}"); g(f"s_cbranch_scc1 L_nod{role}")
        g("s_mov_b64 exec, -1"); g("v_mov_b32 v2, 0")
        for i, k in enumerate(sel):
            g(f"s_sub_u32 s57, s{72+2*k}, s72"); g(f"v_writelane_b32 v2, s57, {i}")
        g("s_mov_b32 s102, 0" if False else "s_nop 0")
        g("s_mov_b32 s58, 256"); g("s_mov_b32 s59, 0x20000"); g("s_mov_b64 s[56:57], s[100:101]")
        g("v_lshlrev_b32 v3, 2, v1"); g("s_mov_b64 exec, 0xff")
        g(f"buffer_store_dword v2, v3, s[56:59], 0 offen offset:{base}")
        g.label(f"L_nod{role}")
        return
    g(f"s_lshl_b32 s56, s2, 2"); g(f"s_add_u32 s56, s56, {sW}"); g("s_lshl_b32 s56, s56, 6"); g(f"s_add_u32 s56, s56, {TS}")
    g("s_mov_b64 exec, -1")
    g("v_mov_b32 v2, 0")
    for i in range(15): g(f"v_writelane_b32 v2, s{72+2*i}, {i}")
    g("s_getreg_b32 s57, hwreg(HW_REG_XCC_ID)")
    g("v_writelane_b32 v2, s57, 15")
    g("v_lshlrev_b32 v3, 2, v1")
    g("s_mov_b64 exec, 0xffff")
    g(f"buffer_store_dword v2, v3, {WS}, s56 offen")

def build(debug=False, thr=(16, 0), swap=1, touch=0, pfk=1, pfo=1, pf2=1, pfc=0, noflag=0, wdelay=0, loc=1, stw=16, slp=1, pad=0, rslp=0, p2t=0, est=1, pfoe=1, hint=1, qal=0, hintr=1, hsl=0):
    g = G(debug)
    g.stamp(0)
    g("""
    s_load_dwordx2 s[16:17], s[0:1], 16
    s_load_dwordx2 s[48:49], s[0:1], 8
    s_load_dwordx2 s[20:21], s[0:1], 24
    s_load_dwordx2 s[12:13], s[0:1], 0
    s_load_dwordx2 s[8:9], s[0:1], 88
    s_cmp_ge_u32 s2, 256
    s_cbranch_scc1 L_end
    v_lshrrev_b32 v2, 6, v0
    v_and_b32 v1, 63, v0
    s_lshr_b32 s4, s2, 3
    v_readfirstlane_b32 s3, v2
    s_and_b32 s5, s2, 7
    v_lshlrev_b32 v4, 4, v1
    s_cmp_ge_u32 s4, 16
    s_cbranch_scc1 L_A
    """)
    l16 = 4
    def srd(k, sz):
        g(f"s_mov_b32 s{k+2}, {sz}"); g(f"s_mov_b32 s{k+3}, 0x20000")
    def dbg_init():
        if debug:
            for i in range(1, 14): g(f"s_mov_b64 s[{72+2*i}:{73+2*i}], 0")
            if debug >= 2: g("s_load_dwordx2 s[100:101], s[0:1], 80")
            else: g("s_mov_b64 s[100:101], 0")
    g.reset_v(5)
    n, gg = g.v(), g.v()
    vqA, vqB = g.v(), g.v(); vq4 = g.v(4)
    xa = g.v(8, 4)
    sQAo, sOPo, sQoff = "s38", "s39", "s35"
    g(f"v_and_b32 v{n}, 15, v1"); g(f"v_lshrrev_b32 v{gg}, 4, v1")
    g(f"v_lshlrev_b32 v2, 1, v{gg}"); g(f"v_xor_b32 v2, v2, v{n}"); g(f"v_lshlrev_b32 v2, 4, v2"); g(f"v_lshl_add_u32 v{vqA}, v{gg}, 13, v2"); g(f"v_xor_b32 v{vqB}, 0x80, v{vqA}")
    g(f"v_add_u32 v{vq4+1}, {31744}, v{vqA}"); g(f"v_add_u32 v{vq4+2}, {2*31744}, v{vqB}"); g(f"v_add_u32 v{vq4+3}, {3*31744}, v{vqB}")
    srd(16, 4 << 20); srd(12, 2048)
    g(f"""
    s_lshr_b32 s6, s4, 2
    s_lshl2_add_u32 s6, s5, s6
    s_and_b32 s7, s4, 3
    s_lshl2_add_u32 s61, s7, s3
    s_lshl_b32 s61, s61, 18
    s_lshl_b32 s59, s6, 8
    s_add_u32 {sQoff}, s61, s59
    s_lshl_b32 s60, s3, 13
    s_mov_b32 m0, s60
    s_lshl_b32 s57, s3, 10
    s_cmp_lt_u32 s3, 2
    s_cselect_b64 exec, -1, 0
    s_waitcnt lgkmcnt(0)
    """)
    def quad(srdname, soff):
        g(f"buffer_load_dwordx4 v{vqA}, {srdname}, {soff} offen nt lds")
        for k in range(1, 4): g(f"buffer_load_dwordx4 v{vq4+k}, {srdname}, {soff} offen offset:{k*1024} nt lds")
    g(f"buffer_load_dwordx4 {vr(xa,4)}, v{l16}, {X}, s57 offen")
    g("s_mov_b64 exec, -1")
    quad(WQ, sQoff)
    g("s_add_u32 m0, m0, 0x1000"); g(f"s_add_u32 s61, {sQoff}, 0x20000")
    quad(WQ, "s61")
    g("s_branch L_W2")
    wv = g.nv
    g.label("L_A")
    vt4 = 8
    sPOs, sRow, sCnt, sRid = "s18", "s19", "s22", "s23"
    g(f"""
    s_and_b32 s6, s4, 1
    s_bfe_u32 s56, s4, 0x30001
    s_lshl3_add_u32 s7, s5, s56
    s_lshl_b32 s57, s7, 17
    """)
    if swap: g(f"s_lshl2_add_u32 {sRow}, s6, s3"); g(f"s_lshl_b32 {sRow}, {sRow}, 14")
    else: g(f"s_lshl_b32 {sRow}, s3, 14")
    srd(48, 8 << 20)
    g(f"s_mov_b32 m0, {sRow}"); g(f"s_add_u32 s33, {sRow}, s57")
    if pfk:
        g("""
        s_and_b32 s60, s4, 3
        s_lshl2_add_u32 s60, s60, s3
        s_lshl_b32 s60, s60, 18
        s_bfe_u32 s61, s4, 0x20002
        s_lshl2_add_u32 s61, s5, s61
        s_lshl_b32 s61, s61, 8
        s_add_u32 s60, s60, s61
        v_lshrrev_b32 v2, 1, v1
        v_and_b32 v3, 1, v1
        v_lshlrev_b32 v2, 13, v2
        v_lshl_add_u32 v2, v3, 7, v2
        v_add_u32 v2, s60, v2
        """)
        if pfk == 2: g("s_cmp_lt_u32 s3, 2"); g("s_cselect_b64 exec, -1, 0")
        g("s_waitcnt lgkmcnt(0)")
        g("global_load_dword v255, v2, s[20:21]")
        if pfk == 2: g("s_mov_b64 exec, -1")
    def abody(a, half):
        if a == 0:
            for k in range(1, 4): g(f"v_xor_b32 v{vt4+k}, {k*16}, v{l16}")
            regs = [l16, vt4 + 1, vt4 + 2, vt4 + 3]
        else:
            for k in range(4): g(f"v_xor_b32 v{vt4+k}, {(4*a+k)*16}, v{l16}")
            regs = [vt4 + k for k in range(4)]
        if a == 0 and half == 0: g("s_waitcnt lgkmcnt(0)")
        for k in range(4):
            j = 4 * a + k
            if half == 0 and thr[0] <= j < thr[1] + thr[0]: g(f"s_waitcnt vmcnt({thr[0]-1})")
            g(f"buffer_load_dwordx4 v{regs[k]}, {CKV}, s33 offen offset:{k*1024} nt lds")
        if a < 3: g("s_add_u32 m0, m0, 0x1000"); g("s_add_u32 s33, s33, 0x1000")
    abody(0, 0); abody(1, 0)
    g(f"""
    s_getpc_b64 s[40:41]
L_pc:
    v_lshlrev_b32 v2, 3, v4
    s_lshl2_add_u32 s56, s4, s3
    v_add_u32 v3, 0x2000, v2
    v_min_u32 v3, L_end-L_pc, v3
    s_cmp_eq_u32 s56, 64
    s_cselect_b64 exec, -1, 0
    global_load_dword v255, v2, s[40:41]
    global_load_dword v255, v3, s[40:41]
    s_mov_b64 exec, -1
    s_branch L_A2
    """)

    g.label("L_W2")
    g.reset_v(wv)
    g("""
    s_load_dword s43, s[8:9], 0
    s_load_dwordx2 s[24:25], s[0:1], 32
    s_load_dwordx2 s[28:29], s[0:1], 40
    s_load_dwordx2 s[32:33], s[0:1], 56
    s_load_dwordx2 s[36:37], s[0:1], 64
    """)
    dbg_init()
    srd(8, WS_REC); srd(20, 4 << 20)
    if loc:
        g(f"v_and_b32 v2, 0x70, v{l16}"); g(f"v_lshlrev_b32 v2, 3, v2"); g("s_lshl2_add_u32 s63, s6, s7"); g("s_lshl_b32 s63, s63, 10"); g("s_lshl_b32 s62, s3, 17"); g("s_add_u32 s63, s63, s62"); g(f"s_add_u32 s63, s63, {QP}")
        g("s_cmp_lt_u32 s3, 2"); g("s_cselect_b64 exec, 0xff, 0")
        g(f"buffer_load_dword v254, v2, {WS}, s63 offen")
        g("s_mov_b64 exec, -1")
    sent = g.v(4, 4); vqa, vop = g.v(), g.v()
    for k in range(4): g(f"v_mov_b32 v{sent+k}, -1")
    vk = g.v(8); vkr = g.v(4)
    g(f"v_xor_b32 v2, v{n}, v{gg}"); g(f"v_lshlrev_b32 v2, 4, v2"); g(f"v_lshl_add_u32 v{vk}, v{gg}, 13, v2")
    for k in range(1, 8):
        g(f"v_xor_b32 v{vk+k}, {(k>>1)*64}, v{vk}")
        if k & 3: g(f"v_add_u32 v{vk+k}, {(k&3)*31744}, v{vk+k}")
    g(f"""
    s_lshr_b32 s62, s6, 4
    s_lshl2_add_u32 s62, s62, s7
    s_lshl_b32 s62, s62, 6
    s_and_b32 s63, s6, 15
    s_add_u32 s62, s62, s63
    s_lshl_b32 s62, s62, 6
    s_add_u32 s62, s62, {QA}
    s_add_u32 {sQAo}, s62, s57
    s_cmp_lt_u32 s3, 2
    s_cbranch_scc1 L_W_c
    """)
    g(f"v_lshrrev_b32 v3, 3, v1"); g(f"v_lshlrev_b32 v3, 10, v3"); g(f"v_and_b32 v{vop}, 4, v1"); g(f"v_lshl_add_u32 v3, v{vop}, 13, v3"); g(f"v_and_b32 v{vop}, 3, v1"); g(f"v_lshl_add_u32 v3, v{vop}, 4, v3")
    g("s_cmp_eq_u32 s3, 2"); g("s_cselect_b32 exec_lo, -1, 0"); g("s_mov_b32 exec_hi, 0")
    g(f"buffer_store_dwordx4 {vr(sent,4)}, v3, {WS}, s62 offen sc1")
    g("s_mov_b64 exec, -1")
    g("s_lshr_b32 s62, s6, 1"); g("s_lshl2_add_u32 s62, s62, s7"); g("s_lshl_b32 s62, s62, 1"); g("s_and_b32 s63, s6, 1"); g("s_add_u32 s62, s62, s63")
    g("s_lshl_b32 s62, s62, 1"); g("s_and_b32 s63, s3, 1"); g("s_add_u32 s62, s62, s63"); g("s_lshl_b32 s62, s62, 13")
    g(f"s_add_u32 s62, s62, {PO}"); g("s_add_u32 s58, s62, 0x1000")
    for k in range(8): g(f"buffer_store_dwordx4 {vr(sent,4)}, v{l16}, {WS}, {'s62' if k < 4 else 's58'} offen offset:{(k&3)*1024} sc1")
    g(f"""
    s_lshl_b32 s58, s63, 14
    s_add_u32 m0, s58, {L_WUK}
    s_lshl_b32 s58, s7, 1
    s_add_u32 s58, s58, s63
    s_lshl_b32 s58, s58, 19
    s_add_u32 s61, s58, s59
    """)
    for a in range(4):
        for k in range(4): g(f"buffer_load_dwordx4 v{vk+4*(a&1)+k}, {WUK}, s61 offen offset:{k*1024} nt lds")
        if a < 3: g("s_add_u32 m0, m0, 0x1000"); g("s_add_u32 s61, s61, 0x20000")
    g.label("L_W_c")
    r, c4 = g.v(), g.v()
    g(f"v_bfe_u32 v{r}, v1, 2, 2"); g(f"v_and_b32 v{c4}, 3, v1")
    vxf, vtr, vqps, vqpl, vf = g.v(), g.v(), g.v(), g.v(), g.v()
    g(f"v_lshl_add_u32 v3, v{r}, 3, v{c4}"); g(f"v_lshl_add_u32 v2, v3, 8, v2"); g(f"s_add_u32 s64, s60, {L_WUK}"); g(f"v_add_u32 v{vkr}, s64, v2")
    for k in range(1, 4): g(f"v_xor_b32 v{vkr+k}, {k*64}, v{vkr}")
    g(f"v_lshlrev_b32 v{vqa}, 13, v1"); g(f"v_and_b32 v{vqa}, 0x8000, v{vqa}"); g(f"v_lshl_or_b32 v{vqa}, v{gg}, 4, v{vqa}")
    g(f"v_and_b32 v2, 1, v1"); g(f"v_mul_u32_u24 v{vxf}, {XNP}, v2"); g(f"v_lshl_add_u32 v{vxf}, v{gg}, 4, v{vxf}")
    g(f"s_lshl_b32 s63, s7, 8"); g(f"s_add_u32 s63, s63, {L_XN}"); g(f"v_add_u32 v{vxf}, s63, v{vxf}")
    g(f"v_lshlrev_b32 v{vqps}, 9, v2"); g(f"v_lshl_add_u32 v{vqps}, v{gg}, 5, v{vqps}"); g(f"v_and_b32 v2, 2, v1"); g(f"v_lshl_add_u32 v{vqps}, v2, 3, v{vqps}")
    g(f"v_and_b32 v2, 1, v{gg}"); g(f"v_lshl_or_b32 v2, v2, 2, v{r}"); g(f"v_lshlrev_b32 v{vf}, 5, v2")
    g(f"s_lshl_b32 s63, s3, 6"); g(f"v_lshl_or_b32 v2, v{c4}, 4, s63"); g(f"v_xor_b32 v2, v2, v{vf}")
    g(f"v_lshl_add_u32 v{vtr}, v{gg}, 3, v{r}"); g(f"v_lshl_add_u32 v{vtr}, v{vtr}, 8, v2")
    g(f"v_bfe_u32 v2, v1, 2, 1"); g(f"v_lshl_add_u32 v{vqpl}, v{c4}, 1, v2"); g(f"v_lshlrev_b32 v{vqpl}, 9, v{vqpl}"); g(f"v_lshl_add_u32 v{vqpl}, v{gg}, 5, v{vqpl}")
    g(f"v_and_b32 v2, 8, v1"); g(f"v_lshl_add_u32 v{vqpl}, v2, 1, v{vqpl}")
    g(f"""
    s_lshl_b32 s68, s6, 12
    s_add_u32 s68, s68, {QP}
    s_lshl_b32 s63, s7, 10
    s_add_u32 s67, s68, s63
    s_lshl_b32 s63, s3, 7
    s_add_u32 s67, s67, s63
    s_mov_b32 s70, 0xcccccccc
    s_mov_b32 s71, s70
    s_lshl2_add_u32 s69, s6, s7
    s_lshl_b32 s44, s69, 4
    s_add_u32 s44, s44, {FL1}
    """)
    Ga = g.v(4, 4); vT = Ga
    f = g.v(16, 2); m = g.v(2); t = g.v(); s2 = g.v(8, 2)
    g("s_cmp_lt_u32 s3, 2"); g("s_cbranch_scc1 L_W_ln")
    g("s_waitcnt lgkmcnt(0)")
    g(f"s_mul_i32 {sT}, {sE}, 0x9E3779B1"); g(f"s_add_u32 {sT}, {sT}, 0x7F4A7C15")
    g(f"v_mov_b32 v{vT}, {sT}")
    g("v_lshlrev_b32 v3, 2, v1")
    g("s_cmp_eq_u32 s3, 2"); g("s_cselect_b32 exec_lo, 0xf, 0"); g("s_mov_b32 exec_hi, 0")
    g("s_waitcnt vmcnt(24)")
    g(f"buffer_store_dword v{vT}, v3, {WS}, s44 offen sc1")
    g("s_mov_b64 exec, -1")
    g("s_branch L_W_b0")
    g.label("L_W_ln")
    g(f"s_mul_i32 s63, s3, {XNP}"); g(f"s_add_u32 s63, s63, {L_XN}"); g(f"v_add_u32 v3, s63, v{l16}")
    g(f"s_waitcnt vmcnt({9 if loc else 8})")
    d = f + 8
    for k in range(4):
        g(f"v_lshlrev_b32 v{f+2*k}, 16, v{xa+k}"); g(f"v_and_b32 v{f+2*k+1}, 0xffff0000, v{xa+k}")
    g(f"v_pk_add_f32 {vr(s2,2)}, {vr(f,2)}, {vr(f+2,2)}"); g(f"v_pk_add_f32 {vr(s2+2,2)}, {vr(f+4,2)}, {vr(f+6,2)}")
    g(f"v_pk_add_f32 {vr(s2,2)}, {vr(s2,2)}, {vr(s2+2,2)}")
    g(f"v_add_f32 v{m}, v{s2}, v{s2+1}"); g("s_nop 1")
    reduce64(g, "add", m, t)
    g(f"v_mul_f32 v{m}, {f2u(1/512):#x}, v{m}")
    for k in range(4): g(f"v_pk_add_f32 {vr(d+2*k,2)}, {vr(f+2*k,2)}, {vr(m,2)} op_sel_hi:[1,0] neg_lo:[0,1] neg_hi:[0,1]")
    g(f"v_pk_mul_f32 {vr(s2,2)}, {vr(d,2)}, {vr(d,2)}"); g(f"v_pk_mul_f32 {vr(s2+2,2)}, {vr(d+2,2)}, {vr(d+2,2)}")
    g(f"v_pk_fma_f32 {vr(s2,2)}, {vr(d+4,2)}, {vr(d+4,2)}, {vr(s2,2)}"); g(f"v_pk_fma_f32 {vr(s2+2,2)}, {vr(d+6,2)}, {vr(d+6,2)}, {vr(s2+2,2)}")
    g(f"v_pk_add_f32 {vr(s2,2)}, {vr(s2,2)}, {vr(s2+2,2)}")
    va = s2 + 4
    g(f"v_add_f32 v{va}, v{s2}, v{s2+1}")
    g(f"v_cvt_pk_bf16_f32 v{m}, v{m}, v{m}"); g(f"v_and_b32 v{m}, 0xffff0000, v{m}")
    reduce64(g, "add", va, t)
    g(f"v_mul_f32 v{va}, {f2u(1/512):#x}, v{va}")
    for k in range(2): g(f"v_pk_add_f32 {vr(f+2*k,2)}, {vr(f+2*k,2)}, {vr(m,2)} op_sel_hi:[1,0] neg_lo:[0,1] neg_hi:[0,1]")
    g(f"v_cvt_pk_bf16_f32 v{va}, v{va}, v{va}")
    for k in range(2, 4): g(f"v_pk_add_f32 {vr(f+2*k,2)}, {vr(f+2*k,2)}, {vr(m,2)} op_sel_hi:[1,0] neg_lo:[0,1] neg_hi:[0,1]")
    g(f"v_and_b32 v{va}, 0xffff0000, v{va}")
    g(f"v_add_f32 v{va}, {f2u(1e-5):#x}, v{va}")
    g(f"v_cvt_pk_bf16_f32 v{xa}, v{f}, v{f+1}")
    g(f"v_cvt_pk_bf16_f32 v{va}, v{va}, v{va}")
    g(f"v_cvt_pk_bf16_f32 v{xa+1}, v{f+2}, v{f+3}")
    g(f"v_and_b32 v{va}, 0xffff0000, v{va}")
    g(f"v_sqrt_f32 v{va}, v{va}")
    g(f"v_cvt_pk_bf16_f32 v{xa+2}, v{f+4}, v{f+5}"); g(f"v_cvt_pk_bf16_f32 v{xa+3}, v{f+6}, v{f+7}")
    g(f"v_cvt_pk_bf16_f32 v{va}, v{va}, v{va}")
    for k in range(2):
        g(f"v_lshlrev_b32 v{f+2*k}, 16, v{xa+k}"); g(f"v_and_b32 v{f+2*k+1}, 0xffff0000, v{xa+k}")
    g(f"v_and_b32 v{m}, 0xffff0000, v{va}")
    g(f"v_rcp_f32 v{m}, v{m}")
    for k in range(2, 4):
        g(f"v_lshlrev_b32 v{f+2*k}, 16, v{xa+k}"); g(f"v_and_b32 v{f+2*k+1}, 0xffff0000, v{xa+k}")
    for k in range(4): g(f"v_pk_mul_f32 {vr(f+2*k,2)}, {vr(f+2*k,2)}, {vr(m,2)} op_sel_hi:[1,0]")
    for k in range(4): g(f"v_cvt_pk_bf16_f32 v{xa+k}, v{f+2*k}, v{f+2*k+1}")
    g(f"ds_write_b128 v3, {vr(xa,4)}")
    g.stamp(3)
    g("s_waitcnt lgkmcnt(0)"); g.lq = []
    g(f"s_mul_i32 {sT}, {sE}, 0x9E3779B1"); g(f"s_add_u32 {sT}, {sT}, 0x7F4A7C15")
    g(f"v_mov_b32 v{vT}, {sT}")
    g(f"s_waitcnt vmcnt({1 if loc else 0})")
    g.label("L_W_b0")
    g("s_mov_b32 s1, s69")
    g("s_barrier")
    g.stamp(1)
    xb = g.v(16, 4); wk = g.v(32, 4); ta = g.v(16, 4); Da = g.v(4, 4); Db = g.v(4, 4)
    qf = g.v(32, 4); chk = g.v()
    tq = qf
    for u in range(4):
        g.lds(f"ds_read_b128 {vr(xb+4*u,4)}, v{vxf} offset:{u*64}")
        for T in range(2):
            for hf in range(2):
                g.lds(f"ds_read_b64_tr_b16 {vr(tq+8*u+4*T+2*hf,2)}, v{vtr} offset:{L_WQ + u*8192 + hf*1024 + T*8}", ("tr", u, T))
    for u in range(4):
        g.lwait(("tr", u, 0))
        g(f"v_mfma_f32_16x16x32_bf16 {vr(Da,4)}, {vr(tq+8*u,4)}, {vr(xb+4*u,4)}, {vr(Da,4) if u else 0}")
        g.lwait(("tr", u, 1))
        g(f"v_mfma_f32_16x16x32_bf16 {vr(Db,4)}, {vr(tq+8*u+4,4)}, {vr(xb+4*u,4)}, {vr(Db,4) if u else 0}")
    def pack_granule(msk):
        g(f"v_cvt_pk_bf16_f32 v{Ga+2}, v{Da}, v{Da+1}"); g(f"v_cvt_pk_bf16_f32 v{Ga+3}, v{Da+2}, v{Da+3}")
        g(f"v_cvt_pk_bf16_f32 v2, v{Db}, v{Db+1}"); g(f"v_cvt_pk_bf16_f32 v3, v{Db+2}, v{Db+3}")
        g(f"v_cndmask_b32 v{Ga+2}, v{Ga+2}, v2, {msk}"); g(f"v_cndmask_b32 v{Ga+3}, v{Ga+3}, v3, {msk}")
    g("s_mov_b32 exec_lo, 0x000f000f"); g("s_mov_b32 exec_hi, 0x000f000f")
    g("s_nop 4")
    pack_granule("s[70:71]")
    g(f"buffer_store_dwordx4 {vr(Ga,4)}, v{vqps}, {WS}, s67 offen {'' if loc else 'sc1'}")
    g("s_mov_b64 exec, -1")
    g.stamp(4)
    def qp_loads():
        for u in range(4): g(f"buffer_load_dwordx4 {vr(qf+8*u,4)}, v{vqpl}, {WS}, s68 offen offset:{u*128} sc1")
    g("s_mov_b32 s63, 0")
    if not loc:
        g("s_cmp_ge_u32 s3, 2"); g("s_cbranch_scc1 L_W_b1")
        g("s_waitcnt vmcnt(0)")
        g.label("L_W_b1")
        g("s_barrier")
    qp_loads()
    g("s_waitcnt vmcnt(5)")
    g("s_barrier")
    g.stamp(12)
    for u in range(4):
        for T in range(2): g.lds(f"ds_read_b128 {vr(wk+16*T+4*u,4)}, v{vkr+u} offset:{T*1024}")
    g("s_branch L_Wa_c")
    g.label("L_Wa")
    def restore(vaddr, soff):
        g("s_mov_b32 exec_lo, 0x000f000f"); g("s_mov_b32 exec_hi, 0x000f000f")
        g(f"buffer_store_dwordx4 {vr(Ga,4)}, v{vaddr}, {WS}, {soff} offen sc1")
        g("s_mov_b64 exec, -1")
    if loc:
        g("s_cmp_lg_u32 s63, 4"); g("s_cbranch_scc1 L_Wa_n")
        restore(vqps, "s67")
        g.label("L_Wa_n")
    qp_loads()
    g.label("L_Wa_c")
    g("s_add_u32 s63, s63, 1"); g(f"s_cmp_gt_u32 s63, {SPIN}"); g("s_cbranch_scc1 L_Wa_x")
    g("s_waitcnt vmcnt(0)")
    for u in range(4): g(f"v_sad_u32 v{chk}, v{qf+8*u}, {sT}, {('v%d' % chk) if u else 0}")
    g(f"v_cmp_ne_u32 vcc, 0, v{chk}")
    g("s_cbranch_vccnz L_Wa")
    g.label("L_Wa_x")
    g.count("s63")
    g("s_waitcnt vmcnt(0)")
    for u in range(4):
        for k in range(2): g(f"v_mov_b32_dpp v{qf+8*u+4+k}, v{qf+8*u+2+k} row_ror:8 {DPPF}")
    g.lwait0()
    g.stamp(5)
    for u in range(4):
        g(f"v_mfma_f32_16x16x32_bf16 {vr(Da,4)}, {vr(wk+4*u,4)}, {vr(qf+8*u+2,4)}, {vr(Da,4) if u else 0}")
        g(f"v_mfma_f32_16x16x32_bf16 {vr(Db,4)}, {vr(wk+16+4*u,4)}, {vr(qf+8*u+2,4)}, {vr(Db,4) if u else 0}")
    g("s_nop 6")
    for k in range(8): g(f"v_add_f32_dpp v{Da+k}, v{Da+k}, v{Da+k} quad_perm:[1,0,3,2] {DPPF}")
    assert Db == Da + 4
    for k in range(8): g(f"v_add_f32_dpp v{Da+k}, v{Da+k}, v{Da+k} quad_perm:[2,3,0,1] {DPPF}")
    qo = g.v(4, 4)
    for k in range(4): g(f"v_cvt_pk_bf16_f32 v{qo+k}, v{Da+2*k}, v{Da+2*k+1}")
    g("s_mov_b32 exec_lo, 0x00110011"); g("s_mov_b32 exec_hi, 0x00110011")
    g(f"buffer_store_dwordx4 {vr(qo,4)}, v{vqa}, {WS}, {sQAo} offen sc1")
    g("s_mov_b64 exec, -1")
    g.stamp(6)
    if loc: restore(vqps, "s67")
    g("v_mov_b32 v3, 0"); g("s_lshl2_add_u32 s44, s3, s44"); g(f"s_add_u32 s44, s44, {FL2-FL1-8}")
    g("s_cmp_ge_u32 s3, 2"); g("s_cselect_b64 exec, 1, 0")
    g(f"buffer_store_dword v{vT}, v3, {WS}, s44 offen sc1")
    g("s_mov_b64 exec, -1")
    for _ in range(wdelay): g("s_sleep 127")
    sPOo = "s17"
    g(f"s_lshr_b32 {sPOo}, s6, 1"); g(f"s_lshl2_add_u32 {sPOo}, {sPOo}, s7"); g(f"s_lshl_b32 {sPOo}, {sPOo}, 15"); g(f"s_add_u32 {sPOo}, {sPOo}, s60")
    g("s_and_b32 s63, s6, 1"); g("s_lshl_b32 s63, s63, 6"); g(f"s_add_u32 {sPOo}, {sPOo}, s63"); g(f"s_add_u32 {sPOo}, {sPOo}, {PO}"); g(f"s_add_u32 s47, {sPOo}, 0x1000")
    vpl = g.v()
    g(f"v_lshlrev_b32 v{vpl}, 9, v{gg}"); g(f"v_lshl_add_u32 v{vpl}, v{r}, 7, v{vpl}"); g(f"v_lshl_add_u32 v{vpl}, v{c4}, 4, v{vpl}")
    g(f"v_lshrrev_b32 v{vop}, 1, v1"); g(f"v_lshlrev_b32 v{vop}, 12, v{vop}"); g(f"v_and_b32 v2, 1, v1"); g(f"v_lshl_or_b32 v{vop}, v2, 4, v{vop}")
    g(f"""
    s_lshl4_add_u32 s64, s5, s4
    s_lshl_b32 s64, s64, 5
    s_lshl_b32 s63, s3, 17
    s_add_u32 s64, s64, s63
    s_add_u32 {sOPo}, s64, {OP}
    """)
    vA, vB = vk, vk + 1
    g(f"v_and_b32 v2, 0xff, v{vqA}"); g(f"v_lshl_add_u32 v{vA}, v{gg}, 10, v2"); g(f"v_xor_b32 v{vB}, 0x80, v{vA}")
    g(f"v_add_u32 v{vk+2}, 3072, v{vA}"); g(f"v_add_u32 v{vk+3}, 3072, v{vB}"); g(f"v_add_u32 v{vk+4}, 6144, v{vA}"); g(f"v_add_u32 v{vk+5}, 6144, v{vB}"); g(f"v_add_u32 v{vk+6}, 9216, v{vB}")
    sCB = "s0"
    g(f"s_lshr_b32 {sCB}, s4, 2"); g(f"s_lshl3_add_u32 {sCB}, {sCB}, s5")
    g(f"s_lshl_b32 s59, {sW}, 12"); g(f"s_lshl_b32 s58, {sW}, 8")
    hpv = g.v(4, 4); hlo = g.v(2); hhi = g.v(2); vt1 = g.v(); vh = g.v()
    vwo = f
    g(f"s_cmp_ge_u32 {sCB}, 22"); g("s_cbranch_scc1 L_Wnf1")
    W1c, W2c = "s[64:67]", "s[68:71]"
    g("s_mov_b64 s[64:65], s[32:33]"); g(f"s_mov_b32 s66, {512*1376*2}"); g("s_mov_b32 s67, 0x20000")
    g("s_mov_b64 s[68:69], s[36:37]"); g(f"s_mov_b32 s70, {512*1376*2}"); g("s_mov_b32 s71, 0x20000")
    g(f"v_lshrrev_b32 v2, 3, v1"); g(f"v_mul_u32_u24 v{vt1}, 2752, v2"); g(f"v_and_b32 v2, 7, v1"); g(f"v_lshl_add_u32 v{vt1}, v2, 4, v{vt1}")
    g(f"s_lshl2_add_u32 s61, s7, {sW}"); g(f"s_mul_i32 s61, s61, {32*2752}"); g(f"s_lshl_b32 s62, {sCB}, 7"); g("s_add_u32 s61, s61, s62")
    g(f"s_add_u32 m0, s59, {L_W1}")
    for j in range(4):
        if j: g("s_add_u32 m0, m0, 0x400")
        if j: g(f"s_add_u32 s61, s61, {8*2752}")
        else: g("s_nop 0")
        g(f"buffer_load_dwordx4 v{vt1}, {W1c}, s61 offen nt lds")
    g.label("L_Wnf1")
    srd(24, 4 << 20); srd(28, 4 << 20)
    acc = g.v(16, 4)
    for k in range(16): g(f"v_mov_b32 v{acc+k}, 0")
    uv = wk; wo = 0
    vlw, vlr, vcs, vclo, vbp = g.v(), g.v(), g.v(), g.v(), g.v()
    mk = f + 8
    g(f"v_lshl_or_b32 v{vf}, v{c4}, 3, v{vf}")
    g(f"v_lshlrev_b32 v{vlw}, 6, v{r}"); g(f"v_lshl_add_u32 v{vlw}, v{gg}, 5, v{vlw}"); g(f"v_lshl_add_u32 v{vlw}, v{c4}, 3, v{vlw}")
    g(f"s_mul_i32 s62, {sW}, 288"); g(f"s_add_u32 s62, s62, {L_LAT}"); g(f"v_add_u32 v{vlw}, s62, v{vlw}")
    g(f"v_mul_u32_u24 v{vlr}, 288, v{c4}"); g(f"v_lshl_add_u32 v{vlr}, v{gg}, 4, v{vlr}"); g(f"v_add_u32 v{vlr}, {L_LAT}, v{vlr}")
    g(f"v_bfe_u32 v{vcs}, v1, 1, 1"); g(f"v_lshlrev_b32 v{vcs}, 9, v{vcs}"); g(f"v_lshl_add_u32 v{vcs}, v{gg}, 5, v{vcs}"); g(f"v_and_b32 v2, 1, v1"); g(f"v_lshl_add_u32 v{vcs}, v2, 4, v{vcs}")
    g(f"v_and_b32 v2, 7, v1"); g(f"v_lshlrev_b32 v{vh}, 6, v2"); g(f"v_lshlrev_b32 v2, 9, v2"); g(f"v_lshl_add_u32 v2, v{gg}, 5, v2")
    g(f"v_and_b32 v3, 8, v1"); g(f"v_lshl_add_u32 v{vclo}, v3, 1, v2")
    g(f"v_lshl_add_u32 v{vh}, v{gg}, 4, v{vh}")
    g(f"s_lshl_b32 s62, {sW}, 6"); g(f"v_lshlrev_b32 v{vbp}, 2, v{gg}"); g(f"v_add_u32 v{vbp}, s62, v{vbp}")
    g(f"v_and_b32 v2, 1, v1"); g(f"v_lshlrev_b32 v2, 4, v2"); g(f"v_mov_b32 v3, 0xffff"); g(f"v_lshlrev_b32 v3, v2, v3"); g(f"v_bfe_u32 v2, v1, 1, 2")
    for k in range(4):
        g(f"v_cmp_eq_u32 vcc, {k}, v2"); g("s_nop 1"); g(f"v_cndmask_b32 v{mk+k}, 0, v3, vcc")
    if p2t: g("s_waitcnt vmcnt(0)")
    g(f"s_add_u32 m0, s60, {L_WUV}"); g(f"s_add_u32 s61, {sQoff}, 0x20000")
    quad(WUV, sQoff)
    g("s_add_u32 m0, m0, 0x1000"); g("s_nop 0")
    quad(WUV, "s61")
    sHP, sWOo = "s23", "s46"
    g(f"s_lshl_b32 {sWOo}, s1, 15"); g(f"s_add_u32 {sWOo}, {sWOo}, s58")
    g(f"s_cmp_ge_u32 {sCB}, 22"); g("s_cbranch_scc1 L_Wnf3")
    g("s_waitcnt vmcnt(8)")
    g("s_barrier")
    g.stamp(14)
    g(f"v_lshl_add_u32 v{vt1}, v{gg}, 3, v{r}"); g(f"v_lshlrev_b32 v{vt1}, 7, v{vt1}"); g(f"v_lshl_add_u32 v{vt1}, v{c4}, 3, v{vt1}")
    g(f"s_lshl_b32 s62, {sW}, 5"); g(f"s_add_u32 s62, s62, {L_W1}"); g(f"v_add_u32 v{vt1}, s62, v{vt1}")
    for u in range(4):
        for hf in range(2): g.lds(f"ds_read_b64_tr_b16 {vr(ta+4*u+2*hf,2)}, v{vt1} offset:{u*4096+hf*512}")
    g(f"s_lshl_b32 {sHP}, s6, 11"); g(f"s_add_u32 {sHP}, {sHP}, {HP}")
    g(f"s_lshl_b32 s62, {sW}, 9"); g(f"s_add_u32 s62, s62, {sHP}"); g("s_lshl_b32 s63, s7, 7"); g("s_add_u32 s62, s62, s63")
    g("s_lshl_b32 s63, s7, 9"); g(f"s_add_u32 {sHP}, {sHP}, s63")
    g.lwait0()
    for u in range(4): g(f"v_mfma_f32_16x16x32_bf16 {vr(Da,4)}, {vr(ta+4*u,4)}, {vr(xb+4*u,4)}, {vr(Da,4) if u else 0}")
    g(f"v_mov_b32 v{hpv+2}, v{vT}")
    g("s_mov_b32 exec_lo, 0x00030003"); g("s_mov_b32 exec_hi, 0x00030003")
    g("s_nop 4")
    g(f"v_cvt_pk_bf16_f32 v{hpv}, v{Da}, v{Da+1}"); g(f"v_cvt_pk_bf16_f32 v{hpv+1}, v{Da+2}, v{Da+3}")
    g(f"buffer_store_dwordx4 {vr(hpv,4)}, v{vh}, {WS}, s62 offen sc1")
    g("s_mov_b64 exec, -1")
    g(f"s_add_u32 m0, s59, {L_W2}")
    g(f"s_lshl2_add_u32 s61, {sCB}, s7"); g(f"s_lshl_b32 s61, s61, 14"); g("s_add_u32 s61, s61, s58")
    for j, rg in enumerate((vA, vk + 3, vk + 4, vk + 6)):
        g(f"buffer_load_dwordx4 v{rg}, {W2c}, s61 offen offset:{j*1024} nt lds")
    g("s_branch L_Wnf3a")
    g.label("L_Wnf3")
    if pf2:
        g(f"s_cmp_lt_u32 {sCB}, 24"); g("s_cbranch_scc1 L_Wnf3a")
        g(f"s_lshl3_add_u32 s61, {sW}, s5"); g("s_lshl2_add_u32 s61, s61, s7"); g("s_lshl_b32 s61, s61, 14")
        g("s_mov_b64 s[68:69], s[36:37]"); g(f"s_mov_b32 s70, {512*1376*2}"); g("s_mov_b32 s71, 0x20000")
        g(f"v_lshlrev_b32 v2, 3, v{l16}"); g("s_add_u32 s62, s61, 0x2000")
        g(f"buffer_load_dword v254, v2, {W2c}, s61 offen"); g(f"buffer_load_dword v254, v2, {W2c}, s62 offen")
    g.label("L_Wnf3a")
    hp = ta
    def wo_quad():
        for j, rg in enumerate((vA, vk + 2, vk + 5, vk + 6)):
            g(f"buffer_load_dwordx4 v{rg}, {WO}, {sWOo} offen offset:{j*1024} nt lds")
    g(f"s_cmp_ge_u32 {sCB}, 22"); g("s_cbranch_scc1 L_Wnf3b")
    g("s_waitcnt vmcnt(5)")
    g.label("L_Wnf3b")
    g(f"s_cmp_lt_u32 {sCB}, 22"); g("s_cbranch_scc1 L_Wnf3c")
    g("s_waitcnt vmcnt(0)" if not pf2 else "s_waitcnt vmcnt(2)")
    g(f"s_cmp_lt_u32 {sCB}, 24"); g("s_cbranch_scc0 L_Wnf3c")
    g("s_waitcnt vmcnt(0)")
    g.label("L_Wnf3c")
    g("s_barrier")
    g.stamp(7)
    for u in range(4):
        for T in range(2):
            for hf in range(2):
                g.lds(f"ds_read_b64_tr_b16 {vr(uv+16*T+4*u+2*hf,2)}, v{vtr} offset:{L_WUV + u*8192 + hf*1024 + T*8}")
    g(f"s_cmp_ge_u32 {sCB}, 22"); g("s_cbranch_scc1 L_Wnf4")
    g(f"v_lshl_add_u32 v2, v{gg}, 2, v{r}"); g(f"v_lshlrev_b32 v2, 8, v2"); g(f"s_add_u32 s62, s59, {L_W2}"); g(f"v_add_u32 v2, s62, v2")
    for tl in range(8):
        g(f"v_xor_b32 v{vwo+tl}, {tl*32}, v{vf}"); g(f"v_add_u32 v{vwo+tl}, v{vwo+tl}, v2")
    w2f = qf
    g("s_mov_b32 s63, 0")
    g.label("L_Wh")
    g(f"buffer_load_dwordx4 {vr(hp+4,4)}, v{vh}, {WS}, {sHP} offen sc1")
    g("s_add_u32 s63, s63, 1"); g(f"s_cmp_gt_u32 s63, {SPIN}"); g("s_cbranch_scc1 L_Wh_x")
    g("s_waitcnt vmcnt(0)")
    g(f"v_cmp_ne_u32 vcc, {sT}, v{hp+6}")
    g("s_cbranch_vccnz L_Wh")
    g.label("L_Wh_x")
    g("s_waitcnt vmcnt(0)")
    for tl in range(8): g.lds(f"ds_read_b64_tr_b16 {vr(w2f+2*tl,2)}, v{vwo+tl}")
    g(f"v_lshlrev_b32 v{hp}, 16, v{hp+4}"); g(f"v_and_b32 v{hp+1}, 0xffff0000, v{hp+4}")
    g(f"v_lshlrev_b32 v{hp+2}, 16, v{hp+5}"); g(f"v_and_b32 v{hp+3}, 0xffff0000, v{hp+5}")
    for k in range(4): g(f"v_add_f32_dpp v{hp+k}, v{hp+k}, v{hp+k} quad_perm:[2,3,0,1] {DPPF}")
    for k in range(4): g(f"v_add_f32_dpp v{hp+k}, v{hp+k}, v{hp+k} row_ror:4 {DPPF}")
    g(f"v_cvt_pk_bf16_f32 v{hp+4}, v{hp}, v{hp+1}"); g(f"v_cvt_pk_bf16_f32 v{hp+5}, v{hp+2}, v{hp+3}")
    g(f"v_lshlrev_b32 v{hp}, 16, v{hp+4}"); g(f"v_and_b32 v{hp+1}, 0xffff0000, v{hp+4}")
    g(f"v_lshlrev_b32 v{hp+2}, 16, v{hp+5}"); g(f"v_and_b32 v{hp+3}, 0xffff0000, v{hp+5}")
    for k in range(4): g(f"v_mul_f32 v{hp+8+k}, {f2u(-1.4426950408889634):#x}, v{hp+k}")
    for k in range(4): g(f"v_exp_f32 v{hp+8+k}, v{hp+8+k}")
    g("s_nop 0")
    for k in range(4): g(f"v_add_f32 v{hp+8+k}, 1.0, v{hp+8+k}")
    for k in range(4): g(f"v_rcp_f32 v{hp+8+k}, v{hp+8+k}")
    g("s_nop 0")
    for k in range(4): g(f"v_mul_f32 v{hp+k}, v{hp+k}, v{hp+8+k}")
    g(f"v_cvt_pk_bf16_f32 v{hp+4}, v{hp}, v{hp+1}"); g(f"v_cvt_pk_bf16_f32 v{hp+5}, v{hp+2}, v{hp+3}")
    g("s_mov_b32 s62, 0x00030003"); g("s_mov_b32 s63, s62"); g("s_lshl_b64 s[64:65], s[62:63], 8")
    for k in range(2):
        g(f"v_cndmask_b32 v{hlo+k}, 0, v{hp+4+k}, s[62:63]"); g(f"v_cndmask_b32 v{hhi+k}, 0, v{hp+4+k}, s[64:65]")
    g.lwait0()
    TLO = (0, 1, 4, 5); THI = (2, 3, 6, 7)
    for k in range(4): g(f"v_mfma_f32_16x16x16_bf16 {vr(acc+4*k,4)}, {vr(hlo,2)}, {vr(w2f+2*TLO[k],2)}, {vr(acc+4*k,4)}")
    for k in range(4): g(f"v_mfma_f32_16x16x16_bf16 {vr(acc+4*k,4)}, {vr(hhi,2)}, {vr(w2f+2*THI[k],2)}, {vr(acc+4*k,4)}")
    g.label("L_Wnf4")
    g.lwait0()
    g(f"v_lshl_add_u32 v2, v{gg}, 3, v{r}"); g(f"v_lshlrev_b32 v2, 8, v2"); g(f"s_add_u32 s62, s60, {L_WO}"); g(f"v_add_u32 v2, s62, v2")
    for tl in range(8):
        g(f"v_xor_b32 v{vwo+tl}, {tl*32}, v{vf}"); g(f"v_add_u32 v{vwo+tl}, v{vwo+tl}, v2")
    g.stamp(8)
    sSTo, sCPs, sCPl, sCnt, sBl, sRL = "s16", "s18", "s19", "s20", "s21", "s22"
    g(f"s_lshr_b32 {sSTo}, s6, 2"); g(f"s_lshl_b32 {sSTo}, {sSTo}, 8"); g("s_and_b32 s63, s6, 3"); g(f"s_add_u32 {sSTo}, {sSTo}, s63"); g(f"s_lshl_b32 {sSTo}, {sSTo}, 4"); g(f"s_add_u32 {sSTo}, {sSTo}, {ST}")
    vst = g.v()
    g(f"v_lshlrev_b32 v{vst}, 6, v1")
    g(f"s_lshl_b32 s62, s6, 12"); g(f"s_add_u32 s62, s62, {CP}")
    g(f"s_lshl_b32 s63, s7, 7"); g(f"s_add_u32 {sCPl}, s62, s63")
    g(f"s_lshl_b32 s63, s7, 10"); g(f"s_add_u32 {sCPs}, s62, s63"); g(f"s_lshl_b32 s63, {sW}, 7"); g(f"s_add_u32 {sCPs}, {sCPs}, s63")
    g(f"s_lshr_b32 {sBl}, {sW}, 1"); g(f"s_lshl_b32 {sBl}, {sBl}, 5")
    g("s_mov_b32 s70, 0xaaaaaaaa"); g("s_mov_b32 s71, s70")
    stt = xa; pf = qf; af = ta; wd = xa + 4; mx = xa + 5; wb = f + 12
    vz = g.v()
    sHA = "s45"
    if hint:
        g("s_and_b32 s62, s4, 14"); g("s_lshr_b32 s63, s5, 2"); g("s_or_b32 s62, s62, s63"); g("s_lshl4_add_u32 s62, s5, s62"); g("s_lshl_b32 s62, s62, 7")
        g(f"s_add_u32 {sHA}, s62, {HA}"); g(f"s_lshl2_add_u32 s62, s7, {sHA}"); g(f"v_mov_b32 v{vz}, 0")
        hint_wait(g, "L_Wh1", 2, vz, sHA, 0, sCnt)
    g(f"s_mov_b32 {sCnt}, 0")
    g.label("L_Ws")
    if slp: g(f"s_sleep {slp}")
    g(f"buffer_load_dwordx3 {vr(stt,3)}, v{vst}, {WS}, {sSTo} offen sc1")
    if hint: g(f"buffer_load_dword v{stt+3}, v{vz}, {WS}, s62 offen offset:16 sc1")
    g(f"s_add_u32 {sCnt}, {sCnt}, 1"); g(f"s_cmp_gt_u32 {sCnt}, {SPIN}"); g("s_cbranch_scc1 L_Ws_x")
    g("s_waitcnt vmcnt(0)")
    g(f"v_cmp_ne_u32 vcc, {sT}, v{stt+2}")
    g("s_cbranch_vccnz L_Ws")
    g.label("L_Ws_x")
    g.count(sCnt)
    g("s_waitcnt vmcnt(0)")
    g.stamp(9)
    def po_loads():
        for u in range(4): g(f"buffer_load_dwordx4 {vr(pf+4*u,4)}, v{vpl}, {WS}, {sPOo if u < 2 else 's47'} offen offset:{(u&1)*2048} sc1")
    def po_first():
        po_loads()
        g(f"s_add_u32 m0, s60, {L_WO}"); g("s_nop 0")
        wo_quad()
        g("s_add_u32 m0, m0, 0x1000"); g(f"s_add_u32 {sWOo}, {sWOo}, 0x4000")
        wo_quad()
    if hint:
        g(f"v_cmp_ne_u32 s[64:65], {sT}, v{stt+3}")
        g("s_cmp_lg_u64 s[64:65], 0"); g("s_cbranch_scc1 L_Wp_n1")
        po_first()
        g.label("L_Wp_n1")
    g(f"v_mov_b32 v{mx}, v{stt}"); g("s_nop 1")
    reduce32(g, "max", mx, t)
    g(f"v_sub_f32 v{mx}, v{stt}, v{mx}")
    g(f"v_exp_f32 v{mx}, v{mx}")
    g("s_nop 0")
    g(f"v_cvt_pk_bf16_f32 v{wd}, v{mx}, v{mx}")
    for u in range(4): g.lds(f"ds_bpermute_b32 v{wb+u}, v{vbp}, v{wd} offset:{16*u}")
    g(f"v_and_b32 v{mx}, 0xffff0000, v{wd}")
    g(f"v_mul_f32 v{mx}, v{mx}, v{stt+1}"); g("s_nop 1")
    reduce32(g, "add", mx, t)
    g(f"v_rcp_f32 v{mx}, v{mx}")
    g.lwait0()
    for u in range(4):
        for k in range(4): g(f"v_and_b32 v{af+4*u+k}, v{wb+u}, v{mk+k}")
    g(f"v_readlane_b32 {sRL}, v{mx}, {sBl}")
    if hint:
        g("s_cmp_eq_u64 s[64:65], 0"); g("s_cbranch_scc1 L_Wp_n2")
        hint_wait(g, "L_Wh2", 2, vz, "s62", 16, sCnt)
    po_first()
    g.label("L_Wp_n2")
    g(f"s_mov_b32 {sCnt}, 0")
    g("s_waitcnt vmcnt(8)")
    g("s_branch L_Wp_d")
    g.label("L_Wp")
    po_loads()
    g.label("L_Wp_c")
    g(f"s_add_u32 {sCnt}, {sCnt}, 1"); g(f"s_cmp_gt_u32 {sCnt}, {SPIN}"); g("s_cbranch_scc1 L_Wp_x")
    g("s_waitcnt vmcnt(0)")
    g.label("L_Wp_d")
    g(f"v_max3_u32 v{chk}, v{pf+3}, v{pf+7}, v{pf+11}"); g(f"v_max_u32 v{chk}, v{chk}, v{pf+15}")
    g(f"v_cmp_eq_u32 vcc, -1, v{chk}")
    g("s_cbranch_vccnz L_Wp")
    g.label("L_Wp_x")
    g.count(sCnt)
    g.stamp(10)
    for u in range(4): g(f"v_mfma_f32_16x16x32_bf16 {vr(Da,4)}, {vr(af+4*u,4)}, {vr(pf+4*u,4)}, {vr(Da,4) if u else 0}")
    g("s_mov_b32 exec_hi, 0")
    g("s_nop 6")
    for k in range(4): g(f"v_mul_f32 v{Da+k}, {sRL}, v{Da+k}")
    g(f"v_cvt_pk_bf16_f32 v{qo}, v{Da}, v{Da+1}"); g(f"v_cvt_pk_bf16_f32 v{qo+1}, v{Da+2}, v{Da+3}")
    g(f"ds_write_b64 v{vlw}, {vr(qo,2)}")
    g("s_mov_b64 exec, -1")
    g.lwait0()
    g("s_barrier")
    for u in range(4): g.lds(f"ds_read_b128 {vr(xb+4*u,4)}, v{vlr} offset:{u*64}", ("lf", u))
    for u in range(4):
        g.lwait(("lf", u))
        g(f"v_mfma_f32_16x16x32_bf16 {vr(Da,4)}, {vr(uv+4*u,4)}, {vr(xb+4*u,4)}, {vr(Da,4) if u else 0}")
        g(f"v_mfma_f32_16x16x32_bf16 {vr(Db,4)}, {vr(uv+16+4*u,4)}, {vr(xb+4*u,4)}, {vr(Db,4) if u else 0}")
    g("s_nop 6")
    for k in range(8): g(f"v_add_f32_dpp v{Da+k}, v{Da+k}, v{Da+k} quad_perm:[1,0,3,2] {DPPF}")
    g("s_mov_b32 exec_lo, 0x000f000f"); g("s_mov_b32 exec_hi, 0x000f000f")
    pack_granule("s[70:71]")
    g(f"buffer_store_dwordx4 {vr(Ga,4)}, v{vcs}, {WS}, {sCPs} offen {'' if loc else 'sc1'}")
    g("s_mov_b64 exec, -1")
    g.stamp(11)
    for k in range(8): g(f"v_mov_b32 v{pf+8+k}, 0")
    g(f"v_mov_b32 v{hpv+2}, v{vT}")
    cl, ch = pf, pf + 8
    g(f"s_mov_b32 {sCnt}, 0")
    g("s_waitcnt vmcnt(1)")
    for tl in range(8):
        for hf in range(2): g.lds(f"ds_read_b64_tr_b16 {ar(wo+4*tl+2*hf,2)}, v{vwo+tl} offset:{hf*1024}")
    if not loc: g("s_waitcnt vmcnt(0)")
    g.label("L_Wd")
    if loc:
        g(f"s_cmp_lg_u32 {sCnt}, 6"); g("s_cbranch_scc1 L_Wd_n")
        restore(vcs, sCPs)
        g.label("L_Wd_n")
    g(f"buffer_load_dwordx4 {vr(cl,4)}, v{vclo}, {WS}, {sCPl} offen sc1")
    g(f"s_add_u32 {sCnt}, {sCnt}, 1"); g(f"s_cmp_gt_u32 {sCnt}, {SPIN}"); g("s_cbranch_scc1 L_Wd_x")
    g("s_waitcnt vmcnt(0)")
    g(f"v_cmp_ne_u32 vcc, {sT}, v{cl}")
    g("s_cbranch_vccnz L_Wd")
    g.label("L_Wd_x")
    g.count(sCnt)
    g("s_waitcnt vmcnt(0)")
    AL, AH = pf + 8, pf + 12
    for k in range(2):
        g(f"v_mov_b32_dpp v{AL+k}, v{cl+2+k} quad_perm:[0,1,2,3] row_mask:0xf bank_mask:0x3")
        g(f"v_mov_b32_dpp v{AL+2+k}, v{cl+2+k} row_ror:8 row_mask:0xf bank_mask:0x3")
        g(f"v_mov_b32_dpp v{AH+k}, v{cl+2+k} row_ror:8 row_mask:0xf bank_mask:0xc")
        g(f"v_mov_b32_dpp v{AH+2+k}, v{cl+2+k} quad_perm:[0,1,2,3] row_mask:0xf bank_mask:0xc")
    g.lwait0()
    g("s_nop 0")
    for k in range(4): g(f"v_mfma_f32_16x16x32_bf16 {vr(acc+4*k,4)}, {vr(AL,4)}, {ar(wo+4*TLO[k],4)}, {vr(acc+4*k,4)}")
    for k in range(4): g(f"v_mfma_f32_16x16x32_bf16 {vr(acc+4*k,4)}, {vr(AH,4)}, {ar(wo+4*THI[k],4)}, {vr(acc+4*k,4)}")
    g("s_nop 4")
    R = qo; U = Da
    g(f"v_pk_add_f32 {vr(R,2)}, {vr(acc,2)}, {vr(acc+2,2)}")
    g(f"v_pk_add_f32 {vr(U,2)}, {vr(acc+4,2)}, {vr(acc+6,2)}")
    g(f"v_pk_add_f32 {vr(R+2,2)}, {vr(acc+8,2)}, {vr(acc+10,2)}")
    g(f"v_pk_add_f32 {vr(U+2,2)}, {vr(acc+12,2)}, {vr(acc+14,2)}")
    g("s_nop 0")
    for k in range(4): g(f"v_permlane16_swap_b32 v{R+k}, v{U+k}")
    g("s_nop 0")
    g(f"v_pk_add_f32 {vr(R,2)}, {vr(R,2)}, {vr(U,2)}"); g(f"v_pk_add_f32 {vr(R+2,2)}, {vr(R+2,2)}, {vr(U+2,2)}")
    g(f"v_cvt_pk_bf16_f32 v{hpv}, v{R}, v{R+1}"); g(f"v_cvt_pk_bf16_f32 v{hpv+1}, v{R+2}, v{R+3}")
    g(f"buffer_store_dwordx4 {vr(hpv,4)}, v{vop}, {WS}, {sOPo} offen sc1")
    if hintr:
        g("s_lshl4_add_u32 s62, s5, s4"); g("s_lshl_b32 s62, s62, 7"); g(f"s_add_u32 s62, s62, {HW}"); g(f"v_mov_b32 v{vz}, 0")
        g(f"s_cmp_eq_u32 {sW}, 0"); g("s_cselect_b64 exec, 1, 0")
        g(f"buffer_store_dword v{vT}, v{vz}, {WS}, s62 offen")
        g("s_mov_b64 exec, -1")
    if loc: restore(vcs, sCPs)
    g.stamp(2)
    dump_stamps(g, "W")
    g("s_endpgm")

    g.label("L_A2")
    g.lq = []
    g("""
    s_load_dword s43, s[8:9], 0
    s_load_dwordx2 s[52:53], s[0:1], 72
    s_load_dwordx2 s[28:29], s[0:1], 40
    """)
    dbg_init()
    g.reset_v(12)
    vj = l16
    vfl = g.v(2); vpo, vfo = g.v(), g.v()
    srd(8, WS_REC); srd(12, 2048); srd(52, 2048)
    g(f"v_lshlrev_b32 v{vfo}, 7, v1"); g("s_lshl_b32 s34, s6, 10"); g(f"s_add_u32 s34, s34, {FL1}")
    n, gg, r, c4 = g.v(), g.v(), g.v(), g.v()
    g(f"v_and_b32 v{n}, 15, v1"); g(f"v_lshrrev_b32 v{gg}, 4, v1"); g(f"v_bfe_u32 v{r}, v1, 2, 2"); g(f"v_and_b32 v{c4}, 3, v1")
    g(f"""
    s_lshl_b32 {sPOs}, s6, 5
    s_add_u32 {sPOs}, {sPOs}, s3
    s_lshl_b32 {sPOs}, {sPOs}, 15
    s_lshl_b32 s56, s7, 9
    s_add_u32 {sPOs}, {sPOs}, s56
    s_add_u32 {sPOs}, {sPOs}, {PO}
    """)
    sHX = "s35"
    g(f"s_mov_b32 {sHX}, {'s6' if swap else 0}")
    g(f"v_lshrrev_b32 v{vpo}, 1, v{n}"); g(f"v_lshlrev_b32 v{vpo}, 17, v{vpo}"); g(f"v_and_b32 v2, 1, v1"); g(f"v_lshl_add_u32 v{vpo}, v2, 6, v{vpo}"); g(f"v_lshl_add_u32 v{vpo}, v{gg}, 4, v{vpo}")
    vro, xr = g.v(), g.v()
    g(f"v_and_b32 v2, 1, v{gg}"); g(f"v_lshlrev_b32 v{vro}, 10, v2"); g(f"v_lshrrev_b32 v2, 1, v{gg}"); g(f"v_lshl_add_u32 v{vro}, v2, 7, v{vro}")
    g(f"v_and_b32 v2, 1, v1"); g(f"v_lshl_add_u32 v{vro}, v2, 1, v{vro}")
    sRo = "s26"
    g(f"""
    s_sub_u32 s56, s4, 16
    s_lshl4_add_u32 {sRid}, s5, s56
    s_lshr_b32 s56, {sRid}, 5
    s_lshl_b32 {sRo}, s56, 8
    s_bfe_u32 s56, {sRid}, 0x20003
    s_lshl_b32 s56, s56, 5
    s_add_u32 {sRo}, {sRo}, s56
    s_and_b32 s56, {sRid}, 7
    s_lshl2_add_u32 {sRo}, s56, {sRo}
    """)
    vkq = g.v(4); vpv = g.v(16); vpw = g.v(2); vpr = g.v(2); vmx = g.v(); vqd = g.v(); vqr = g.v(); vqc = g.v(); vst = g.v()
    for k in range(4):
        g(f"v_add_u32 v2, {4*k}, v{gg}"); g(f"v_xor_b32 v2, v2, v{n}"); g(f"v_lshlrev_b32 v2, 4, v2"); g(f"v_lshl_add_u32 v2, v{n}, 10, v2"); g(f"v_add_u32 v{vkq+k}, {sRow}, v2")
    g(f"v_and_b32 v2, 1, v{gg}"); g(f"v_lshlrev_b32 v2, 2, v2"); g(f"v_add_lshl_u32 v2, v2, v{r}, 1")
    g(f"v_lshrrev_b32 v3, 1, v{c4}"); g(f"v_xor_b32 v2, v2, v3"); g(f"v_lshlrev_b32 v2, 4, v2")
    g(f"v_and_b32 v3, 1, v1"); g(f"v_lshl_add_u32 v2, v3, 3, v2")
    g(f"v_lshl_add_u32 v3, v{gg}, 2, v{r}"); g(f"v_lshl_add_u32 v2, v3, 11, v2")
    g(f"s_lshl_b32 s56, {sHX}, 16"); g(f"s_lshl_b32 s58, s3, 8"); g("s_add_u32 s56, s56, s58"); g(f"v_add_u32 v2, s56, v2")
    for T in range(8):
        g(f"v_xor_b32 v{vpv+2*T}, {T*32}, v2")
        g(f"v_xor_b32 v3, {T*32+16}, v2"); g(f"v_add_u32 v{vpv+2*T+1}, 0x400, v3")
    g(f"v_mul_u32_u24 v2, 272, v{n}"); g(f"v_lshrrev_b32 v3, 1, v{gg}"); g(f"v_lshl_add_u32 v{vpw}, v3, 4, v2"); g(f"v_and_b32 v3, 1, v{gg}"); g(f"v_lshl_add_u32 v{vpw}, v3, 2, v{vpw}")
    g(f"s_lshl_b32 s56, {sHX}, 7"); g(f"s_xor_b32 s58, s56, 0x80"); g(f"s_lshl_b32 s59, s3, 5"); g(f"s_add_u32 s59, s59, {L_P}")
    g("s_add_u32 s60, s58, s59"); g("s_add_u32 s59, s56, s59")
    g(f"v_add_u32 v{vpw+1}, s60, v{vpw}"); g(f"v_add_u32 v{vpw}, s59, v{vpw}")
    g(f"v_lshl_add_u32 v2, v{gg}, 4, v2"); g(f"s_add_u32 s56, s56, {L_P}"); g(f"s_add_u32 s58, s58, {L_P}")
    g(f"v_add_u32 v{vpr}, s56, v2"); g(f"v_add_u32 v{vpr+1}, s58, v2")
    g(f"v_lshlrev_b32 v{vmx}, 2, v{n}"); g(f"v_add_u32 v{vmx}, {L_MX}, v{vmx}")
    g(f"v_lshlrev_b32 v{vqd}, 6, v{n}"); g(f"v_lshl_add_u32 v{vqd}, v{gg}, 4, v{vqd}")
    g(f"v_add_u32 v{vqr}, {L_QA}, v{vj}")
    sQAl, sQAm, sSTs = "s27", "s30", "s31"
    g(f"""
    s_lshl_b32 {sQAm}, s3, 12
    s_lshr_b32 s56, s7, 5
    s_lshl1_add_u32 s56, s56, s6
    s_lshl_b32 s56, s56, 14
    s_add_u32 {sQAl}, s56, {sQAm}
    s_add_u32 {sQAl}, {sQAl}, {QA}
    s_add_u32 {sQAm}, {sQAm}, {L_QA}
    s_lshl_b32 {sSTs}, s6, 14
    s_lshl_b32 s56, s7, 6
    s_add_u32 {sSTs}, {sSTs}, s56
    s_add_u32 {sSTs}, {sSTs}, {ST}
    """)
    g(f"v_add_u32 v{vqc}, {sQAm}, v{vj}")
    g(f"v_lshlrev_b32 v{vst}, 12, v{r}"); g(f"v_lshl_add_u32 v{vst}, v{c4}, 4, v{vst}")
    vpo2 = g.v()
    g(f"s_lshl2_add_u32 s56, {sRid}, s3"); g("s_lshl_b32 s56, s56, 13"); g(f"v_add_u32 v{vpo2}, s56, v{vfo}")
    vzA = g.v()
    g(f"v_mov_b32 v{vzA}, 0"); g(f"s_lshl_b32 s38, {sRid}, 7"); g(f"s_add_u32 s36, s38, {HA}"); g("s_lshl2_add_u32 s37, s3, s36"); g(f"s_add_u32 s38, s38, {HW}")
    ones = g.v(4, 4)
    for k in range(4): g(f"v_mov_b32 v{ones+k}, 0x3f803f80")
    g(f"v_mov_b32 v2, 0xff800000")
    g(f"ds_write_b32 v{vmx}, v2")
    g("v_mov_b32 v3, 0")
    g(f"ds_write_b32 v{vmx}, v3 offset:64")
    g.lwait0()
    g(f"s_mul_i32 {sT}, {sE}, 0x9E3779B1"); g(f"s_add_u32 {sT}, {sT}, 0x7F4A7C15")
    g(f"s_mov_b32 s40, {sT}"); g(f"s_mov_b32 s41, {sT}")
    abody(2, 0); abody(3, 0)
    g.stamp(1)
    g(f"s_xor_b32 s58, {sRow}, 0x10000"); g("s_mov_b32 m0, s58"); g("s_add_u32 s33, s58, s57")
    abody(0, 1); abody(1, 1)
    g("s_waitcnt vmcnt(8)")
    g.stamp(3)
    g("s_barrier")
    for u in range(16): g.lds(f"ds_read_b128 {ar(4*u,4)}, v{vkq+(u&3)} offset:{(u>>2)*256}")
    if not noflag: g(f"buffer_load_dword v{vfl}, v{l16}, {WS}, s34 offen sc1")
    abody(2, 1); abody(3, 1)
    g.stamp(2)
    for ks in range(2):
        for T in range(8):
            for hf in range(2):
                g.lds(f"ds_read_b64_tr_b16 {ar(128+(ks*8+T)*4+2*hf,2)}, v{vpv+2*T+hf} offset:{ks*32768}")
    for k in range(4): g(f"v_xor_b32 v{vkq+k}, 0x10000, v{vkq+k}")
    for k in range(16): g(f"v_xor_b32 v{vpv+k}, 0x10000, v{vpv+k}")
    g("s_waitcnt vmcnt(8)")
    if not noflag:
        g(f"v_cmp_ne_u32 vcc, {sT}, v{vfl}")
        g("s_cbranch_vccnz L_Af1")
    g.label("L_Af1_x")
    g.stamp(11)
    qf = g.v(64, 4); chk = g.v()
    def qa_dma():
        for j in range(4): g(f"buffer_load_dwordx4 v{vqd}, {WS}, {sQAl} offen offset:{j*1024} sc1 lds")
    def qa_check():
        for j in range(4): g(f"ds_read_b128 {vr(qf+4*j,4)}, v{vqc} offset:{j*1024}")
        g.lwait0()
        g(f"v_max3_u32 v{chk}, v{qf+3}, v{qf+7}, v{qf+11}"); g(f"v_max_u32 v{chk}, v{chk}, v{qf+15}")
        g(f"v_cmp_eq_u32 vcc, -1, v{chk}")
    g(f"s_mov_b32 m0, {sQAm}")
    g(f"s_mov_b32 {sCnt}, 1")
    if qal:
        g("s_waitcnt vmcnt(0)")
        qa_dma()
    else:
        qa_dma()
        g("s_waitcnt vmcnt(4)")
    g.stamp(5)
    for u in range(16): g.lds(f"ds_read_b128 {ar(64+4*u,4)}, v{vkq+(u&3)} offset:{(u>>2)*256}")
    g("s_barrier")
    g("s_waitcnt vmcnt(0) lgkmcnt(8)")
    qa_check()
    g("s_cbranch_vccz L_Aq_1")
    qa_dma()
    g.label("L_Aq_1")
    for ks in range(2):
        for T in range(8):
            for hf in range(2):
                g.lds(f"ds_read_b64_tr_b16 {ar(128+((ks+2)*8+T)*4+2*hf,2)}, v{vpv+2*T+hf} offset:{ks*32768}")
    g("s_cbranch_vccz L_Aq_x")
    g("s_branch L_Aq_c")
    g.label("L_Aq")
    qa_dma()
    g.label("L_Aq_c")
    g(f"s_add_u32 {sCnt}, {sCnt}, 1"); g(f"s_cmp_gt_u32 {sCnt}, {SPIN}"); g("s_cbranch_scc1 L_Aq_y")
    g("s_waitcnt vmcnt(0) lgkmcnt(8)")
    save = list(g.lq)
    qa_check()
    g("s_cbranch_vccnz L_Aq")
    g.label("L_Aq_y")
    g("s_waitcnt vmcnt(0)")
    g.label("L_Aq_x")
    g.lq = save
    g.count(sCnt)
    g("s_barrier")
    g.stamp(6)
    SX = g.v(4, 4); SY = g.v(4, 4); O = g.v(32, 4); pfr = g.v(16, 4); LD = g.v(4, 4); pk = g.v(16, 4)
    EX = g.v(8, 4); STG = g.v(4, 4); mxv, t2 = g.v(), g.v()
    AHEAD = 10
    for u in range(AHEAD): g.lds(f"ds_read_b128 {vr(qf+4*u,4)}, v{vqr} offset:{u*1024}", ("q", u))
    g(f"s_add_u32 s34, s34, {FL2-FL1}")
    g(f"buffer_load_dwordx2 {vr(vfl,2)}, v{l16}, {WS}, s34 offen sc1")
    if pfo and pfoe: g(f"global_load_dword v255, v{vpo2}, s[28:29]")
    g(f"s_mov_b32 s56, {KSCALE:#x}")
    for u in range(16):
        g.lwait(("q", u))
        g(f"v_mfma_f32_16x16x32_bf16 {vr(SX,4)}, {ar(4*u,4)}, {vr(qf+4*u,4)}, {vr(SX,4) if u else 0}")
        if u + AHEAD < 16: g.lds(f"ds_read_b128 {vr(qf+4*(u+AHEAD),4)}, v{vqr} offset:{(u+AHEAD)*1024}", ("q", u + AHEAD))
    def my(u): g(f"v_mfma_f32_16x16x32_bf16 {vr(SY,4)}, {ar(64+4*u,4)}, {vr(qf+4*u,4)}, {vr(SY,4) if u else 0}")
    def pexp(H):
        for k in range(4): g(f"v_exp_f32 v{EX+4*H+k}, v{EX+4*H+k}")
    def pwrite(H):
        g(f"v_cvt_pk_bf16_f32 v{pk+2*H}, v{EX+4*H}, v{EX+4*H+2}"); g(f"v_cvt_pk_bf16_f32 v{pk+2*H+1}, v{EX+4*H+1}, v{EX+4*H+3}")
        g(f"ds_write2_b32 v{vpw+H}, v{pk+2*H}, v{pk+2*H+1} offset1:2")
    my(0); my(1); my(2)
    g("s_nop 4")
    g(f"v_max3_f32 v{mxv}, v{SX}, v{SX+1}, v{SX+2}")
    my(3)
    g(f"v_max_f32 v{mxv}, v{mxv}, v{SX+3}")
    g(f"ds_max_f32 v{vmx}, v{mxv}")
    my(4); my(5); my(6)
    g.lwait0()
    g("s_barrier")
    g(f"ds_read_b32 v{mxv}, v{vmx}")
    my(7); my(8); my(9)
    g.lwait0()
    g(f"v_mul_f32 v{STG}, s56, v{mxv}")
    my(10)
    for k in range(2): g(f"v_fma_f32 v{EX+k}, v{SX+k}, s56, -v{STG}")
    my(11)
    for k in range(2, 4): g(f"v_fma_f32 v{EX+k}, v{SX+k}, s56, -v{STG}")
    my(12)
    g(f"v_exp_f32 v{EX}, v{EX}")
    my(13)
    g(f"v_exp_f32 v{EX+1}, v{EX+1}")
    my(14)
    g(f"v_exp_f32 v{EX+2}, v{EX+2}")
    my(15)
    g(f"v_exp_f32 v{EX+3}, v{EX+3}")
    g(f"v_mov_b32 v{STG+2}, {sT}")
    pwrite(0)
    g(f"s_mov_b32 s57, {f2u(40.0):#x}")
    g("s_nop 1")
    for k in range(4): g(f"v_fma_f32 v{EX+4+k}, v{SY+k}, s56, -v{STG}")
    g(f"v_max3_f32 v{t2}, v{EX+4}, v{EX+5}, v{EX+6}")
    g(f"v_exp_f32 v{EX+4}, v{EX+4}")
    g(f"v_max_f32 v{t2}, v{t2}, v{EX+7}")
    g(f"v_exp_f32 v{EX+5}, v{EX+5}")
    g(f"v_cmp_lt_f32 vcc, s57, v{t2}")
    g(f"v_exp_f32 v{EX+6}, v{EX+6}")
    g(f"v_exp_f32 v{EX+7}, v{EX+7}")
    g("s_cbranch_vccnz L_Aovf")
    g.label("L_Aovf_x")
    pwrite(1)
    g.lwait0()
    g("s_barrier")
    g.stamp(7)
    g.label("L_Apv")
    g.lds(f"ds_read_b32 v{t2}, v{vmx} offset:64", "ovf")
    for ks in range(4): g.lds(f"ds_read_b128 {vr(pfr+4*ks,4)}, v{vpr+(ks>>1)} offset:{(ks&1)*64}", ("p", ks))
    g(f"s_waitcnt vmcnt({1 if (pfo and pfoe) else 0})")
    g(f"v_cmp_ne_u64 vcc, s[40:41], {vr(vfl,2)}")
    g("s_cbranch_vccnz L_Af2")
    g.label("L_Af2_x")
    g.lwait("ovf")
    g(f"v_cmp_ne_u32 vcc, 0, v{t2}")
    g("s_cbranch_vccnz L_Aslow")
    g(f"s_cmp_lg_u32 {sW}, 3"); g("s_cbranch_scc1 L_Anol")
    save = list(g.lq)
    g.lwait(("p", 3))
    for ks in range(4): g(f"v_mfma_f32_16x16x32_bf16 {vr(LD,4)}, {vr(ones,4)}, {vr(pfr+4*ks,4)}, {vr(LD,4) if ks else 0}")
    g.label("L_Anol")
    g.lq = save
    def epi(b):
        for q in range(2):
            g(f"v_cvt_pk_bf16_f32 v{pk+4*b+2*q}, v{O+8*b+4*q}, v{O+8*b+4*q+1}")
            yield
            g(f"v_cvt_pk_bf16_f32 v{pk+4*b+2*q+1}, v{O+8*b+4*q+2}, v{O+8*b+4*q+3}")
            yield
        g(f"buffer_store_dwordx4 {vr(pk+4*b,4)}, v{vpo}, {WS}, {sPOs} offen offset:{b*128} sc1")
        yield
    pend = None
    for b in range(4):
        cnt = 0
        for ks in range(4):
            if b == 0: g.lwait(("p", ks))
            for T in (2 * b, 2 * b + 1):
                g(f"v_mfma_f32_16x16x32_bf16 {vr(O+4*T,4)}, {ar(128+(ks*8+T)*4,4)}, {vr(pfr+4*ks,4)}, {vr(O+4*T,4) if ks else 0}")
                cnt += 1
                if b == 0 and cnt == 8:
                    g(f"s_cmp_lg_u32 {sW}, 3"); g("s_cbranch_scc1 L_Anos")
                    g(f"v_mov_b32 v{STG+1}, v{LD}")
                    g("s_mov_b64 exec, 0xffff")
                    g(f"buffer_store_dwordx4 {vr(STG,4)}, v{vst}, {WS}, {sSTs} offen sc1")
                    if hint:
                        g("s_mov_b64 exec, 1")
                        g(f"buffer_store_dword v{STG+2}, v{vzA}, {WS}, s36 offen")
                    g("s_mov_b64 exec, -1")
                    g.label("L_Anos")
                if pend is not None and cnt >= 4:
                    if cnt == 4: g("s_nop 1")
                    next(pend, None)
        if pend is not None:
            for _ in pend: pass
        pend = epi(b)
    g("s_nop 4")
    for _ in pend: pass
    if hint:
        g("s_mov_b64 exec, 1")
        g(f"buffer_store_dword v{STG+2}, v{vzA}, {WS}, s37 offen offset:16")
        g("s_mov_b64 exec, -1")
    g.stamp(4)
    if pfo and not pfoe: g(f"global_load_dword v255, v{vpo2}, s[28:29]")
    g.stamp(8)
    g(f"s_cmp_lg_u32 {sW}, 0"); g("s_cbranch_scc1 L_Aend0")
    op = qf
    g(f"s_lshl_b32 s56, {sRid}, 12"); g(f"s_add_u32 s56, s56, {OP}")
    g(f"buffer_load_ushort v{xr}, v{vro}, {X}, {sRo} offen")
    g(f"s_mov_b32 {sCnt}, 0")
    if hintr:
        hint_wait(g, "L_Rh", 2, vzA, "s38", 0, sCnt)
        g(f"s_mov_b32 {sCnt}, 0")
    for _ in range(rslp): g("s_sleep 32")
    g.label("L_R")
    for j in range(4): g(f"buffer_load_dwordx3 {vr(op+16+4*j,3)}, v{vj}, {WS}, s56 offen offset:{j*1024} sc1")
    g(f"s_add_u32 {sCnt}, {sCnt}, 1"); g(f"s_cmp_gt_u32 {sCnt}, {SPIN}"); g("s_cbranch_scc1 L_R_x")
    g("s_waitcnt vmcnt(0)")
    for j in range(4): g(f"v_sad_u32 v{chk}, v{op+18+4*j}, {sT}, {('v%d' % chk) if j else 0}")
    g(f"v_cmp_ne_u32 vcc, 0, v{chk}")
    g("s_cbranch_vccnz L_R")
    g.label("L_R_x")
    g.count(sCnt)
    g("s_waitcnt vmcnt(0)")
    g.stamp(9)
    g(f"v_lshlrev_b32 v{xr}, 16, v{xr}")
    for j in range(4):
        for k in range(2):
            g(f"v_lshlrev_b32 v{op+4*j+2*k}, 16, v{op+16+4*j+k}"); g(f"v_and_b32 v{op+4*j+2*k+1}, 0xffff0000, v{op+16+4*j+k}")
    for k in range(2):
        g(f"v_pk_add_f32 {vr(op+2*k,2)}, {vr(op+2*k,2)}, {vr(op+4+2*k,2)}"); g(f"v_pk_add_f32 {vr(op+8+2*k,2)}, {vr(op+8+2*k,2)}, {vr(op+12+2*k,2)}")
    for k in range(2): g(f"v_pk_add_f32 {vr(op+2*k,2)}, {vr(op+2*k,2)}, {vr(op+8+2*k,2)}")
    g("s_nop 1")
    g(f"v_permlane16_swap_b32 v{op}, v{op+1}"); g(f"v_permlane16_swap_b32 v{op+2}, v{op+3}")
    g("s_nop 0")
    g(f"v_add_f32 v{op}, v{op}, v{op+1}"); g(f"v_add_f32 v{op+2}, v{op+2}, v{op+3}")
    g("s_nop 1")
    g(f"v_permlane32_swap_b32 v{op}, v{op+2}")
    g("s_nop 0")
    g(f"v_add_f32 v{op}, v{op}, v{op+2}")
    for k in (2, 4, 8):
        g("s_nop 1"); g(f"v_add_f32_dpp v{op}, v{op}, v{op} row_ror:{k} {DPPF}")
    g(f"v_add_f32 v{op}, v{op}, v{xr}")
    g("s_mov_b32 exec_lo, 0x00030003"); g("s_mov_b32 exec_hi, 0x00030003")
    g(f"v_cvt_pk_bf16_f32 v{op}, v{op}, v{op}")
    g(f"buffer_store_short v{op}, v{vro}, {OUT}, {sRo} offen")
    g(f"s_cmp_lg_u32 {sRid}, 0"); g("s_cbranch_scc1 L_Aend")
    g("s_mov_b64 exec, 1"); g(f"v_mov_b32 v2, {sT}"); g("v_mov_b32 v3, 0")
    g(f"buffer_store_dword v2, v3, {WS}, 0 offen sc1")
    g("s_branch L_Aend")
    g.label("L_Aend0")
    if debug == 1:
        g(f"s_waitcnt vmcnt({(1 if pfo and not pfoe else 0)})"); g.stamp(12)
    g.label("L_Aend")
    g.stamp(10)
    dump_stamps(g, "A")
    g("s_endpgm")
    g.label("L_Aovf")
    g(f"v_mov_b32 v{t2}, 1")
    g(f"ds_write_b32 v{vmx}, v{t2} offset:64")
    g("s_branch L_Aovf_x")
    g.label("L_Aslow")
    g(f"v_max3_f32 v{mxv}, v{SY}, v{SY+1}, v{SY+2}"); g(f"v_max_f32 v{mxv}, v{mxv}, v{SY+3}")
    g(f"ds_max_f32 v{vmx}, v{mxv}")
    g("s_waitcnt lgkmcnt(0)"); g("s_barrier")
    g(f"ds_read_b32 v{mxv}, v{vmx}"); g(f"v_mov_b32 v{t2}, 0"); g(f"ds_write_b32 v{vmx}, v{t2} offset:64")
    g("s_waitcnt lgkmcnt(0)")
    g(f"v_mul_f32 v{STG}, s56, v{mxv}")
    for k in range(8): g(f"v_fma_f32 v{EX+k}, v{SX+k}, s56, -v{STG}")
    pexp(0); pexp(1); g("s_nop 0")
    pwrite(0); pwrite(1)
    g("s_waitcnt lgkmcnt(0)"); g("s_barrier")
    g("s_branch L_Apv")
    flag_fallback(g, "L_Af1", vfl, l16, "s34", sCnt); flag_fallback(g, "L_Af2", vfl, l16, "s34", sCnt, True)
    g.label("L_end")
    body = "\n".join(g.L)
    hdr = open("parallel_sum__compressed_kv_cla__dense_activation_silu__decode.s.ref").read().split("; Override launch")[0]
    return f"""{hdr}; @launch grid=(256,1,1) block=(256,1,1) lds={LDS_BYTES}
.amdgcn_target "amdgcn-amd-amdhsa--gfx950"
.set HINT_LIMIT, 40
.text
.globl {KNAME}
.p2align 8
.type {KNAME},@function
{KNAME}:
{body}
    s_endpgm
.section .rodata,"a"
.p2align 6
.amdhsa_kernel {KNAME}
  .amdhsa_next_free_vgpr 512
  .amdhsa_next_free_sgpr 102
  .amdhsa_accum_offset 256
  .amdhsa_group_segment_fixed_size 0
  .amdhsa_kernarg_size 96
  .amdhsa_user_sgpr_count 2
  .amdhsa_user_sgpr_kernarg_segment_ptr 1
  .amdhsa_system_sgpr_workgroup_id_x 1
.end_amdhsa_kernel
"""

if __name__ == "__main__":
    dbg = 3 if "--debug3" in sys.argv else 2 if "--debug2" in sys.argv else (1 if "--debug" in sys.argv else 0)
    out = [a for a in sys.argv[1:] if not a.startswith("--")][0]
    kw = {}
    for a in sys.argv[1:]:
        if a.startswith("--thr="): kw["thr"] = tuple(int(x) for x in a[6:].split(","))
        if a.startswith("--swap="): kw["swap"] = int(a[7:])
        for nm in ("touch", "pfk", "pfo", "pf2", "pfc", "noflag", "wdelay", "loc", "stw", "slp", "pad", "rslp", "p2t", "est", "pfoe", "hint", "qal", "hintr", "hsl"):
            if a.startswith(f"--{nm}="): kw[nm] = int(a.split("=")[1])
    open(out, "w").write(build(dbg, **kw))
```

```python
import sys, struct

KNAME = "parallel_sum__compressed_kv_cla__dense_activation_silu__decode_kernel"

QP, CP, QA, ST, OP, PO, TS = 0x10000, 0x30000, 0x50000, 0x380000, 0x400000, 0x100000, 0x340000
FL1, HQ, HP, HA, HW = 0x68000, 0x6C000, 0x70000, 0x60000, 0x64000
XNG, FLA, HB = 0x6E000, 0x69000, 0x6D000
OPS = 7168
WS_REC = 0x500000
OOB = 0x40000000
L_WQ, L_WUK, L_WUV, L_WO, L_W1, L_W2, L_XN, L_LAT = 0, 0x8000, 0, 0x10000, 0x18000, 0x1C000, 0x20000, 0x20900
XNP = 1056
L_QA, L_P, L_MX = 0x20000, 0x24000, 0x25200
LDS_BYTES = 0x25400
SPIN = 20000

def f2u(x): return struct.unpack("<I", struct.pack("<f", x))[0]
KSCALE = f2u(128 ** -0.5 * 1.4426950408889634)

class G:
    def __init__(self, debug=False):
        self.L = []; self.debug = debug; self.nv = 0; self.names = {}; self.nstamp = 0; self.lq = []; self.maxv = 0
    def __call__(self, s):
        for ln in s.strip().split("\n"):
            self.L.append("    " + ln.strip())
    def label(self, s): self.L.append(s + ":")
    def c(self, s): self.L.append("    ; " + s)
    def reset_v(self, start): self.nv = start
    def v(self, n=1, al=None):
        if al is None: al = 1 if n == 1 else 2
        self.nv = (self.nv + al - 1) // al * al
        r = self.nv; self.nv += n; self.maxv = max(self.maxv, self.nv)
        assert self.nv <= 254, "out of VGPRs"
        return r
    def stamp(self, i):
        if self.debug == 3 and i not in (0, 10): return
        if self.debug == 2:
            if i == 11: return
            if i == 14: i = 11
        if self.debug == 1 and i == 13: return
        if self.debug:
            assert i < 15
            self(f"s_memrealtime s[{72+2*i}:{73+2*i}]")
    def count(self, cnt):
        if self.debug == 1:
            self(f"s_min_u32 s99, {cnt}, 63"); self("s_lshl_b32 s98, s98, 6"); self("s_or_b32 s98, s98, s99")
    def lds(self, s, tag=None):
        if len(self.lq) >= 15:
            self.lwait(self.lq[len(self.lq) - 15])
        self(s); self.lq.append(tag if tag is not None else object())
    def lwait(self, tag):
        if tag not in self.lq: return
        k = max(i for i, t in enumerate(self.lq) if t == tag)
        n = len(self.lq) - 1 - k
        self(f"s_waitcnt lgkmcnt({n})")
        self.lq = self.lq[k + 1:]
    def lwait0(self):
        self("s_waitcnt lgkmcnt(0)"); self.lq = []

def vr(a, n): return f"v[{a}:{a+n-1}]" if n > 1 else f"v{a}"
def ar(a, n): return f"a[{a}:{a+n-1}]"

sW, sS, sX, sH, sQT = "s3", "s4", "s5", "s6", "s7"
WS, X, WQ, WUK, WUV, WO, W1, W2, DBG, CKV, OUT = ("s[8:11]", "s[12:15]", "s[16:19]", "s[20:23]", "s[24:27]", "s[28:31]",
                                                  "s[32:35]", "s[36:39]", "s[44:47]", "s[48:51]", "s[52:55]")
sT, sE = "s42", "s43"
sHG, sSP = "s6", "s7"
DPPF = "row_mask:0xf bank_mask:0xf"

def reduce32(g, op, s, t):
    for k in (8, 4, 2, 1):
        g(f"v_{op}_f32_dpp v{s}, v{s}, v{s} row_ror:{k} {DPPF}")
        g("s_nop 1")
    g(f"v_mov_b32 v{t}, v{s}")
    g("s_nop 1")
    g(f"v_permlane16_swap_b32 v{t}, v{s}")
    g("s_nop 0")
    g(f"v_{op}_f32 v{s}, v{s}, v{t}")

def reduce64(g, op, s, t):
    reduce32(g, op, s, t)
    g(f"v_mov_b32 v{t}, v{s}")
    g("s_nop 1")
    g(f"v_permlane32_swap_b32 v{t}, v{s}")
    g("s_nop 0")
    g(f"v_{op}_f32 v{s}, v{s}, v{t}")

def flag_fallback(g, name, vfl, vfo, soff, cnt, pair=False):
    g.label(name)
    g(f"s_mov_b32 {cnt}, 0")
    g.label(name + "_l")
    g("s_sleep 2")
    if pair: g(f"buffer_load_dwordx2 {vr(vfl,2)}, v{vfo}, {WS}, {soff} offen sc1")
    else: g(f"buffer_load_dword v{vfl}, v{vfo}, {WS}, {soff} offen sc1")
    g(f"s_add_u32 {cnt}, {cnt}, 1"); g(f"s_cmp_gt_u32 {cnt}, {SPIN}"); g(f"s_cbranch_scc1 {name}_x")
    g("s_waitcnt vmcnt(0)")
    if pair: g(f"v_cmp_ne_u64 vcc, s[40:41], {vr(vfl,2)}")
    else: g(f"v_cmp_ne_u32 vcc, {sT}, v{vfl}")
    g(f"s_cbranch_vccnz {name}_l")
    g(f"s_branch {name}_x")

HINTN = 3000
def hint_wait(g, name, vt, vz, soff, off, cnt):
    g(f"s_mov_b32 {cnt}, 0")
    g.label(name)
    g(f"buffer_load_dword v{vt}, v{vz}, {WS}, {soff} offen offset:{off} sc1")
    g(f"s_add_u32 {cnt}, {cnt}, 1"); g(f"s_cmp_gt_u32 {cnt}, HINT_LIMIT"); g(f"s_cbranch_scc1 {name}_x")
    g("s_waitcnt vmcnt(0)")
    g(f"v_cmp_ne_u32 vcc, {sT}, v{vt}")
    g(f"s_cbranch_vccnz {name}")
    g.label(name + "_x")

def dump_stamps(g, role=None):
    if not g.debug: return
    g.lwait0()
    if g.debug == 3:
        lo = 0 if role == "W" else 128
        g(f"s_sub_u32 s56, s2, {lo}"); g("s_cmp_ge_u32 s56, 8"); g(f"s_cbranch_scc1 L_nod{role}"); g(f"s_cmp_lg_u32 {sW}, 0"); g(f"s_cbranch_scc1 L_nod{role}")
        g("s_lshl_b32 s60, s56, 2")
        g("s_mov_b64 exec, -1"); g(f"v_mov_b32 v2, s{72 if role == 'W' else 92}"); g("v_mov_b32 v3, 0")
        g("s_mov_b32 s58, 256"); g("s_mov_b32 s59, 0x20000"); g("s_mov_b64 s[56:57], s[100:101]"); g("s_mov_b64 exec, 1")
        g(f"buffer_store_dword v2, v3, s[56:59], s60 offen offset:{0 if role == 'W' else 32}")
        g.label(f"L_nod{role}")
        return
    if g.debug == 2:
        wg, sel, base = (0, (3, 1, 12, 6, 11, 8, 10, 2), 0) if role == "W" else (128 + 3, (1, 2, 5, 6, 7, 8, 9, 10), 32)
        g(f"s_lshl2_add_u32 s56, s2, {sW}"); g(f"s_cmp_lg_u32 s56, {wg*4}"); g(f"s_cbranch_scc1 L_nod{role}")
        g("s_mov_b64 exec, -1"); g("v_mov_b32 v2, 0")
        for i, k in enumerate(sel):
            g(f"s_sub_u32 s57, s{72+2*k}, s72"); g(f"v_writelane_b32 v2, s57, {i}")
        g("s_mov_b32 s102, 0" if False else "s_nop 0")
        g("s_mov_b32 s58, 256"); g("s_mov_b32 s59, 0x20000"); g("s_mov_b64 s[56:57], s[100:101]")
        g("v_lshlrev_b32 v3, 2, v1"); g("s_mov_b64 exec, 0xff")
        g(f"buffer_store_dword v2, v3, s[56:59], 0 offen offset:{base}")
        g.label(f"L_nod{role}")
        return
    g(f"s_lshl_b32 s56, s2, 2"); g(f"s_add_u32 s56, s56, {sW}"); g("s_lshl_b32 s56, s56, 6"); g(f"s_add_u32 s56, s56, {TS}")
    g("s_mov_b64 exec, -1")
    g("v_mov_b32 v2, 0")
    for i in range(15): g(f"v_writelane_b32 v2, s{72+2*i}, {i}")
    g("s_getreg_b32 s57, hwreg(HW_REG_XCC_ID)")
    g("v_writelane_b32 v2, s57, 15")
    g("v_lshlrev_b32 v3, 2, v1")
    g("s_mov_b64 exec, 0xffff")
    g(f"buffer_store_dword v2, v3, {WS}, s56 offen")

def build(debug=False, thr=(16, 0), swap=1, touch=0, pfk=1, pfo=1, pf2=1, pfc=0, noflag=0, wdelay=0, loc=1, stw=16, slp=1, pad=0, rslp=0, p2t=0, est=1, pfoe=1, hint=1, qal=0, hintr=1, hsl=0, dq=0, wke=1, qack=1, qsl=0, hq=1, nts=0, gate=1, pff=0, poack=0, pfv=0, wv1=6, fgate=0, rall=1, pg=0, wow=0, gw=-1, xnl=1, pffe=0, cmb=1, hre=0):
    g = G(debug)
    NS = 'nt ' if nts else ''
    g.stamp(0)
    g("""
    s_load_dwordx2 s[16:17], s[0:1], 16
    s_load_dwordx2 s[48:49], s[0:1], 8
    s_load_dwordx2 s[20:21], s[0:1], 24
    s_load_dwordx2 s[12:13], s[0:1], 0
    s_load_dwordx2 s[8:9], s[0:1], 88
    s_cmp_ge_u32 s2, 256
    s_cbranch_scc1 L_end
    v_lshrrev_b32 v2, 6, v0
    v_and_b32 v1, 63, v0
    s_lshr_b32 s4, s2, 3
    v_readfirstlane_b32 s3, v2
    s_and_b32 s5, s2, 7
    v_lshlrev_b32 v4, 4, v1
    s_cmp_ge_u32 s4, 16
    s_cbranch_scc1 L_A
    """)
    l16 = 4
    def srd(k, sz):
        g(f"s_mov_b32 s{k+2}, {sz}"); g(f"s_mov_b32 s{k+3}, 0x20000")
    def dbg_init():
        if debug:
            for i in range(1, 14): g(f"s_mov_b64 s[{72+2*i}:{73+2*i}], 0")
            if debug >= 2: g("s_load_dwordx2 s[100:101], s[0:1], 80")
            else: g("s_mov_b64 s[100:101], 0")
    g.reset_v(5)
    n, gg = g.v(), g.v()
    vqA, vqB = g.v(), g.v(); vq4 = g.v(4)
    xa = g.v(8, 4)
    sQAo, sOPo, sQoff = "s38", "s39", "s35"
    g(f"v_and_b32 v{n}, 15, v1"); g(f"v_lshrrev_b32 v{gg}, 4, v1")
    g(f"v_lshlrev_b32 v2, 1, v{gg}"); g(f"v_xor_b32 v2, v2, v{n}"); g(f"v_lshlrev_b32 v2, 4, v2"); g(f"v_lshl_add_u32 v{vqA}, v{gg}, 13, v2"); g(f"v_xor_b32 v{vqB}, 0x80, v{vqA}")
    g(f"v_add_u32 v{vq4+1}, {31744}, v{vqA}"); g(f"v_add_u32 v{vq4+2}, {2*31744}, v{vqB}"); g(f"v_add_u32 v{vq4+3}, {3*31744}, v{vqB}")
    srd(16, 4 << 20); srd(12, 2048); srd(8, WS_REC)
    sent = xa + 4
    for k in range(4): g(f"v_mov_b32 v{sent+k}, -1")
    g(f"v_lshrrev_b32 v3, 3, v1"); g(f"v_lshlrev_b32 v3, 10, v3"); g(f"v_and_b32 v2, 4, v1"); g(f"v_lshl_add_u32 v3, v2, 13, v3"); g(f"v_and_b32 v2, 3, v1"); g(f"v_lshl_add_u32 v3, v2, 4, v3")
    g(f"""
    s_lshr_b32 s6, s4, 2
    s_lshl2_add_u32 s6, s5, s6
    s_and_b32 s7, s4, 3
    s_lshl2_add_u32 s61, s7, s3
    s_lshl_b32 s61, s61, 18
    s_lshl_b32 s59, s6, 8
    s_add_u32 {sQoff}, s61, s59
    s_lshl_b32 s60, s3, 13
    s_mov_b32 m0, s60
    s_lshl_b32 s57, s3, 10
    s_lshr_b32 s62, s6, 4
    s_lshl2_add_u32 s62, s62, s7
    s_lshl_b32 s62, s62, 6
    s_and_b32 s63, s6, 15
    s_add_u32 s62, s62, s63
    s_lshl_b32 s62, s62, 6
    s_add_u32 s62, s62, {QA}
    s_cmp_eq_u32 s3, 2
    s_cselect_b32 exec_lo, -1, 0
    s_mov_b32 exec_hi, 0
    s_waitcnt lgkmcnt(0)
    """)
    g(f"buffer_store_dwordx4 {vr(sent,4)}, v3, {WS}, s62 offen sc1")
    g("s_cmp_lt_u32 s3, 2"); g("s_cselect_b64 exec, -1, 0")
    def quad(srdname, soff):
        g(f"buffer_load_dwordx4 v{vqA}, {srdname}, {soff} offen nt lds")
        for k in range(1, 4): g(f"buffer_load_dwordx4 v{vq4+k}, {srdname}, {soff} offen offset:{k*1024} nt lds")
    g(f"buffer_load_dwordx4 {vr(xa,4)}, v{l16}, {X}, s57 offen")
    g("s_mov_b64 exec, -1")
    quad(WQ, sQoff)
    g("s_add_u32 m0, m0, 0x1000"); g(f"s_add_u32 s61, {sQoff}, 0x20000")
    quad(WQ, "s61")
    g("s_branch L_W2")
    wv = g.nv
    g.label("L_A")
    vt4 = 8
    sPOs, sRow, sCnt, sRid = "s18", "s19", "s22", "s23"
    g(f"""
    s_and_b32 s6, s4, 1
    s_bfe_u32 s56, s4, 0x30001
    s_lshl3_add_u32 s7, s5, s56
    s_lshl_b32 s57, s7, 17
    """)
    if swap: g(f"s_lshl2_add_u32 {sRow}, s6, s3"); g(f"s_lshl_b32 {sRow}, {sRow}, 14")
    else: g(f"s_lshl_b32 {sRow}, s3, 14")
    srd(48, 8 << 20)
    g(f"s_mov_b32 m0, {sRow}"); g(f"s_add_u32 s33, {sRow}, s57")
    vpo = 7
    srd(8, WS_REC)
    g(f"""
    s_lshl_b32 {sPOs}, s6, 5
    s_add_u32 {sPOs}, {sPOs}, s3
    s_lshl_b32 {sPOs}, {sPOs}, 15
    s_lshl_b32 s56, s7, 9
    s_add_u32 {sPOs}, {sPOs}, s56
    s_add_u32 {sPOs}, {sPOs}, {PO}
    """)
    g(f"v_bfe_u32 v{vpo}, v1, 1, 3"); g(f"v_lshlrev_b32 v{vpo}, 17, v{vpo}"); g(f"v_and_b32 v2, 1, v1"); g(f"v_lshl_add_u32 v{vpo}, v2, 6, v{vpo}"); g(f"v_and_b32 v2, 48, v1"); g(f"v_add_u32 v{vpo}, v2, v{vpo}")
    for k in range(4): g(f"v_mov_b32 v{vt4+k}, -1")
    def a_clear():
        for b in range(4): g(f"buffer_store_dwordx4 {vr(vt4,4)}, v{vpo}, {WS}, {sPOs} offen offset:{b*128} sc1")
        g("s_nop 1")
    if pfk:
        g("""
        s_and_b32 s60, s4, 3
        s_lshl2_add_u32 s60, s60, s3
        s_lshl_b32 s60, s60, 18
        s_bfe_u32 s61, s4, 0x20002
        s_lshl2_add_u32 s61, s5, s61
        s_lshl_b32 s61, s61, 8
        s_add_u32 s60, s60, s61
        v_lshrrev_b32 v2, 1, v1
        v_and_b32 v3, 1, v1
        v_lshlrev_b32 v2, 13, v2
        v_lshl_add_u32 v2, v3, 7, v2
        v_add_u32 v6, s60, v2
        """)
        if pfk == 2: g("s_cmp_lt_u32 s3, 2"); g("s_cselect_b64 exec, -1, 0")
        if pfk == 3: g("s_mov_b32 exec_lo, 0")
        g("s_waitcnt lgkmcnt(0)")
        g("global_load_dword v255, v6, s[20:21]")
        if pfk >= 2: g("s_mov_b64 exec, -1")
    else: g("s_waitcnt lgkmcnt(0)")
    a_clear()
    def abody(a, half):
        if a == 0:
            for k in range(1, 4): g(f"v_xor_b32 v{vt4+k}, {k*16}, v{l16}")
            regs = [l16, vt4 + 1, vt4 + 2, vt4 + 3]
        else:
            for k in range(4): g(f"v_xor_b32 v{vt4+k}, {(4*a+k)*16}, v{l16}")
            regs = [vt4 + k for k in range(4)]
        if a == 0 and half == 0: g("s_waitcnt lgkmcnt(0)")
        for k in range(4):
            j = 4 * a + k
            if half == 0 and thr[0] <= j < thr[1] + thr[0]: g(f"s_waitcnt vmcnt({thr[0]-1})")
            g(f"buffer_load_dwordx4 v{regs[k]}, {CKV}, s33 offen offset:{k*1024} {NS}lds")
        if a < 3: g("s_add_u32 m0, m0, 0x1000"); g("s_add_u32 s33, s33, 0x1000")
    abody(0, 0); abody(1, 0)
    g(f"""
    s_getpc_b64 s[40:41]
L_pc:
    v_lshlrev_b32 v2, 3, v4
    s_lshl2_add_u32 s56, s4, s3
    v_add_u32 v3, 0x2000, v2
    v_min_u32 v3, L_end-L_pc, v3
    s_cmp_eq_u32 s56, 64
    s_cselect_b64 exec, -1, 0
    global_load_dword v255, v2, s[40:41]
    global_load_dword v255, v3, s[40:41]
    s_mov_b64 exec, -1
    s_branch L_A2
    """)

    g.label("L_W2")
    g.reset_v(wv)
    g("""
    s_load_dword s43, s[8:9], 0
    s_load_dwordx2 s[24:25], s[0:1], 32
    s_load_dwordx2 s[28:29], s[0:1], 40
    """)
    dbg_init()
    srd(20, 4 << 20)
    g(f"s_add_u32 {sQAo}, s62, s57")
    if loc:
        g(f"v_and_b32 v2, 0x70, v{l16}"); g(f"v_lshlrev_b32 v2, 3, v2"); g("s_lshl2_add_u32 s63, s6, s7"); g("s_lshl_b32 s63, s63, 10"); g("s_lshl_b32 s62, s3, 17"); g("s_add_u32 s63, s63, s62"); g(f"s_add_u32 s63, s63, {QP}")
        g("s_cmp_lt_u32 s3, 2"); g("s_cselect_b64 exec, 0xff, 0")
        g(f"buffer_load_dword v254, v2, {WS}, s63 offen")
        g("s_mov_b64 exec, -1")
    vqa, vop = g.v(), g.v()
    vk = g.v(8); vkr = g.v(4)
    g(f"v_xor_b32 v2, v{n}, v{gg}"); g(f"v_lshlrev_b32 v2, 4, v2"); g(f"v_lshl_add_u32 v{vk}, v{gg}, 13, v2")
    for k in range(1, 8):
        g(f"v_xor_b32 v{vk+k}, {(k>>1)*64}, v{vk}")
        if k & 3: g(f"v_add_u32 v{vk+k}, {(k&3)*31744}, v{vk+k}")
    def wuk_quad(a):
        g(f"s_add_u32 m0, s60, {L_WUK + a*0x1000}"); g(f"s_add_u32 s61, {sQoff}, {a*0x20000}")
        for k in range(4): g(f"buffer_load_dwordx4 v{vk+4*a+k}, {WUK}, s61 offen offset:{k*1024} {NS}lds")
    if wke == 1: wuk_quad(0)
    r, c4 = g.v(), g.v()
    g(f"v_bfe_u32 v{r}, v1, 2, 2"); g(f"v_and_b32 v{c4}, 3, v1")
    vxf, vtr, vqps, vqpl, vf = g.v(), g.v(), g.v(), g.v(), g.v()
    g(f"v_lshl_add_u32 v3, v{r}, 3, v{c4}"); g(f"v_lshl_add_u32 v2, v3, 8, v2"); g(f"s_add_u32 s64, s60, {L_WUK}"); g(f"v_add_u32 v{vkr}, s64, v2")
    for k in range(1, 4): g(f"v_xor_b32 v{vkr+k}, {k*64}, v{vkr}")
    g(f"v_lshlrev_b32 v{vqa}, 13, v1"); g(f"v_and_b32 v{vqa}, 0x8000, v{vqa}"); g(f"v_lshl_or_b32 v{vqa}, v{gg}, 4, v{vqa}")
    g(f"v_and_b32 v2, 1, v1"); g(f"v_mul_u32_u24 v{vxf}, {XNP}, v2"); g(f"v_lshl_add_u32 v{vxf}, v{gg}, 4, v{vxf}")
    g(f"s_lshl_b32 s63, s7, 8"); g(f"s_add_u32 s63, s63, {L_XN}"); g(f"v_add_u32 v{vxf}, s63, v{vxf}")
    g(f"v_lshlrev_b32 v{vqps}, 9, v2"); g(f"v_lshl_add_u32 v{vqps}, v{gg}, 5, v{vqps}"); g(f"v_and_b32 v2, 2, v1"); g(f"v_lshl_add_u32 v{vqps}, v2, 3, v{vqps}")
    g(f"v_and_b32 v2, 1, v{gg}"); g(f"v_lshl_or_b32 v2, v2, 2, v{r}"); g(f"v_lshlrev_b32 v{vf}, 5, v2")
    g(f"s_lshl_b32 s63, s3, 6"); g(f"v_lshl_or_b32 v2, v{c4}, 4, s63"); g(f"v_xor_b32 v2, v2, v{vf}")
    g(f"v_lshl_add_u32 v{vtr}, v{gg}, 3, v{r}"); g(f"v_lshl_add_u32 v{vtr}, v{vtr}, 8, v2")
    g(f"v_bfe_u32 v2, v1, 2, 1"); g(f"v_lshl_add_u32 v{vqpl}, v{c4}, 1, v2"); g(f"v_lshlrev_b32 v{vqpl}, 9, v{vqpl}"); g(f"v_lshl_add_u32 v{vqpl}, v{gg}, 5, v{vqpl}")
    g(f"v_and_b32 v2, 8, v1"); g(f"v_lshl_add_u32 v{vqpl}, v2, 1, v{vqpl}")
    g(f"""
    s_lshl_b32 s68, s6, 12
    s_add_u32 s68, s68, {QP}
    s_lshl_b32 s63, s7, 10
    s_add_u32 s67, s68, s63
    s_lshl_b32 s63, s3, 7
    s_add_u32 s67, s67, s63
    s_mov_b32 s70, 0xcccccccc
    s_mov_b32 s71, s70
    s_lshl2_add_u32 s69, s6, s7
    s_lshl_b32 s44, s69, 4
    s_add_u32 s44, s44, {FL1}
    """)
    Ga = g.v(4, 4); vT = Ga
    f = g.v(16, 2); m = g.v(2); t = g.v(); s2 = g.v(8, 2)
    g("s_cmp_lt_u32 s3, 2"); g("s_cbranch_scc1 L_W_ln")
    g("s_waitcnt lgkmcnt(0)")
    g(f"s_mul_i32 {sT}, {sE}, 0x9E3779B1"); g(f"s_add_u32 {sT}, {sT}, 0x7F4A7C15")
    g(f"v_mov_b32 v{vT}, {sT}")
    if wke == 2: wuk_quad(0); wuk_quad(1)
    g("v_mov_b32 v3, 0"); g("s_cmp_eq_u32 s3, 2"); g("s_cselect_b64 exec, 1, 0")
    g(f"s_waitcnt vmcnt({4 * wke})")
    g(f"buffer_store_dword v{vT}, v3, {WS}, s44 offen sc1")
    g("s_mov_b64 exec, -1")
    g("s_branch L_W_b0")
    g.label("L_W_ln")
    g(f"s_mul_i32 s63, s3, {XNP}"); g(f"s_add_u32 s63, s63, {L_XN}"); g(f"v_add_u32 v3, s63, v{l16}")
    g(f"s_waitcnt vmcnt({(9 if loc else 8) + (4 if wke == 1 else 0)})")
    d = f + 8
    for k in range(4):
        g(f"v_lshlrev_b32 v{f+2*k}, 16, v{xa+k}"); g(f"v_and_b32 v{f+2*k+1}, 0xffff0000, v{xa+k}")
    g(f"v_pk_add_f32 {vr(s2,2)}, {vr(f,2)}, {vr(f+2,2)}"); g(f"v_pk_add_f32 {vr(s2+2,2)}, {vr(f+4,2)}, {vr(f+6,2)}")
    g(f"v_pk_add_f32 {vr(s2,2)}, {vr(s2,2)}, {vr(s2+2,2)}")
    g(f"v_add_f32 v{m}, v{s2}, v{s2+1}"); g("s_nop 1")
    reduce64(g, "add", m, t)
    g(f"v_mul_f32 v{m}, {f2u(1/512):#x}, v{m}")
    for k in range(4): g(f"v_pk_add_f32 {vr(d+2*k,2)}, {vr(f+2*k,2)}, {vr(m,2)} op_sel_hi:[1,0] neg_lo:[0,1] neg_hi:[0,1]")
    g(f"v_pk_mul_f32 {vr(s2,2)}, {vr(d,2)}, {vr(d,2)}"); g(f"v_pk_mul_f32 {vr(s2+2,2)}, {vr(d+2,2)}, {vr(d+2,2)}")
    g(f"v_pk_fma_f32 {vr(s2,2)}, {vr(d+4,2)}, {vr(d+4,2)}, {vr(s2,2)}"); g(f"v_pk_fma_f32 {vr(s2+2,2)}, {vr(d+6,2)}, {vr(d+6,2)}, {vr(s2+2,2)}")
    g(f"v_pk_add_f32 {vr(s2,2)}, {vr(s2,2)}, {vr(s2+2,2)}")
    va = s2 + 4
    g(f"v_add_f32 v{va}, v{s2}, v{s2+1}")
    g(f"v_cvt_pk_bf16_f32 v{m}, v{m}, v{m}"); g(f"v_and_b32 v{m}, 0xffff0000, v{m}")
    reduce64(g, "add", va, t)
    g(f"v_mul_f32 v{va}, {f2u(1/512):#x}, v{va}")
    for k in range(2): g(f"v_pk_add_f32 {vr(f+2*k,2)}, {vr(f+2*k,2)}, {vr(m,2)} op_sel_hi:[1,0] neg_lo:[0,1] neg_hi:[0,1]")
    g(f"v_cvt_pk_bf16_f32 v{va}, v{va}, v{va}")
    for k in range(2, 4): g(f"v_pk_add_f32 {vr(f+2*k,2)}, {vr(f+2*k,2)}, {vr(m,2)} op_sel_hi:[1,0] neg_lo:[0,1] neg_hi:[0,1]")
    g(f"v_and_b32 v{va}, 0xffff0000, v{va}")
    g(f"v_add_f32 v{va}, {f2u(1e-5):#x}, v{va}")
    g(f"v_cvt_pk_bf16_f32 v{xa}, v{f}, v{f+1}")
    g(f"v_cvt_pk_bf16_f32 v{va}, v{va}, v{va}")
    g(f"v_cvt_pk_bf16_f32 v{xa+1}, v{f+2}, v{f+3}")
    g(f"v_and_b32 v{va}, 0xffff0000, v{va}")
    g(f"v_sqrt_f32 v{va}, v{va}")
    g(f"v_cvt_pk_bf16_f32 v{xa+2}, v{f+4}, v{f+5}"); g(f"v_cvt_pk_bf16_f32 v{xa+3}, v{f+6}, v{f+7}")
    g(f"v_cvt_pk_bf16_f32 v{va}, v{va}, v{va}")
    for k in range(2):
        g(f"v_lshlrev_b32 v{f+2*k}, 16, v{xa+k}"); g(f"v_and_b32 v{f+2*k+1}, 0xffff0000, v{xa+k}")
    g(f"v_and_b32 v{m}, 0xffff0000, v{va}")
    g(f"v_rcp_f32 v{m}, v{m}")
    for k in range(2, 4):
        g(f"v_lshlrev_b32 v{f+2*k}, 16, v{xa+k}"); g(f"v_and_b32 v{f+2*k+1}, 0xffff0000, v{xa+k}")
    for k in range(4): g(f"v_pk_mul_f32 {vr(f+2*k,2)}, {vr(f+2*k,2)}, {vr(m,2)} op_sel_hi:[1,0]")
    for k in range(4): g(f"v_cvt_pk_bf16_f32 v{xa+k}, v{f+2*k}, v{f+2*k+1}")
    g(f"ds_write_b128 v3, {vr(xa,4)}")
    if not dq and not qack: g.stamp(3)
    g("s_waitcnt lgkmcnt(0)"); g.lq = []
    g(f"s_mul_i32 {sT}, {sE}, 0x9E3779B1"); g(f"s_add_u32 {sT}, {sT}, 0x7F4A7C15")
    g(f"v_mov_b32 v{vT}, {sT}")
    if wke == 2: wuk_quad(0); wuk_quad(1)
    g(f"s_waitcnt vmcnt({(1 if loc else 0) + 4 * wke})")
    if dq: g.stamp(3)
    g.label("L_W_b0")
    g("s_mov_b32 s1, s69")
    g("s_barrier")
    g.stamp(1)
    xb = g.v(16, 4); wk = g.v(32, 4); ta = g.v(16, 4); Da = g.v(4, 4); Db = g.v(4, 4)
    qf = g.v(32, 4); chk = g.v()
    tq = qf
    for u in range(4):
        g.lds(f"ds_read_b128 {vr(xb+4*u,4)}, v{vxf} offset:{u*64}")
        for T in range(2):
            for hf in range(2):
                g.lds(f"ds_read_b64_tr_b16 {vr(tq+8*u+4*T+2*hf,2)}, v{vtr} offset:{L_WQ + u*8192 + hf*1024 + T*8}", ("tr", u, T))
    for u in range(4):
        g.lwait(("tr", u, 0))
        g(f"v_mfma_f32_16x16x32_bf16 {vr(Da,4)}, {vr(tq+8*u,4)}, {vr(xb+4*u,4)}, {vr(Da,4) if u else 0}")
        g.lwait(("tr", u, 1))
        g(f"v_mfma_f32_16x16x32_bf16 {vr(Db,4)}, {vr(tq+8*u+4,4)}, {vr(xb+4*u,4)}, {vr(Db,4) if u else 0}")
    def pack_granule(msk):
        g(f"v_cvt_pk_bf16_f32 v{Ga+2}, v{Da}, v{Da+1}"); g(f"v_cvt_pk_bf16_f32 v{Ga+3}, v{Da+2}, v{Da+3}")
        g(f"v_cvt_pk_bf16_f32 v2, v{Db}, v{Db+1}"); g(f"v_cvt_pk_bf16_f32 v3, v{Db+2}, v{Db+3}")
        g(f"v_cndmask_b32 v{Ga+2}, v{Ga+2}, v2, {msk}"); g(f"v_cndmask_b32 v{Ga+3}, v{Ga+3}, v3, {msk}")
    g("s_mov_b32 exec_lo, 0x000f000f"); g("s_mov_b32 exec_hi, 0x000f000f")
    g("s_nop 4")
    pack_granule("s[70:71]")
    g(f"buffer_store_dwordx4 {vr(Ga,4)}, v{vqps}, {WS}, s67 offen {'' if loc else 'sc1'}")
    g("s_mov_b64 exec, -1")
    g.stamp(4)
    g("s_and_b32 s62, s6, 15"); g("s_cmp_lg_u32 s62, 0"); g("s_cbranch_scc1 L_W_nx")
    g("s_lshr_b32 s62, s6, 4"); g("s_lshl2_add_u32 s62, s62, s7"); g("s_lshl_b32 s62, s62, 9"); g(f"s_add_u32 s62, s62, {XNG}")
    g(f"v_lshlrev_b32 v2, 6, v{n}"); g(f"v_lshl_add_u32 v2, v{gg}, 4, v2")
    g("s_cmp_eq_u32 s3, 0"); g("s_cselect_b32 exec_lo, 0x00030003, 0"); g("s_mov_b32 exec_hi, exec_lo")
    for u in range(4): g(f"buffer_store_dwordx4 {vr(xb+4*u,4)}, v2, {WS}, s62 offen offset:{u*128} sc1")
    g("s_mov_b64 exec, -1")
    g.label("L_W_nx")
    def qp_loads():
        for u in range(4): g(f"buffer_load_dwordx4 {vr(qf+8*u,4)}, v{vqpl}, {WS}, s68 offen offset:{u*128} sc1")
    g("s_mov_b32 s63, 0")
    if wke == 0: wuk_quad(0)
    if wke <= 1: wuk_quad(1)
    qp_loads()
    g("s_waitcnt vmcnt(4)")
    g.stamp(12)
    for u in range(4):
        for T in range(2): g.lds(f"ds_read_b128 {vr(wk+16*T+4*u,4)}, v{vkr+u} offset:{T*1024}")
    g("s_branch L_Wa_c")
    g.label("L_Wa")
    def restore(vaddr, soff):
        g("s_mov_b32 exec_lo, 0x000f000f"); g("s_mov_b32 exec_hi, 0x000f000f")
        g(f"buffer_store_dwordx4 {vr(Ga,4)}, v{vaddr}, {WS}, {soff} offen sc1")
        g("s_mov_b64 exec, -1")
    if loc:
        g("s_cmp_lg_u32 s63, 4"); g("s_cbranch_scc1 L_Wa_n")
        restore(vqps, "s67")
        g.label("L_Wa_n")
    qp_loads()
    g.label("L_Wa_c")
    g("s_add_u32 s63, s63, 1"); g(f"s_cmp_gt_u32 s63, {SPIN}"); g("s_cbranch_scc1 L_Wa_x")
    g("s_waitcnt vmcnt(0)")
    for u in range(4): g(f"v_sad_u32 v{chk}, v{qf+8*u}, {sT}, {('v%d' % chk) if u else 0}")
    g(f"v_cmp_ne_u32 vcc, 0, v{chk}")
    g("s_cbranch_vccnz L_Wa")
    g.label("L_Wa_x")
    g.count("s63")
    g("s_waitcnt vmcnt(0)")
    for u in range(4):
        for k in range(2): g(f"v_mov_b32_dpp v{qf+8*u+4+k}, v{qf+8*u+2+k} row_ror:8 {DPPF}")
    g.lwait0()
    g.stamp(5)
    for u in range(4):
        g(f"v_mfma_f32_16x16x32_bf16 {vr(Da,4)}, {vr(wk+4*u,4)}, {vr(qf+8*u+2,4)}, {vr(Da,4) if u else 0}")
        g(f"v_mfma_f32_16x16x32_bf16 {vr(Db,4)}, {vr(wk+16+4*u,4)}, {vr(qf+8*u+2,4)}, {vr(Db,4) if u else 0}")
    g("s_nop 6")
    for k in range(8): g(f"v_add_f32_dpp v{Da+k}, v{Da+k}, v{Da+k} quad_perm:[1,0,3,2] {DPPF}")
    assert Db == Da + 4
    for k in range(8): g(f"v_add_f32_dpp v{Da+k}, v{Da+k}, v{Da+k} quad_perm:[2,3,0,1] {DPPF}")
    qo = g.v(4, 4)
    for k in range(4): g(f"v_cvt_pk_bf16_f32 v{qo+k}, v{Da+2*k}, v{Da+2*k+1}")
    g("s_mov_b32 exec_lo, 0x00110011"); g("s_mov_b32 exec_hi, 0x00110011")
    g(f"buffer_store_dwordx4 {vr(qo,4)}, v{vqa}, {WS}, {sQAo} offen sc1")
    g("s_mov_b64 exec, -1")
    g.stamp(6)
    g(f"s_lshl_b32 s58, {sW}, 8")
    vA, vB = vk, vk + 1
    g(f"v_and_b32 v2, 0xff, v{vqA}"); g(f"v_lshl_add_u32 v{vA}, v{gg}, 10, v2"); g(f"v_xor_b32 v{vB}, 0x80, v{vA}")
    g(f"v_add_u32 v{vk+2}, 3072, v{vA}"); g(f"v_add_u32 v{vk+5}, 6144, v{vB}"); g(f"v_add_u32 v{vk+6}, 9216, v{vB}")
    hpv = g.v(4, 4); vz = g.v()
    sWOo = "s46"
    g(f"v_mov_b32 v{vz}, 0")
    if qack:
        if hq:
            g("s_lshl4_add_u32 s62, s5, s4"); g("s_lshl2_add_u32 s62, s62, s3"); g("s_lshl_b32 s62, s62, 2"); g(f"s_add_u32 s62, s62, {HQ}"); g("v_mov_b32 v3, 0"); g("s_mov_b64 exec, 1")
        g("s_waitcnt vmcnt(0)"); g.stamp(3)
        if hq:
            g(f"buffer_store_dword v{vT}, v3, {WS}, s62 offen")
            g("s_mov_b64 exec, -1")
    if loc: restore(vqps, "s67")
    def wuv_quad(a):
        g(f"s_add_u32 m0, s60, {L_WUV + a*0x1000}"); g(f"s_add_u32 s61, {sQoff}, {a*0x20000}")
        quad(WUV, "s61")
    srd(24, 4 << 20)
    for a in range(pg): wuv_quad(a)
    sPOo = "s17"
    g(f"s_lshr_b32 {sPOo}, s6, 1"); g(f"s_lshl2_add_u32 {sPOo}, {sPOo}, s7"); g(f"s_lshl_b32 {sPOo}, {sPOo}, 15"); g(f"s_add_u32 {sPOo}, {sPOo}, s60")
    g("s_and_b32 s63, s6, 1"); g("s_lshl_b32 s63, s63, 6"); g(f"s_add_u32 {sPOo}, {sPOo}, s63"); g(f"s_add_u32 {sPOo}, {sPOo}, {PO}"); g(f"s_add_u32 s47, {sPOo}, 0x1000")
    vpl = g.v()
    g(f"v_lshlrev_b32 v{vpl}, 9, v{gg}"); g(f"v_lshl_add_u32 v{vpl}, v{r}, 7, v{vpl}"); g(f"v_lshl_add_u32 v{vpl}, v{c4}, 4, v{vpl}")
    g(f"v_lshrrev_b32 v{vop}, 1, v1"); g(f"v_mul_u32_u24 v{vop}, {OPS}, v{vop}"); g(f"v_and_b32 v2, 1, v1"); g(f"v_lshl_or_b32 v{vop}, v2, 4, v{vop}")
    g(f"""
    s_lshl4_add_u32 s62, s5, s4
    s_lshl_b32 s62, s62, 5
    s_mul_i32 s63, s3, {32*OPS}
    s_add_u32 s62, s62, s63
    s_add_u32 {sOPo}, s62, {OP}
    """)
    vwo = f
    srd(28, 4 << 20)
    acc = g.v(16, 4)
    uv = wk; wo = 0
    vlw, vlr, vcs, vclo, vbp = g.v(), g.v(), g.v(), g.v(), g.v()
    mk = f + 8
    g(f"v_lshl_or_b32 v{vf}, v{c4}, 3, v{vf}")
    g(f"v_lshlrev_b32 v{vlw}, 6, v{r}"); g(f"v_lshl_add_u32 v{vlw}, v{gg}, 5, v{vlw}"); g(f"v_lshl_add_u32 v{vlw}, v{c4}, 3, v{vlw}")
    g(f"s_mul_i32 s62, {sW}, 288"); g(f"s_add_u32 s62, s62, {L_LAT}"); g(f"v_add_u32 v{vlw}, s62, v{vlw}")
    g(f"v_mul_u32_u24 v{vlr}, 288, v{c4}"); g(f"v_lshl_add_u32 v{vlr}, v{gg}, 4, v{vlr}"); g(f"v_add_u32 v{vlr}, {L_LAT}, v{vlr}")
    g(f"v_bfe_u32 v{vcs}, v1, 1, 1"); g(f"v_lshlrev_b32 v{vcs}, 9, v{vcs}"); g(f"v_lshl_add_u32 v{vcs}, v{gg}, 5, v{vcs}"); g(f"v_and_b32 v2, 1, v1"); g(f"v_lshl_add_u32 v{vcs}, v2, 4, v{vcs}")
    g(f"v_and_b32 v2, 7, v1"); g(f"v_lshlrev_b32 v2, 9, v2"); g(f"v_lshl_add_u32 v2, v{gg}, 5, v2")
    g(f"v_and_b32 v3, 8, v1"); g(f"v_lshl_add_u32 v{vclo}, v3, 1, v2")
    g(f"s_lshl_b32 s62, {sW}, 6"); g(f"v_lshlrev_b32 v{vbp}, 2, v{gg}"); g(f"v_add_u32 v{vbp}, s62, v{vbp}")
    g(f"v_and_b32 v2, 1, v1"); g(f"v_lshlrev_b32 v2, 4, v2"); g(f"v_mov_b32 v3, 0xffff"); g(f"v_lshlrev_b32 v3, v2, v3"); g(f"v_bfe_u32 v2, v1, 1, 2")
    for k in range(4):
        g(f"v_cmp_eq_u32 vcc, {k}, v2"); g("s_nop 1"); g(f"v_cndmask_b32 v{mk+k}, 0, v3, vcc")
    g(f"s_lshl_b32 {sWOo}, s1, 15"); g(f"s_add_u32 {sWOo}, {sWOo}, s58")
    g(f"v_lshl_add_u32 v3, v{gg}, 3, v{r}"); g(f"v_lshlrev_b32 v3, 8, v3"); g(f"s_add_u32 s62, s60, {L_WO}"); g(f"v_add_u32 v3, s62, v3")
    for tl in range(8):
        g(f"v_xor_b32 v{vwo+tl}, {tl*32}, v{vf}"); g(f"v_add_u32 v{vwo+tl}, v{vwo+tl}, v3")
    g(f"v_mov_b32 v{hpv+2}, v{vT}")
    ALH = g.v(8, 4)
    for k in range(8): g(f"v_mov_b32 v{ALH+k}, 0")
    def wo_quad():
        for j, rg in enumerate((vA, vk + 2, vk + 5, vk + 6)):
            g(f"buffer_load_dwordx4 v{rg}, {WO}, {sWOo} offen offset:{j*1024} {NS}lds")
    def uv_reads():
        for u in range(4):
            for T in range(2):
                for hf in range(2):
                    g.lds(f"ds_read_b64_tr_b16 {vr(uv+16*T+4*u+2*hf,2)}, v{vtr} offset:{L_WUV + u*8192 + hf*1024 + T*8}")
    def wuv_stream():
        for a in range(pg, 2):
            if gw >= 0 and a > 0: g(f"s_waitcnt vmcnt({gw})")
            wuv_quad(a)
    if gate == 1:
        g(f"s_lshl_b32 s62, s5, 8"); g(f"s_add_u32 s62, s62, {HQ}"); g("v_lshlrev_b32 v3, 2, v1")
        hint_wait(g, "L_Wg", 2, 3, "s62", 0, "s63")
    g.stamp(14)
    wuv_stream()
    def wo_stream():
        g(f"s_add_u32 m0, s60, {L_WO}"); g("s_nop 0")
        if gw >= 0 and wow: g(f"s_waitcnt vmcnt({gw})")
        wo_quad()
        g("s_add_u32 m0, m0, 0x1000"); g(f"s_add_u32 {sWOo}, {sWOo}, 0x4000")
        if gw >= 0 and wow: g(f"s_waitcnt vmcnt({gw})")
        wo_quad()
    def wo_reads():
        for tl in range(8):
            for hf in range(2): g.lds(f"ds_read_b64_tr_b16 {ar(wo+4*tl+2*hf,2)}, v{vwo+tl} offset:{hf*1024}")
    if wow: wo_stream()
    sSTo, sCPs, sCPl, sCnt, sBl, sRL = "s16", "s18", "s19", "s20", "s21", "s22"
    g(f"s_lshr_b32 {sSTo}, s6, 2"); g(f"s_lshl_b32 {sSTo}, {sSTo}, 8"); g("s_and_b32 s63, s6, 3"); g(f"s_add_u32 {sSTo}, {sSTo}, s63"); g(f"s_lshl_b32 {sSTo}, {sSTo}, 4"); g(f"s_add_u32 {sSTo}, {sSTo}, {ST}")
    vst = g.v()
    g(f"v_lshlrev_b32 v{vst}, 6, v1")
    g(f"s_lshl_b32 s62, s6, 12"); g(f"s_add_u32 s62, s62, {CP}")
    g(f"s_lshl_b32 s63, s7, 7"); g(f"s_add_u32 {sCPl}, s62, s63")
    g(f"s_lshl_b32 s63, s7, 10"); g(f"s_add_u32 {sCPs}, s62, s63"); g(f"s_lshl_b32 s63, {sW}, 7"); g(f"s_add_u32 {sCPs}, {sCPs}, s63")
    g(f"s_lshr_b32 {sBl}, {sW}, 1"); g(f"s_lshl_b32 {sBl}, {sBl}, 5")
    g("s_mov_b32 s70, 0xaaaaaaaa"); g("s_mov_b32 s71, s70")
    g(f"s_waitcnt vmcnt({8 if wow else 0})")
    g("s_barrier")
    g.stamp(7)
    uv_reads()
    if wow:
        g("s_waitcnt vmcnt(0)")
        wo_reads()
    g.stamp(8)
    TLO = (0, 1, 4, 5); THI = (2, 3, 6, 7)
    stt = xa; pf = qf; af = ta; wd = xa + 4; mx = xa + 5; wb = f + 12
    sHA = "s45"
    def po_loads():
        for u in range(4): g(f"buffer_load_dwordx4 {vr(pf+4*u,4)}, v{vpl}, {WS}, {sPOo if u < 2 else 's47'} offen offset:{(u&1)*2048} sc1")
    if cmb:
        g("s_lshr_b32 s62, s6, 4"); g("s_lshl_b32 s62, s62, 10"); g(f"s_add_u32 s62, s62, {FLA}")
        g(f"buffer_load_dword v2, v{l16}, {WS}, s62 offen sc1")
        g(f"s_lshl_b32 s63, s5, 8"); g(f"s_add_u32 s63, s63, {HB}"); g("v_lshlrev_b32 v3, 2, v1")
        g("s_waitcnt vmcnt(0)")
        g(f"v_cmp_ne_u32 vcc, {sT}, v2")
        g("s_cbranch_vccnz L_Wfa")
        g.label("L_Wfa_x")
        hint_wait(g, "L_Wh1", 2, 3, "s63", 0, sCnt)
        g(f"s_mov_b32 {sCnt}, 0")
        g(f"buffer_load_dwordx3 {vr(stt,3)}, v{vst}, {WS}, {sSTo} offen sc1")
        po_loads()
        if not wow: wo_stream()
        g(f"s_waitcnt vmcnt({4 if wow else 12})")
        g("s_branch L_Ws_c")
        g.label("L_Ws")
        g(f"buffer_load_dwordx3 {vr(stt,3)}, v{vst}, {WS}, {sSTo} offen sc1")
        po_loads()
        g(f"s_add_u32 {sCnt}, {sCnt}, 1"); g(f"s_cmp_gt_u32 {sCnt}, {SPIN}"); g("s_cbranch_scc1 L_Ws_x")
        g("s_waitcnt vmcnt(4)")
        g.label("L_Ws_c")
        g(f"v_cmp_ne_u32 vcc, {sT}, v{stt+2}")
        g("s_cbranch_vccnz L_Ws")
        g.label("L_Ws_x")
        g.count(sCnt)
        g.stamp(9)
    else:
        if hint:
            g("s_and_b32 s62, s4, 14"); g("s_lshr_b32 s63, s5, 2"); g("s_or_b32 s62, s62, s63"); g("s_lshl4_add_u32 s62, s5, s62"); g("s_lshl_b32 s62, s62, 7")
            g(f"s_add_u32 {sHA}, s62, {HA}"); g(f"s_lshl2_add_u32 s62, s7, {sHA}")
            hint_wait(g, "L_Wh1", 2, vz, sHA, 0, sCnt)
        g(f"s_mov_b32 {sCnt}, 0")
        g.label("L_Ws")
        if slp: g(f"s_sleep {slp}")
        g(f"buffer_load_dwordx3 {vr(stt,3)}, v{vst}, {WS}, {sSTo} offen sc1")
        if hint: g(f"buffer_load_dword v{stt+3}, v{vz}, {WS}, s62 offen offset:16 sc1")
        g(f"s_add_u32 {sCnt}, {sCnt}, 1"); g(f"s_cmp_gt_u32 {sCnt}, {SPIN}"); g("s_cbranch_scc1 L_Ws_x")
        g("s_waitcnt vmcnt(0)")
        g(f"v_cmp_ne_u32 vcc, {sT}, v{stt+2}")
        g("s_cbranch_vccnz L_Ws")
        g.label("L_Ws_x")
        g.count(sCnt)
        g("s_waitcnt vmcnt(0)")
        g.stamp(9)
        def po_loads():
            for u in range(4): g(f"buffer_load_dwordx4 {vr(pf+4*u,4)}, v{vpl}, {WS}, {sPOo if u < 2 else 's47'} offen offset:{(u&1)*2048} sc1")
        def po_first():
            po_loads()
            if not wow: wo_stream()
        if hint:
            g(f"v_cmp_ne_u32 s[64:65], {sT}, v{stt+3}")
            g("s_cmp_lg_u64 s[64:65], 0"); g("s_cbranch_scc1 L_Wp_n1")
            po_first()
            g.label("L_Wp_n1")
    g(f"v_mov_b32 v{mx}, v{stt}"); g("s_nop 1")
    reduce32(g, "max", mx, t)
    g(f"v_sub_f32 v{mx}, v{stt}, v{mx}")
    g(f"v_exp_f32 v{mx}, v{mx}")
    g("s_nop 0")
    g(f"v_cvt_pk_bf16_f32 v{wd}, v{mx}, v{mx}")
    for u in range(4): g.lds(f"ds_bpermute_b32 v{wb+u}, v{vbp}, v{wd} offset:{16*u}")
    g(f"v_and_b32 v{mx}, 0xffff0000, v{wd}")
    g(f"v_mul_f32 v{mx}, v{mx}, v{stt+1}"); g("s_nop 1")
    reduce32(g, "add", mx, t)
    g(f"v_rcp_f32 v{mx}, v{mx}")
    g.lwait0()
    for u in range(4):
        for k in range(4): g(f"v_and_b32 v{af+4*u+k}, v{wb+u}, v{mk+k}")
    g(f"v_readlane_b32 {sRL}, v{mx}, {sBl}")
    if not cmb:
        if hint:
            g("s_cmp_eq_u64 s[64:65], 0"); g("s_cbranch_scc1 L_Wp_n2")
            hint_wait(g, "L_Wh2", 2, vz, "s62", 16, sCnt)
        po_first()
        g.label("L_Wp_n2")
    if rall:
        g("s_lshl4_add_u32 s62, s5, s4"); g("s_lshl2_add_u32 s62, s62, s3"); g("s_lshl_b32 s62, s62, 2"); g(f"s_add_u32 s62, s62, {HW}")
    else:
        g("s_lshl4_add_u32 s62, s5, s4"); g("s_lshl_b32 s62, s62, 7"); g(f"s_add_u32 s62, s62, {HW}")
    g(f"s_mov_b32 s61, {sCnt}")
    g(f"s_mov_b32 {sCnt}, 0")
    if wow: g("s_branch L_Wp_c")
    else:
        if cmb:
            g(f"s_cmp_lg_u32 s61, 0"); g("s_cbranch_scc1 L_Wp_c")
        g("s_waitcnt vmcnt(8)")
        g("s_branch L_Wp_d")
    g.label("L_Wp")
    po_loads()
    g.label("L_Wp_c")
    g(f"s_add_u32 {sCnt}, {sCnt}, 1"); g(f"s_cmp_gt_u32 {sCnt}, {SPIN}"); g("s_cbranch_scc1 L_Wp_x")
    g("s_waitcnt vmcnt(0)")
    g.label("L_Wp_d")
    g(f"v_max3_u32 v{chk}, v{pf+3}, v{pf+7}, v{pf+11}"); g(f"v_max_u32 v{chk}, v{chk}, v{pf+15}")
    g(f"v_cmp_eq_u32 vcc, -1, v{chk}")
    g("s_cbranch_vccnz L_Wp")
    g.label("L_Wp_x")
    g.count(sCnt)
    g.stamp(10)
    for u in range(4): g(f"v_mfma_f32_16x16x32_bf16 {vr(Da,4)}, {vr(af+4*u,4)}, {vr(pf+4*u,4)}, {vr(Da,4) if u else 0}")
    g("s_mov_b32 exec_hi, 0")
    g("s_nop 6")
    for k in range(4): g(f"v_mul_f32 v{Da+k}, {sRL}, v{Da+k}")
    g(f"v_cvt_pk_bf16_f32 v{qo}, v{Da}, v{Da+1}"); g(f"v_cvt_pk_bf16_f32 v{qo+1}, v{Da+2}, v{Da+3}")
    g(f"ds_write_b64 v{vlw}, {vr(qo,2)}")
    g("s_mov_b64 exec, -1")
    g.lwait0()
    g("s_barrier")
    for u in range(4): g.lds(f"ds_read_b128 {vr(xb+4*u,4)}, v{vlr} offset:{u*64}", ("lf", u))
    for u in range(4):
        g.lwait(("lf", u))
        g(f"v_mfma_f32_16x16x32_bf16 {vr(Da,4)}, {vr(uv+4*u,4)}, {vr(xb+4*u,4)}, {vr(Da,4) if u else 0}")
        g(f"v_mfma_f32_16x16x32_bf16 {vr(Db,4)}, {vr(uv+16+4*u,4)}, {vr(xb+4*u,4)}, {vr(Db,4) if u else 0}")
    g("s_nop 6")
    for k in range(8): g(f"v_add_f32_dpp v{Da+k}, v{Da+k}, v{Da+k} quad_perm:[1,0,3,2] {DPPF}")
    g("s_mov_b32 exec_lo, 0x000f000f"); g("s_mov_b32 exec_hi, 0x000f000f")
    pack_granule("s[70:71]")
    g(f"buffer_store_dwordx4 {vr(Ga,4)}, v{vcs}, {WS}, {sCPs} offen {'' if loc else 'sc1'}")
    g("s_mov_b64 exec, -1")
    g.stamp(11)
    cl = pf
    g(f"s_mov_b32 {sCnt}, 1")
    g(f"buffer_load_dwordx4 {vr(cl,4)}, v{vclo}, {WS}, {sCPl} offen sc1")
    if not wow:
        g("s_waitcnt vmcnt(2)")
        wo_reads()
    g("s_branch L_Wd_c")
    g.label("L_Wd")
    if loc:
        g(f"s_cmp_lg_u32 {sCnt}, 6"); g("s_cbranch_scc1 L_Wd_n")
        restore(vcs, sCPs)
        g.label("L_Wd_n")
    g(f"buffer_load_dwordx4 {vr(cl,4)}, v{vclo}, {WS}, {sCPl} offen sc1")
    g(f"s_add_u32 {sCnt}, {sCnt}, 1"); g(f"s_cmp_gt_u32 {sCnt}, {SPIN}"); g("s_cbranch_scc1 L_Wd_x")
    g.label("L_Wd_c")
    g("s_waitcnt vmcnt(0)")
    g(f"v_cmp_ne_u32 vcc, {sT}, v{cl}")
    g("s_cbranch_vccnz L_Wd")
    g.label("L_Wd_x")
    g.count(sCnt)
    g("s_waitcnt vmcnt(0)")
    def done_hint():
        if rall: g("s_mov_b64 exec, 1")
        else: g(f"s_cmp_eq_u32 {sW}, 0"); g("s_cselect_b64 exec, 1, 0")
        g(f"buffer_store_dword v{vT}, v{vz}, {WS}, s62 offen")
        g("s_mov_b64 exec, -1")
    if hintr and hre: done_hint()
    AL, AH = ALH, ALH + 4
    for k in range(2):
        g(f"v_mov_b32_dpp v{AL+k}, v{cl+2+k} quad_perm:[0,1,2,3] row_mask:0xf bank_mask:0x3")
        g(f"v_mov_b32_dpp v{AL+2+k}, v{cl+2+k} row_ror:8 row_mask:0xf bank_mask:0x3")
        g(f"v_mov_b32_dpp v{AH+k}, v{cl+2+k} row_ror:8 row_mask:0xf bank_mask:0xc")
        g(f"v_mov_b32_dpp v{AH+2+k}, v{cl+2+k} quad_perm:[0,1,2,3] row_mask:0xf bank_mask:0xc")
    g.lwait0()
    g("s_nop 0")
    for k in range(4): g(f"v_mfma_f32_16x16x32_bf16 {vr(acc+4*k,4)}, {vr(AL,4)}, {ar(wo+4*TLO[k],4)}, 0")
    for k in range(4): g(f"v_mfma_f32_16x16x32_bf16 {vr(acc+4*k,4)}, {vr(AH,4)}, {ar(wo+4*THI[k],4)}, {vr(acc+4*k,4)}")
    def out_pack(acc, R, U, dst, vaddr, soff):
        g("s_nop 4")
        g(f"v_pk_add_f32 {vr(R,2)}, {vr(acc,2)}, {vr(acc+2,2)}")
        g(f"v_pk_add_f32 {vr(U,2)}, {vr(acc+4,2)}, {vr(acc+6,2)}")
        g(f"v_pk_add_f32 {vr(R+2,2)}, {vr(acc+8,2)}, {vr(acc+10,2)}")
        g(f"v_pk_add_f32 {vr(U+2,2)}, {vr(acc+12,2)}, {vr(acc+14,2)}")
        g("s_nop 0")
        for k in range(4): g(f"v_permlane16_swap_b32 v{R+k}, v{U+k}")
        g("s_nop 0")
        g(f"v_pk_add_f32 {vr(R,2)}, {vr(R,2)}, {vr(U,2)}"); g(f"v_pk_add_f32 {vr(R+2,2)}, {vr(R+2,2)}, {vr(U+2,2)}")
        g(f"v_cvt_pk_bf16_f32 v{dst}, v{R}, v{R+1}"); g(f"v_cvt_pk_bf16_f32 v{dst+1}, v{R+2}, v{R+3}")
        g(f"buffer_store_dwordx4 {vr(dst,4)}, v{vaddr}, {WS}, {soff} offen sc1")
    out_pack(acc, qo, Da, hpv, vop, sOPo)
    if hintr and not hre: done_hint()
    if loc: restore(vcs, sCPs)
    g.stamp(2)
    dump_stamps(g, "W")
    g("s_endpgm")
    if cmb: flag_fallback(g, "L_Wfa", 2, l16, "s62", sCnt)

    g.label("L_A2")
    g.lq = []
    g("""
    s_load_dword s43, s[8:9], 0
    s_load_dwordx2 s[52:53], s[0:1], 72
    s_load_dwordx2 s[28:29], s[0:1], 40
    s_load_dwordx2 s[60:61], s[0:1], 56
    s_load_dwordx2 s[68:69], s[0:1], 32
    s_load_dwordx2 s[64:65], s[0:1], 64
    """)
    dbg_init()
    g.reset_v(12)
    vj = l16
    vfl, vfo = g.v(), g.v()
    srd(12, 2048); srd(52, 2048)
    g(f"v_lshlrev_b32 v{vfo}, 7, v1"); g("s_lshl_b32 s34, s6, 10"); g(f"s_add_u32 s34, s34, {FL1}")
    n, gg, r, c4 = g.v(), g.v(), g.v(), g.v()
    g(f"v_and_b32 v{n}, 15, v1"); g(f"v_lshrrev_b32 v{gg}, 4, v1"); g(f"v_bfe_u32 v{r}, v1, 2, 2"); g(f"v_and_b32 v{c4}, 3, v1")
    sHX = "s35"
    g(f"s_mov_b32 {sHX}, {'s6' if swap else 0}")
    vro, xr = g.v(), g.v()
    g(f"v_and_b32 v2, 1, v{gg}"); g(f"v_lshlrev_b32 v{vro}, 10, v2"); g(f"v_lshrrev_b32 v2, 1, v{gg}"); g(f"v_lshl_add_u32 v{vro}, v2, 7, v{vro}")
    g(f"v_and_b32 v2, 1, v1"); g(f"v_lshl_add_u32 v{vro}, v2, 1, v{vro}")
    sRo = "s26"
    g(f"""
    s_sub_u32 s56, s4, 16
    s_lshl4_add_u32 {sRid}, s5, s56
    s_lshr_b32 s56, {sRid}, 5
    s_lshl_b32 {sRo}, s56, 8
    s_bfe_u32 s56, {sRid}, 0x20003
    s_lshl_b32 s56, s56, 5
    s_add_u32 {sRo}, {sRo}, s56
    s_and_b32 s56, {sRid}, 7
    s_lshl2_add_u32 {sRo}, s56, {sRo}
    """)
    vkq = g.v(4); vpv = g.v(16); vpw = g.v(2); vpr = g.v(2); vmx = g.v(); vqd = g.v(); vqr = g.v(); vqc = g.v(); vst = g.v()
    for k in range(4):
        g(f"v_add_u32 v2, {4*k}, v{gg}"); g(f"v_xor_b32 v2, v2, v{n}"); g(f"v_lshlrev_b32 v2, 4, v2"); g(f"v_lshl_add_u32 v2, v{n}, 10, v2"); g(f"v_add_u32 v{vkq+k}, {sRow}, v2")
    g(f"v_and_b32 v2, 1, v{gg}"); g(f"v_lshlrev_b32 v2, 2, v2"); g(f"v_add_lshl_u32 v2, v2, v{r}, 1")
    g(f"v_lshrrev_b32 v3, 1, v{c4}"); g(f"v_xor_b32 v2, v2, v3"); g(f"v_lshlrev_b32 v2, 4, v2")
    g(f"v_and_b32 v3, 1, v1"); g(f"v_lshl_add_u32 v2, v3, 3, v2")
    g(f"v_lshl_add_u32 v3, v{gg}, 2, v{r}"); g(f"v_lshl_add_u32 v2, v3, 11, v2")
    g(f"s_lshl_b32 s56, {sHX}, 16"); g(f"s_lshl_b32 s58, s3, 8"); g("s_add_u32 s56, s56, s58"); g(f"v_add_u32 v2, s56, v2")
    for T in range(8):
        g(f"v_xor_b32 v{vpv+2*T}, {T*32}, v2")
        g(f"v_xor_b32 v3, {T*32+16}, v2"); g(f"v_add_u32 v{vpv+2*T+1}, 0x400, v3")
    g(f"v_mul_u32_u24 v2, 272, v{n}"); g(f"v_lshrrev_b32 v3, 1, v{gg}"); g(f"v_lshl_add_u32 v{vpw}, v3, 4, v2"); g(f"v_and_b32 v3, 1, v{gg}"); g(f"v_lshl_add_u32 v{vpw}, v3, 2, v{vpw}")
    g(f"s_lshl_b32 s56, {sHX}, 7"); g(f"s_xor_b32 s58, s56, 0x80"); g(f"s_lshl_b32 s59, s3, 5"); g(f"s_add_u32 s59, s59, {L_P}")
    g("s_add_u32 s24, s58, s59"); g("s_add_u32 s59, s56, s59")
    g(f"v_add_u32 v{vpw+1}, s24, v{vpw}"); g(f"v_add_u32 v{vpw}, s59, v{vpw}")
    g(f"v_lshl_add_u32 v2, v{gg}, 4, v2"); g(f"s_add_u32 s56, s56, {L_P}"); g(f"s_add_u32 s58, s58, {L_P}")
    g(f"v_add_u32 v{vpr}, s56, v2"); g(f"v_add_u32 v{vpr+1}, s58, v2")
    g(f"v_lshlrev_b32 v{vmx}, 2, v{n}"); g(f"v_add_u32 v{vmx}, {L_MX}, v{vmx}")
    g(f"v_lshlrev_b32 v{vqd}, 6, v{n}"); g(f"v_lshl_add_u32 v{vqd}, v{gg}, 4, v{vqd}")
    g(f"v_add_u32 v{vqr}, {L_QA}, v{vj}")
    sQAl, sQAm, sSTs = "s27", "s30", "s31"
    g(f"""
    s_lshl_b32 {sQAm}, s3, 12
    s_lshr_b32 s56, s7, 5
    s_lshl1_add_u32 s56, s56, s6
    s_lshl_b32 s56, s56, 14
    s_add_u32 {sQAl}, s56, {sQAm}
    s_add_u32 {sQAl}, {sQAl}, {QA}
    s_add_u32 {sQAm}, {sQAm}, {L_QA}
    s_lshl_b32 {sSTs}, s6, 14
    s_lshl_b32 s56, s7, 6
    s_add_u32 {sSTs}, {sSTs}, s56
    s_add_u32 {sSTs}, {sSTs}, {ST}
    """)
    g(f"v_add_u32 v{vqc}, {sQAm}, v{vj}")
    g(f"v_lshlrev_b32 v{vst}, 12, v{r}"); g(f"v_lshl_add_u32 v{vst}, v{c4}, 4, v{vst}")
    vpo2 = g.v()
    g(f"s_lshl2_add_u32 s56, {sRid}, s3"); g("s_lshl_b32 s56, s56, 13"); g(f"v_add_u32 v{vpo2}, s56, v{vfo}")
    vf1, vf2 = g.v(), g.v()
    srd(60, 512*1376*2); srd(64, 512*1376*2)
    g("s_bfe_u32 s56, s4, 0x20002"); g("s_lshl3_add_u32 s56, s56, s5"); g("s_and_b32 s58, s4, 3")
    g("s_lshl2_add_u32 s24, s58, s3"); g(f"s_mul_i32 s24, s24, {32*2752}"); g("s_lshl_b32 s25, s56, 7"); g("s_add_u32 s24, s24, s25")
    g("s_lshl2_add_u32 s25, s56, s58"); g("s_lshl2_add_u32 s25, s25, s3"); g("s_lshl_b32 s25, s25, 12")
    g("s_mov_b32 s70, s56"); g("s_mov_b32 s71, s58")
    g("s_cmp_lt_u32 s56, 22"); g(f"s_cselect_b32 s24, s24, {OOB}")
    g(f"v_lshrrev_b32 v2, 1, v1"); g(f"v_mul_u32_u24 v{vf1}, 2752, v2"); g("v_and_b32 v2, 1, v1"); g("v_mul_u32_u24 v2, 124, v2"); g(f"v_add_u32 v{vf1}, v{vf1}, v2")
    g(f"v_and_b32 v{vf2}, 31, v1"); g(f"v_lshlrev_b32 v{vf2}, 7, v{vf2}")
    vzA = g.v()
    g(f"v_mov_b32 v{vzA}, 0"); g(f"s_lshl_b32 s38, {sRid}, 7"); g(f"s_add_u32 s36, s38, {HA}"); g("s_lshl2_add_u32 s37, s3, s36"); g(f"s_add_u32 s38, s38, {HW}")
    if cmb: g(f"s_lshl2_add_u32 s37, {sRid}, s3"); g("s_lshl_b32 s37, s37, 2"); g(f"s_add_u32 s37, s37, {HB-16}")
    xbA = g.v(16, 4); vxa = g.v()
    g(f"v_and_b32 v2, 1, v1"); g(f"v_lshlrev_b32 v{vxa}, 6, v2"); g(f"v_lshl_add_u32 v{vxa}, v{gg}, 4, v{vxa}")
    g("s_lshl2_add_u32 s39, s6, s71"); g("s_lshl_b32 s39, s39, 9"); g(f"s_add_u32 s39, s39, {XNG}")
    g(f"s_lshr_b32 s58, {sRid}, 2"); g("s_lshl_b32 s58, s58, 11"); g(f"s_add_u32 s58, s58, {HP}")
    g(f"s_lshl_b32 s44, {sW}, 9"); g("s_add_u32 s44, s44, s58"); g("s_lshl_b32 s45, s71, 7"); g("s_add_u32 s44, s44, s45"); g("s_lshl_b32 s45, s71, 9"); g("s_add_u32 s45, s45, s58")
    ones = g.v(4, 4)
    for k in range(4): g(f"v_mov_b32 v{ones+k}, 0x3f803f80")
    g(f"v_mov_b32 v2, 0xff800000")
    g(f"ds_write_b32 v{vmx}, v2")
    g("v_mov_b32 v3, 0")
    g(f"ds_write_b32 v{vmx}, v3 offset:64")
    g.lwait0()
    g(f"s_mul_i32 {sT}, {sE}, 0x9E3779B1"); g(f"s_add_u32 {sT}, {sT}, 0x7F4A7C15")
    abody(2, 0); abody(3, 0)
    g(f"s_xor_b32 s58, {sRow}, 0x10000"); g("s_mov_b32 m0, s58"); g("s_add_u32 s33, s58, s57")
    abody(0, 1); abody(1, 1)
    g("s_waitcnt vmcnt(8)")
    g("s_barrier")
    for u in range(16): g.lds(f"ds_read_b128 {ar(4*u,4)}, v{vkq+(u&3)} offset:{(u>>2)*256}")
    if cmb:
        g("s_lshl_b32 s58, s6, 6"); g("s_add_u32 s58, s58, s7"); g("s_lshl_b32 s58, s58, 4"); g(f"s_add_u32 s58, s58, {FLA}")
        g(f"v_mov_b32 v2, {sT}"); g(f"s_cmp_eq_u32 {sW}, 0"); g("s_cselect_b64 exec, 1, 0")
        g(f"buffer_store_dword v2, v{vzA}, {WS}, s58 offen sc1")
        g("s_mov_b64 exec, -1")
    if not noflag: g(f"buffer_load_dword v{vfl}, v{l16}, {WS}, s34 offen sc1")
    abody(2, 1); abody(3, 1)
    def ffn_prefetch():
        g(f"buffer_load_dword v254, v{vzA}, {WS}, s44 offen")
        if pff:
            g(f"buffer_load_dword v255, v{vf1}, s[60:63], s24 offen")
            g(f"buffer_load_dword v255, v{vf2}, s[64:67], s25 offen")
    if pffe == 1: ffn_prefetch()
    for ks in range(2):
        for T in range(8):
            for hf in range(2):
                g.lds(f"ds_read_b64_tr_b16 {ar(128+(ks*8+T)*4+2*hf,2)}, v{vpv+2*T+hf} offset:{ks*32768}")
    for k in range(4): g(f"v_xor_b32 v{vkq+k}, 0x10000, v{vkq+k}")
    for k in range(16): g(f"v_xor_b32 v{vpv+k}, 0x10000, v{vpv+k}")
    g(f"s_waitcnt vmcnt({8 + (3 if pffe == 1 else 0)})")
    if not noflag:
        g(f"v_cmp_ne_u32 vcc, {sT}, v{vfl}")
        g("s_cbranch_vccnz L_Af1")
    g.label("L_Af1_x")
    g.stamp(11)
    qf = g.v(64, 4); chk = g.v()
    def qa_dma():
        for j in range(4): g(f"buffer_load_dwordx4 v{vqd}, {WS}, {sQAl} offen offset:{j*1024} sc1 lds")
    def qa_check():
        for j in range(4): g(f"ds_read_b128 {vr(qf+4*j,4)}, v{vqc} offset:{j*1024}")
        g.lwait0()
        g(f"v_max3_u32 v{chk}, v{qf+3}, v{qf+7}, v{qf+11}"); g(f"v_max_u32 v{chk}, v{chk}, v{qf+15}")
        g(f"v_cmp_eq_u32 vcc, -1, v{chk}")
    g(f"s_mov_b32 m0, {sQAm}")
    g(f"s_mov_b32 {sCnt}, 1")
    if hq:
        g(f"s_waitcnt vmcnt({3 if pffe == 1 else 0})")
        g.stamp(5)
        for u in range(16): g.lds(f"ds_read_b128 {ar(64+4*u,4)}, v{vkq+(u&3)} offset:{(u>>2)*256}")
        g(f"s_lshl_b32 s58, s5, 8"); g(f"s_add_u32 s58, s58, {HQ}"); g("v_lshlrev_b32 v3, 2, v1")
        hint_wait(g, "L_Ahq", 2, 3, "s58", 0, sCnt)
        g(f"s_mov_b32 {sCnt}, 1")
        qa_dma()
    elif qal:
        g("s_waitcnt vmcnt(0)")
        qa_dma()
    else:
        qa_dma()
        g("s_waitcnt vmcnt(4)")
    if not hq:
        g.stamp(5)
        for u in range(16): g.lds(f"ds_read_b128 {ar(64+4*u,4)}, v{vkq+(u&3)} offset:{(u>>2)*256}")
    g("s_barrier")
    if not hq:
        g("s_waitcnt vmcnt(0) lgkmcnt(8)")
        qa_check()
        g("s_cbranch_vccz L_Aq_1")
        qa_dma()
        g.label("L_Aq_1")
    for ks in range(2):
        for T in range(8):
            for hf in range(2):
                g.lds(f"ds_read_b64_tr_b16 {ar(128+((ks+2)*8+T)*4+2*hf,2)}, v{vpv+2*T+hf} offset:{ks*32768}")
    if not hq: g("s_cbranch_vccz L_Aq_x")
    g("s_branch L_Aq_c")
    g.label("L_Aq")
    if qsl: g(f"s_sleep {qsl}")
    qa_dma()
    g.label("L_Aq_c")
    g(f"s_add_u32 {sCnt}, {sCnt}, 1"); g(f"s_cmp_gt_u32 {sCnt}, {SPIN}"); g("s_cbranch_scc1 L_Aq_y")
    g("s_waitcnt vmcnt(0) lgkmcnt(8)")
    save = list(g.lq)
    qa_check()
    g("s_cbranch_vccnz L_Aq")
    g.label("L_Aq_y")
    g("s_waitcnt vmcnt(0)")
    g.label("L_Aq_x")
    g.lq = save
    g.count(sCnt)
    g("s_barrier")
    g.stamp(6)
    SX = g.v(4, 4); SY = g.v(4, 4); O = g.v(32, 4); pfr = g.v(16, 4); LD = g.v(4, 4); pk = g.v(16, 4)
    EX = g.v(8, 4); STG = g.v(4, 4); mxv, t2 = g.v(), g.v()
    AHEAD = 10
    for u in range(AHEAD): g.lds(f"ds_read_b128 {vr(qf+4*u,4)}, v{vqr} offset:{u*1024}", ("q", u))
    if gate == 2:
        g(f"v_mov_b32 v{STG+2}, {sT}"); g(f"s_cmp_eq_u32 {sW}, 0"); g("s_cselect_b64 exec, 1, 0")
        g(f"buffer_store_dword v{STG+2}, v{vzA}, {WS}, s36 offen offset:32")
        g("s_mov_b64 exec, -1")
    if pfv:
        if pfv == 1: g("s_mov_b32 exec_lo, 0")
        g(f"global_load_dword v255, v6, s[68:69]")
        g("s_mov_b64 exec, -1")
    def xn_loads():
        for u in range(4): g(f"buffer_load_dwordx4 {vr(xbA+4*u,4)}, v{vxa}, {WS}, s39 offen offset:{u*128} sc1")
    if xnl == 0: xn_loads()
    if not pffe: ffn_prefetch()
    if pfo and pfoe: g(f"global_load_dword v255, v{vpo2}, s[28:29]")
    g(f"s_mov_b32 s56, {KSCALE:#x}")
    for u in range(16):
        g.lwait(("q", u))
        g(f"v_mfma_f32_16x16x32_bf16 {vr(SX,4)}, {ar(4*u,4)}, {vr(qf+4*u,4)}, {vr(SX,4) if u else 0}")
        if u + AHEAD < 16: g.lds(f"ds_read_b128 {vr(qf+4*(u+AHEAD),4)}, v{vqr} offset:{(u+AHEAD)*1024}", ("q", u + AHEAD))
    def my(u): g(f"v_mfma_f32_16x16x32_bf16 {vr(SY,4)}, {ar(64+4*u,4)}, {vr(qf+4*u,4)}, {vr(SY,4) if u else 0}")
    def pexp(H):
        for k in range(4): g(f"v_exp_f32 v{EX+4*H+k}, v{EX+4*H+k}")
    def pwrite(H):
        g(f"v_cvt_pk_bf16_f32 v{pk+2*H}, v{EX+4*H}, v{EX+4*H+2}"); g(f"v_cvt_pk_bf16_f32 v{pk+2*H+1}, v{EX+4*H+1}, v{EX+4*H+3}")
        g(f"ds_write2_b32 v{vpw+H}, v{pk+2*H}, v{pk+2*H+1} offset1:2")
    my(0); my(1); my(2)
    g("s_nop 4")
    g(f"v_max3_f32 v{mxv}, v{SX}, v{SX+1}, v{SX+2}")
    my(3)
    g(f"v_max_f32 v{mxv}, v{mxv}, v{SX+3}")
    g(f"ds_max_f32 v{vmx}, v{mxv}")
    my(4); my(5); my(6)
    g.lwait0()
    g("s_barrier")
    g(f"ds_read_b32 v{mxv}, v{vmx}")
    my(7); my(8); my(9)
    g.lwait0()
    g(f"v_mul_f32 v{STG}, s56, v{mxv}")
    my(10)
    for k in range(2): g(f"v_fma_f32 v{EX+k}, v{SX+k}, s56, -v{STG}")
    my(11)
    for k in range(2, 4): g(f"v_fma_f32 v{EX+k}, v{SX+k}, s56, -v{STG}")
    my(12)
    g(f"v_exp_f32 v{EX}, v{EX}")
    my(13)
    g(f"v_exp_f32 v{EX+1}, v{EX+1}")
    my(14)
    g(f"v_exp_f32 v{EX+2}, v{EX+2}")
    my(15)
    g(f"v_exp_f32 v{EX+3}, v{EX+3}")
    g(f"v_mov_b32 v{STG+2}, {sT}")
    pwrite(0)
    g(f"s_mov_b32 s57, {f2u(40.0):#x}")
    g("s_nop 1")
    for k in range(4): g(f"v_fma_f32 v{EX+4+k}, v{SY+k}, s56, -v{STG}")
    g(f"v_max3_f32 v{t2}, v{EX+4}, v{EX+5}, v{EX+6}")
    g(f"v_exp_f32 v{EX+4}, v{EX+4}")
    g(f"v_max_f32 v{t2}, v{t2}, v{EX+7}")
    g(f"v_exp_f32 v{EX+5}, v{EX+5}")
    g(f"v_cmp_lt_f32 vcc, s57, v{t2}")
    g(f"v_exp_f32 v{EX+6}, v{EX+6}")
    g(f"v_exp_f32 v{EX+7}, v{EX+7}")
    g("s_cbranch_vccnz L_Aovf")
    g.label("L_Aovf_x")
    pwrite(1)
    g.lwait0()
    g("s_barrier")
    g.stamp(7)
    g.label("L_Apv")
    g.lds(f"ds_read_b32 v{t2}, v{vmx} offset:64", "ovf")
    for ks in range(4): g.lds(f"ds_read_b128 {vr(pfr+4*ks,4)}, v{vpr+(ks>>1)} offset:{(ks&1)*64}", ("p", ks))
    g.lwait("ovf")
    g(f"v_cmp_ne_u32 vcc, 0, v{t2}")
    g("s_cbranch_vccnz L_Aslow")
    g(f"s_cmp_lg_u32 {sW}, 3"); g("s_cbranch_scc1 L_Anol")
    save = list(g.lq)
    g.lwait(("p", 3))
    for ks in range(4): g(f"v_mfma_f32_16x16x32_bf16 {vr(LD,4)}, {vr(ones,4)}, {vr(pfr+4*ks,4)}, {vr(LD,4) if ks else 0}")
    g.label("L_Anol")
    g.lq = save
    def epi(b):
        for q in range(2):
            g(f"v_cvt_pk_bf16_f32 v{pk+4*b+2*q}, v{O+8*b+4*q}, v{O+8*b+4*q+1}")
            yield
            g(f"v_cvt_pk_bf16_f32 v{pk+4*b+2*q+1}, v{O+8*b+4*q+2}, v{O+8*b+4*q+3}")
            yield
        g(f"buffer_store_dwordx4 {vr(pk+4*b,4)}, v{vpo}, {WS}, {sPOs} offen offset:{b*128} sc1")
        yield
    pend = None
    for b in range(4):
        cnt = 0
        for ks in range(4):
            if b == 0: g.lwait(("p", ks))
            for T in (2 * b, 2 * b + 1):
                g(f"v_mfma_f32_16x16x32_bf16 {vr(O+4*T,4)}, {ar(128+(ks*8+T)*4,4)}, {vr(pfr+4*ks,4)}, {vr(O+4*T,4) if ks else 0}")
                cnt += 1
                if b == 0 and cnt == 8:
                    g(f"s_cmp_lg_u32 {sW}, 3"); g("s_cbranch_scc1 L_Anos")
                    g(f"v_mov_b32 v{STG+1}, v{LD}")
                    g("s_mov_b64 exec, 0xffff")
                    g(f"buffer_store_dwordx4 {vr(STG,4)}, v{vst}, {WS}, {sSTs} offen sc1")
                    if hint and not cmb:
                        g("s_mov_b64 exec, 1")
                        g(f"buffer_store_dword v{STG+2}, v{vzA}, {WS}, s36 offen")
                    g("s_mov_b64 exec, -1")
                    g.label("L_Anos")
                if pend is not None and cnt >= 4:
                    if cnt == 4: g("s_nop 1")
                    next(pend, None)
        if pend is not None:
            for _ in pend: pass
        pend = epi(b)
    g("s_nop 4")
    for _ in pend: pass
    if hint:
        g("s_mov_b64 exec, 1")
        g(f"buffer_store_dword v{STG+2}, v{vzA}, {WS}, s37 offen offset:16")
        g("s_mov_b64 exec, -1")
    g.stamp(4)
    L_F1, L_F2 = 0, 0x4000
    xb = xbA; ta = qf + 16; w2f = qf + 32; hp = qf + 48; acc = O; Da = SX; hpv = LD; hlo = EX; hhi = EX + 2
    vw2 = vpv; vA = vpv + 8; vt1, vt2, vh, vop = vpv + 12, vpv + 13, vpv + 14, vpv + 15
    g(f"v_lshrrev_b32 v2, 3, v1"); g(f"v_mul_u32_u24 v{vt1}, 2752, v2"); g(f"v_and_b32 v2, 7, v1"); g(f"v_lshl_add_u32 v{vt1}, v2, 4, v{vt1}")
    g(f"v_lshlrev_b32 v{vh}, 6, v2"); g(f"v_lshl_add_u32 v{vh}, v{gg}, 4, v{vh}")
    g(f"v_lshlrev_b32 v2, 1, v{gg}"); g(f"v_xor_b32 v2, v2, v{n}"); g(f"v_lshlrev_b32 v2, 4, v2"); g(f"v_lshl_add_u32 v{vA}, v{gg}, 10, v2"); g(f"v_xor_b32 v3, 0x80, v{vA}")
    g(f"v_add_u32 v{vA+1}, 3072, v3"); g(f"v_add_u32 v{vA+2}, 6144, v{vA}"); g(f"v_add_u32 v{vA+3}, 9216, v3")
    g(f"s_lshl_b32 s59, {sW}, 12"); g("s_mov_b32 m0, s59")
    g("s_lshl2_add_u32 s25, s70, s71"); g("s_lshl_b32 s32, s25, 14"); g(f"s_lshl_b32 s33, {sW}, 8"); g("s_add_u32 s32, s32, s33")
    if poack: g("s_waitcnt vmcnt(0)")
    g.stamp(12)
    g("s_cmp_ge_u32 s70, 22"); g("s_cbranch_scc1 L_Anf1")
    if xnl == 1: xn_loads()
    for j in range(4):
        if j: g("s_add_u32 m0, m0, 0x400"); g(f"s_add_u32 s24, s24, {8*2752}")
        g(f"buffer_load_dwordx4 v{vt1}, s[60:63], s24 offen lds")
    g(f"s_add_u32 m0, s59, {L_F2}"); g("s_nop 0")
    for j in range(4): g(f"buffer_load_dwordx4 v{vA+j}, s[64:67], s32 offen offset:{j*1024} lds")
    g.label("L_Anf1")
    if pfo and not pfoe: g(f"global_load_dword v255, v{vpo2}, s[28:29]")
    g("s_cmp_ge_u32 s70, 22"); g("s_cbranch_scc1 L_Anf2")
    g(f"v_lshl_add_u32 v{vt2}, v{gg}, 3, v{r}"); g(f"v_lshlrev_b32 v{vt2}, 7, v{vt2}"); g(f"v_lshl_add_u32 v{vt2}, v{c4}, 3, v{vt2}")
    g(f"s_lshl_b32 s58, {sW}, 5"); g(f"v_add_u32 v{vt2}, s58, v{vt2}")
    g(f"v_and_b32 v2, 1, v{gg}"); g(f"v_lshl_or_b32 v2, v2, 2, v{r}"); g(f"v_lshlrev_b32 v2, 5, v2"); g(f"v_lshl_or_b32 v2, v{c4}, 3, v2")
    g(f"v_lshl_add_u32 v3, v{gg}, 2, v{r}"); g(f"v_lshlrev_b32 v3, 8, v3"); g(f"s_add_u32 s58, s59, {L_F2}"); g(f"v_add_u32 v3, s58, v3")
    for tl in range(8):
        g(f"v_xor_b32 v{vw2+tl}, {tl*32}, v2"); g(f"v_add_u32 v{vw2+tl}, v{vw2+tl}, v3")
    g(f"v_lshrrev_b32 v{vop}, 1, v1"); g(f"v_mul_u32_u24 v{vop}, {OPS}, v{vop}"); g(f"v_and_b32 v2, 1, v1"); g(f"v_lshl_or_b32 v{vop}, v2, 4, v{vop}")
    g("s_lshl_b32 s25, s25, 5"); g(f"s_mul_i32 s58, {sW}, {32*OPS}"); g("s_add_u32 s25, s25, s58"); g(f"s_add_u32 s25, s25, {OP + 128*32}")
    g(f"v_mov_b32 v{hpv+2}, {sT}")
    g.stamp(1)
    g(f"s_waitcnt vmcnt({5 if (pfo and not pfoe) else 4})")
    g.stamp(2)
    g("s_barrier")
    g.stamp(14)
    for u in range(4):
        for hf in range(2): g.lds(f"ds_read_b64_tr_b16 {vr(ta+4*u+2*hf,2)}, v{vt2} offset:{u*4096+hf*512}", ("w1", u))
    for u in range(4):
        g.lwait(("w1", u))
        g(f"v_mfma_f32_16x16x32_bf16 {vr(Da,4)}, {vr(ta+4*u,4)}, {vr(xb+4*u,4)}, {vr(Da,4) if u else 0}")
    g("s_mov_b32 exec_lo, 0x00030003"); g("s_mov_b32 exec_hi, 0x00030003")
    g("s_nop 5")
    g(f"v_cvt_pk_bf16_f32 v{hpv}, v{Da}, v{Da+1}"); g(f"v_cvt_pk_bf16_f32 v{hpv+1}, v{Da+2}, v{Da+3}")
    g(f"buffer_store_dwordx4 {vr(hpv,4)}, v{vh}, {WS}, s44 offen")
    g("s_mov_b64 exec, -1")
    def hp_restore():
        g("s_mov_b32 exec_lo, 0x00030003"); g("s_mov_b32 exec_hi, 0x00030003")
        g(f"buffer_store_dwordx4 {vr(hpv,4)}, v{vh}, {WS}, s44 offen sc1")
        g("s_mov_b64 exec, -1")
    g(f"s_mov_b32 {sCnt}, 0")
    g.label("L_Ah")
    g(f"s_cmp_lg_u32 {sCnt}, 6"); g("s_cbranch_scc1 L_Ah_n")
    hp_restore()
    g.label("L_Ah_n")
    g(f"buffer_load_dwordx3 {vr(hp+4,3)}, v{vh}, {WS}, s45 offen sc1")
    g(f"s_add_u32 {sCnt}, {sCnt}, 1"); g(f"s_cmp_gt_u32 {sCnt}, {SPIN}"); g("s_cbranch_scc1 L_Ah_x")
    g("s_waitcnt vmcnt(0)")
    g(f"v_cmp_ne_u32 vcc, {sT}, v{hp+6}")
    g("s_cbranch_vccnz L_Ah")
    g.label("L_Ah_x")
    g("s_waitcnt vmcnt(0)")
    g.stamp(3)
    hp_restore()
    for tl in range(8): g.lds(f"ds_read_b64_tr_b16 {vr(w2f+2*tl,2)}, v{vw2+tl}")
    g(f"v_lshlrev_b32 v{hp}, 16, v{hp+4}"); g(f"v_and_b32 v{hp+1}, 0xffff0000, v{hp+4}")
    g(f"v_lshlrev_b32 v{hp+2}, 16, v{hp+5}"); g(f"v_and_b32 v{hp+3}, 0xffff0000, v{hp+5}")
    for k in range(4): g(f"v_add_f32_dpp v{hp+k}, v{hp+k}, v{hp+k} quad_perm:[2,3,0,1] {DPPF}")
    for k in range(4): g(f"v_add_f32_dpp v{hp+k}, v{hp+k}, v{hp+k} row_ror:4 {DPPF}")
    g(f"v_cvt_pk_bf16_f32 v{hp+4}, v{hp}, v{hp+1}"); g(f"v_cvt_pk_bf16_f32 v{hp+5}, v{hp+2}, v{hp+3}")
    g(f"v_lshlrev_b32 v{hp}, 16, v{hp+4}"); g(f"v_and_b32 v{hp+1}, 0xffff0000, v{hp+4}")
    g(f"v_lshlrev_b32 v{hp+2}, 16, v{hp+5}"); g(f"v_and_b32 v{hp+3}, 0xffff0000, v{hp+5}")
    for k in range(4): g(f"v_mul_f32 v{hp+8+k}, {f2u(-1.4426950408889634):#x}, v{hp+k}")
    for k in range(4): g(f"v_exp_f32 v{hp+8+k}, v{hp+8+k}")
    g("s_nop 0")
    for k in range(4): g(f"v_add_f32 v{hp+8+k}, 1.0, v{hp+8+k}")
    for k in range(4): g(f"v_rcp_f32 v{hp+8+k}, v{hp+8+k}")
    g("s_nop 0")
    for k in range(4): g(f"v_mul_f32 v{hp+k}, v{hp+k}, v{hp+8+k}")
    g(f"v_cvt_pk_bf16_f32 v{hp+4}, v{hp}, v{hp+1}"); g(f"v_cvt_pk_bf16_f32 v{hp+5}, v{hp+2}, v{hp+3}")
    g("s_mov_b32 s56, 0x00030003"); g("s_mov_b32 s57, s56"); g("s_lshl_b64 s[58:59], s[56:57], 8")
    for k in range(2):
        g(f"v_cndmask_b32 v{hlo+k}, 0, v{hp+4+k}, s[56:57]"); g(f"v_cndmask_b32 v{hhi+k}, 0, v{hp+4+k}, s[58:59]")
    g.lwait0()
    TLO = (0, 1, 4, 5); THI = (2, 3, 6, 7)
    for k in range(4): g(f"v_mfma_f32_16x16x16_bf16 {vr(acc+4*k,4)}, {vr(hlo,2)}, {vr(w2f+2*TLO[k],2)}, 0")
    for k in range(4): g(f"v_mfma_f32_16x16x16_bf16 {vr(acc+4*k,4)}, {vr(hhi,2)}, {vr(w2f+2*THI[k],2)}, {vr(acc+4*k,4)}")
    out_pack(acc, pk, pk + 4, hpv, vop, "s25")
    g.label("L_Anf2")
    g.stamp(8)
    g(f"s_cmp_lg_u32 {sW}, 0"); g("s_cbranch_scc1 L_Aend0")
    op = qf
    g(f"s_mul_i32 s56, {sRid}, {OPS}"); g(f"s_add_u32 s56, s56, {OP}"); g("s_add_u32 s57, s56, 0x1000")
    g(f"buffer_load_ushort v{xr}, v{vro}, {X}, {sRo} offen")
    raw = op + 32
    g(f"v_mov_b32 v{raw+24}, 0"); g(f"v_mov_b32 v{raw+25}, 0"); g(f"v_mov_b32 v{raw+26}, {sT}")
    if hintr:
        if rall:
            g(f"s_lshl_b32 s38, s5, 8"); g(f"s_add_u32 s38, s38, {HW}"); g("v_lshlrev_b32 v3, 2, v1")
            hint_wait(g, "L_Rh", 2, 3, "s38", 0, sCnt)
        else: hint_wait(g, "L_Rh", 2, vzA, "s38", 0, sCnt)
    g(f"s_mov_b32 {sCnt}, 0")
    g.label("L_R")
    for j in range(7):
        if j == 6: g("s_mov_b32 exec_hi, 0xffff")
        g(f"buffer_load_dwordx3 {vr(raw+4*j,3)}, v{vj}, {WS}, {'s56' if j < 4 else 's57'} offen offset:{(j&3)*1024} sc1")
    g("s_mov_b32 exec_hi, -1")
    g(f"s_add_u32 {sCnt}, {sCnt}, 1"); g(f"s_cmp_gt_u32 {sCnt}, {SPIN}"); g("s_cbranch_scc1 L_R_x")
    for j in range(7):
        g(f"s_waitcnt vmcnt({6-j})")
        g(f"v_sad_u32 v{chk}, v{raw+2+4*j}, {sT}, {('v%d' % chk) if j else 0}")
        d = op + 4 * (j & 1) if j < 2 else op + 8
        for k in range(2):
            g(f"v_lshlrev_b32 v{d+2*k}, 16, v{raw+4*j+k}"); g(f"v_and_b32 v{d+2*k+1}, 0xffff0000, v{raw+4*j+k}")
        if j >= 2:
            for k in range(2): g(f"v_pk_add_f32 {vr(op+4*(j&1)+2*k,2)}, {vr(op+4*(j&1)+2*k,2)}, {vr(op+8+2*k,2)}")
    g(f"v_cmp_ne_u32 vcc, 0, v{chk}")
    g("s_cbranch_vccnz L_R")
    g.label("L_R_x")
    g.count(sCnt)
    g("s_waitcnt vmcnt(0)")
    g.stamp(9)
    for k in range(2): g(f"v_pk_add_f32 {vr(op+2*k,2)}, {vr(op+2*k,2)}, {vr(op+4+2*k,2)}")
    g(f"v_lshlrev_b32 v{xr}, 16, v{xr}")
    g("s_nop 1")
    g(f"v_permlane16_swap_b32 v{op}, v{op+1}"); g(f"v_permlane16_swap_b32 v{op+2}, v{op+3}")
    g("s_nop 0")
    g(f"v_add_f32 v{op}, v{op}, v{op+1}"); g(f"v_add_f32 v{op+2}, v{op+2}, v{op+3}")
    g("s_nop 1")
    g(f"v_permlane32_swap_b32 v{op}, v{op+2}")
    g("s_nop 0")
    g(f"v_add_f32 v{op}, v{op}, v{op+2}")
    for k in (2, 4, 8):
        g("s_nop 1"); g(f"v_add_f32_dpp v{op}, v{op}, v{op} row_ror:{k} {DPPF}")
    g(f"v_add_f32 v{op}, v{op}, v{xr}")
    g("s_mov_b32 exec_lo, 0x00030003"); g("s_mov_b32 exec_hi, 0x00030003")
    g(f"v_cvt_pk_bf16_f32 v{op}, v{op}, v{op}")
    g(f"buffer_store_short v{op}, v{vro}, {OUT}, {sRo} offen")
    g(f"s_cmp_lg_u32 {sRid}, 0"); g("s_cbranch_scc1 L_Aend")
    g("s_mov_b64 exec, 1"); g(f"v_mov_b32 v2, {sT}"); g("v_mov_b32 v3, 0")
    g(f"buffer_store_dword v2, v3, {WS}, 0 offen sc1")
    g("s_branch L_Aend")
    g.label("L_Aend0")
    g.label("L_Aend")
    g.stamp(10)
    dump_stamps(g, "A")
    g("s_endpgm")
    g.label("L_Aovf")
    g(f"v_mov_b32 v{t2}, 1")
    g(f"ds_write_b32 v{vmx}, v{t2} offset:64")
    g("s_branch L_Aovf_x")
    g.label("L_Aslow")
    g(f"v_max3_f32 v{mxv}, v{SY}, v{SY+1}, v{SY+2}"); g(f"v_max_f32 v{mxv}, v{mxv}, v{SY+3}")
    g(f"ds_max_f32 v{vmx}, v{mxv}")
    g("s_waitcnt lgkmcnt(0)"); g("s_barrier")
    g(f"ds_read_b32 v{mxv}, v{vmx}"); g(f"v_mov_b32 v{t2}, 0"); g(f"ds_write_b32 v{vmx}, v{t2} offset:64")
    g("s_waitcnt lgkmcnt(0)")
    g(f"v_mul_f32 v{STG}, s56, v{mxv}")
    for k in range(8): g(f"v_fma_f32 v{EX+k}, v{SX+k}, s56, -v{STG}")
    pexp(0); pexp(1); g("s_nop 0")
    pwrite(0); pwrite(1)
    g("s_waitcnt lgkmcnt(0)"); g("s_barrier")
    g("s_branch L_Apv")
    flag_fallback(g, "L_Af1", vfl, l16, "s34", sCnt)
    g.label("L_end")
    body = "\n".join(g.L)
    hdr = open("parallel_sum__compressed_kv_cla__dense_activation_silu__decode.s.ref").read().split("; Override launch")[0]
    return f"""{hdr}; @launch grid=(256,1,1) block=(256,1,1) lds={LDS_BYTES}
.amdgcn_target "amdgcn-amd-amdhsa--gfx950"
.set HINT_LIMIT, 40
.text
.globl {KNAME}
.p2align 8
.type {KNAME},@function
{KNAME}:
{body}
    s_endpgm
.section .rodata,"a"
.p2align 6
.amdhsa_kernel {KNAME}
  .amdhsa_next_free_vgpr 512
  .amdhsa_next_free_sgpr 102
  .amdhsa_accum_offset 256
  .amdhsa_group_segment_fixed_size 0
  .amdhsa_kernarg_size 96
  .amdhsa_user_sgpr_count 2
  .amdhsa_user_sgpr_kernarg_segment_ptr 1
  .amdhsa_system_sgpr_workgroup_id_x 1
.end_amdhsa_kernel
"""

if __name__ == "__main__":
    dbg = 3 if "--debug3" in sys.argv else 2 if "--debug2" in sys.argv else (1 if "--debug" in sys.argv else 0)
    out = [a for a in sys.argv[1:] if not a.startswith("--")][0]
    kw = {}
    for a in sys.argv[1:]:
        if a.startswith("--thr="): kw["thr"] = tuple(int(x) for x in a[6:].split(","))
        if a.startswith("--swap="): kw["swap"] = int(a[7:])
        for nm in ("touch", "pfk", "pfo", "pf2", "pfc", "noflag", "wdelay", "loc", "stw", "slp", "pad", "rslp", "p2t", "est", "pfoe", "hint", "qal", "hintr", "hsl", "dq", "wke", "qack", "qsl", "hq", "nts", "gate", "pff", "poack", "pfv", "wv1", "fgate", "rall", "pg", "wow", "gw", "xnl", "pffe", "cmb", "hre"):
            if a.startswith(f"--{nm}="): kw[nm] = int(a.split("=")[1])
    open(out, "w").write(build(dbg, **kw))
```

```python
import sys, struct

KNAME = "parallel_sum__compressed_kv_cla__dense_activation_silu__decode_kernel"

QP, CP, QA, ST, OP, PO, TS = 0x10000, 0x30000, 0x50000, 0x380000, 0x400000, 0x100000, 0x340000
FL1, HQ, HP, HA, HW = 0x68000, 0x6C000, 0x70000, 0x60000, 0x64000
XNG, FLA, HB = 0x6E000, 0x69000, 0x6D000
OPS = 7168
WS_REC = 0x500000
OOB = 0x40000000
L_WQ, L_WUK, L_WUV, L_WO, L_W1, L_W2, L_XN, L_LAT = 0, 0x8000, 0, 0x10000, 0x18000, 0x1C000, 0x20000, 0x20900
XNP = 1056
L_QA, L_P, L_MX = 0x20000, 0x24000, 0x25200
LDS_BYTES = 0x25400
SPIN = 20000

def f2u(x): return struct.unpack("<I", struct.pack("<f", x))[0]
KSCALE = f2u(128 ** -0.5 * 1.4426950408889634)

class G:
    def __init__(self, debug=False):
        self.L = []; self.debug = debug; self.nv = 0; self.names = {}; self.nstamp = 0; self.lq = []; self.maxv = 0
    def __call__(self, s):
        for ln in s.strip().split("\n"):
            self.L.append("    " + ln.strip())
    def label(self, s): self.L.append(s + ":")
    def c(self, s): self.L.append("    ; " + s)
    def reset_v(self, start): self.nv = start
    def v(self, n=1, al=None):
        if al is None: al = 1 if n == 1 else 2
        self.nv = (self.nv + al - 1) // al * al
        r = self.nv; self.nv += n; self.maxv = max(self.maxv, self.nv)
        assert self.nv <= 254, "out of VGPRs"
        return r
    def stamp(self, i):
        if self.debug == 3 and i not in (0, 10): return
        if self.debug == 2:
            if i == 11: return
            if i == 14: i = 11
        if self.debug == 1 and i == 13: return
        if self.debug:
            assert i < 15
            self(f"s_memrealtime s[{72+2*i}:{73+2*i}]")
    def count(self, cnt):
        if self.debug == 1:
            self(f"s_min_u32 s99, {cnt}, 63"); self("s_lshl_b32 s98, s98, 6"); self("s_or_b32 s98, s98, s99")
    def lds(self, s, tag=None):
        if len(self.lq) >= 15:
            self.lwait(self.lq[len(self.lq) - 15])
        self(s); self.lq.append(tag if tag is not None else object())
    def lwait(self, tag):
        if tag not in self.lq: return
        k = max(i for i, t in enumerate(self.lq) if t == tag)
        n = len(self.lq) - 1 - k
        self(f"s_waitcnt lgkmcnt({n})")
        self.lq = self.lq[k + 1:]
    def lwait0(self):
        self("s_waitcnt lgkmcnt(0)"); self.lq = []

def vr(a, n): return f"v[{a}:{a+n-1}]" if n > 1 else f"v{a}"
def ar(a, n): return f"a[{a}:{a+n-1}]"

sW, sS, sX, sH, sQT = "s3", "s4", "s5", "s6", "s7"
WS, X, WQ, WUK, WUV, WO, W1, W2, DBG, CKV, OUT = ("s[8:11]", "s[12:15]", "s[16:19]", "s[20:23]", "s[24:27]", "s[28:31]",
                                                  "s[32:35]", "s[36:39]", "s[44:47]", "s[48:51]", "s[52:55]")
sT, sE = "s42", "s43"
sHG, sSP = "s6", "s7"
DPPF = "row_mask:0xf bank_mask:0xf"

def reduce32(g, op, s, t):
    for k in (8, 4, 2, 1):
        g(f"v_{op}_f32_dpp v{s}, v{s}, v{s} row_ror:{k} {DPPF}")
        g("s_nop 1")
    g(f"v_mov_b32 v{t}, v{s}")
    g("s_nop 1")
    g(f"v_permlane16_swap_b32 v{t}, v{s}")
    g("s_nop 0")
    g(f"v_{op}_f32 v{s}, v{s}, v{t}")

def reduce64(g, op, s, t):
    reduce32(g, op, s, t)
    g(f"v_mov_b32 v{t}, v{s}")
    g("s_nop 1")
    g(f"v_permlane32_swap_b32 v{t}, v{s}")
    g("s_nop 0")
    g(f"v_{op}_f32 v{s}, v{s}, v{t}")

def flag_fallback(g, name, vfl, vfo, soff, cnt, pair=False):
    g.label(name)
    g(f"s_mov_b32 {cnt}, 0")
    g.label(name + "_l")
    g("s_sleep 2")
    if pair: g(f"buffer_load_dwordx2 {vr(vfl,2)}, v{vfo}, {WS}, {soff} offen sc1")
    else: g(f"buffer_load_dword v{vfl}, v{vfo}, {WS}, {soff} offen sc1")
    g(f"s_add_u32 {cnt}, {cnt}, 1"); g(f"s_cmp_gt_u32 {cnt}, {SPIN}"); g(f"s_cbranch_scc1 {name}_x")
    g("s_waitcnt vmcnt(0)")
    if pair: g(f"v_cmp_ne_u64 vcc, s[40:41], {vr(vfl,2)}")
    else: g(f"v_cmp_ne_u32 vcc, {sT}, v{vfl}")
    g(f"s_cbranch_vccnz {name}_l")
    g(f"s_branch {name}_x")

HINTN = 3000
def hint_wait(g, name, vt, vz, soff, off, cnt):
    g(f"s_mov_b32 {cnt}, 0")
    g.label(name)
    g(f"buffer_load_dword v{vt}, v{vz}, {WS}, {soff} offen offset:{off} sc1")
    g(f"s_add_u32 {cnt}, {cnt}, 1"); g(f"s_cmp_gt_u32 {cnt}, HINT_LIMIT"); g(f"s_cbranch_scc1 {name}_x")
    g("s_waitcnt vmcnt(0)")
    g(f"v_cmp_ne_u32 vcc, {sT}, v{vt}")
    g(f"s_cbranch_vccnz {name}")
    g.label(name + "_x")

def dump_stamps(g, role=None):
    if not g.debug: return
    g.lwait0()
    if g.debug == 3:
        lo = 0 if role == "W" else 128
        g(f"s_sub_u32 s56, s2, {lo}"); g("s_cmp_ge_u32 s56, 8"); g(f"s_cbranch_scc1 L_nod{role}"); g(f"s_cmp_lg_u32 {sW}, 0"); g(f"s_cbranch_scc1 L_nod{role}")
        g("s_lshl_b32 s60, s56, 2")
        g("s_mov_b64 exec, -1"); g(f"v_mov_b32 v2, s{72 if role == 'W' else 92}"); g("v_mov_b32 v3, 0")
        g("s_mov_b32 s58, 256"); g("s_mov_b32 s59, 0x20000"); g("s_mov_b64 s[56:57], s[100:101]"); g("s_mov_b64 exec, 1")
        g(f"buffer_store_dword v2, v3, s[56:59], s60 offen offset:{0 if role == 'W' else 32}")
        g.label(f"L_nod{role}")
        return
    if g.debug == 2:
        wg, sel, base = (0, (3, 1, 12, 6, 11, 8, 10, 2), 0) if role == "W" else (128 + 3, (1, 2, 5, 6, 7, 8, 9, 10), 32)
        g(f"s_lshl2_add_u32 s56, s2, {sW}"); g(f"s_cmp_lg_u32 s56, {wg*4}"); g(f"s_cbranch_scc1 L_nod{role}")
        g("s_mov_b64 exec, -1"); g("v_mov_b32 v2, 0")
        for i, k in enumerate(sel):
            g(f"s_sub_u32 s57, s{72+2*k}, s72"); g(f"v_writelane_b32 v2, s57, {i}")
        g("s_mov_b32 s102, 0" if False else "s_nop 0")
        g("s_mov_b32 s58, 256"); g("s_mov_b32 s59, 0x20000"); g("s_mov_b64 s[56:57], s[100:101]")
        g("v_lshlrev_b32 v3, 2, v1"); g("s_mov_b64 exec, 0xff")
        g(f"buffer_store_dword v2, v3, s[56:59], 0 offen offset:{base}")
        g.label(f"L_nod{role}")
        return
    g(f"s_lshl_b32 s56, s2, 2"); g(f"s_add_u32 s56, s56, {sW}"); g("s_lshl_b32 s56, s56, 6"); g(f"s_add_u32 s56, s56, {TS}")
    g("s_mov_b64 exec, -1")
    g("v_mov_b32 v2, 0")
    for i in range(15): g(f"v_writelane_b32 v2, s{72+2*i}, {i}")
    g("s_getreg_b32 s57, hwreg(HW_REG_XCC_ID)")
    g("v_writelane_b32 v2, s57, 15")
    g("v_lshlrev_b32 v3, 2, v1")
    g("s_mov_b64 exec, 0xffff")
    g(f"buffer_store_dword v2, v3, {WS}, s56 offen")

def build(debug=False, thr=(16, 0), swap=1, touch=0, pfk=1, pfo=1, pf2=1, pfc=0, noflag=0, wdelay=0, loc=1, stw=16, slp=1, pad=0, rslp=0, p2t=0, est=1, pfoe=1, hint=1, qal=0, hintr=1, hsl=0, dq=0, wke=1, qack=1, qsl=0, hq=1, nts=0, gate=1, pff=0, poack=0, pfv=0, wv1=6, fgate=0, rall=1, pg=0, wow=0, gw=-1, xnl=1, pffe=0, cmb=0, hre=1, adl=0, noclr=0, fwait=0, hqe=1, nat=1, opr=1, qae=1, fk=0, wk2=0, hpos=3, pre0=0, osc=0):
    g = G(debug)
    NS = 'nt ' if nts else ''
    g.stamp(0)
    g("""
    s_load_dwordx2 s[16:17], s[0:1], 16
    s_load_dwordx2 s[48:49], s[0:1], 8
    s_load_dwordx2 s[20:21], s[0:1], 24
    s_load_dwordx2 s[12:13], s[0:1], 0
    s_load_dwordx2 s[8:9], s[0:1], 88
    s_cmp_ge_u32 s2, 256
    s_cbranch_scc1 L_end
    v_lshrrev_b32 v2, 6, v0
    v_and_b32 v1, 63, v0
    s_lshr_b32 s4, s2, 3
    v_readfirstlane_b32 s3, v2
    s_and_b32 s5, s2, 7
    v_lshlrev_b32 v4, 4, v1
    s_cmp_ge_u32 s4, 16
    s_cbranch_scc1 L_A
    """)
    l16 = 4
    def srd(k, sz):
        g(f"s_mov_b32 s{k+2}, {sz}"); g(f"s_mov_b32 s{k+3}, 0x20000")
    def dbg_init():
        if debug:
            for i in range(1, 14): g(f"s_mov_b64 s[{72+2*i}:{73+2*i}], 0")
            if debug >= 2: g("s_load_dwordx2 s[100:101], s[0:1], 80")
            else: g("s_mov_b64 s[100:101], 0")
    g.reset_v(5)
    n, gg = g.v(), g.v()
    vqA, vqB = g.v(), g.v(); vq4 = g.v(4)
    xa = g.v(8, 4)
    sQAo, sOPo, sQoff = "s38", "s39", "s35"
    g(f"v_and_b32 v{n}, 15, v1"); g(f"v_lshrrev_b32 v{gg}, 4, v1")
    g(f"v_lshlrev_b32 v2, 1, v{gg}"); g(f"v_xor_b32 v2, v2, v{n}"); g(f"v_lshlrev_b32 v2, 4, v2"); g(f"v_lshl_add_u32 v{vqA}, v{gg}, 13, v2"); g(f"v_xor_b32 v{vqB}, 0x80, v{vqA}")
    g(f"v_add_u32 v{vq4+1}, {31744}, v{vqA}"); g(f"v_add_u32 v{vq4+2}, {2*31744}, v{vqB}"); g(f"v_add_u32 v{vq4+3}, {3*31744}, v{vqB}")
    srd(16, 4 << 20); srd(12, 2048); srd(8, WS_REC)
    PRE0 = f"""v_lshlrev_b32 v2, 7, v1
    s_lshl2_add_u32 s63, s6, s7
    s_lshl_b32 s63, s63, 10
    s_lshl_b32 s58, s3, 17
    s_add_u32 s63, s63, s58
    s_add_u32 s63, s63, {QP}""" if pre0 else "s_nop 0"
    sent = xa + 4
    for k in range(4): g(f"v_mov_b32 v{sent+k}, -1")
    g(f"v_lshrrev_b32 v3, 3, v1"); g(f"v_lshlrev_b32 v3, 10, v3"); g(f"v_and_b32 v2, 4, v1"); g(f"v_lshl_add_u32 v3, v2, 13, v3"); g(f"v_and_b32 v2, 3, v1"); g(f"v_lshl_add_u32 v3, v2, 4, v3")
    g(f"""
    s_lshr_b32 s6, s4, 2
    s_lshl2_add_u32 s6, s5, s6
    s_and_b32 s7, s4, 3
    s_lshl2_add_u32 s61, s7, s3
    s_lshl_b32 s61, s61, 18
    s_lshl_b32 s59, s6, 8
    s_add_u32 {sQoff}, s61, s59
    s_lshl_b32 s60, s3, 13
    s_mov_b32 m0, s60
    s_lshl_b32 s57, s3, 10
    s_lshr_b32 s62, s6, 4
    s_lshl2_add_u32 s62, s62, s7
    s_lshl_b32 s62, s62, 6
    s_and_b32 s63, s6, 15
    s_add_u32 s62, s62, s63
    s_lshl_b32 s62, s62, 6
    s_add_u32 s62, s62, {QA}
    {PRE0}
    s_cmp_eq_u32 s3, 2
    s_cselect_b32 exec_lo, -1, 0
    s_mov_b32 exec_hi, 0
    s_waitcnt lgkmcnt(0)
    """)
    g(f"buffer_store_dwordx4 {vr(sent,4)}, v3, {WS}, s62 offen sc1")
    g("s_cmp_lt_u32 s3, 2"); g("s_cselect_b64 exec, -1, 0")
    def quad(srdname, soff):
        g(f"buffer_load_dwordx4 v{vqA}, {srdname}, {soff} offen nt lds")
        for k in range(1, 4): g(f"buffer_load_dwordx4 v{vq4+k}, {srdname}, {soff} offen offset:{k*1024} nt lds")
    g(f"buffer_load_dwordx4 {vr(xa,4)}, v{l16}, {X}, s57 offen")
    if pre0:
        g("s_and_b32 exec_lo, exec_lo, 0xff"); g("s_mov_b32 exec_hi, 0")
        g(f"buffer_load_dword v254, v2, {WS}, s63 offen")
    g("s_mov_b64 exec, -1")
    quad(WQ, sQoff)
    g("s_add_u32 m0, m0, 0x1000"); g(f"s_add_u32 s61, {sQoff}, 0x20000")
    quad(WQ, "s61")
    g("s_branch L_W2")
    wv = g.nv
    g.label("L_A")
    vt4 = 8
    sPOs, sRow, sCnt, sRid = "s18", "s19", "s22", "s23"
    g(f"""
    s_and_b32 s6, s4, 1
    s_bfe_u32 s56, s4, 0x30001
    s_lshl3_add_u32 s7, s5, s56
    s_lshl_b32 s57, s7, 17
    """)
    if swap: g(f"s_lshl2_add_u32 {sRow}, s6, s3"); g(f"s_lshl_b32 {sRow}, {sRow}, 14")
    else: g(f"s_lshl_b32 {sRow}, s3, 14")
    srd(48, 8 << 20)
    g(f"s_mov_b32 m0, {sRow}"); g(f"s_add_u32 s33, {sRow}, s57")
    vpo = 7
    srd(8, WS_REC)
    g(f"""
    s_lshl_b32 {sPOs}, s6, 5
    s_add_u32 {sPOs}, {sPOs}, s3
    s_lshl_b32 {sPOs}, {sPOs}, 15
    s_lshl_b32 s56, s7, 9
    s_add_u32 {sPOs}, {sPOs}, s56
    s_add_u32 {sPOs}, {sPOs}, {PO}
    """)
    g(f"v_bfe_u32 v{vpo}, v1, 1, 3"); g(f"v_lshlrev_b32 v{vpo}, 17, v{vpo}"); g(f"v_and_b32 v2, 1, v1"); g(f"v_lshl_add_u32 v{vpo}, v2, 6, v{vpo}"); g(f"v_and_b32 v2, 48, v1"); g(f"v_add_u32 v{vpo}, v2, v{vpo}")
    for k in range(4): g(f"v_mov_b32 v{vt4+k}, -1")
    def a_clear():
        for b in range(4): g(f"buffer_store_dwordx4 {vr(vt4,4)}, v{vpo}, {WS}, {sPOs} offen offset:{b*128} sc1")
        g("s_nop 1")
    if pfk:
        g("""
        s_and_b32 s60, s4, 3
        s_lshl2_add_u32 s60, s60, s3
        s_lshl_b32 s60, s60, 18
        s_bfe_u32 s61, s4, 0x20002
        s_lshl2_add_u32 s61, s5, s61
        s_lshl_b32 s61, s61, 8
        s_add_u32 s60, s60, s61
        v_lshrrev_b32 v2, 1, v1
        v_and_b32 v3, 1, v1
        v_lshlrev_b32 v2, 13, v2
        v_lshl_add_u32 v2, v3, 7, v2
        v_add_u32 v6, s60, v2
        """)
    def pfk_load():
        if pfk:
            if pfk == 2: g("s_cmp_lt_u32 s3, 2"); g("s_cselect_b64 exec, -1, 0")
            if pfk == 3: g("s_mov_b32 exec_lo, 0")
            g("global_load_dword v255, v6, s[20:21]")
            if pfk >= 2: g("s_mov_b64 exec, -1")
    g("s_waitcnt lgkmcnt(0)")
    if not adl: pfk_load()
    if not noclr: a_clear()
    if fwait: g(f's_waitcnt vmcnt({0 if noclr else 4})')
    def abody(a, half):
        if a == 0:
            for k in range(1, 4): g(f"v_xor_b32 v{vt4+k}, {k*16}, v{l16}")
            regs = [l16, vt4 + 1, vt4 + 2, vt4 + 3]
        else:
            for k in range(4): g(f"v_xor_b32 v{vt4+k}, {(4*a+k)*16}, v{l16}")
            regs = [vt4 + k for k in range(4)]
        for k in range(4):
            j = 4 * a + k
            if half == 0 and thr[0] <= j < thr[1] + thr[0]: g(f"s_waitcnt vmcnt({thr[0]-1})")
            g(f"buffer_load_dwordx4 v{regs[k]}, {CKV}, s33 offen offset:{k*1024} {NS}lds")
        if a < 3: g("s_add_u32 m0, m0, 0x1000"); g("s_add_u32 s33, s33, 0x1000")
    if not adl: abody(0, 0); abody(1, 0)
    g(f"""
    s_getpc_b64 s[40:41]
L_pc:
    v_lshlrev_b32 v2, 3, v4
    s_lshl2_add_u32 s56, s4, s3
    v_add_u32 v3, 0x2000, v2
    v_min_u32 v3, L_end-L_pc, v3
    s_cmp_eq_u32 s56, 64
    s_cselect_b64 exec, -1, 0
    global_load_dword v255, v2, s[40:41]
    global_load_dword v255, v3, s[40:41]
    s_mov_b64 exec, -1
    s_branch L_A2
    """)

    g.label("L_W2")
    g.reset_v(wv)
    g("""
    s_load_dword s43, s[8:9], 0
    s_load_dwordx2 s[24:25], s[0:1], 32
    s_load_dwordx2 s[28:29], s[0:1], 40
    """)
    dbg_init()
    srd(20, 4 << 20)
    g(f"s_add_u32 {sQAo}, s62, s57")
    if not pre0:
        if loc:
            g(f"v_and_b32 v2, 0x70, v{l16}"); g(f"v_lshlrev_b32 v2, 3, v2"); g("s_lshl2_add_u32 s63, s6, s7"); g("s_lshl_b32 s63, s63, 10"); g("s_lshl_b32 s62, s3, 17"); g("s_add_u32 s63, s63, s62"); g(f"s_add_u32 s63, s63, {QP}")
            g("s_cmp_lt_u32 s3, 2"); g("s_cselect_b64 exec, 0xff, 0")
            g(f"buffer_load_dword v254, v2, {WS}, s63 offen")
            g("s_mov_b64 exec, -1")
    vqa, vop = g.v(), g.v()
    vk = g.v(8); vkr = g.v(4)
    g(f"v_xor_b32 v2, v{n}, v{gg}"); g(f"v_lshlrev_b32 v2, 4, v2"); g(f"v_lshl_add_u32 v{vk}, v{gg}, 13, v2")
    for k in range(1, 8):
        g(f"v_xor_b32 v{vk+k}, {(k>>1)*64}, v{vk}")
        if k & 3: g(f"v_add_u32 v{vk+k}, {(k&3)*31744}, v{vk+k}")
    def wuk_quad(a):
        g(f"s_add_u32 m0, s60, {L_WUK + a*0x1000}"); g(f"s_add_u32 s61, {sQoff}, {a*0x20000}")
        for k in range(4): g(f"buffer_load_dwordx4 v{vk+4*a+k}, {WUK}, s61 offen offset:{k*1024} {NS}lds")
    if wke == 1: wuk_quad(0)
    r, c4 = g.v(), g.v()
    g(f"v_bfe_u32 v{r}, v1, 2, 2"); g(f"v_and_b32 v{c4}, 3, v1")
    vxf, vtr, vqps, vqpl, vf = g.v(), g.v(), g.v(), g.v(), g.v()
    g(f"v_lshl_add_u32 v3, v{r}, 3, v{c4}"); g(f"v_lshl_add_u32 v2, v3, 8, v2"); g(f"s_add_u32 s64, s60, {L_WUK}"); g(f"v_add_u32 v{vkr}, s64, v2")
    for k in range(1, 4): g(f"v_xor_b32 v{vkr+k}, {k*64}, v{vkr}")
    g(f"v_lshlrev_b32 v{vqa}, 13, v1"); g(f"v_and_b32 v{vqa}, 0x8000, v{vqa}"); g(f"v_lshl_or_b32 v{vqa}, v{gg}, 4, v{vqa}")
    g(f"v_and_b32 v2, 1, v1"); g(f"v_mul_u32_u24 v{vxf}, {XNP}, v2"); g(f"v_lshl_add_u32 v{vxf}, v{gg}, 4, v{vxf}")
    g(f"s_lshl_b32 s63, s7, 8"); g(f"s_add_u32 s63, s63, {L_XN}"); g(f"v_add_u32 v{vxf}, s63, v{vxf}")
    g(f"v_lshlrev_b32 v{vqps}, 9, v2"); g(f"v_lshl_add_u32 v{vqps}, v{gg}, {4 if nat else 5}, v{vqps}"); g(f"v_and_b32 v2, 2, v1"); g(f"v_lshl_add_u32 v{vqps}, v2, {5 if nat else 3}, v{vqps}")
    g(f"v_and_b32 v2, 1, v{gg}"); g(f"v_lshl_or_b32 v2, v2, 2, v{r}"); g(f"v_lshlrev_b32 v{vf}, 5, v2")
    g(f"s_lshl_b32 s63, s3, 6"); g(f"v_lshl_or_b32 v2, v{c4}, {3 if nat else 4}, s63"); g(f"v_xor_b32 v2, v2, v{vf}")
    g(f"v_lshl_add_u32 v{vtr}, v{gg}, 3, v{r}"); g(f"v_lshl_add_u32 v{vtr}, v{vtr}, 8, v2")
    vtr1 = g.v()
    g(f"v_xor_b32 v{vtr1}, 32, v{vtr}")
    def trad(T): return (f"v{vtr1 if T else vtr}", 0) if nat else (f"v{vtr}", 8 * T)
    g(f"v_bfe_u32 v2, v1, 2, 1"); g(f"v_lshl_add_u32 v{vqpl}, v{c4}, 1, v2"); g(f"v_lshlrev_b32 v{vqpl}, 9, v{vqpl}"); g(f"v_lshl_add_u32 v{vqpl}, v{gg}, 5, v{vqpl}")
    g(f"v_and_b32 v2, 8, v1"); g(f"v_lshl_add_u32 v{vqpl}, v2, 1, v{vqpl}")
    g(f"""
    s_lshl_b32 s68, s6, 12
    s_add_u32 s68, s68, {QP}
    s_lshl_b32 s63, s7, 10
    s_add_u32 s67, s68, s63
    s_lshl_b32 s63, s3, 7
    s_add_u32 s67, s67, s63
    s_mov_b32 s70, 0xcccccccc
    s_mov_b32 s71, s70
    s_lshl4_add_u32 s66, s5, s4
    s_lshl2_add_u32 s66, s66, s3
    s_lshl_b32 s66, s66, 2
    s_add_u32 s66, s66, {HQ}
    s_lshl2_add_u32 s69, s6, s7
    s_lshl_b32 s44, s69, 4
    s_add_u32 s44, s44, {FL1}
    """)
    Ga = g.v(4, 4); vT = Ga
    f = g.v(16, 2); m = g.v(2); t = g.v(); s2 = g.v(8, 2)
    g("s_cmp_lt_u32 s3, 2"); g("s_cbranch_scc1 L_W_ln")
    g("s_waitcnt lgkmcnt(0)")
    g(f"s_mul_i32 {sT}, {sE}, 0x9E3779B1"); g(f"s_add_u32 {sT}, {sT}, 0x7F4A7C15")
    g(f"v_mov_b32 v{vT}, {sT}")
    if wke == 2: wuk_quad(0); wuk_quad(1)
    g("v_mov_b32 v3, 0"); g("s_cmp_eq_u32 s3, 2"); g("s_cselect_b64 exec, 1, 0")
    g(f"s_waitcnt vmcnt({4 * wke})")
    g(f"buffer_store_dword v{vT}, v3, {WS}, s44 offen sc1")
    g("s_mov_b64 exec, -1")
    g("s_branch L_W_b0")
    g.label("L_W_ln")
    g(f"s_mul_i32 s63, s3, {XNP}"); g(f"s_add_u32 s63, s63, {L_XN}"); g(f"v_add_u32 v3, s63, v{l16}")
    g(f"s_waitcnt vmcnt({(9 if loc else 8) + (4 if wke == 1 else 0)})")
    d = f + 8
    for k in range(4):
        g(f"v_lshlrev_b32 v{f+2*k}, 16, v{xa+k}"); g(f"v_and_b32 v{f+2*k+1}, 0xffff0000, v{xa+k}")
    g(f"v_pk_add_f32 {vr(s2,2)}, {vr(f,2)}, {vr(f+2,2)}"); g(f"v_pk_add_f32 {vr(s2+2,2)}, {vr(f+4,2)}, {vr(f+6,2)}")
    g(f"v_pk_add_f32 {vr(s2,2)}, {vr(s2,2)}, {vr(s2+2,2)}")
    g(f"v_add_f32 v{m}, v{s2}, v{s2+1}"); g("s_nop 1")
    reduce64(g, "add", m, t)
    g(f"v_mul_f32 v{m}, {f2u(1/512):#x}, v{m}")
    for k in range(4): g(f"v_pk_add_f32 {vr(d+2*k,2)}, {vr(f+2*k,2)}, {vr(m,2)} op_sel_hi:[1,0] neg_lo:[0,1] neg_hi:[0,1]")
    g(f"v_pk_mul_f32 {vr(s2,2)}, {vr(d,2)}, {vr(d,2)}"); g(f"v_pk_mul_f32 {vr(s2+2,2)}, {vr(d+2,2)}, {vr(d+2,2)}")
    g(f"v_pk_fma_f32 {vr(s2,2)}, {vr(d+4,2)}, {vr(d+4,2)}, {vr(s2,2)}"); g(f"v_pk_fma_f32 {vr(s2+2,2)}, {vr(d+6,2)}, {vr(d+6,2)}, {vr(s2+2,2)}")
    g(f"v_pk_add_f32 {vr(s2,2)}, {vr(s2,2)}, {vr(s2+2,2)}")
    va = s2 + 4
    g(f"v_add_f32 v{va}, v{s2}, v{s2+1}")
    g(f"v_cvt_pk_bf16_f32 v{m}, v{m}, v{m}"); g(f"v_and_b32 v{m}, 0xffff0000, v{m}")
    reduce64(g, "add", va, t)
    g(f"v_mul_f32 v{va}, {f2u(1/512):#x}, v{va}")
    for k in range(2): g(f"v_pk_add_f32 {vr(f+2*k,2)}, {vr(f+2*k,2)}, {vr(m,2)} op_sel_hi:[1,0] neg_lo:[0,1] neg_hi:[0,1]")
    g(f"v_cvt_pk_bf16_f32 v{va}, v{va}, v{va}")
    for k in range(2, 4): g(f"v_pk_add_f32 {vr(f+2*k,2)}, {vr(f+2*k,2)}, {vr(m,2)} op_sel_hi:[1,0] neg_lo:[0,1] neg_hi:[0,1]")
    g(f"v_and_b32 v{va}, 0xffff0000, v{va}")
    g(f"v_add_f32 v{va}, {f2u(1e-5):#x}, v{va}")
    g(f"v_cvt_pk_bf16_f32 v{xa}, v{f}, v{f+1}")
    g(f"v_cvt_pk_bf16_f32 v{va}, v{va}, v{va}")
    g(f"v_cvt_pk_bf16_f32 v{xa+1}, v{f+2}, v{f+3}")
    g(f"v_and_b32 v{va}, 0xffff0000, v{va}")
    g(f"v_sqrt_f32 v{va}, v{va}")
    g(f"v_cvt_pk_bf16_f32 v{xa+2}, v{f+4}, v{f+5}"); g(f"v_cvt_pk_bf16_f32 v{xa+3}, v{f+6}, v{f+7}")
    g(f"v_cvt_pk_bf16_f32 v{va}, v{va}, v{va}")
    for k in range(2):
        g(f"v_lshlrev_b32 v{f+2*k}, 16, v{xa+k}"); g(f"v_and_b32 v{f+2*k+1}, 0xffff0000, v{xa+k}")
    g(f"v_and_b32 v{m}, 0xffff0000, v{va}")
    g(f"v_rcp_f32 v{m}, v{m}")
    for k in range(2, 4):
        g(f"v_lshlrev_b32 v{f+2*k}, 16, v{xa+k}"); g(f"v_and_b32 v{f+2*k+1}, 0xffff0000, v{xa+k}")
    for k in range(4): g(f"v_pk_mul_f32 {vr(f+2*k,2)}, {vr(f+2*k,2)}, {vr(m,2)} op_sel_hi:[1,0]")
    for k in range(4): g(f"v_cvt_pk_bf16_f32 v{xa+k}, v{f+2*k}, v{f+2*k+1}")
    g(f"ds_write_b128 v3, {vr(xa,4)}")
    if not dq and not qack: g.stamp(3)
    g("s_waitcnt lgkmcnt(0)"); g.lq = []
    g(f"s_mul_i32 {sT}, {sE}, 0x9E3779B1"); g(f"s_add_u32 {sT}, {sT}, 0x7F4A7C15")
    g(f"v_mov_b32 v{vT}, {sT}")
    if wke == 2: wuk_quad(0); wuk_quad(1)
    g(f"s_waitcnt vmcnt({(1 if (loc and not pre0) else 0) + 4 * wke})")
    if dq: g.stamp(3)
    g.label("L_W_b0")
    g("s_mov_b32 s1, s69")
    g("s_barrier")
    g.stamp(1)
    xb = g.v(16, 4); wk = g.v(32, 4); ta = g.v(16, 4); Da = g.v(4, 4); Db = g.v(4, 4)
    qf = g.v(32, 4); chk = g.v()
    tq = qf
    for u in range(4):
        g.lds(f"ds_read_b128 {vr(xb+4*u,4)}, v{vxf} offset:{u*64}")
        for T in range(2):
            for hf in range(2):
                g.lds(f"ds_read_b64_tr_b16 {vr(tq+8*u+4*T+2*hf,2)}, {trad(T)[0]} offset:{L_WQ + u*8192 + hf*1024 + trad(T)[1]}", ("tr", u, T))
    if wk2: wuk_quad(1)
    for u in range(4):
        g.lwait(("tr", u, 0))
        g(f"v_mfma_f32_16x16x32_bf16 {vr(Da,4)}, {vr(tq+8*u,4)}, {vr(xb+4*u,4)}, {vr(Da,4) if u else 0}")
        g.lwait(("tr", u, 1))
        g(f"v_mfma_f32_16x16x32_bf16 {vr(Db,4)}, {vr(tq+8*u+4,4)}, {vr(xb+4*u,4)}, {vr(Db,4) if u else 0}")
    def pack_granule(msk):
        g(f"v_cvt_pk_bf16_f32 v{Ga+2}, v{Da}, v{Da+1}"); g(f"v_cvt_pk_bf16_f32 v{Ga+3}, v{Da+2}, v{Da+3}")
        g(f"v_cvt_pk_bf16_f32 v2, v{Db}, v{Db+1}"); g(f"v_cvt_pk_bf16_f32 v3, v{Db+2}, v{Db+3}")
        g(f"v_cndmask_b32 v{Ga+2}, v{Ga+2}, v2, {msk}"); g(f"v_cndmask_b32 v{Ga+3}, v{Ga+3}, v3, {msk}")
    g("s_mov_b32 exec_lo, 0x000f000f"); g("s_mov_b32 exec_hi, 0x000f000f")
    g("s_nop 4")
    pack_granule("s[70:71]")
    g(f"buffer_store_dwordx4 {vr(Ga,4)}, v{vqps}, {WS}, s67 offen {'' if loc else 'sc1'}")
    g("s_mov_b64 exec, -1")
    g.stamp(4)
    g("s_and_b32 s62, s6, 15"); g("s_cmp_lg_u32 s62, 0"); g("s_cbranch_scc1 L_W_nx")
    g("s_lshr_b32 s62, s6, 4"); g("s_lshl2_add_u32 s62, s62, s7"); g("s_lshl_b32 s62, s62, 9"); g(f"s_add_u32 s62, s62, {XNG}")
    g(f"v_lshlrev_b32 v2, 6, v{n}"); g(f"v_lshl_add_u32 v2, v{gg}, 4, v2")
    g("s_cmp_eq_u32 s3, 0"); g("s_cselect_b32 exec_lo, 0x00030003, 0"); g("s_mov_b32 exec_hi, exec_lo")
    for u in range(4): g(f"buffer_store_dwordx4 {vr(xb+4*u,4)}, v2, {WS}, s62 offen offset:{u*128} sc1")
    g("s_mov_b64 exec, -1")
    g.label("L_W_nx")
    def qp_loads():
        for u in range(4): g(f"buffer_load_dwordx4 {vr(qf+8*u,4)}, v{vqpl}, {WS}, s68 offen offset:{u*128} sc1")
    g("s_mov_b32 s63, 0")
    if wke == 0: wuk_quad(0)
    if wke <= 1 and not wk2: wuk_quad(1)
    qp_loads()
    g(f"s_waitcnt vmcnt({5 if wk2 else 4})")
    g.stamp(12)
    for u in range(4):
        for T in range(2): g.lds(f"ds_read_b128 {vr(wk+16*T+4*u,4)}, v{vkr+u} offset:{T*1024}")
    if debug == 1: g("s_waitcnt vmcnt(0)"); g.stamp(3)
    g("s_branch L_Wa_c")
    g.label("L_Wa")
    def restore(vaddr, soff):
        g("s_mov_b32 exec_lo, 0x000f000f"); g("s_mov_b32 exec_hi, 0x000f000f")
        g(f"buffer_store_dwordx4 {vr(Ga,4)}, v{vaddr}, {WS}, {soff} offen sc1")
        g("s_mov_b64 exec, -1")
    if loc:
        g("s_cmp_lg_u32 s63, 4"); g("s_cbranch_scc1 L_Wa_n")
        restore(vqps, "s67")
        g.label("L_Wa_n")
    qp_loads()
    g.label("L_Wa_c")
    g("s_add_u32 s63, s63, 1"); g(f"s_cmp_gt_u32 s63, {SPIN}"); g("s_cbranch_scc1 L_Wa_x")
    g("s_waitcnt vmcnt(0)")
    for u in range(4): g(f"v_sad_u32 v{chk}, v{qf+8*u}, {sT}, {('v%d' % chk) if u else 0}")
    g(f"v_cmp_ne_u32 vcc, 0, v{chk}")
    g("s_cbranch_vccnz L_Wa")
    g.label("L_Wa_x")
    g.count("s63")
    g("s_waitcnt vmcnt(0)")
    for u in range(4):
        for k in range(2): g(f"v_mov_b32_dpp v{qf+8*u+4+k}, v{qf+8*u+2+k} row_ror:8 {DPPF}")
    g.lwait0()
    g.stamp(5)
    for u in range(4):
        g(f"v_mfma_f32_16x16x32_bf16 {vr(Da,4)}, {vr(wk+4*u,4)}, {vr(qf+8*u+2,4)}, {vr(Da,4) if u else 0}")
        g(f"v_mfma_f32_16x16x32_bf16 {vr(Db,4)}, {vr(wk+16+4*u,4)}, {vr(qf+8*u+2,4)}, {vr(Db,4) if u else 0}")
    g("s_nop 6")
    for k in range(8): g(f"v_add_f32_dpp v{Da+k}, v{Da+k}, v{Da+k} quad_perm:[1,0,3,2] {DPPF}")
    assert Db == Da + 4
    for k in range(8): g(f"v_add_f32_dpp v{Da+k}, v{Da+k}, v{Da+k} quad_perm:[2,3,0,1] {DPPF}")
    qo = g.v(4, 4)
    for k in range(4): g(f"v_cvt_pk_bf16_f32 v{qo+k}, v{Da+2*k}, v{Da+2*k+1}")
    g("s_mov_b32 exec_lo, 0x00110011"); g("s_mov_b32 exec_hi, 0x00110011")
    g(f"buffer_store_dwordx4 {vr(qo,4)}, v{vqa}, {WS}, {sQAo} offen sc1")
    if hqe:
        g("s_mov_b64 exec, 1")
        g(f"buffer_store_dword v{vT}, v{l16}, {WS}, s66 offen")
    g("s_mov_b64 exec, -1")
    g.stamp(6)
    g(f"s_lshl_b32 s58, {sW}, 8")
    vA, vB = vk, vk + 1
    g(f"v_and_b32 v2, 0xff, v{vqA}"); g(f"v_lshl_add_u32 v{vA}, v{gg}, 10, v2"); g(f"v_xor_b32 v{vB}, 0x80, v{vA}")
    g(f"v_add_u32 v{vk+2}, 3072, v{vA}"); g(f"v_add_u32 v{vk+5}, 6144, v{vB}"); g(f"v_add_u32 v{vk+6}, 9216, v{vB}")
    hpv = g.v(4, 4); vz = g.v()
    sWOo = "s46"
    g(f"v_mov_b32 v{vz}, 0")
    if not hqe:
        g("v_mov_b32 v3, 0"); g("s_mov_b64 exec, 1")
        g("s_waitcnt vmcnt(0)"); g.stamp(3)
        g(f"buffer_store_dword v{vT}, v3, {WS}, s66 offen")
        g("s_mov_b64 exec, -1")
    if loc: restore(vqps, "s67")
    def wuv_quad(a):
        g(f"s_add_u32 m0, s60, {L_WUV + a*0x1000}"); g(f"s_add_u32 s61, {sQoff}, {a*0x20000}")
        quad(WUV, "s61")
    srd(24, 4 << 20)
    for a in range(pg): wuv_quad(a)
    sPOo = "s17"
    g(f"s_lshr_b32 {sPOo}, s6, 1"); g(f"s_lshl2_add_u32 {sPOo}, {sPOo}, s7"); g(f"s_lshl_b32 {sPOo}, {sPOo}, 15"); g(f"s_add_u32 {sPOo}, {sPOo}, s60")
    g("s_and_b32 s63, s6, 1"); g("s_lshl_b32 s63, s63, 6"); g(f"s_add_u32 {sPOo}, {sPOo}, s63"); g(f"s_add_u32 {sPOo}, {sPOo}, {PO}"); g(f"s_add_u32 s47, {sPOo}, 0x1000")
    vpl = g.v()
    g(f"v_lshlrev_b32 v{vpl}, 9, v{gg}"); g(f"v_lshl_add_u32 v{vpl}, v{r}, 7, v{vpl}"); g(f"v_lshl_add_u32 v{vpl}, v{c4}, 4, v{vpl}")
    g(f"v_lshrrev_b32 v{vop}, 1, v1"); g(f"v_mul_u32_u24 v{vop}, {OPS}, v{vop}"); g(f"v_and_b32 v2, 1, v1"); g(f"v_lshl_or_b32 v{vop}, v2, 4, v{vop}")
    g(f"""
    s_lshl4_add_u32 s62, s5, s4
    s_lshl_b32 s62, s62, 5
    s_mul_i32 s63, s3, {32*OPS}
    s_add_u32 s62, s62, s63
    s_add_u32 {sOPo}, s62, {OP}
    """)
    vwo = f
    srd(28, 4 << 20)
    acc = g.v(16, 4)
    uv = wk; wo = 0
    vlw, vlr, vcs, vclo, vbp = g.v(), g.v(), g.v(), g.v(), g.v()
    mk = f + 8
    g(f"v_lshl_or_b32 v{vf}, v{c4}, 3, v{vf}")
    g(f"v_lshlrev_b32 v{vlw}, 6, v{r}"); g(f"v_lshl_add_u32 v{vlw}, v{gg}, 5, v{vlw}"); g(f"v_lshl_add_u32 v{vlw}, v{c4}, 3, v{vlw}")
    g(f"s_mul_i32 s62, {sW}, 288"); g(f"s_add_u32 s62, s62, {L_LAT}"); g(f"v_add_u32 v{vlw}, s62, v{vlw}")
    g(f"v_mul_u32_u24 v{vlr}, 288, v{c4}"); g(f"v_lshl_add_u32 v{vlr}, v{gg}, 4, v{vlr}"); g(f"v_add_u32 v{vlr}, {L_LAT}, v{vlr}")
    g(f"v_bfe_u32 v{vcs}, v1, 1, 1"); g(f"v_lshlrev_b32 v{vcs}, 9, v{vcs}"); g(f"v_lshl_add_u32 v{vcs}, v{gg}, {4 if nat else 5}, v{vcs}"); g(f"v_and_b32 v2, 1, v1"); g(f"v_lshl_add_u32 v{vcs}, v2, {6 if nat else 4}, v{vcs}")
    g(f"v_and_b32 v2, 7, v1"); g(f"v_lshlrev_b32 v2, 9, v2"); g(f"v_lshl_add_u32 v2, v{gg}, 5, v2")
    g(f"v_and_b32 v3, 8, v1"); g(f"v_lshl_add_u32 v{vclo}, v3, 1, v2")
    g(f"s_lshl_b32 s62, {sW}, 6"); g(f"v_lshlrev_b32 v{vbp}, 2, v{gg}"); g(f"v_add_u32 v{vbp}, s62, v{vbp}")
    g(f"v_and_b32 v2, 1, v1"); g(f"v_lshlrev_b32 v2, 4, v2"); g(f"v_mov_b32 v3, 0xffff"); g(f"v_lshlrev_b32 v3, v2, v3"); g(f"v_bfe_u32 v2, v1, 1, 2")
    for k in range(4):
        g(f"v_cmp_eq_u32 vcc, {k}, v2"); g("s_nop 1"); g(f"v_cndmask_b32 v{mk+k}, 0, v3, vcc")
    g(f"s_lshl_b32 {sWOo}, s1, 15"); g(f"s_add_u32 {sWOo}, {sWOo}, s58")
    g(f"v_lshl_add_u32 v3, v{gg}, 3, v{r}"); g(f"v_lshlrev_b32 v3, 8, v3"); g(f"s_add_u32 s62, s60, {L_WO}"); g(f"v_add_u32 v3, s62, v3")
    for tl in range(8):
        g(f"v_xor_b32 v{vwo+tl}, {tl*32}, v{vf}"); g(f"v_add_u32 v{vwo+tl}, v{vwo+tl}, v3")
    g(f"v_mov_b32 v{hpv+2}, v{vT}")
    ALH = g.v(8, 4)
    for k in range(8): g(f"v_mov_b32 v{ALH+k}, 0")
    def wo_quad():
        for j, rg in enumerate((vA, vk + 2, vk + 5, vk + 6)):
            g(f"buffer_load_dwordx4 v{rg}, {WO}, {sWOo} offen offset:{j*1024} {NS}lds")
    def uv_reads():
        for u in range(4):
            for T in range(2):
                for hf in range(2):
                    g.lds(f"ds_read_b64_tr_b16 {vr(uv+16*T+4*u+2*hf,2)}, {trad(T)[0]} offset:{L_WUV + u*8192 + hf*1024 + trad(T)[1]}")
    def wuv_stream():
        for a in range(pg, 2):
            if gw >= 0 and a > 0: g(f"s_waitcnt vmcnt({gw})")
            wuv_quad(a)
    if gate == 1:
        g(f"s_lshl_b32 s62, s5, 8"); g(f"s_add_u32 s62, s62, {HQ}"); g("v_lshlrev_b32 v3, 2, v1")
        hint_wait(g, "L_Wg", 2, 3, "s62", 0, "s63")
    g.stamp(14)
    wuv_stream()
    def wo_stream():
        g(f"s_add_u32 m0, s60, {L_WO}"); g("s_nop 0")
        if gw >= 0 and wow: g(f"s_waitcnt vmcnt({gw})")
        wo_quad()
        g("s_add_u32 m0, m0, 0x1000"); g(f"s_add_u32 {sWOo}, {sWOo}, 0x4000")
        if gw >= 0 and wow: g(f"s_waitcnt vmcnt({gw})")
        wo_quad()
    def wo_reads():
        for tl in range(8):
            for hf in range(2): g.lds(f"ds_read_b64_tr_b16 {ar(wo+4*tl+2*hf,2)}, v{vwo+tl} offset:{hf*1024}")
    if wow: wo_stream()
    if opr: g(f"buffer_load_dword v254, v{vop}, {WS}, {sOPo} offen")
    sSTo, sCPs, sCPl, sCnt, sBl, sRL = "s16", "s18", "s19", "s20", "s21", "s22"
    g(f"s_lshr_b32 {sSTo}, s6, 2"); g(f"s_lshl_b32 {sSTo}, {sSTo}, 8"); g("s_and_b32 s63, s6, 3"); g(f"s_add_u32 {sSTo}, {sSTo}, s63"); g(f"s_lshl_b32 {sSTo}, {sSTo}, 4"); g(f"s_add_u32 {sSTo}, {sSTo}, {ST}")
    vst = g.v()
    g(f"v_lshlrev_b32 v{vst}, 6, v1")
    g(f"s_lshl_b32 s62, s6, 12"); g(f"s_add_u32 s62, s62, {CP}")
    g(f"s_lshl_b32 s63, s7, 7"); g(f"s_add_u32 {sCPl}, s62, s63")
    g(f"s_lshl_b32 s63, s7, 10"); g(f"s_add_u32 {sCPs}, s62, s63"); g(f"s_lshl_b32 s63, {sW}, 7"); g(f"s_add_u32 {sCPs}, {sCPs}, s63")
    g(f"s_lshr_b32 {sBl}, {sW}, 1"); g(f"s_lshl_b32 {sBl}, {sBl}, 5")
    g("s_mov_b32 s70, 0xaaaaaaaa"); g("s_mov_b32 s71, s70")
    g(f"s_waitcnt vmcnt({(8 if wow else 0) + (1 if opr else 0)})")
    g("s_barrier")
    g.stamp(7)
    uv_reads()
    if wow:
        g("s_waitcnt vmcnt(0)")
        wo_reads()
    g.stamp(8)
    TLO = (0, 1, 4, 5); THI = (2, 3, 6, 7)
    stt = xa; pf = qf; af = ta; wd = xa + 4; mx = xa + 5; wb = f + 12
    sHA = "s45"
    def po_loads():
        for u in range(4): g(f"buffer_load_dwordx4 {vr(pf+4*u,4)}, v{vpl}, {WS}, {sPOo if u < 2 else 's47'} offen offset:{(u&1)*2048} sc1")
    if cmb:
        g("s_lshr_b32 s62, s6, 4"); g("s_lshl_b32 s62, s62, 10"); g(f"s_add_u32 s62, s62, {FLA}")
        g(f"buffer_load_dword v2, v{l16}, {WS}, s62 offen sc1")
        g(f"s_lshl_b32 s63, s5, 8"); g(f"s_add_u32 s63, s63, {HB}"); g("v_lshlrev_b32 v3, 2, v1")
        g("s_waitcnt vmcnt(0)")
        g(f"v_cmp_ne_u32 vcc, {sT}, v2")
        g("s_cbranch_vccnz L_Wfa")
        g.label("L_Wfa_x")
        hint_wait(g, "L_Wh1", 2, 3, "s63", 0, sCnt)
        g(f"s_mov_b32 {sCnt}, 0")
        g(f"buffer_load_dwordx3 {vr(stt,3)}, v{vst}, {WS}, {sSTo} offen sc1")
        po_loads()
        if not wow: wo_stream()
        g(f"s_waitcnt vmcnt({4 if wow else 12})")
        g("s_branch L_Ws_c")
        g.label("L_Ws")
        g(f"buffer_load_dwordx3 {vr(stt,3)}, v{vst}, {WS}, {sSTo} offen sc1")
        po_loads()
        g(f"s_add_u32 {sCnt}, {sCnt}, 1"); g(f"s_cmp_gt_u32 {sCnt}, {SPIN}"); g("s_cbranch_scc1 L_Ws_x")
        g("s_waitcnt vmcnt(4)")
        g.label("L_Ws_c")
        g(f"v_cmp_ne_u32 vcc, {sT}, v{stt+2}")
        g("s_cbranch_vccnz L_Ws")
        g.label("L_Ws_x")
        g.count(sCnt)
        g.stamp(9)
    else:
        if hint:
            g("s_and_b32 s62, s4, 14"); g("s_lshr_b32 s63, s5, 2"); g("s_or_b32 s62, s62, s63"); g("s_lshl4_add_u32 s62, s5, s62"); g("s_lshl_b32 s62, s62, 7")
            g(f"s_add_u32 {sHA}, s62, {HA}"); g(f"s_lshl2_add_u32 s62, s7, {sHA}")
            hint_wait(g, "L_Wh1", 2, vz, sHA, 0, sCnt)
        g(f"s_mov_b32 {sCnt}, 0")
        g.label("L_Ws")
        if slp: g(f"s_sleep {slp}")
        g(f"buffer_load_dwordx3 {vr(stt,3)}, v{vst}, {WS}, {sSTo} offen sc1")
        if hint: g(f"buffer_load_dword v{stt+3}, v{vz}, {WS}, s62 offen offset:16 sc1")
        g(f"s_add_u32 {sCnt}, {sCnt}, 1"); g(f"s_cmp_gt_u32 {sCnt}, {SPIN}"); g("s_cbranch_scc1 L_Ws_x")
        g("s_waitcnt vmcnt(0)")
        g(f"v_cmp_ne_u32 vcc, {sT}, v{stt+2}")
        g("s_cbranch_vccnz L_Ws")
        g.label("L_Ws_x")
        g.count(sCnt)
        g("s_waitcnt vmcnt(0)")
        g.stamp(9)
        def po_loads():
            for u in range(4): g(f"buffer_load_dwordx4 {vr(pf+4*u,4)}, v{vpl}, {WS}, {sPOo if u < 2 else 's47'} offen offset:{(u&1)*2048} sc1")
        def po_first():
            po_loads()
            if not wow: wo_stream()
        if hint:
            g(f"v_cmp_ne_u32 s[64:65], {sT}, v{stt+3}")
            g("s_cmp_lg_u64 s[64:65], 0"); g("s_cbranch_scc1 L_Wp_n1")
            po_first()
            g.label("L_Wp_n1")
    g(f"v_mov_b32 v{mx}, v{stt}"); g("s_nop 1")
    reduce32(g, "max", mx, t)
    g(f"v_sub_f32 v{mx}, v{stt}, v{mx}")
    g(f"v_exp_f32 v{mx}, v{mx}")
    g("s_nop 0")
    g(f"v_cvt_pk_bf16_f32 v{wd}, v{mx}, v{mx}")
    for u in range(4): g.lds(f"ds_bpermute_b32 v{wb+u}, v{vbp}, v{wd} offset:{16*u}")
    g(f"v_and_b32 v{mx}, 0xffff0000, v{wd}")
    g(f"v_mul_f32 v{mx}, v{mx}, v{stt+1}"); g("s_nop 1")
    reduce32(g, "add", mx, t)
    g(f"v_rcp_f32 v{mx}, v{mx}")
    g.lwait0()
    for u in range(4):
        for k in range(4): g(f"v_and_b32 v{af+4*u+k}, v{wb+u}, v{mk+k}")
    g(f"v_readlane_b32 {sRL}, v{mx}, {sBl}")
    if not cmb:
        if hint:
            g("s_cmp_eq_u64 s[64:65], 0"); g("s_cbranch_scc1 L_Wp_n2")
            hint_wait(g, "L_Wh2", 2, vz, "s62", 16, sCnt)
        po_first()
        g.label("L_Wp_n2")
    if rall:
        g("s_lshl4_add_u32 s62, s5, s4"); g("s_lshl2_add_u32 s62, s62, s3"); g("s_lshl_b32 s62, s62, 2"); g(f"s_add_u32 s62, s62, {HW}")
    else:
        g("s_lshl4_add_u32 s62, s5, s4"); g("s_lshl_b32 s62, s62, 7"); g(f"s_add_u32 s62, s62, {HW}")
    g(f"s_mov_b32 s61, {sCnt}")
    g(f"s_mov_b32 {sCnt}, 0")
    if wow: g("s_branch L_Wp_c")
    else:
        if cmb:
            g(f"s_cmp_lg_u32 s61, 0"); g("s_cbranch_scc1 L_Wp_c")
        g("s_waitcnt vmcnt(8)")
        g("s_branch L_Wp_d")
    g.label("L_Wp")
    po_loads()
    g.label("L_Wp_c")
    g(f"s_add_u32 {sCnt}, {sCnt}, 1"); g(f"s_cmp_gt_u32 {sCnt}, {SPIN}"); g("s_cbranch_scc1 L_Wp_x")
    g("s_waitcnt vmcnt(0)")
    g.label("L_Wp_d")
    g(f"v_max3_u32 v{chk}, v{pf+3}, v{pf+7}, v{pf+11}"); g(f"v_max_u32 v{chk}, v{chk}, v{pf+15}")
    g(f"v_cmp_eq_u32 vcc, -1, v{chk}")
    g("s_cbranch_vccnz L_Wp")
    g.label("L_Wp_x")
    g.count(sCnt)
    g.stamp(10)
    for u in range(4): g(f"v_mfma_f32_16x16x32_bf16 {vr(Da,4)}, {vr(af+4*u,4)}, {vr(pf+4*u,4)}, {vr(Da,4) if u else 0}")
    g("s_mov_b32 exec_hi, 0")
    g("s_nop 6")
    for k in range(4): g(f"v_mul_f32 v{Da+k}, {sRL}, v{Da+k}")
    g(f"v_cvt_pk_bf16_f32 v{qo}, v{Da}, v{Da+1}"); g(f"v_cvt_pk_bf16_f32 v{qo+1}, v{Da+2}, v{Da+3}")
    g(f"ds_write_b64 v{vlw}, {vr(qo,2)}")
    g("s_mov_b64 exec, -1")
    g.lwait0()
    g("s_barrier")
    for u in range(4): g.lds(f"ds_read_b128 {vr(xb+4*u,4)}, v{vlr} offset:{u*64}", ("lf", u))
    for u in range(4):
        g.lwait(("lf", u))
        g(f"v_mfma_f32_16x16x32_bf16 {vr(Da,4)}, {vr(uv+4*u,4)}, {vr(xb+4*u,4)}, {vr(Da,4) if u else 0}")
        g(f"v_mfma_f32_16x16x32_bf16 {vr(Db,4)}, {vr(uv+16+4*u,4)}, {vr(xb+4*u,4)}, {vr(Db,4) if u else 0}")
    g("s_nop 6")
    for k in range(8): g(f"v_add_f32_dpp v{Da+k}, v{Da+k}, v{Da+k} quad_perm:[1,0,3,2] {DPPF}")
    g("s_mov_b32 exec_lo, 0x000f000f"); g("s_mov_b32 exec_hi, 0x000f000f")
    pack_granule("s[70:71]")
    g(f"buffer_store_dwordx4 {vr(Ga,4)}, v{vcs}, {WS}, {sCPs} offen {'' if loc else 'sc1'}")
    g("s_mov_b64 exec, -1")
    g.stamp(11)
    cl = pf
    g(f"s_mov_b32 {sCnt}, 1")
    g(f"buffer_load_dwordx4 {vr(cl,4)}, v{vclo}, {WS}, {sCPl} offen sc1")
    if not wow:
        g("s_waitcnt vmcnt(2)")
        wo_reads()
    g("s_branch L_Wd_c")
    g.label("L_Wd")
    if loc:
        g(f"s_cmp_lg_u32 {sCnt}, 6"); g("s_cbranch_scc1 L_Wd_n")
        restore(vcs, sCPs)
        g.label("L_Wd_n")
    g(f"buffer_load_dwordx4 {vr(cl,4)}, v{vclo}, {WS}, {sCPl} offen sc1")
    g(f"s_add_u32 {sCnt}, {sCnt}, 1"); g(f"s_cmp_gt_u32 {sCnt}, {SPIN}"); g("s_cbranch_scc1 L_Wd_x")
    g.label("L_Wd_c")
    g("s_waitcnt vmcnt(0)")
    g(f"v_cmp_ne_u32 vcc, {sT}, v{cl}")
    g("s_cbranch_vccnz L_Wd")
    g.label("L_Wd_x")
    g.count(sCnt)
    g("s_waitcnt vmcnt(0)")
    def done_hint():
        if rall: g("s_mov_b64 exec, 1")
        else: g(f"s_cmp_eq_u32 {sW}, 0"); g("s_cselect_b64 exec, 1, 0")
        g(f"buffer_store_dword v{vT}, v{vz}, {WS}, s62 offen")
        g("s_mov_b64 exec, -1")
    if hintr and hre: done_hint()
    AL, AH = ALH, ALH + 4
    for k in range(2):
        g(f"v_mov_b32_dpp v{AL+k}, v{cl+2+k} quad_perm:[0,1,2,3] row_mask:0xf bank_mask:0x3")
        g(f"v_mov_b32_dpp v{AL+2+k}, v{cl+2+k} row_ror:8 row_mask:0xf bank_mask:0x3")
        g(f"v_mov_b32_dpp v{AH+k}, v{cl+2+k} row_ror:8 row_mask:0xf bank_mask:0xc")
        g(f"v_mov_b32_dpp v{AH+2+k}, v{cl+2+k} quad_perm:[0,1,2,3] row_mask:0xf bank_mask:0xc")
    g.lwait0()
    g("s_nop 0")
    for k in range(4): g(f"v_mfma_f32_16x16x32_bf16 {vr(acc+4*k,4)}, {vr(AL,4)}, {ar(wo+4*TLO[k],4)}, 0")
    for k in range(4): g(f"v_mfma_f32_16x16x32_bf16 {vr(acc+4*k,4)}, {vr(AH,4)}, {ar(wo+4*THI[k],4)}, {vr(acc+4*k,4)}")
    def out_pack(acc, R, U, dst, vaddr, soff):
        g("s_nop 4")
        g(f"v_pk_add_f32 {vr(R,2)}, {vr(acc,2)}, {vr(acc+2,2)}")
        g(f"v_pk_add_f32 {vr(U,2)}, {vr(acc+4,2)}, {vr(acc+6,2)}")
        g(f"v_pk_add_f32 {vr(R+2,2)}, {vr(acc+8,2)}, {vr(acc+10,2)}")
        g(f"v_pk_add_f32 {vr(U+2,2)}, {vr(acc+12,2)}, {vr(acc+14,2)}")
        g("s_nop 0")
        for k in range(4): g(f"v_permlane16_swap_b32 v{R+k}, v{U+k}")
        g("s_nop 0")
        g(f"v_pk_add_f32 {vr(R,2)}, {vr(R,2)}, {vr(U,2)}"); g(f"v_pk_add_f32 {vr(R+2,2)}, {vr(R+2,2)}, {vr(U+2,2)}")
        g(f"v_cvt_pk_bf16_f32 v{dst}, v{R}, v{R+1}"); g(f"v_cvt_pk_bf16_f32 v{dst+1}, v{R+2}, v{R+3}")
        g(f"buffer_store_dwordx4 {vr(dst,4)}, v{vaddr}, {WS}, {soff} offen sc1")
    out_pack(acc, qo, Da, hpv, vop, sOPo)
    if hintr and not hre: done_hint()
    if loc: restore(vcs, sCPs)
    g.stamp(2)
    dump_stamps(g, "W")
    g("s_endpgm")
    if cmb: flag_fallback(g, "L_Wfa", 2, l16, "s62", sCnt)

    g.label("L_A2")
    g.lq = []
    g("""
    s_load_dword s43, s[8:9], 0
    s_load_dwordx2 s[52:53], s[0:1], 72
    s_load_dwordx2 s[28:29], s[0:1], 40
    s_load_dwordx2 s[60:61], s[0:1], 56
    s_load_dwordx2 s[68:69], s[0:1], 32
    s_load_dwordx2 s[64:65], s[0:1], 64
    """)
    dbg_init()
    g.reset_v(12)
    vj = l16
    vfl, vfo = g.v(), g.v()
    srd(12, 2048); srd(52, 2048)
    g(f"v_lshlrev_b32 v{vfo}, 7, v1"); g("s_lshl_b32 s34, s6, 10"); g(f"s_add_u32 s34, s34, {FL1}")
    n, gg, r, c4 = g.v(), g.v(), g.v(), g.v()
    g(f"v_and_b32 v{n}, 15, v1"); g(f"v_lshrrev_b32 v{gg}, 4, v1"); g(f"v_bfe_u32 v{r}, v1, 2, 2"); g(f"v_and_b32 v{c4}, 3, v1")
    sHX = "s35"
    g(f"s_mov_b32 {sHX}, {'s6' if swap else 0}")
    vro, xr = g.v(), g.v()
    g(f"v_and_b32 v2, 1, v{gg}"); g(f"v_lshlrev_b32 v{vro}, 10, v2"); g(f"v_lshrrev_b32 v2, 1, v{gg}"); g(f"v_lshl_add_u32 v{vro}, v2, 7, v{vro}")
    g(f"v_and_b32 v2, 1, v1"); g(f"v_lshl_add_u32 v{vro}, v2, 1, v{vro}")
    sRo = "s26"
    g(f"""
    s_sub_u32 s56, s4, 16
    s_lshl4_add_u32 {sRid}, s5, s56
    s_lshr_b32 s56, {sRid}, 5
    s_lshl_b32 {sRo}, s56, 8
    s_bfe_u32 s56, {sRid}, 0x20003
    s_lshl_b32 s56, s56, 5
    s_add_u32 {sRo}, {sRo}, s56
    s_and_b32 s56, {sRid}, 7
    s_lshl2_add_u32 {sRo}, s56, {sRo}
    """)
    if adl == 2: pfk_load(); abody(0, 0); abody(1, 0)
    vkq = g.v(4); vpv = g.v(16); vpw = g.v(2); vpr = g.v(2); vmx = g.v(); vqd = g.v(); vqr = g.v(); vqc = g.v(); vst = g.v()
    for k in range(4):
        g(f"v_add_u32 v2, {4*k}, v{gg}"); g(f"v_xor_b32 v2, v2, v{n}"); g(f"v_lshlrev_b32 v2, 4, v2"); g(f"v_lshl_add_u32 v2, v{n}, 10, v2"); g(f"v_add_u32 v{vkq+k}, {sRow}, v2")
    g(f"v_and_b32 v2, 1, v{gg}"); g(f"v_lshlrev_b32 v2, 2, v2"); g(f"v_add_lshl_u32 v2, v2, v{r}, 1")
    g(f"v_lshrrev_b32 v3, 1, v{c4}"); g(f"v_xor_b32 v2, v2, v3"); g(f"v_lshlrev_b32 v2, 4, v2")
    g(f"v_and_b32 v3, 1, v1"); g(f"v_lshl_add_u32 v2, v3, 3, v2")
    g(f"v_lshl_add_u32 v3, v{gg}, 2, v{r}"); g(f"v_lshl_add_u32 v2, v3, 11, v2")
    g(f"s_lshl_b32 s56, {sHX}, 16"); g(f"s_lshl_b32 s58, s3, 8"); g("s_add_u32 s56, s56, s58"); g(f"v_add_u32 v2, s56, v2")
    for T in range(8):
        g(f"v_xor_b32 v{vpv+2*T}, {T*32}, v2")
        g(f"v_xor_b32 v3, {T*32+16}, v2"); g(f"v_add_u32 v{vpv+2*T+1}, 0x400, v3")
    g(f"v_mul_u32_u24 v2, 272, v{n}"); g(f"v_lshrrev_b32 v3, 1, v{gg}"); g(f"v_lshl_add_u32 v{vpw}, v3, 4, v2"); g(f"v_and_b32 v3, 1, v{gg}"); g(f"v_lshl_add_u32 v{vpw}, v3, 2, v{vpw}")
    g(f"s_lshl_b32 s56, {sHX}, 7"); g(f"s_xor_b32 s58, s56, 0x80"); g(f"s_lshl_b32 s59, s3, 5"); g(f"s_add_u32 s59, s59, {L_P}")
    g("s_add_u32 s24, s58, s59"); g("s_add_u32 s59, s56, s59")
    g(f"v_add_u32 v{vpw+1}, s24, v{vpw}"); g(f"v_add_u32 v{vpw}, s59, v{vpw}")
    g(f"v_lshl_add_u32 v2, v{gg}, 4, v2"); g(f"s_add_u32 s56, s56, {L_P}"); g(f"s_add_u32 s58, s58, {L_P}")
    g(f"v_add_u32 v{vpr}, s56, v2"); g(f"v_add_u32 v{vpr+1}, s58, v2")
    g(f"v_lshlrev_b32 v{vmx}, 2, v{n}"); g(f"v_add_u32 v{vmx}, {L_MX}, v{vmx}")
    g(f"v_lshlrev_b32 v{vqd}, 6, v{n}"); g(f"v_lshl_add_u32 v{vqd}, v{gg}, 4, v{vqd}")
    g(f"v_add_u32 v{vqr}, {L_QA}, v{vj}")
    sQAl, sQAm, sSTs = "s27", "s30", "s31"
    g(f"""
    s_lshl_b32 {sQAm}, s3, 12
    s_lshr_b32 s56, s7, 5
    s_lshl1_add_u32 s56, s56, s6
    s_lshl_b32 s56, s56, 14
    s_add_u32 {sQAl}, s56, {sQAm}
    s_add_u32 {sQAl}, {sQAl}, {QA}
    s_add_u32 {sQAm}, {sQAm}, {L_QA}
    s_lshl_b32 {sSTs}, s6, 14
    s_lshl_b32 s56, s7, 6
    s_add_u32 {sSTs}, {sSTs}, s56
    s_add_u32 {sSTs}, {sSTs}, {ST}
    """)
    g(f"v_add_u32 v{vqc}, {sQAm}, v{vj}")
    g(f"v_lshlrev_b32 v{vst}, 12, v{r}"); g(f"v_lshl_add_u32 v{vst}, v{c4}, 4, v{vst}")
    vpo2 = g.v()
    g(f"s_lshl2_add_u32 s56, {sRid}, s3"); g("s_lshl_b32 s56, s56, 13"); g(f"v_add_u32 v{vpo2}, s56, v{vfo}")
    vf1, vf2 = g.v(), g.v()
    srd(60, 512*1376*2); srd(64, 512*1376*2)
    g("s_bfe_u32 s56, s4, 0x20002"); g("s_mul_i32 s58, s5, 3"); g("s_cmp_lt_u32 s56, 3"); g("s_cselect_b32 s58, s58, 64"); g("s_add_u32 s56, s56, s58"); g("s_and_b32 s58, s4, 3")
    g("s_lshl2_add_u32 s24, s58, s3"); g(f"s_mul_i32 s24, s24, {32*2752}"); g("s_lshl_b32 s25, s56, 7"); g("s_add_u32 s24, s24, s25")
    g("s_lshl2_add_u32 s25, s56, s58"); g("s_lshl2_add_u32 s25, s25, s3"); g("s_lshl_b32 s25, s25, 12")
    g("s_mov_b32 s70, s56"); g("s_mov_b32 s71, s58")
    g("s_cmp_lt_u32 s56, 22"); g(f"s_cselect_b32 s24, s24, {OOB}")
    g(f"v_lshrrev_b32 v2, 1, v1"); g(f"v_mul_u32_u24 v{vf1}, 2752, v2"); g("v_and_b32 v2, 1, v1"); g("v_mul_u32_u24 v2, 124, v2"); g(f"v_add_u32 v{vf1}, v{vf1}, v2")
    g(f"v_and_b32 v{vf2}, 31, v1"); g(f"v_lshlrev_b32 v{vf2}, 7, v{vf2}")
    vzA = g.v()
    g(f"v_mov_b32 v{vzA}, 0"); g(f"s_lshl_b32 s38, {sRid}, 7"); g(f"s_add_u32 s36, s38, {HA}"); g("s_lshl2_add_u32 s37, s3, s36"); g(f"s_add_u32 s38, s38, {HW}")
    if cmb: g(f"s_lshl2_add_u32 s37, {sRid}, s3"); g("s_lshl_b32 s37, s37, 2"); g(f"s_add_u32 s37, s37, {HB-16}")
    xbA = g.v(16, 4); vxa = g.v()
    g(f"v_and_b32 v2, 1, v1"); g(f"v_lshlrev_b32 v{vxa}, 6, v2"); g(f"v_lshl_add_u32 v{vxa}, v{gg}, 4, v{vxa}")
    g(f"s_lshl2_add_u32 s39, s6, {'s3' if fk else 's71'}"); g("s_lshl_b32 s39, s39, 9"); g(f"s_add_u32 s39, s39, {XNG}")
    g(f"s_lshr_b32 s58, {sRid}, 2"); g("s_lshl_b32 s58, s58, 11"); g(f"s_add_u32 s58, s58, {HP}")
    g(f"s_lshl_b32 s44, {sW}, 9"); g("s_add_u32 s44, s44, s58"); g("s_lshl_b32 s45, s71, 7"); g("s_add_u32 s44, s44, s45"); g("s_lshl_b32 s45, s71, 9"); g("s_add_u32 s45, s45, s58")
    ones = g.v(4, 4)
    for k in range(4): g(f"v_mov_b32 v{ones+k}, 0x3f803f80")
    if adl == 1: pfk_load(); abody(0, 0); abody(1, 0)
    g(f"v_mov_b32 v2, 0xff800000")
    g(f"ds_write_b32 v{vmx}, v2")
    g("v_mov_b32 v3, 0")
    g(f"ds_write_b32 v{vmx}, v3 offset:64")
    g.lwait0()
    g(f"s_mul_i32 {sT}, {sE}, 0x9E3779B1"); g(f"s_add_u32 {sT}, {sT}, 0x7F4A7C15")
    abody(2, 0); abody(3, 0)
    g(f"s_xor_b32 s58, {sRow}, 0x10000"); g("s_mov_b32 m0, s58"); g("s_add_u32 s33, s58, s57")
    abody(0, 1); abody(1, 1)
    g("s_waitcnt vmcnt(8)")
    g("s_barrier")
    for u in range(16): g.lds(f"ds_read_b128 {ar(4*u,4)}, v{vkq+(u&3)} offset:{(u>>2)*256}")
    if cmb:
        g("s_lshl_b32 s58, s6, 6"); g("s_add_u32 s58, s58, s7"); g("s_lshl_b32 s58, s58, 4"); g(f"s_add_u32 s58, s58, {FLA}")
        g(f"v_mov_b32 v2, {sT}"); g(f"s_cmp_eq_u32 {sW}, 0"); g("s_cselect_b64 exec, 1, 0")
        g(f"buffer_store_dword v2, v{vzA}, {WS}, s58 offen sc1")
        g("s_mov_b64 exec, -1")
    if not noflag: g(f"buffer_load_dword v{vfl}, v{l16}, {WS}, s34 offen sc1")
    vhq, vl4 = g.v(), g.v()
    g(f"s_lshl_b32 s46, s5, 8"); g(f"s_add_u32 s46, s46, {HQ}"); g(f"v_lshlrev_b32 v{vl4}, 2, v1")
    if qae: g(f"buffer_load_dword v{vhq}, v{vl4}, {WS}, s46 offen sc1")
    abody(2, 1); abody(3, 1)
    def ffn_prefetch():
        if not fk: g(f"buffer_load_dword v254, v{vzA}, {WS}, s44 offen")
        if pff:
            g(f"buffer_load_dword v255, v{vf1}, s[60:63], s24 offen")
            g(f"buffer_load_dword v255, v{vf2}, s[64:67], s25 offen")
    if pffe == 1: ffn_prefetch()
    for ks in range(2):
        for T in range(8):
            for hf in range(2):
                g.lds(f"ds_read_b64_tr_b16 {ar(128+(ks*8+T)*4+2*hf,2)}, v{vpv+2*T+hf} offset:{ks*32768}")
    for k in range(4): g(f"v_xor_b32 v{vkq+k}, 0x10000, v{vkq+k}")
    for k in range(16): g(f"v_xor_b32 v{vpv+k}, 0x10000, v{vpv+k}")
    g(f"s_waitcnt vmcnt({8 + (3 if pffe == 1 else 0)})")
    if not noflag:
        g(f"v_cmp_ne_u32 vcc, {sT}, v{vfl}")
        g("s_cbranch_vccnz L_Af1")
    g.label("L_Af1_x")
    g.stamp(11)
    qf = g.v(64, 4); chk = g.v()
    def qa_dma():
        for j in range(4): g(f"buffer_load_dwordx4 v{vqd}, {WS}, {sQAl} offen offset:{j*1024} sc1 lds")
    def qa_check():
        for j in range(4): g(f"ds_read_b128 {vr(qf+4*j,4)}, v{vqc} offset:{j*1024}")
        g.lwait0()
        g(f"v_max3_u32 v{chk}, v{qf+3}, v{qf+7}, v{qf+11}"); g(f"v_max_u32 v{chk}, v{chk}, v{qf+15}")
        g(f"v_cmp_eq_u32 vcc, -1, v{chk}")
    g(f"s_mov_b32 m0, {sQAm}")
    g(f"s_mov_b32 {sCnt}, 1")
    if hq:
        if qae:
            g(f"v_cmp_ne_u32 vcc, {sT}, v{vhq}")
            g("s_cbranch_vccnz L_Aq_l")
            qa_dma()
            g("s_waitcnt vmcnt(4)")
            g("s_branch L_Aq_m")
            g.label("L_Aq_l")
        g("s_waitcnt vmcnt(0)")
        g.label("L_Aq_m")
        g.stamp(5)
        for u in range(16): g.lds(f"ds_read_b128 {ar(64+4*u,4)}, v{vkq+(u&3)} offset:{(u>>2)*256}")
        if qae: g("s_cbranch_vccz L_Aq_n")
        hint_wait(g, "L_Ahq", 2, vl4, "s46", 0, sCnt)
        g(f"s_mov_b32 {sCnt}, 1")
        qa_dma()
        g.label("L_Aq_n")
    elif qal:
        g("s_waitcnt vmcnt(0)")
        qa_dma()
    else:
        qa_dma()
        g("s_waitcnt vmcnt(4)")
    if not hq:
        g.stamp(5)
        for u in range(16): g.lds(f"ds_read_b128 {ar(64+4*u,4)}, v{vkq+(u&3)} offset:{(u>>2)*256}")
    g("s_barrier")
    if not hq:
        g("s_waitcnt vmcnt(0) lgkmcnt(8)")
        qa_check()
        g("s_cbranch_vccz L_Aq_1")
        qa_dma()
        g.label("L_Aq_1")
    for ks in range(2):
        for T in range(8):
            for hf in range(2):
                g.lds(f"ds_read_b64_tr_b16 {ar(128+((ks+2)*8+T)*4+2*hf,2)}, v{vpv+2*T+hf} offset:{ks*32768}")
    if not hq: g("s_cbranch_vccz L_Aq_x")
    g("s_branch L_Aq_c")
    g.label("L_Aq")
    if qsl: g(f"s_sleep {qsl}")
    qa_dma()
    g.label("L_Aq_c")
    g(f"s_add_u32 {sCnt}, {sCnt}, 1"); g(f"s_cmp_gt_u32 {sCnt}, {SPIN}"); g("s_cbranch_scc1 L_Aq_y")
    g("s_waitcnt vmcnt(0) lgkmcnt(8)")
    save = list(g.lq)
    qa_check()
    g("s_cbranch_vccnz L_Aq")
    g.label("L_Aq_y")
    g("s_waitcnt vmcnt(0)")
    g.label("L_Aq_x")
    g.lq = save
    g.count(sCnt)
    g("s_barrier")
    g.stamp(6)
    SX = g.v(4, 4); SY = g.v(4, 4); O = g.v(32, 4); pfr = g.v(16, 4); LD = g.v(4, 4); pk = g.v(16, 4)
    EX = g.v(8, 4); STG = g.v(4, 4); mxv, t2 = g.v(), g.v()
    AHEAD = 10
    for u in range(AHEAD): g.lds(f"ds_read_b128 {vr(qf+4*u,4)}, v{vqr} offset:{u*1024}", ("q", u))
    if gate == 2:
        g(f"v_mov_b32 v{STG+2}, {sT}"); g(f"s_cmp_eq_u32 {sW}, 0"); g("s_cselect_b64 exec, 1, 0")
        g(f"buffer_store_dword v{STG+2}, v{vzA}, {WS}, s36 offen offset:32")
        g("s_mov_b64 exec, -1")
    if pfv:
        if pfv == 1: g("s_mov_b32 exec_lo, 0")
        g(f"global_load_dword v255, v6, s[68:69]")
        g("s_mov_b64 exec, -1")
    def xn_loads():
        for u in range(4): g(f"buffer_load_dwordx4 {vr(xbA+4*u,4)}, v{vxa}, {WS}, s39 offen offset:{u*128} sc1")
    if xnl == 0: xn_loads()
    if not pffe: ffn_prefetch()
    if pfo and pfoe: g(f"global_load_dword v255, v{vpo2}, s[28:29]")
    g(f"s_mov_b32 s56, {KSCALE:#x}")
    for u in range(16):
        g.lwait(("q", u))
        g(f"v_mfma_f32_16x16x32_bf16 {vr(SX,4)}, {ar(4*u,4)}, {vr(qf+4*u,4)}, {vr(SX,4) if u else 0}")
        if u + AHEAD < 16: g.lds(f"ds_read_b128 {vr(qf+4*(u+AHEAD),4)}, v{vqr} offset:{(u+AHEAD)*1024}", ("q", u + AHEAD))
    def my(u): g(f"v_mfma_f32_16x16x32_bf16 {vr(SY,4)}, {ar(64+4*u,4)}, {vr(qf+4*u,4)}, {vr(SY,4) if u else 0}")
    def pexp(H):
        for k in range(4): g(f"v_exp_f32 v{EX+4*H+k}, v{EX+4*H+k}")
    def pwrite(H):
        g(f"v_cvt_pk_bf16_f32 v{pk+2*H}, v{EX+4*H}, v{EX+4*H+2}"); g(f"v_cvt_pk_bf16_f32 v{pk+2*H+1}, v{EX+4*H+1}, v{EX+4*H+3}")
        g(f"ds_write2_b32 v{vpw+H}, v{pk+2*H}, v{pk+2*H+1} offset1:2")
    my(0); my(1); my(2)
    g("s_nop 4")
    g(f"v_max3_f32 v{mxv}, v{SX}, v{SX+1}, v{SX+2}")
    my(3)
    g(f"v_max_f32 v{mxv}, v{mxv}, v{SX+3}")
    g(f"ds_max_f32 v{vmx}, v{mxv}")
    my(4); my(5); my(6)
    g.lwait0()
    g("s_barrier")
    g(f"ds_read_b32 v{mxv}, v{vmx}")
    my(7); my(8); my(9)
    g.lwait0()
    g(f"v_mul_f32 v{STG}, s56, v{mxv}")
    my(10)
    for k in range(2): g(f"v_fma_f32 v{EX+k}, v{SX+k}, s56, -v{STG}")
    my(11)
    for k in range(2, 4): g(f"v_fma_f32 v{EX+k}, v{SX+k}, s56, -v{STG}")
    my(12)
    g(f"v_exp_f32 v{EX}, v{EX}")
    my(13)
    g(f"v_exp_f32 v{EX+1}, v{EX+1}")
    my(14)
    g(f"v_exp_f32 v{EX+2}, v{EX+2}")
    my(15)
    g(f"v_exp_f32 v{EX+3}, v{EX+3}")
    g(f"v_mov_b32 v{STG+2}, {sT}")
    pwrite(0)
    g(f"s_mov_b32 s57, {f2u(40.0):#x}")
    g("s_nop 1")
    for k in range(4): g(f"v_fma_f32 v{EX+4+k}, v{SY+k}, s56, -v{STG}")
    g(f"v_max3_f32 v{t2}, v{EX+4}, v{EX+5}, v{EX+6}")
    g(f"v_exp_f32 v{EX+4}, v{EX+4}")
    g(f"v_max_f32 v{t2}, v{t2}, v{EX+7}")
    g(f"v_exp_f32 v{EX+5}, v{EX+5}")
    g(f"v_cmp_lt_f32 vcc, s57, v{t2}")
    g(f"v_exp_f32 v{EX+6}, v{EX+6}")
    g(f"v_exp_f32 v{EX+7}, v{EX+7}")
    g("s_cbranch_vccnz L_Aovf")
    g.label("L_Aovf_x")
    pwrite(1)
    g.lwait0()
    g("s_barrier")
    g.stamp(7)
    g.label("L_Apv")
    g.lds(f"ds_read_b32 v{t2}, v{vmx} offset:64", "ovf")
    for ks in range(4): g.lds(f"ds_read_b128 {vr(pfr+4*ks,4)}, v{vpr+(ks>>1)} offset:{(ks&1)*64}", ("p", ks))
    g.lwait("ovf")
    g(f"v_cmp_ne_u32 vcc, 0, v{t2}")
    g("s_cbranch_vccnz L_Aslow")
    g(f"s_cmp_lg_u32 {sW}, 3"); g("s_cbranch_scc1 L_Anol")
    save = list(g.lq)
    g.lwait(("p", 3))
    for ks in range(4): g(f"v_mfma_f32_16x16x32_bf16 {vr(LD,4)}, {vr(ones,4)}, {vr(pfr+4*ks,4)}, {vr(LD,4) if ks else 0}")
    g.label("L_Anol")
    g.lq = save
    def epi(b):
        for q in range(2):
            g(f"v_cvt_pk_bf16_f32 v{pk+4*b+2*q}, v{O+8*b+4*q}, v{O+8*b+4*q+1}")
            yield
            g(f"v_cvt_pk_bf16_f32 v{pk+4*b+2*q+1}, v{O+8*b+4*q+2}, v{O+8*b+4*q+3}")
            yield
        g(f"buffer_store_dwordx4 {vr(pk+4*b,4)}, v{vpo}, {WS}, {sPOs} offen offset:{b*128} sc1")
        if hint and b == hpos:
            g("s_mov_b64 exec, 1")
            g(f"buffer_store_dword v{STG+2}, v{vzA}, {WS}, s37 offen offset:16")
            g("s_mov_b64 exec, -1")
        yield
    pend = None
    for b in range(4):
        cnt = 0
        for ks in range(4):
            if b == 0: g.lwait(("p", ks))
            for T in (2 * b, 2 * b + 1):
                g(f"v_mfma_f32_16x16x32_bf16 {vr(O+4*T,4)}, {ar(128+(ks*8+T)*4,4)}, {vr(pfr+4*ks,4)}, {vr(O+4*T,4) if ks else 0}")
                cnt += 1
                if b == 0 and cnt == 8:
                    g(f"s_cmp_lg_u32 {sW}, 3"); g("s_cbranch_scc1 L_Anos")
                    g(f"v_mov_b32 v{STG+1}, v{LD}")
                    g("s_mov_b64 exec, 0xffff")
                    g(f"buffer_store_dwordx4 {vr(STG,4)}, v{vst}, {WS}, {sSTs} offen sc1")
                    if hint and not cmb:
                        g("s_mov_b64 exec, 1")
                        g(f"buffer_store_dword v{STG+2}, v{vzA}, {WS}, s36 offen")
                    g("s_mov_b64 exec, -1")
                    g.label("L_Anos")
                if pend is not None and cnt >= 4:
                    if cnt == 4: g("s_nop 1")
                    next(pend, None)
        if pend is not None:
            for _ in pend: pass
        pend = epi(b)
    g("s_nop 4")
    for _ in pend: pass
    g.stamp(4)
    L_F1, L_F2 = 0, 0x4000
    xb = xbA; ta = qf + 16; w2f = qf + 32; hp = qf + 48; acc = O; Da = SX; hpv = LD; hlo = EX; hhi = EX + 2
    vw2 = vpv; vA = vpv + 8; vt1, vt2, vh, vop = vpv + 12, vpv + 13, vpv + 14, vpv + 15
    L_H = 0x8000
    if fk:
        g(f"v_lshrrev_b32 v2, 1, v1"); g(f"v_mul_u32_u24 v{vt1}, 2752, v2"); g(f"v_and_b32 v2, 1, v1"); g(f"v_lshlrev_b32 v2, 4, v2"); g(f"v_add_u32 v{vt1}, v2, v{vt1}")
        g(f"v_lshl_add_u32 v{vh}, v{gg}, 5, v2"); g(f"v_add_u32 v{vh}, {L_H}, v{vh}")
    else:
        g(f"v_lshrrev_b32 v2, 3, v1"); g(f"v_mul_u32_u24 v{vt1}, 2752, v2"); g(f"v_and_b32 v2, 7, v1"); g(f"v_lshl_add_u32 v{vt1}, v2, 4, v{vt1}")
        g(f"v_lshlrev_b32 v{vh}, 6, v2"); g(f"v_lshl_add_u32 v{vh}, v{gg}, 4, v{vh}")
    g(f"v_lshlrev_b32 v2, 1, v{gg}"); g(f"v_xor_b32 v2, v2, v{n}"); g(f"v_lshlrev_b32 v2, 4, v2"); g(f"v_lshl_add_u32 v{vA}, v{gg}, 10, v2"); g(f"v_xor_b32 v3, 0x80, v{vA}")
    g(f"v_add_u32 v{vA+1}, 3072, v3"); g(f"v_add_u32 v{vA+2}, 6144, v{vA}"); g(f"v_add_u32 v{vA+3}, 9216, v3")
    g(f"s_lshl_b32 s59, {sW}, 12"); g("s_mov_b32 m0, s59")
    g("s_lshl2_add_u32 s25, s70, s71"); g("s_lshl_b32 s32, s25, 14"); g(f"s_lshl_b32 s33, {sW}, 8"); g("s_add_u32 s32, s32, s33")
    if poack: g("s_waitcnt vmcnt(0)")
    g.stamp(12)
    g("s_cmp_ge_u32 s70, 22"); g("s_cbranch_scc1 L_Anf1")
    if fk:
        if not pff: g(f"buffer_load_dword v255, v{vf1}, s[60:63], s24 offen")
        g(f"s_mul_i32 s24, {sW}, {128*2752}"); g("s_lshl_b32 s58, s25, 5"); g("s_add_u32 s24, s24, s58")
    if xnl == 1: xn_loads()
    for j in range(4):
        if j: g("s_add_u32 m0, m0, 0x400"); g(f"s_add_u32 s24, s24, {(32 if fk else 8)*2752}")
        g(f"buffer_load_dwordx4 v{vt1}, s[60:63], s24 offen lds")
    g(f"s_add_u32 m0, s59, {L_F2}"); g("s_nop 0")
    for j in range(4): g(f"buffer_load_dwordx4 v{vA+j}, s[64:67], s32 offen offset:{j*1024} lds")
    g.label("L_Anf1")
    if pfo and not pfoe: g(f"global_load_dword v255, v{vpo2}, s[28:29]")
    g("s_cmp_ge_u32 s70, 22"); g("s_cbranch_scc1 L_Anf2")
    g(f"v_lshl_add_u32 v{vt2}, v{gg}, 3, v{r}"); g(f"v_lshlrev_b32 v{vt2}, {5 if fk else 7}, v{vt2}"); g(f"v_lshl_add_u32 v{vt2}, v{c4}, 3, v{vt2}")
    g(f"s_lshl_b32 s58, {sW}, {12 if fk else 5}"); g(f"v_add_u32 v{vt2}, s58, v{vt2}")
    g(f"v_and_b32 v2, 1, v{gg}"); g(f"v_lshl_or_b32 v2, v2, 2, v{r}"); g(f"v_lshlrev_b32 v2, 5, v2"); g(f"v_lshl_or_b32 v2, v{c4}, 3, v2")
    g(f"v_lshl_add_u32 v3, v{gg}, 2, v{r}"); g(f"v_lshlrev_b32 v3, 8, v3"); g(f"s_add_u32 s58, s59, {L_F2}"); g(f"v_add_u32 v3, s58, v3")
    for tl in range(8):
        g(f"v_xor_b32 v{vw2+tl}, {tl*32}, v2"); g(f"v_add_u32 v{vw2+tl}, v{vw2+tl}, v3")
    g(f"v_lshrrev_b32 v{vop}, 1, v1"); g(f"v_mul_u32_u24 v{vop}, {OPS}, v{vop}"); g(f"v_and_b32 v2, 1, v1"); g(f"v_lshl_or_b32 v{vop}, v2, 4, v{vop}")
    g("s_lshl_b32 s25, s25, 5"); g(f"s_mul_i32 s58, {sW}, {32*OPS}"); g("s_add_u32 s25, s25, s58"); g(f"s_add_u32 s25, s25, {OP + 128*32}")
    g(f"v_mov_b32 v{hpv+2}, {sT}")
    if opr: g(f"buffer_load_dword v254, v{vop}, {WS}, s25 offen")
    g.stamp(1)
    g(f"s_waitcnt vmcnt({(5 if (pfo and not pfoe) else 4) + (1 if opr else 0)})")
    g.stamp(2)
    if fk:
        for u in range(4):
            for hf in range(2): g.lds(f"ds_read_b64_tr_b16 {vr(ta+4*u+2*hf,2)}, v{vt2} offset:{u*1024+hf*128}", ("w1", u))
        g(f"s_lshl_b32 s58, {sW}, 7"); g(f"v_add_u32 v2, s58, v{vh}")
        for u in range(4):
            g.lwait(("w1", u))
            g(f"v_mfma_f32_16x16x32_bf16 {vr(Da,4)}, {vr(ta+4*u,4)}, {vr(xb+4*u,4)}, {vr(Da,4) if u else 0}")
        g(f"s_waitcnt vmcnt({(1 if (pfo and not pfoe) else 0) + (1 if opr else 0)})")
        for tl in range(8): g.lds(f"ds_read_b64_tr_b16 {vr(w2f+2*tl,2)}, v{vw2+tl}")
        g.lds(f"ds_write_b128 v2, {vr(Da,4)}")
        g.lwait0()
        g("s_barrier")
        g.stamp(14)
        for k in range(4): g.lds(f"ds_read_b128 {vr(ta+4*k,4)}, v{vh} offset:{k*128}")
        g.lwait0()
        for k in range(2):
            g(f"v_pk_add_f32 {vr(ta+2*k,2)}, {vr(ta+2*k,2)}, {vr(ta+4+2*k,2)}"); g(f"v_pk_add_f32 {vr(ta+8+2*k,2)}, {vr(ta+8+2*k,2)}, {vr(ta+12+2*k,2)}")
        for k in range(2): g(f"v_pk_add_f32 {vr(hp+2*k,2)}, {vr(ta+2*k,2)}, {vr(ta+8+2*k,2)}")
    else:
        g("s_barrier")
        g.stamp(14)
        for u in range(4):
            for hf in range(2): g.lds(f"ds_read_b64_tr_b16 {vr(ta+4*u+2*hf,2)}, v{vt2} offset:{u*4096+hf*512}", ("w1", u))
        for u in range(4):
            g.lwait(("w1", u))
            g(f"v_mfma_f32_16x16x32_bf16 {vr(Da,4)}, {vr(ta+4*u,4)}, {vr(xb+4*u,4)}, {vr(Da,4) if u else 0}")
        g("s_mov_b32 exec_lo, 0x00030003"); g("s_mov_b32 exec_hi, 0x00030003")
        g("s_nop 5")
        g(f"v_cvt_pk_bf16_f32 v{hpv}, v{Da}, v{Da+1}"); g(f"v_cvt_pk_bf16_f32 v{hpv+1}, v{Da+2}, v{Da+3}")
        g(f"buffer_store_dwordx4 {vr(hpv,4)}, v{vh}, {WS}, s44 offen")
        g("s_mov_b64 exec, -1")
        def hp_restore():
            g("s_mov_b32 exec_lo, 0x00030003"); g("s_mov_b32 exec_hi, 0x00030003")
            g(f"buffer_store_dwordx4 {vr(hpv,4)}, v{vh}, {WS}, s44 offen sc1")
            g("s_mov_b64 exec, -1")
        g(f"s_mov_b32 {sCnt}, 0")
        g.label("L_Ah")
        g(f"s_cmp_lg_u32 {sCnt}, 6"); g("s_cbranch_scc1 L_Ah_n")
        hp_restore()
        g.label("L_Ah_n")
        g(f"buffer_load_dwordx3 {vr(hp+4,3)}, v{vh}, {WS}, s45 offen sc1")
        g(f"s_add_u32 {sCnt}, {sCnt}, 1"); g(f"s_cmp_gt_u32 {sCnt}, {SPIN}"); g("s_cbranch_scc1 L_Ah_x")
        g("s_waitcnt vmcnt(0)")
        g(f"v_cmp_ne_u32 vcc, {sT}, v{hp+6}")
        g("s_cbranch_vccnz L_Ah")
        g.label("L_Ah_x")
        g("s_waitcnt vmcnt(0)")
        g.stamp(3)
        hp_restore()
        for tl in range(8): g.lds(f"ds_read_b64_tr_b16 {vr(w2f+2*tl,2)}, v{vw2+tl}")
        g(f"v_lshlrev_b32 v{hp}, 16, v{hp+4}"); g(f"v_and_b32 v{hp+1}, 0xffff0000, v{hp+4}")
        g(f"v_lshlrev_b32 v{hp+2}, 16, v{hp+5}"); g(f"v_and_b32 v{hp+3}, 0xffff0000, v{hp+5}")
        for k in range(4): g(f"v_add_f32_dpp v{hp+k}, v{hp+k}, v{hp+k} quad_perm:[2,3,0,1] {DPPF}")
        for k in range(4): g(f"v_add_f32_dpp v{hp+k}, v{hp+k}, v{hp+k} row_ror:4 {DPPF}")
    g(f"v_cvt_pk_bf16_f32 v{hp+4}, v{hp}, v{hp+1}"); g(f"v_cvt_pk_bf16_f32 v{hp+5}, v{hp+2}, v{hp+3}")
    g(f"v_lshlrev_b32 v{hp}, 16, v{hp+4}"); g(f"v_and_b32 v{hp+1}, 0xffff0000, v{hp+4}")
    g(f"v_lshlrev_b32 v{hp+2}, 16, v{hp+5}"); g(f"v_and_b32 v{hp+3}, 0xffff0000, v{hp+5}")
    for k in range(4): g(f"v_mul_f32 v{hp+8+k}, {f2u(-1.4426950408889634):#x}, v{hp+k}")
    for k in range(4): g(f"v_exp_f32 v{hp+8+k}, v{hp+8+k}")
    g("s_nop 0")
    for k in range(4): g(f"v_add_f32 v{hp+8+k}, 1.0, v{hp+8+k}")
    for k in range(4): g(f"v_rcp_f32 v{hp+8+k}, v{hp+8+k}")
    g("s_nop 0")
    for k in range(4): g(f"v_mul_f32 v{hp+k}, v{hp+k}, v{hp+8+k}")
    g(f"v_cvt_pk_bf16_f32 v{hp+4}, v{hp}, v{hp+1}"); g(f"v_cvt_pk_bf16_f32 v{hp+5}, v{hp+2}, v{hp+3}")
    g("s_mov_b32 s56, 0x00030003"); g("s_mov_b32 s57, s56"); g("s_lshl_b64 s[58:59], s[56:57], 8")
    for k in range(2):
        g(f"v_cndmask_b32 v{hlo+k}, 0, v{hp+4+k}, s[56:57]"); g(f"v_cndmask_b32 v{hhi+k}, 0, v{hp+4+k}, s[58:59]")
    g.lwait0()
    TLO = (0, 1, 4, 5); THI = (2, 3, 6, 7)
    for k in range(4): g(f"v_mfma_f32_16x16x16_bf16 {vr(acc+4*k,4)}, {vr(hlo,2)}, {vr(w2f+2*TLO[k],2)}, 0")
    for k in range(4): g(f"v_mfma_f32_16x16x16_bf16 {vr(acc+4*k,4)}, {vr(hhi,2)}, {vr(w2f+2*THI[k],2)}, {vr(acc+4*k,4)}")
    out_pack(acc, pk, pk + 4, hpv, vop, "s25")
    g.label("L_Anf2")
    g.stamp(8)
    g(f"s_cmp_lg_u32 {sW}, 0"); g("s_cbranch_scc1 L_Aend0")
    op = qf
    g(f"s_mul_i32 s56, {sRid}, {OPS}"); g(f"s_add_u32 s56, s56, {OP}"); g("s_add_u32 s57, s56, 0x1000")
    g(f"buffer_load_ushort v{xr}, v{vro}, {X}, {sRo} offen")
    raw = op + 32
    g(f"v_mov_b32 v{raw+24}, 0"); g(f"v_mov_b32 v{raw+25}, 0"); g(f"v_mov_b32 v{raw+26}, {sT}")
    if hintr:
        if rall:
            g(f"s_lshl_b32 s38, s5, 8"); g(f"s_add_u32 s38, s38, {HW}")
            hint_wait(g, "L_Rh", 2, vl4, "s38", 0, sCnt)
        else: hint_wait(g, "L_Rh", 2, vzA, "s38", 0, sCnt)
    g(f"s_mov_b32 {sCnt}, 0")
    g.label("L_R")
    for j in range(7):
        if j == 6: g("s_mov_b32 exec_hi, 0xffff")
        g(f"buffer_load_dwordx3 {vr(raw+4*j,3)}, v{vj}, {WS}, {'s56' if j < 4 else 's57'} offen offset:{(j&3)*1024} sc1")
    g("s_mov_b32 exec_hi, -1")
    g(f"s_add_u32 {sCnt}, {sCnt}, 1"); g(f"s_cmp_gt_u32 {sCnt}, {SPIN}"); g("s_cbranch_scc1 L_R_x")
    for j in range(7):
        g(f"s_waitcnt vmcnt({6-j})")
        g(f"v_sad_u32 v{chk}, v{raw+2+4*j}, {sT}, {('v%d' % chk) if j else 0}")
        d = op + 4 * (j & 1) if j < 2 else op + 8
        for k in range(2):
            g(f"v_lshlrev_b32 v{d+2*k}, 16, v{raw+4*j+k}"); g(f"v_and_b32 v{d+2*k+1}, 0xffff0000, v{raw+4*j+k}")
        if j >= 2:
            for k in range(2): g(f"v_pk_add_f32 {vr(op+4*(j&1)+2*k,2)}, {vr(op+4*(j&1)+2*k,2)}, {vr(op+8+2*k,2)}")
    g(f"v_cmp_ne_u32 vcc, 0, v{chk}")
    g("s_cbranch_vccnz L_R")
    g.label("L_R_x")
    g.count(sCnt)
    g("s_waitcnt vmcnt(0)")
    g.stamp(9)
    for k in range(2): g(f"v_pk_add_f32 {vr(op+2*k,2)}, {vr(op+2*k,2)}, {vr(op+4+2*k,2)}")
    g(f"v_lshlrev_b32 v{xr}, 16, v{xr}")
    g("s_nop 1")
    g(f"v_permlane16_swap_b32 v{op}, v{op+1}"); g(f"v_permlane16_swap_b32 v{op+2}, v{op+3}")
    g("s_nop 0")
    g(f"v_add_f32 v{op}, v{op}, v{op+1}"); g(f"v_add_f32 v{op+2}, v{op+2}, v{op+3}")
    g("s_nop 1")
    g(f"v_permlane32_swap_b32 v{op}, v{op+2}")
    g("s_nop 0")
    g(f"v_add_f32 v{op}, v{op}, v{op+2}")
    for k in (2, 4, 8):
        g("s_nop 1"); g(f"v_add_f32_dpp v{op}, v{op}, v{op} row_ror:{k} {DPPF}")
    g(f"v_add_f32 v{op}, v{op}, v{xr}")
    g("s_mov_b32 exec_lo, 0x00030003"); g("s_mov_b32 exec_hi, 0x00030003")
    g(f"v_cvt_pk_bf16_f32 v{op}, v{op}, v{op}")
    g(f"buffer_store_short v{op}, v{vro}, {OUT}, {sRo} offen {('', 'sc1', 'sc0 sc1', 'nt')[osc]}")
    g(f"s_cmp_lg_u32 {sRid}, 0"); g("s_cbranch_scc1 L_Aend")
    g("s_mov_b64 exec, 1"); g(f"v_mov_b32 v2, {sT}"); g("v_mov_b32 v3, 0")
    g(f"buffer_store_dword v2, v3, {WS}, 0 offen sc1")
    g("s_branch L_Aend")
    g.label("L_Aend0")
    g.label("L_Aend")
    g.stamp(10)
    dump_stamps(g, "A")
    g("s_endpgm")
    g.label("L_Aovf")
    g(f"v_mov_b32 v{t2}, 1")
    g(f"ds_write_b32 v{vmx}, v{t2} offset:64")
    g("s_branch L_Aovf_x")
    g.label("L_Aslow")
    g(f"v_max3_f32 v{mxv}, v{SY}, v{SY+1}, v{SY+2}"); g(f"v_max_f32 v{mxv}, v{mxv}, v{SY+3}")
    g(f"ds_max_f32 v{vmx}, v{mxv}")
    g("s_waitcnt lgkmcnt(0)"); g("s_barrier")
    g(f"ds_read_b32 v{mxv}, v{vmx}"); g(f"v_mov_b32 v{t2}, 0"); g(f"ds_write_b32 v{vmx}, v{t2} offset:64")
    g("s_waitcnt lgkmcnt(0)")
    g(f"v_mul_f32 v{STG}, s56, v{mxv}")
    for k in range(8): g(f"v_fma_f32 v{EX+k}, v{SX+k}, s56, -v{STG}")
    pexp(0); pexp(1); g("s_nop 0")
    pwrite(0); pwrite(1)
    g("s_waitcnt lgkmcnt(0)"); g("s_barrier")
    g("s_branch L_Apv")
    flag_fallback(g, "L_Af1", vfl, l16, "s34", sCnt)
    g.label("L_end")
    body = "\n".join(g.L)
    hdr = open("parallel_sum__compressed_kv_cla__dense_activation_silu__decode.s.ref").read().split("; Override launch")[0]
    return f"""{hdr}; @launch grid=(256,1,1) block=(256,1,1) lds={LDS_BYTES}
.amdgcn_target "amdgcn-amd-amdhsa--gfx950"
.set HINT_LIMIT, 40
.text
.globl {KNAME}
.p2align 8
.type {KNAME},@function
{KNAME}:
{body}
    s_endpgm
.section .rodata,"a"
.p2align 6
.amdhsa_kernel {KNAME}
  .amdhsa_next_free_vgpr 512
  .amdhsa_next_free_sgpr 102
  .amdhsa_accum_offset 256
  .amdhsa_group_segment_fixed_size 0
  .amdhsa_kernarg_size 96
  .amdhsa_user_sgpr_count 2
  .amdhsa_user_sgpr_kernarg_segment_ptr 1
  .amdhsa_system_sgpr_workgroup_id_x 1
.end_amdhsa_kernel
"""

if __name__ == "__main__":
    dbg = 3 if "--debug3" in sys.argv else 2 if "--debug2" in sys.argv else (1 if "--debug" in sys.argv else 0)
    out = [a for a in sys.argv[1:] if not a.startswith("--")][0]
    kw = {}
    for a in sys.argv[1:]:
        if a.startswith("--thr="): kw["thr"] = tuple(int(x) for x in a[6:].split(","))
        if a.startswith("--swap="): kw["swap"] = int(a[7:])
        for nm in ("touch", "pfk", "pfo", "pf2", "pfc", "noflag", "wdelay", "loc", "stw", "slp", "pad", "rslp", "p2t", "est", "pfoe", "hint", "qal", "hintr", "hsl", "dq", "wke", "qack", "qsl", "hq", "nts", "gate", "pff", "poack", "pfv", "wv1", "fgate", "rall", "pg", "wow", "gw", "xnl", "pffe", "cmb", "hre", "adl", "noclr", "fwait", "hqe", "nat", "opr", "qae", "fk", "wk2", "hpos", "pre0", "osc"):
            if a.startswith(f"--{nm}="): kw[nm] = int(a.split("=")[1])
    open(out, "w").write(build(dbg, **kw))
```

```python
import sys, struct

KNAME = "parallel_sum__compressed_kv_cla__dense_activation_silu__decode_kernel"

QP, CP, QA, ST, OP, PO, TS = 0x10000, 0x30000, 0x50000, 0x380000, 0x400000, 0x100000, 0x340000
FL1, HQ, HP, HA, HW = 0x68000, 0x6C000, 0x70000, 0x60000, 0x64000
XNG, FLA, HB = 0x6E000, 0x69000, 0x6D000
OPS = 7168
WS_REC = 0x500000
OOB = 0x40000000
L_WQ, L_WUK, L_WUV, L_WO, L_W1, L_W2, L_XN, L_LAT = 0, 0x8000, 0, 0x10000, 0x18000, 0x1C000, 0x20000, 0x20900
XNP = 1056
L_QA, L_P, L_MX = 0x20000, 0x24000, 0x25200
LDS_BYTES = 0x25400
SPIN = 20000

def f2u(x): return struct.unpack("<I", struct.pack("<f", x))[0]
KSCALE = f2u(128 ** -0.5 * 1.4426950408889634)

class G:
    def __init__(self, debug=False):
        self.L = []; self.debug = debug; self.nv = 0; self.names = {}; self.nstamp = 0; self.lq = []; self.maxv = 0
    def __call__(self, s):
        for ln in s.strip().split("\n"):
            self.L.append("    " + ln.strip())
    def label(self, s): self.L.append(s + ":")
    def c(self, s): self.L.append("    ; " + s)
    def reset_v(self, start): self.nv = start
    def v(self, n=1, al=None):
        if al is None: al = 1 if n == 1 else 2
        self.nv = (self.nv + al - 1) // al * al
        r = self.nv; self.nv += n; self.maxv = max(self.maxv, self.nv)
        assert self.nv <= 254, "out of VGPRs"
        return r
    def stamp(self, i):
        if self.debug == 3 and i not in (0, 10): return
        if self.debug == 2:
            if i == 11: return
            if i == 14: i = 11
        if self.debug == 1 and i == 13: return
        if self.debug:
            assert i < 15
            self(f"s_memrealtime s[{72+2*i}:{73+2*i}]")
    def count(self, cnt):
        if self.debug == 1:
            self(f"s_min_u32 s99, {cnt}, 63"); self("s_lshl_b32 s98, s98, 6"); self("s_or_b32 s98, s98, s99")
    def lds(self, s, tag=None):
        if len(self.lq) >= 15:
            self.lwait(self.lq[len(self.lq) - 15])
        self(s); self.lq.append(tag if tag is not None else object())
    def lwait(self, tag):
        if tag not in self.lq: return
        k = max(i for i, t in enumerate(self.lq) if t == tag)
        n = len(self.lq) - 1 - k
        self(f"s_waitcnt lgkmcnt({n})")
        self.lq = self.lq[k + 1:]
    def lwait0(self):
        self("s_waitcnt lgkmcnt(0)"); self.lq = []

def vr(a, n): return f"v[{a}:{a+n-1}]" if n > 1 else f"v{a}"
def ar(a, n): return f"a[{a}:{a+n-1}]"

sW, sS, sX, sH, sQT = "s3", "s4", "s5", "s6", "s7"
WS, X, WQ, WUK, WUV, WO, W1, W2, DBG, CKV, OUT = ("s[8:11]", "s[12:15]", "s[16:19]", "s[20:23]", "s[24:27]", "s[28:31]",
                                                  "s[32:35]", "s[36:39]", "s[44:47]", "s[48:51]", "s[52:55]")
sT, sE = "s42", "s43"
sHG, sSP = "s6", "s7"
DPPF = "row_mask:0xf bank_mask:0xf"

def reduce32(g, op, s, t):
    for k in (8, 4, 2, 1):
        g(f"v_{op}_f32_dpp v{s}, v{s}, v{s} row_ror:{k} {DPPF}")
        g("s_nop 1")
    g(f"v_mov_b32 v{t}, v{s}")
    g("s_nop 1")
    g(f"v_permlane16_swap_b32 v{t}, v{s}")
    g("s_nop 0")
    g(f"v_{op}_f32 v{s}, v{s}, v{t}")

def reduce64(g, op, s, t):
    reduce32(g, op, s, t)
    g(f"v_mov_b32 v{t}, v{s}")
    g("s_nop 1")
    g(f"v_permlane32_swap_b32 v{t}, v{s}")
    g("s_nop 0")
    g(f"v_{op}_f32 v{s}, v{s}, v{t}")

def flag_fallback(g, name, vfl, vfo, soff, cnt, pair=False):
    g.label(name)
    g(f"s_mov_b32 {cnt}, 0")
    g.label(name + "_l")
    g("s_sleep 2")
    if pair: g(f"buffer_load_dwordx2 {vr(vfl,2)}, v{vfo}, {WS}, {soff} offen sc1")
    else: g(f"buffer_load_dword v{vfl}, v{vfo}, {WS}, {soff} offen sc1")
    g(f"s_add_u32 {cnt}, {cnt}, 1"); g(f"s_cmp_gt_u32 {cnt}, {SPIN}"); g(f"s_cbranch_scc1 {name}_x")
    g("s_waitcnt vmcnt(0)")
    if pair: g(f"v_cmp_ne_u64 vcc, s[40:41], {vr(vfl,2)}")
    else: g(f"v_cmp_ne_u32 vcc, {sT}, v{vfl}")
    g(f"s_cbranch_vccnz {name}_l")
    g(f"s_branch {name}_x")

HINTN = 3000
def hint_wait(g, name, vt, vz, soff, off, cnt):
    g(f"s_mov_b32 {cnt}, 0")
    g.label(name)
    g(f"buffer_load_dword v{vt}, v{vz}, {WS}, {soff} offen offset:{off} sc1")
    g(f"s_add_u32 {cnt}, {cnt}, 1"); g(f"s_cmp_gt_u32 {cnt}, HINT_LIMIT"); g(f"s_cbranch_scc1 {name}_x")
    g("s_waitcnt vmcnt(0)")
    g(f"v_cmp_ne_u32 vcc, {sT}, v{vt}")
    g(f"s_cbranch_vccnz {name}")
    g.label(name + "_x")

def dump_stamps(g, role=None):
    if not g.debug: return
    g.lwait0()
    if g.debug == 3:
        lo = 0 if role == "W" else 128
        g(f"s_sub_u32 s56, s2, {lo}"); g("s_cmp_ge_u32 s56, 8"); g(f"s_cbranch_scc1 L_nod{role}"); g(f"s_cmp_lg_u32 {sW}, 0"); g(f"s_cbranch_scc1 L_nod{role}")
        g("s_lshl_b32 s60, s56, 2")
        g("s_mov_b64 exec, -1"); g(f"v_mov_b32 v2, s{72 if role == 'W' else 92}"); g("v_mov_b32 v3, 0")
        g("s_mov_b32 s58, 256"); g("s_mov_b32 s59, 0x20000"); g("s_mov_b64 s[56:57], s[100:101]"); g("s_mov_b64 exec, 1")
        g(f"buffer_store_dword v2, v3, s[56:59], s60 offen offset:{0 if role == 'W' else 32}")
        g.label(f"L_nod{role}")
        return
    if g.debug == 2:
        wg, sel, base = (0, (3, 1, 12, 6, 11, 8, 10, 2), 0) if role == "W" else (128 + 3, (1, 2, 5, 6, 7, 8, 9, 10), 32)
        g(f"s_lshl2_add_u32 s56, s2, {sW}"); g(f"s_cmp_lg_u32 s56, {wg*4}"); g(f"s_cbranch_scc1 L_nod{role}")
        g("s_mov_b64 exec, -1"); g("v_mov_b32 v2, 0")
        for i, k in enumerate(sel):
            g(f"s_sub_u32 s57, s{72+2*k}, s72"); g(f"v_writelane_b32 v2, s57, {i}")
        g("s_mov_b32 s102, 0" if False else "s_nop 0")
        g("s_mov_b32 s58, 256"); g("s_mov_b32 s59, 0x20000"); g("s_mov_b64 s[56:57], s[100:101]")
        g("v_lshlrev_b32 v3, 2, v1"); g("s_mov_b64 exec, 0xff")
        g(f"buffer_store_dword v2, v3, s[56:59], 0 offen offset:{base}")
        g.label(f"L_nod{role}")
        return
    g(f"s_lshl_b32 s56, s2, 2"); g(f"s_add_u32 s56, s56, {sW}"); g("s_lshl_b32 s56, s56, 6"); g(f"s_add_u32 s56, s56, {TS}")
    g("s_mov_b64 exec, -1")
    g("v_mov_b32 v2, 0")
    for i in range(15): g(f"v_writelane_b32 v2, s{72+2*i}, {i}")
    g("s_getreg_b32 s57, hwreg(HW_REG_XCC_ID)")
    g("v_writelane_b32 v2, s57, 15")
    g("v_lshlrev_b32 v3, 2, v1")
    g("s_mov_b64 exec, 0xffff")
    g(f"buffer_store_dword v2, v3, {WS}, s56 offen")

def build(debug=False, thr=(16, 0), swap=1, touch=0, pfk=1, pfo=1, pf2=1, pfc=0, noflag=0, wdelay=0, loc=1, stw=16, slp=1, pad=0, rslp=0, p2t=0, est=1, pfoe=1, hint=1, qal=0, hintr=1, hsl=0, dq=0, wke=1, qack=1, qsl=0, hq=1, nts=0, gate=1, pff=0, poack=0, pfv=0, wv1=6, fgate=0, rall=1, pg=0, wow=0, gw=-1, xnl=1, pffe=0, cmb=1, hre=0, adl=0, noclr=0, fwait=0, hqe=1, nat=1, opr=1, qae=1, fk=0, wk2=0, hpos=1, pre0=0, osc=0, tlb=0):
    g = G(debug)
    NS = 'nt ' if nts else ''
    g.stamp(0)
    g("""
    s_load_dwordx2 s[16:17], s[0:1], 16
    s_load_dwordx2 s[48:49], s[0:1], 8
    s_load_dwordx2 s[20:21], s[0:1], 24
    s_load_dwordx2 s[12:13], s[0:1], 0
    s_load_dwordx2 s[8:9], s[0:1], 88
    s_cmp_ge_u32 s2, 256
    s_cbranch_scc1 L_end
    v_lshrrev_b32 v2, 6, v0
    v_and_b32 v1, 63, v0
    s_lshr_b32 s4, s2, 3
    v_readfirstlane_b32 s3, v2
    s_and_b32 s5, s2, 7
    v_lshlrev_b32 v4, 4, v1
    s_cmp_ge_u32 s4, 16
    s_cbranch_scc1 L_A
    """)
    l16 = 4
    def srd(k, sz):
        g(f"s_mov_b32 s{k+2}, {sz}"); g(f"s_mov_b32 s{k+3}, 0x20000")
    def dbg_init():
        if debug:
            for i in range(1, 14): g(f"s_mov_b64 s[{72+2*i}:{73+2*i}], 0")
            if debug >= 2: g("s_load_dwordx2 s[100:101], s[0:1], 80")
            else: g("s_mov_b64 s[100:101], 0")
    g.reset_v(5)
    n, gg = g.v(), g.v()
    vqA, vqB = g.v(), g.v(); vq4 = g.v(4)
    xa = g.v(8, 4)
    sQAo, sOPo, sQoff = "s38", "s39", "s35"
    g(f"v_and_b32 v{n}, 15, v1"); g(f"v_lshrrev_b32 v{gg}, 4, v1")
    g(f"v_lshlrev_b32 v2, 1, v{gg}"); g(f"v_xor_b32 v2, v2, v{n}"); g(f"v_lshlrev_b32 v2, 4, v2"); g(f"v_lshl_add_u32 v{vqA}, v{gg}, 13, v2"); g(f"v_xor_b32 v{vqB}, 0x80, v{vqA}")
    g(f"v_add_u32 v{vq4+1}, {31744}, v{vqA}"); g(f"v_add_u32 v{vq4+2}, {2*31744}, v{vqB}"); g(f"v_add_u32 v{vq4+3}, {3*31744}, v{vqB}")
    srd(16, 4 << 20); srd(12, 2048); srd(8, WS_REC)
    PRE0 = f"""v_lshlrev_b32 v2, 7, v1
    s_lshl2_add_u32 s63, s6, s7
    s_lshl_b32 s63, s63, 10
    s_lshl_b32 s58, s3, 17
    s_add_u32 s63, s63, s58
    s_add_u32 s63, s63, {QP}""" if pre0 else "s_nop 0"
    sent = xa + 4
    for k in range(4): g(f"v_mov_b32 v{sent+k}, -1")
    g(f"v_lshrrev_b32 v3, 3, v1"); g(f"v_lshlrev_b32 v3, 10, v3"); g(f"v_and_b32 v2, 4, v1"); g(f"v_lshl_add_u32 v3, v2, 13, v3"); g(f"v_and_b32 v2, 3, v1"); g(f"v_lshl_add_u32 v3, v2, 4, v3")
    g(f"""
    s_lshr_b32 s6, s4, 2
    s_lshl2_add_u32 s6, s5, s6
    s_and_b32 s7, s4, 3
    s_lshl2_add_u32 s61, s7, s3
    s_lshl_b32 s61, s61, 18
    s_lshl_b32 s59, s6, 8
    s_add_u32 {sQoff}, s61, s59
    s_lshl_b32 s60, s3, 13
    s_mov_b32 m0, s60
    s_lshl_b32 s57, s3, 10
    s_lshr_b32 s62, s6, 4
    s_lshl2_add_u32 s62, s62, s7
    s_lshl_b32 s62, s62, 6
    s_and_b32 s63, s6, 15
    s_add_u32 s62, s62, s63
    s_lshl_b32 s62, s62, 6
    s_add_u32 s62, s62, {QA}
    {PRE0}
    s_cmp_eq_u32 s3, 2
    s_cselect_b32 exec_lo, -1, 0
    s_mov_b32 exec_hi, 0
    s_waitcnt lgkmcnt(0)
    """)
    g(f"buffer_store_dwordx4 {vr(sent,4)}, v3, {WS}, s62 offen sc1")
    g("s_cmp_lt_u32 s3, 2"); g("s_cselect_b64 exec, -1, 0")
    def quad(srdname, soff):
        g(f"buffer_load_dwordx4 v{vqA}, {srdname}, {soff} offen nt lds")
        for k in range(1, 4): g(f"buffer_load_dwordx4 v{vq4+k}, {srdname}, {soff} offen offset:{k*1024} nt lds")
    g(f"buffer_load_dwordx4 {vr(xa,4)}, v{l16}, {X}, s57 offen")
    if pre0:
        g("s_and_b32 exec_lo, exec_lo, 0xff"); g("s_mov_b32 exec_hi, 0")
        g(f"buffer_load_dword v254, v2, {WS}, s63 offen")
    g("s_mov_b64 exec, -1")
    quad(WQ, sQoff)
    g("s_add_u32 m0, m0, 0x1000"); g(f"s_add_u32 s61, {sQoff}, 0x20000")
    quad(WQ, "s61")
    g("s_branch L_W2")
    wv = g.nv
    g.label("L_A")
    if tlb:
        g("""
        s_and_b32 s56, s4, 15
        s_lshr_b32 s62, s56, 2
        s_lshl3_add_u32 s62, s62, 32
        s_and_b32 s63, s56, 3
        s_lshl_b32 s63, s63, 20
        s_lshr_b32 s58, s56, 1
        s_lshl3_add_u32 s58, s58, 24
        s_and_b32 s59, s56, 1
        s_mul_i32 s59, s59, 0x150000
        s_cmp_ge_u32 s56, 8
        s_cselect_b32 s62, s58, s62
        s_cselect_b32 s63, s59, s63
        s_and_b32 s59, s56, 3
        s_lshl_b32 s59, s59, 21
        s_cmp_eq_u32 s56, 12
        s_cselect_b32 s58, 0, 16
        s_add_u32 s58, s58, 72
        s_cmp_ge_u32 s56, 12
        s_cselect_b32 s62, s58, s62
        s_cselect_b32 s63, s59, s63
        s_load_dwordx2 s[64:65], s[0:1], s62
        """)
    vt4 = 8
    sPOs, sRow, sCnt, sRid = "s18", "s19", "s22", "s23"
    g(f"""
    s_and_b32 s6, s4, 1
    s_bfe_u32 s56, s4, 0x30001
    s_lshl3_add_u32 s7, s5, s56
    s_lshl_b32 s57, s7, 17
    """)
    if swap: g(f"s_lshl2_add_u32 {sRow}, s6, s3"); g(f"s_lshl_b32 {sRow}, {sRow}, 14")
    else: g(f"s_lshl_b32 {sRow}, s3, 14")
    srd(48, 8 << 20)
    g(f"s_mov_b32 m0, {sRow}"); g(f"s_add_u32 s33, {sRow}, s57")
    vpo = 7
    srd(8, WS_REC)
    g(f"""
    s_lshl_b32 {sPOs}, s6, 5
    s_add_u32 {sPOs}, {sPOs}, s3
    s_lshl_b32 {sPOs}, {sPOs}, 15
    s_lshl_b32 s56, s7, 9
    s_add_u32 {sPOs}, {sPOs}, s56
    s_add_u32 {sPOs}, {sPOs}, {PO}
    """)
    g(f"v_bfe_u32 v{vpo}, v1, 1, 3"); g(f"v_lshlrev_b32 v{vpo}, 17, v{vpo}"); g(f"v_and_b32 v2, 1, v1"); g(f"v_lshl_add_u32 v{vpo}, v2, 6, v{vpo}"); g(f"v_and_b32 v2, 48, v1"); g(f"v_add_u32 v{vpo}, v2, v{vpo}")
    for k in range(4): g(f"v_mov_b32 v{vt4+k}, -1")
    def a_clear():
        for b in range(4): g(f"buffer_store_dwordx4 {vr(vt4,4)}, v{vpo}, {WS}, {sPOs} offen offset:{b*128} sc1")
        g("s_nop 1")
    if pfk:
        g("""
        s_and_b32 s60, s4, 3
        s_lshl2_add_u32 s60, s60, s3
        s_lshl_b32 s60, s60, 18
        s_bfe_u32 s61, s4, 0x20002
        s_lshl2_add_u32 s61, s5, s61
        s_lshl_b32 s61, s61, 8
        s_add_u32 s60, s60, s61
        v_lshrrev_b32 v2, 1, v1
        v_and_b32 v3, 1, v1
        v_lshlrev_b32 v2, 13, v2
        v_lshl_add_u32 v2, v3, 7, v2
        v_add_u32 v6, s60, v2
        """)
    def pfk_load():
        if pfk:
            if pfk == 2: g("s_cmp_lt_u32 s3, 2"); g("s_cselect_b64 exec, -1, 0")
            if pfk == 3: g("s_mov_b32 exec_lo, 0")
            g("global_load_dword v255, v6, s[20:21]")
            if pfk >= 2: g("s_mov_b64 exec, -1")
    if tlb: g("v_mov_b32 v3, s63"); g("s_cmp_eq_u32 s3, 3"); g("s_cselect_b64 exec, 1, 0")
    g("s_waitcnt lgkmcnt(0)")
    if tlb: g("global_load_dword v254, v3, s[64:65]"); g("s_mov_b64 exec, -1")
    if not adl: pfk_load()
    if not noclr: a_clear()
    if fwait: g(f's_waitcnt vmcnt({0 if noclr else 4})')
    def abody(a, half):
        if a == 0:
            for k in range(1, 4): g(f"v_xor_b32 v{vt4+k}, {k*16}, v{l16}")
            regs = [l16, vt4 + 1, vt4 + 2, vt4 + 3]
        else:
            for k in range(4): g(f"v_xor_b32 v{vt4+k}, {(4*a+k)*16}, v{l16}")
            regs = [vt4 + k for k in range(4)]
        for k in range(4):
            j = 4 * a + k
            if half == 0 and thr[0] <= j < thr[1] + thr[0]: g(f"s_waitcnt vmcnt({thr[0]-1})")
            g(f"buffer_load_dwordx4 v{regs[k]}, {CKV}, s33 offen offset:{k*1024} {NS}lds")
        if a < 3: g("s_add_u32 m0, m0, 0x1000"); g("s_add_u32 s33, s33, 0x1000")
    if not adl: abody(0, 0); abody(1, 0)
    g(f"""
    s_getpc_b64 s[40:41]
L_pc:
    v_lshlrev_b32 v2, 3, v4
    s_lshl2_add_u32 s56, s4, s3
    v_add_u32 v3, 0x2000, v2
    v_min_u32 v3, L_end-L_pc, v3
    s_cmp_eq_u32 s56, 64
    s_cselect_b64 exec, -1, 0
    global_load_dword v255, v2, s[40:41]
    global_load_dword v255, v3, s[40:41]
    s_mov_b64 exec, -1
    s_branch L_A2
    """)

    g.label("L_W2")
    g.reset_v(wv)
    g("""
    s_load_dword s43, s[8:9], 0
    s_load_dwordx2 s[24:25], s[0:1], 32
    s_load_dwordx2 s[28:29], s[0:1], 40
    """)
    dbg_init()
    srd(20, 4 << 20)
    g(f"s_add_u32 {sQAo}, s62, s57")
    if not pre0:
        if loc:
            g(f"v_and_b32 v2, 0x70, v{l16}"); g(f"v_lshlrev_b32 v2, 3, v2"); g("s_lshl2_add_u32 s63, s6, s7"); g("s_lshl_b32 s63, s63, 10"); g("s_lshl_b32 s62, s3, 17"); g("s_add_u32 s63, s63, s62"); g(f"s_add_u32 s63, s63, {QP}")
            g("s_cmp_lt_u32 s3, 2"); g("s_cselect_b64 exec, 0xff, 0")
            g(f"buffer_load_dword v254, v2, {WS}, s63 offen")
            g("s_mov_b64 exec, -1")
    vqa, vop = g.v(), g.v()
    vk = g.v(8); vkr = g.v(4)
    g(f"v_xor_b32 v2, v{n}, v{gg}"); g(f"v_lshlrev_b32 v2, 4, v2"); g(f"v_lshl_add_u32 v{vk}, v{gg}, 13, v2")
    for k in range(1, 8):
        g(f"v_xor_b32 v{vk+k}, {(k>>1)*64}, v{vk}")
        if k & 3: g(f"v_add_u32 v{vk+k}, {(k&3)*31744}, v{vk+k}")
    def wuk_quad(a):
        g(f"s_add_u32 m0, s60, {L_WUK + a*0x1000}"); g(f"s_add_u32 s61, {sQoff}, {a*0x20000}")
        for k in range(4): g(f"buffer_load_dwordx4 v{vk+4*a+k}, {WUK}, s61 offen offset:{k*1024} {NS}lds")
    if wke == 1: wuk_quad(0)
    r, c4 = g.v(), g.v()
    g(f"v_bfe_u32 v{r}, v1, 2, 2"); g(f"v_and_b32 v{c4}, 3, v1")
    vxf, vtr, vqps, vqpl, vf = g.v(), g.v(), g.v(), g.v(), g.v()
    g(f"v_lshl_add_u32 v3, v{r}, 3, v{c4}"); g(f"v_lshl_add_u32 v2, v3, 8, v2"); g(f"s_add_u32 s64, s60, {L_WUK}"); g(f"v_add_u32 v{vkr}, s64, v2")
    for k in range(1, 4): g(f"v_xor_b32 v{vkr+k}, {k*64}, v{vkr}")
    g(f"v_lshlrev_b32 v{vqa}, 13, v1"); g(f"v_and_b32 v{vqa}, 0x8000, v{vqa}"); g(f"v_lshl_or_b32 v{vqa}, v{gg}, 4, v{vqa}")
    g(f"v_and_b32 v2, 1, v1"); g(f"v_mul_u32_u24 v{vxf}, {XNP}, v2"); g(f"v_lshl_add_u32 v{vxf}, v{gg}, 4, v{vxf}")
    g(f"s_lshl_b32 s63, s7, 8"); g(f"s_add_u32 s63, s63, {L_XN}"); g(f"v_add_u32 v{vxf}, s63, v{vxf}")
    g(f"v_lshlrev_b32 v{vqps}, 9, v2"); g(f"v_lshl_add_u32 v{vqps}, v{gg}, {4 if nat else 5}, v{vqps}"); g(f"v_and_b32 v2, 2, v1"); g(f"v_lshl_add_u32 v{vqps}, v2, {5 if nat else 3}, v{vqps}")
    g(f"v_and_b32 v2, 1, v{gg}"); g(f"v_lshl_or_b32 v2, v2, 2, v{r}"); g(f"v_lshlrev_b32 v{vf}, 5, v2")
    g(f"s_lshl_b32 s63, s3, 6"); g(f"v_lshl_or_b32 v2, v{c4}, {3 if nat else 4}, s63"); g(f"v_xor_b32 v2, v2, v{vf}")
    g(f"v_lshl_add_u32 v{vtr}, v{gg}, 3, v{r}"); g(f"v_lshl_add_u32 v{vtr}, v{vtr}, 8, v2")
    vtr1 = g.v()
    g(f"v_xor_b32 v{vtr1}, 32, v{vtr}")
    def trad(T): return (f"v{vtr1 if T else vtr}", 0) if nat else (f"v{vtr}", 8 * T)
    g(f"v_bfe_u32 v2, v1, 2, 1"); g(f"v_lshl_add_u32 v{vqpl}, v{c4}, 1, v2"); g(f"v_lshlrev_b32 v{vqpl}, 9, v{vqpl}"); g(f"v_lshl_add_u32 v{vqpl}, v{gg}, 5, v{vqpl}")
    g(f"v_and_b32 v2, 8, v1"); g(f"v_lshl_add_u32 v{vqpl}, v2, 1, v{vqpl}")
    g(f"""
    s_lshl_b32 s68, s6, 12
    s_add_u32 s68, s68, {QP}
    s_lshl_b32 s63, s7, 10
    s_add_u32 s67, s68, s63
    s_lshl_b32 s63, s3, 7
    s_add_u32 s67, s67, s63
    s_mov_b32 s70, 0xcccccccc
    s_mov_b32 s71, s70
    s_lshl4_add_u32 s66, s5, s4
    s_lshl2_add_u32 s66, s66, s3
    s_lshl_b32 s66, s66, 2
    s_add_u32 s66, s66, {HQ}
    s_lshl2_add_u32 s69, s6, s7
    s_lshl_b32 s44, s69, 4
    s_add_u32 s44, s44, {FL1}
    """)
    Ga = g.v(4, 4); vT = Ga
    f = g.v(16, 2); m = g.v(2); t = g.v(); s2 = g.v(8, 2)
    g("s_cmp_lt_u32 s3, 2"); g("s_cbranch_scc1 L_W_ln")
    g("s_waitcnt lgkmcnt(0)")
    g(f"s_mul_i32 {sT}, {sE}, 0x9E3779B1"); g(f"s_add_u32 {sT}, {sT}, 0x7F4A7C15")
    g(f"v_mov_b32 v{vT}, {sT}")
    if wke == 2: wuk_quad(0); wuk_quad(1)
    g("v_mov_b32 v3, 0"); g("s_cmp_eq_u32 s3, 2"); g("s_cselect_b64 exec, 1, 0")
    g(f"s_waitcnt vmcnt({4 * wke})")
    g(f"buffer_store_dword v{vT}, v3, {WS}, s44 offen sc1")
    g("s_mov_b64 exec, -1")
    g("s_branch L_W_b0")
    g.label("L_W_ln")
    g(f"s_mul_i32 s63, s3, {XNP}"); g(f"s_add_u32 s63, s63, {L_XN}"); g(f"v_add_u32 v3, s63, v{l16}")
    g(f"s_waitcnt vmcnt({(9 if loc else 8) + (4 if wke == 1 else 0)})")
    d = f + 8
    for k in range(4):
        g(f"v_lshlrev_b32 v{f+2*k}, 16, v{xa+k}"); g(f"v_and_b32 v{f+2*k+1}, 0xffff0000, v{xa+k}")
    g(f"v_pk_add_f32 {vr(s2,2)}, {vr(f,2)}, {vr(f+2,2)}"); g(f"v_pk_add_f32 {vr(s2+2,2)}, {vr(f+4,2)}, {vr(f+6,2)}")
    g(f"v_pk_add_f32 {vr(s2,2)}, {vr(s2,2)}, {vr(s2+2,2)}")
    g(f"v_add_f32 v{m}, v{s2}, v{s2+1}"); g("s_nop 1")
    reduce64(g, "add", m, t)
    g(f"v_mul_f32 v{m}, {f2u(1/512):#x}, v{m}")
    for k in range(4): g(f"v_pk_add_f32 {vr(d+2*k,2)}, {vr(f+2*k,2)}, {vr(m,2)} op_sel_hi:[1,0] neg_lo:[0,1] neg_hi:[0,1]")
    g(f"v_pk_mul_f32 {vr(s2,2)}, {vr(d,2)}, {vr(d,2)}"); g(f"v_pk_mul_f32 {vr(s2+2,2)}, {vr(d+2,2)}, {vr(d+2,2)}")
    g(f"v_pk_fma_f32 {vr(s2,2)}, {vr(d+4,2)}, {vr(d+4,2)}, {vr(s2,2)}"); g(f"v_pk_fma_f32 {vr(s2+2,2)}, {vr(d+6,2)}, {vr(d+6,2)}, {vr(s2+2,2)}")
    g(f"v_pk_add_f32 {vr(s2,2)}, {vr(s2,2)}, {vr(s2+2,2)}")
    va = s2 + 4
    g(f"v_add_f32 v{va}, v{s2}, v{s2+1}")
    g(f"v_cvt_pk_bf16_f32 v{m}, v{m}, v{m}"); g(f"v_and_b32 v{m}, 0xffff0000, v{m}")
    reduce64(g, "add", va, t)
    g(f"v_mul_f32 v{va}, {f2u(1/512):#x}, v{va}")
    for k in range(2): g(f"v_pk_add_f32 {vr(f+2*k,2)}, {vr(f+2*k,2)}, {vr(m,2)} op_sel_hi:[1,0] neg_lo:[0,1] neg_hi:[0,1]")
    g(f"v_cvt_pk_bf16_f32 v{va}, v{va}, v{va}")
    for k in range(2, 4): g(f"v_pk_add_f32 {vr(f+2*k,2)}, {vr(f+2*k,2)}, {vr(m,2)} op_sel_hi:[1,0] neg_lo:[0,1] neg_hi:[0,1]")
    g(f"v_and_b32 v{va}, 0xffff0000, v{va}")
    g(f"v_add_f32 v{va}, {f2u(1e-5):#x}, v{va}")
    g(f"v_cvt_pk_bf16_f32 v{xa}, v{f}, v{f+1}")
    g(f"v_cvt_pk_bf16_f32 v{va}, v{va}, v{va}")
    g(f"v_cvt_pk_bf16_f32 v{xa+1}, v{f+2}, v{f+3}")
    g(f"v_and_b32 v{va}, 0xffff0000, v{va}")
    g(f"v_sqrt_f32 v{va}, v{va}")
    g(f"v_cvt_pk_bf16_f32 v{xa+2}, v{f+4}, v{f+5}"); g(f"v_cvt_pk_bf16_f32 v{xa+3}, v{f+6}, v{f+7}")
    g(f"v_cvt_pk_bf16_f32 v{va}, v{va}, v{va}")
    for k in range(2):
        g(f"v_lshlrev_b32 v{f+2*k}, 16, v{xa+k}"); g(f"v_and_b32 v{f+2*k+1}, 0xffff0000, v{xa+k}")
    g(f"v_and_b32 v{m}, 0xffff0000, v{va}")
    g(f"v_rcp_f32 v{m}, v{m}")
    for k in range(2, 4):
        g(f"v_lshlrev_b32 v{f+2*k}, 16, v{xa+k}"); g(f"v_and_b32 v{f+2*k+1}, 0xffff0000, v{xa+k}")
    for k in range(4): g(f"v_pk_mul_f32 {vr(f+2*k,2)}, {vr(f+2*k,2)}, {vr(m,2)} op_sel_hi:[1,0]")
    for k in range(4): g(f"v_cvt_pk_bf16_f32 v{xa+k}, v{f+2*k}, v{f+2*k+1}")
    g(f"ds_write_b128 v3, {vr(xa,4)}")
    if not dq and not qack: g.stamp(3)
    g("s_waitcnt lgkmcnt(0)"); g.lq = []
    g(f"s_mul_i32 {sT}, {sE}, 0x9E3779B1"); g(f"s_add_u32 {sT}, {sT}, 0x7F4A7C15")
    g(f"v_mov_b32 v{vT}, {sT}")
    if wke == 2: wuk_quad(0); wuk_quad(1)
    g(f"s_waitcnt vmcnt({(1 if (loc and not pre0) else 0) + 4 * wke})")
    if dq: g.stamp(3)
    g.label("L_W_b0")
    g("s_mov_b32 s1, s69")
    g("s_barrier")
    g.stamp(1)
    xb = g.v(16, 4); wk = g.v(32, 4); ta = g.v(16, 4); Da = g.v(4, 4); Db = g.v(4, 4)
    qf = g.v(32, 4); chk = g.v()
    tq = qf
    for u in range(4):
        g.lds(f"ds_read_b128 {vr(xb+4*u,4)}, v{vxf} offset:{u*64}")
        for T in range(2):
            for hf in range(2):
                g.lds(f"ds_read_b64_tr_b16 {vr(tq+8*u+4*T+2*hf,2)}, {trad(T)[0]} offset:{L_WQ + u*8192 + hf*1024 + trad(T)[1]}", ("tr", u, T))
    if wk2: wuk_quad(1)
    for u in range(4):
        g.lwait(("tr", u, 0))
        g(f"v_mfma_f32_16x16x32_bf16 {vr(Da,4)}, {vr(tq+8*u,4)}, {vr(xb+4*u,4)}, {vr(Da,4) if u else 0}")
        g.lwait(("tr", u, 1))
        g(f"v_mfma_f32_16x16x32_bf16 {vr(Db,4)}, {vr(tq+8*u+4,4)}, {vr(xb+4*u,4)}, {vr(Db,4) if u else 0}")
    def pack_granule(msk):
        g(f"v_cvt_pk_bf16_f32 v{Ga+2}, v{Da}, v{Da+1}"); g(f"v_cvt_pk_bf16_f32 v{Ga+3}, v{Da+2}, v{Da+3}")
        g(f"v_cvt_pk_bf16_f32 v2, v{Db}, v{Db+1}"); g(f"v_cvt_pk_bf16_f32 v3, v{Db+2}, v{Db+3}")
        g(f"v_cndmask_b32 v{Ga+2}, v{Ga+2}, v2, {msk}"); g(f"v_cndmask_b32 v{Ga+3}, v{Ga+3}, v3, {msk}")
    g("s_mov_b32 exec_lo, 0x000f000f"); g("s_mov_b32 exec_hi, 0x000f000f")
    g("s_nop 4")
    pack_granule("s[70:71]")
    g(f"buffer_store_dwordx4 {vr(Ga,4)}, v{vqps}, {WS}, s67 offen {'' if loc else 'sc1'}")
    g("s_mov_b64 exec, -1")
    g.stamp(4)
    g("s_and_b32 s62, s6, 15"); g("s_cmp_lg_u32 s62, 0"); g("s_cbranch_scc1 L_W_nx")
    g("s_lshr_b32 s62, s6, 4"); g("s_lshl2_add_u32 s62, s62, s7"); g("s_lshl_b32 s62, s62, 9"); g(f"s_add_u32 s62, s62, {XNG}")
    g(f"v_lshlrev_b32 v2, 6, v{n}"); g(f"v_lshl_add_u32 v2, v{gg}, 4, v2")
    g("s_cmp_eq_u32 s3, 0"); g("s_cselect_b32 exec_lo, 0x00030003, 0"); g("s_mov_b32 exec_hi, exec_lo")
    for u in range(4): g(f"buffer_store_dwordx4 {vr(xb+4*u,4)}, v2, {WS}, s62 offen offset:{u*128} sc1")
    g("s_mov_b64 exec, -1")
    g.label("L_W_nx")
    def qp_loads():
        for u in range(4): g(f"buffer_load_dwordx4 {vr(qf+8*u,4)}, v{vqpl}, {WS}, s68 offen offset:{u*128} sc1")
    g("s_mov_b32 s63, 0")
    if wke == 0: wuk_quad(0)
    if wke <= 1 and not wk2: wuk_quad(1)
    qp_loads()
    g(f"s_waitcnt vmcnt({5 if wk2 else 4})")
    g.stamp(12)
    for u in range(4):
        for T in range(2): g.lds(f"ds_read_b128 {vr(wk+16*T+4*u,4)}, v{vkr+u} offset:{T*1024}")
    if debug == 1: g("s_waitcnt vmcnt(0)"); g.stamp(3)
    g("s_branch L_Wa_c")
    g.label("L_Wa")
    def restore(vaddr, soff):
        g("s_mov_b32 exec_lo, 0x000f000f"); g("s_mov_b32 exec_hi, 0x000f000f")
        g(f"buffer_store_dwordx4 {vr(Ga,4)}, v{vaddr}, {WS}, {soff} offen sc1")
        g("s_mov_b64 exec, -1")
    if loc:
        g("s_cmp_lg_u32 s63, 4"); g("s_cbranch_scc1 L_Wa_n")
        restore(vqps, "s67")
        g.label("L_Wa_n")
    qp_loads()
    g.label("L_Wa_c")
    g("s_add_u32 s63, s63, 1"); g(f"s_cmp_gt_u32 s63, {SPIN}"); g("s_cbranch_scc1 L_Wa_x")
    g("s_waitcnt vmcnt(0)")
    for u in range(4): g(f"v_sad_u32 v{chk}, v{qf+8*u}, {sT}, {('v%d' % chk) if u else 0}")
    g(f"v_cmp_ne_u32 vcc, 0, v{chk}")
    g("s_cbranch_vccnz L_Wa")
    g.label("L_Wa_x")
    g.count("s63")
    g("s_waitcnt vmcnt(0)")
    for u in range(4):
        for k in range(2): g(f"v_mov_b32_dpp v{qf+8*u+4+k}, v{qf+8*u+2+k} row_ror:8 {DPPF}")
    g.lwait0()
    g.stamp(5)
    for u in range(4):
        g(f"v_mfma_f32_16x16x32_bf16 {vr(Da,4)}, {vr(wk+4*u,4)}, {vr(qf+8*u+2,4)}, {vr(Da,4) if u else 0}")
        g(f"v_mfma_f32_16x16x32_bf16 {vr(Db,4)}, {vr(wk+16+4*u,4)}, {vr(qf+8*u+2,4)}, {vr(Db,4) if u else 0}")
    g("s_nop 6")
    for k in range(8): g(f"v_add_f32_dpp v{Da+k}, v{Da+k}, v{Da+k} quad_perm:[1,0,3,2] {DPPF}")
    assert Db == Da + 4
    for k in range(8): g(f"v_add_f32_dpp v{Da+k}, v{Da+k}, v{Da+k} quad_perm:[2,3,0,1] {DPPF}")
    qo = g.v(4, 4)
    for k in range(4): g(f"v_cvt_pk_bf16_f32 v{qo+k}, v{Da+2*k}, v{Da+2*k+1}")
    g("s_mov_b32 exec_lo, 0x00110011"); g("s_mov_b32 exec_hi, 0x00110011")
    g(f"buffer_store_dwordx4 {vr(qo,4)}, v{vqa}, {WS}, {sQAo} offen sc1")
    if hqe:
        g("s_mov_b64 exec, 1")
        g(f"buffer_store_dword v{vT}, v{l16}, {WS}, s66 offen")
    g("s_mov_b64 exec, -1")
    g.stamp(6)
    g(f"s_lshl_b32 s58, {sW}, 8")
    vA, vB = vk, vk + 1
    g(f"v_and_b32 v2, 0xff, v{vqA}"); g(f"v_lshl_add_u32 v{vA}, v{gg}, 10, v2"); g(f"v_xor_b32 v{vB}, 0x80, v{vA}")
    g(f"v_add_u32 v{vk+2}, 3072, v{vA}"); g(f"v_add_u32 v{vk+5}, 6144, v{vB}"); g(f"v_add_u32 v{vk+6}, 9216, v{vB}")
    hpv = g.v(4, 4); vz = g.v()
    sWOo = "s46"
    g(f"v_mov_b32 v{vz}, 0")
    if not hqe:
        g("v_mov_b32 v3, 0"); g("s_mov_b64 exec, 1")
        g("s_waitcnt vmcnt(0)"); g.stamp(3)
        g(f"buffer_store_dword v{vT}, v3, {WS}, s66 offen")
        g("s_mov_b64 exec, -1")
    if loc: restore(vqps, "s67")
    def wuv_quad(a):
        g(f"s_add_u32 m0, s60, {L_WUV + a*0x1000}"); g(f"s_add_u32 s61, {sQoff}, {a*0x20000}")
        quad(WUV, "s61")
    srd(24, 4 << 20)
    for a in range(pg): wuv_quad(a)
    sPOo = "s17"
    g(f"s_lshr_b32 {sPOo}, s6, 1"); g(f"s_lshl2_add_u32 {sPOo}, {sPOo}, s7"); g(f"s_lshl_b32 {sPOo}, {sPOo}, 15"); g(f"s_add_u32 {sPOo}, {sPOo}, s60")
    g("s_and_b32 s63, s6, 1"); g("s_lshl_b32 s63, s63, 6"); g(f"s_add_u32 {sPOo}, {sPOo}, s63"); g(f"s_add_u32 {sPOo}, {sPOo}, {PO}"); g(f"s_add_u32 s47, {sPOo}, 0x1000")
    vpl = g.v()
    g(f"v_lshlrev_b32 v{vpl}, 9, v{gg}"); g(f"v_lshl_add_u32 v{vpl}, v{r}, 7, v{vpl}"); g(f"v_lshl_add_u32 v{vpl}, v{c4}, 4, v{vpl}")
    g(f"v_lshrrev_b32 v{vop}, 1, v1"); g(f"v_mul_u32_u24 v{vop}, {OPS}, v{vop}"); g(f"v_and_b32 v2, 1, v1"); g(f"v_lshl_or_b32 v{vop}, v2, 4, v{vop}")
    g(f"""
    s_lshl4_add_u32 s62, s5, s4
    s_lshl_b32 s62, s62, 5
    s_mul_i32 s63, s3, {32*OPS}
    s_add_u32 s62, s62, s63
    s_add_u32 {sOPo}, s62, {OP}
    """)
    vwo = f
    srd(28, 4 << 20)
    acc = g.v(16, 4)
    uv = wk; wo = 0
    vlw, vlr, vcs, vclo, vbp = g.v(), g.v(), g.v(), g.v(), g.v()
    mk = f + 8
    g(f"v_lshl_or_b32 v{vf}, v{c4}, 3, v{vf}")
    g(f"v_lshlrev_b32 v{vlw}, 6, v{r}"); g(f"v_lshl_add_u32 v{vlw}, v{gg}, 5, v{vlw}"); g(f"v_lshl_add_u32 v{vlw}, v{c4}, 3, v{vlw}")
    g(f"s_mul_i32 s62, {sW}, 288"); g(f"s_add_u32 s62, s62, {L_LAT}"); g(f"v_add_u32 v{vlw}, s62, v{vlw}")
    g(f"v_mul_u32_u24 v{vlr}, 288, v{c4}"); g(f"v_lshl_add_u32 v{vlr}, v{gg}, 4, v{vlr}"); g(f"v_add_u32 v{vlr}, {L_LAT}, v{vlr}")
    g(f"v_bfe_u32 v{vcs}, v1, 1, 1"); g(f"v_lshlrev_b32 v{vcs}, 9, v{vcs}"); g(f"v_lshl_add_u32 v{vcs}, v{gg}, {4 if nat else 5}, v{vcs}"); g(f"v_and_b32 v2, 1, v1"); g(f"v_lshl_add_u32 v{vcs}, v2, {6 if nat else 4}, v{vcs}")
    g(f"v_and_b32 v2, 7, v1"); g(f"v_lshlrev_b32 v2, 9, v2"); g(f"v_lshl_add_u32 v2, v{gg}, 5, v2")
    g(f"v_and_b32 v3, 8, v1"); g(f"v_lshl_add_u32 v{vclo}, v3, 1, v2")
    g(f"s_lshl_b32 s62, {sW}, 6"); g(f"v_lshlrev_b32 v{vbp}, 2, v{gg}"); g(f"v_add_u32 v{vbp}, s62, v{vbp}")
    g(f"v_and_b32 v2, 1, v1"); g(f"v_lshlrev_b32 v2, 4, v2"); g(f"v_mov_b32 v3, 0xffff"); g(f"v_lshlrev_b32 v3, v2, v3"); g(f"v_bfe_u32 v2, v1, 1, 2")
    for k in range(4):
        g(f"v_cmp_eq_u32 vcc, {k}, v2"); g("s_nop 1"); g(f"v_cndmask_b32 v{mk+k}, 0, v3, vcc")
    g(f"s_lshl_b32 {sWOo}, s1, 15"); g(f"s_add_u32 {sWOo}, {sWOo}, s58")
    g(f"v_lshl_add_u32 v3, v{gg}, 3, v{r}"); g(f"v_lshlrev_b32 v3, 8, v3"); g(f"s_add_u32 s62, s60, {L_WO}"); g(f"v_add_u32 v3, s62, v3")
    for tl in range(8):
        g(f"v_xor_b32 v{vwo+tl}, {tl*32}, v{vf}"); g(f"v_add_u32 v{vwo+tl}, v{vwo+tl}, v3")
    g(f"v_mov_b32 v{hpv+2}, v{vT}")
    ALH = g.v(8, 4)
    for k in range(8): g(f"v_mov_b32 v{ALH+k}, 0")
    def wo_quad():
        for j, rg in enumerate((vA, vk + 2, vk + 5, vk + 6)):
            g(f"buffer_load_dwordx4 v{rg}, {WO}, {sWOo} offen offset:{j*1024} {NS}lds")
    def uv_reads():
        for u in range(4):
            for T in range(2):
                for hf in range(2):
                    g.lds(f"ds_read_b64_tr_b16 {vr(uv+16*T+4*u+2*hf,2)}, {trad(T)[0]} offset:{L_WUV + u*8192 + hf*1024 + trad(T)[1]}")
    def wuv_stream():
        for a in range(pg, 2):
            if gw >= 0 and a > 0: g(f"s_waitcnt vmcnt({gw})")
            wuv_quad(a)
    if gate == 1:
        g(f"s_lshl_b32 s62, s5, 8"); g(f"s_add_u32 s62, s62, {HQ}"); g("v_lshlrev_b32 v3, 2, v1")
        hint_wait(g, "L_Wg", 2, 3, "s62", 0, "s63")
    g.stamp(14)
    wuv_stream()
    def wo_stream():
        g(f"s_add_u32 m0, s60, {L_WO}"); g("s_nop 0")
        if gw >= 0 and wow: g(f"s_waitcnt vmcnt({gw})")
        wo_quad()
        g("s_add_u32 m0, m0, 0x1000"); g(f"s_add_u32 {sWOo}, {sWOo}, 0x4000")
        if gw >= 0 and wow: g(f"s_waitcnt vmcnt({gw})")
        wo_quad()
    def wo_reads():
        for tl in range(8):
            for hf in range(2): g.lds(f"ds_read_b64_tr_b16 {ar(wo+4*tl+2*hf,2)}, v{vwo+tl} offset:{hf*1024}")
    if wow: wo_stream()
    if opr: g(f"buffer_load_dword v254, v{vop}, {WS}, {sOPo} offen")
    sSTo, sCPs, sCPl, sCnt, sBl, sRL = "s16", "s18", "s19", "s20", "s21", "s22"
    g(f"s_lshr_b32 {sSTo}, s6, 2"); g(f"s_lshl_b32 {sSTo}, {sSTo}, 8"); g("s_and_b32 s63, s6, 3"); g(f"s_add_u32 {sSTo}, {sSTo}, s63"); g(f"s_lshl_b32 {sSTo}, {sSTo}, 4"); g(f"s_add_u32 {sSTo}, {sSTo}, {ST}")
    vst = g.v()
    g(f"v_lshlrev_b32 v{vst}, 6, v1")
    g(f"s_lshl_b32 s62, s6, 12"); g(f"s_add_u32 s62, s62, {CP}")
    g(f"s_lshl_b32 s63, s7, 7"); g(f"s_add_u32 {sCPl}, s62, s63")
    g(f"s_lshl_b32 s63, s7, 10"); g(f"s_add_u32 {sCPs}, s62, s63"); g(f"s_lshl_b32 s63, {sW}, 7"); g(f"s_add_u32 {sCPs}, {sCPs}, s63")
    g(f"s_lshr_b32 {sBl}, {sW}, 1"); g(f"s_lshl_b32 {sBl}, {sBl}, 5")
    g("s_mov_b32 s70, 0xaaaaaaaa"); g("s_mov_b32 s71, s70")
    g(f"s_waitcnt vmcnt({(8 if wow else 0) + (1 if opr else 0)})")
    g("s_barrier")
    g.stamp(7)
    uv_reads()
    if wow:
        g("s_waitcnt vmcnt(0)")
        wo_reads()
    g.stamp(8)
    TLO = (0, 1, 4, 5); THI = (2, 3, 6, 7)
    stt = xa; pf = qf; af = ta; wd = xa + 4; mx = xa + 5; wb = f + 12
    sHA = "s45"
    def po_loads():
        for u in range(4): g(f"buffer_load_dwordx4 {vr(pf+4*u,4)}, v{vpl}, {WS}, {sPOo if u < 2 else 's47'} offen offset:{(u&1)*2048} sc1")
    if cmb:
        g("s_lshr_b32 s62, s6, 4"); g("s_lshl_b32 s62, s62, 10"); g(f"s_add_u32 s62, s62, {FLA}")
        g(f"buffer_load_dword v2, v{l16}, {WS}, s62 offen sc1")
        g(f"s_lshl_b32 s63, s5, 8"); g(f"s_add_u32 s63, s63, {HB}"); g("v_lshlrev_b32 v3, 2, v1")
        g("s_waitcnt vmcnt(0)")
        g(f"v_cmp_ne_u32 vcc, {sT}, v2")
        g("s_cbranch_vccnz L_Wfa")
        g.label("L_Wfa_x")
        hint_wait(g, "L_Wh1", 2, 3, "s63", 0, sCnt)
        g(f"s_mov_b32 {sCnt}, 0")
        g(f"buffer_load_dwordx3 {vr(stt,3)}, v{vst}, {WS}, {sSTo} offen sc1")
        po_loads()
        if not wow: wo_stream()
        g(f"s_waitcnt vmcnt({4 if wow else 12})")
        g("s_branch L_Ws_c")
        g.label("L_Ws")
        g(f"buffer_load_dwordx3 {vr(stt,3)}, v{vst}, {WS}, {sSTo} offen sc1")
        po_loads()
        g(f"s_add_u32 {sCnt}, {sCnt}, 1"); g(f"s_cmp_gt_u32 {sCnt}, {SPIN}"); g("s_cbranch_scc1 L_Ws_x")
        g("s_waitcnt vmcnt(4)")
        g.label("L_Ws_c")
        g(f"v_cmp_ne_u32 vcc, {sT}, v{stt+2}")
        g("s_cbranch_vccnz L_Ws")
        g.label("L_Ws_x")
        g.count(sCnt)
        g.stamp(9)
    else:
        if hint:
            g("s_and_b32 s62, s4, 14"); g("s_lshr_b32 s63, s5, 2"); g("s_or_b32 s62, s62, s63"); g("s_lshl4_add_u32 s62, s5, s62"); g("s_lshl_b32 s62, s62, 7")
            g(f"s_add_u32 {sHA}, s62, {HA}"); g(f"s_lshl2_add_u32 s62, s7, {sHA}")
            hint_wait(g, "L_Wh1", 2, vz, sHA, 0, sCnt)
        g(f"s_mov_b32 {sCnt}, 0")
        g.label("L_Ws")
        if slp: g(f"s_sleep {slp}")
        g(f"buffer_load_dwordx3 {vr(stt,3)}, v{vst}, {WS}, {sSTo} offen sc1")
        if hint: g(f"buffer_load_dword v{stt+3}, v{vz}, {WS}, s62 offen offset:16 sc1")
        g(f"s_add_u32 {sCnt}, {sCnt}, 1"); g(f"s_cmp_gt_u32 {sCnt}, {SPIN}"); g("s_cbranch_scc1 L_Ws_x")
        g("s_waitcnt vmcnt(0)")
        g(f"v_cmp_ne_u32 vcc, {sT}, v{stt+2}")
        g("s_cbranch_vccnz L_Ws")
        g.label("L_Ws_x")
        g.count(sCnt)
        g("s_waitcnt vmcnt(0)")
        g.stamp(9)
        def po_loads():
            for u in range(4): g(f"buffer_load_dwordx4 {vr(pf+4*u,4)}, v{vpl}, {WS}, {sPOo if u < 2 else 's47'} offen offset:{(u&1)*2048} sc1")
        def po_first():
            po_loads()
            if not wow: wo_stream()
        if hint:
            g(f"v_cmp_ne_u32 s[64:65], {sT}, v{stt+3}")
            g("s_cmp_lg_u64 s[64:65], 0"); g("s_cbranch_scc1 L_Wp_n1")
            po_first()
            g.label("L_Wp_n1")
    g(f"v_mov_b32 v{mx}, v{stt}"); g("s_nop 1")
    reduce32(g, "max", mx, t)
    g(f"v_sub_f32 v{mx}, v{stt}, v{mx}")
    g(f"v_exp_f32 v{mx}, v{mx}")
    g("s_nop 0")
    g(f"v_cvt_pk_bf16_f32 v{wd}, v{mx}, v{mx}")
    for u in range(4): g.lds(f"ds_bpermute_b32 v{wb+u}, v{vbp}, v{wd} offset:{16*u}")
    g(f"v_and_b32 v{mx}, 0xffff0000, v{wd}")
    g(f"v_mul_f32 v{mx}, v{mx}, v{stt+1}"); g("s_nop 1")
    reduce32(g, "add", mx, t)
    g(f"v_rcp_f32 v{mx}, v{mx}")
    g.lwait0()
    for u in range(4):
        for k in range(4): g(f"v_and_b32 v{af+4*u+k}, v{wb+u}, v{mk+k}")
    g(f"v_readlane_b32 {sRL}, v{mx}, {sBl}")
    if not cmb:
        if hint:
            g("s_cmp_eq_u64 s[64:65], 0"); g("s_cbranch_scc1 L_Wp_n2")
            hint_wait(g, "L_Wh2", 2, vz, "s62", 16, sCnt)
        po_first()
        g.label("L_Wp_n2")
    if rall:
        g("s_lshl4_add_u32 s62, s5, s4"); g("s_lshl2_add_u32 s62, s62, s3"); g("s_lshl_b32 s62, s62, 2"); g(f"s_add_u32 s62, s62, {HW}")
    else:
        g("s_lshl4_add_u32 s62, s5, s4"); g("s_lshl_b32 s62, s62, 7"); g(f"s_add_u32 s62, s62, {HW}")
    g(f"s_mov_b32 s61, {sCnt}")
    g(f"s_mov_b32 {sCnt}, 0")
    if wow: g("s_branch L_Wp_c")
    else:
        if cmb:
            g(f"s_cmp_lg_u32 s61, 0"); g("s_cbranch_scc1 L_Wp_c")
        g("s_waitcnt vmcnt(8)")
        g("s_branch L_Wp_d")
    g.label("L_Wp")
    po_loads()
    g.label("L_Wp_c")
    g(f"s_add_u32 {sCnt}, {sCnt}, 1"); g(f"s_cmp_gt_u32 {sCnt}, {SPIN}"); g("s_cbranch_scc1 L_Wp_x")
    g("s_waitcnt vmcnt(0)")
    g.label("L_Wp_d")
    g(f"v_max3_u32 v{chk}, v{pf+3}, v{pf+7}, v{pf+11}"); g(f"v_max_u32 v{chk}, v{chk}, v{pf+15}")
    g(f"v_cmp_eq_u32 vcc, -1, v{chk}")
    g("s_cbranch_vccnz L_Wp")
    g.label("L_Wp_x")
    g.count(sCnt)
    g.stamp(10)
    for u in range(4): g(f"v_mfma_f32_16x16x32_bf16 {vr(Da,4)}, {vr(af+4*u,4)}, {vr(pf+4*u,4)}, {vr(Da,4) if u else 0}")
    g("s_mov_b32 exec_hi, 0")
    g("s_nop 6")
    for k in range(4): g(f"v_mul_f32 v{Da+k}, {sRL}, v{Da+k}")
    g(f"v_cvt_pk_bf16_f32 v{qo}, v{Da}, v{Da+1}"); g(f"v_cvt_pk_bf16_f32 v{qo+1}, v{Da+2}, v{Da+3}")
    g(f"ds_write_b64 v{vlw}, {vr(qo,2)}")
    g("s_mov_b64 exec, -1")
    g.lwait0()
    g("s_barrier")
    for u in range(4): g.lds(f"ds_read_b128 {vr(xb+4*u,4)}, v{vlr} offset:{u*64}", ("lf", u))
    for u in range(4):
        g.lwait(("lf", u))
        g(f"v_mfma_f32_16x16x32_bf16 {vr(Da,4)}, {vr(uv+4*u,4)}, {vr(xb+4*u,4)}, {vr(Da,4) if u else 0}")
        g(f"v_mfma_f32_16x16x32_bf16 {vr(Db,4)}, {vr(uv+16+4*u,4)}, {vr(xb+4*u,4)}, {vr(Db,4) if u else 0}")
    g("s_nop 6")
    for k in range(8): g(f"v_add_f32_dpp v{Da+k}, v{Da+k}, v{Da+k} quad_perm:[1,0,3,2] {DPPF}")
    g("s_mov_b32 exec_lo, 0x000f000f"); g("s_mov_b32 exec_hi, 0x000f000f")
    pack_granule("s[70:71]")
    g(f"buffer_store_dwordx4 {vr(Ga,4)}, v{vcs}, {WS}, {sCPs} offen {'' if loc else 'sc1'}")
    g("s_mov_b64 exec, -1")
    g.stamp(11)
    cl = pf
    g(f"s_mov_b32 {sCnt}, 1")
    g(f"buffer_load_dwordx4 {vr(cl,4)}, v{vclo}, {WS}, {sCPl} offen sc1")
    if not wow:
        g("s_waitcnt vmcnt(2)")
        wo_reads()
    g("s_branch L_Wd_c")
    g.label("L_Wd")
    if loc:
        g(f"s_cmp_lg_u32 {sCnt}, 6"); g("s_cbranch_scc1 L_Wd_n")
        restore(vcs, sCPs)
        g.label("L_Wd_n")
    g(f"buffer_load_dwordx4 {vr(cl,4)}, v{vclo}, {WS}, {sCPl} offen sc1")
    g(f"s_add_u32 {sCnt}, {sCnt}, 1"); g(f"s_cmp_gt_u32 {sCnt}, {SPIN}"); g("s_cbranch_scc1 L_Wd_x")
    g.label("L_Wd_c")
    g("s_waitcnt vmcnt(0)")
    g(f"v_cmp_ne_u32 vcc, {sT}, v{cl}")
    g("s_cbranch_vccnz L_Wd")
    g.label("L_Wd_x")
    g.count(sCnt)
    g("s_waitcnt vmcnt(0)")
    def done_hint():
        if rall: g("s_mov_b64 exec, 1")
        else: g(f"s_cmp_eq_u32 {sW}, 0"); g("s_cselect_b64 exec, 1, 0")
        g(f"buffer_store_dword v{vT}, v{vz}, {WS}, s62 offen")
        g("s_mov_b64 exec, -1")
    if hintr and hre: done_hint()
    AL, AH = ALH, ALH + 4
    for k in range(2):
        g(f"v_mov_b32_dpp v{AL+k}, v{cl+2+k} quad_perm:[0,1,2,3] row_mask:0xf bank_mask:0x3")
        g(f"v_mov_b32_dpp v{AL+2+k}, v{cl+2+k} row_ror:8 row_mask:0xf bank_mask:0x3")
        g(f"v_mov_b32_dpp v{AH+k}, v{cl+2+k} row_ror:8 row_mask:0xf bank_mask:0xc")
        g(f"v_mov_b32_dpp v{AH+2+k}, v{cl+2+k} quad_perm:[0,1,2,3] row_mask:0xf bank_mask:0xc")
    g.lwait0()
    g("s_nop 0")
    for k in range(4): g(f"v_mfma_f32_16x16x32_bf16 {vr(acc+4*k,4)}, {vr(AL,4)}, {ar(wo+4*TLO[k],4)}, 0")
    for k in range(4): g(f"v_mfma_f32_16x16x32_bf16 {vr(acc+4*k,4)}, {vr(AH,4)}, {ar(wo+4*THI[k],4)}, {vr(acc+4*k,4)}")
    def out_pack(acc, R, U, dst, vaddr, soff):
        g("s_nop 4")
        g(f"v_pk_add_f32 {vr(R,2)}, {vr(acc,2)}, {vr(acc+2,2)}")
        g(f"v_pk_add_f32 {vr(U,2)}, {vr(acc+4,2)}, {vr(acc+6,2)}")
        g(f"v_pk_add_f32 {vr(R+2,2)}, {vr(acc+8,2)}, {vr(acc+10,2)}")
        g(f"v_pk_add_f32 {vr(U+2,2)}, {vr(acc+12,2)}, {vr(acc+14,2)}")
        g("s_nop 0")
        for k in range(4): g(f"v_permlane16_swap_b32 v{R+k}, v{U+k}")
        g("s_nop 0")
        g(f"v_pk_add_f32 {vr(R,2)}, {vr(R,2)}, {vr(U,2)}"); g(f"v_pk_add_f32 {vr(R+2,2)}, {vr(R+2,2)}, {vr(U+2,2)}")
        g(f"v_cvt_pk_bf16_f32 v{dst}, v{R}, v{R+1}"); g(f"v_cvt_pk_bf16_f32 v{dst+1}, v{R+2}, v{R+3}")
        g(f"buffer_store_dwordx4 {vr(dst,4)}, v{vaddr}, {WS}, {soff} offen sc1")
    out_pack(acc, qo, Da, hpv, vop, sOPo)
    if hintr and not hre: done_hint()
    if loc: restore(vcs, sCPs)
    g.stamp(2)
    dump_stamps(g, "W")
    g("s_endpgm")
    if cmb: flag_fallback(g, "L_Wfa", 2, l16, "s62", sCnt)

    g.label("L_A2")
    g.lq = []
    g("""
    s_load_dword s43, s[8:9], 0
    s_load_dwordx2 s[52:53], s[0:1], 72
    s_load_dwordx2 s[28:29], s[0:1], 40
    s_load_dwordx2 s[60:61], s[0:1], 56
    s_load_dwordx2 s[68:69], s[0:1], 32
    s_load_dwordx2 s[64:65], s[0:1], 64
    """)
    dbg_init()
    g.reset_v(12)
    vj = l16
    vfl, vfo = g.v(), g.v()
    srd(12, 2048); srd(52, 2048)
    g(f"v_lshlrev_b32 v{vfo}, 7, v1"); g("s_lshl_b32 s34, s6, 10"); g(f"s_add_u32 s34, s34, {FL1}")
    n, gg, r, c4 = g.v(), g.v(), g.v(), g.v()
    g(f"v_and_b32 v{n}, 15, v1"); g(f"v_lshrrev_b32 v{gg}, 4, v1"); g(f"v_bfe_u32 v{r}, v1, 2, 2"); g(f"v_and_b32 v{c4}, 3, v1")
    sHX = "s35"
    g(f"s_mov_b32 {sHX}, {'s6' if swap else 0}")
    vro, xr = g.v(), g.v()
    g(f"v_and_b32 v2, 1, v{gg}"); g(f"v_lshlrev_b32 v{vro}, 10, v2"); g(f"v_lshrrev_b32 v2, 1, v{gg}"); g(f"v_lshl_add_u32 v{vro}, v2, 7, v{vro}")
    g(f"v_and_b32 v2, 1, v1"); g(f"v_lshl_add_u32 v{vro}, v2, 1, v{vro}")
    sRo = "s26"
    g(f"""
    s_sub_u32 s56, s4, 16
    s_lshl4_add_u32 {sRid}, s5, s56
    s_lshr_b32 s56, {sRid}, 5
    s_lshl_b32 {sRo}, s56, 8
    s_bfe_u32 s56, {sRid}, 0x20003
    s_lshl_b32 s56, s56, 5
    s_add_u32 {sRo}, {sRo}, s56
    s_and_b32 s56, {sRid}, 7
    s_lshl2_add_u32 {sRo}, s56, {sRo}
    """)
    if adl == 2: pfk_load(); abody(0, 0); abody(1, 0)
    vkq = g.v(4); vpv = g.v(16); vpw = g.v(2); vpr = g.v(2); vmx = g.v(); vqd = g.v(); vqr = g.v(); vqc = g.v(); vst = g.v()
    for k in range(4):
        g(f"v_add_u32 v2, {4*k}, v{gg}"); g(f"v_xor_b32 v2, v2, v{n}"); g(f"v_lshlrev_b32 v2, 4, v2"); g(f"v_lshl_add_u32 v2, v{n}, 10, v2"); g(f"v_add_u32 v{vkq+k}, {sRow}, v2")
    g(f"v_and_b32 v2, 1, v{gg}"); g(f"v_lshlrev_b32 v2, 2, v2"); g(f"v_add_lshl_u32 v2, v2, v{r}, 1")
    g(f"v_lshrrev_b32 v3, 1, v{c4}"); g(f"v_xor_b32 v2, v2, v3"); g(f"v_lshlrev_b32 v2, 4, v2")
    g(f"v_and_b32 v3, 1, v1"); g(f"v_lshl_add_u32 v2, v3, 3, v2")
    g(f"v_lshl_add_u32 v3, v{gg}, 2, v{r}"); g(f"v_lshl_add_u32 v2, v3, 11, v2")
    g(f"s_lshl_b32 s56, {sHX}, 16"); g(f"s_lshl_b32 s58, s3, 8"); g("s_add_u32 s56, s56, s58"); g(f"v_add_u32 v2, s56, v2")
    for T in range(8):
        g(f"v_xor_b32 v{vpv+2*T}, {T*32}, v2")
        g(f"v_xor_b32 v3, {T*32+16}, v2"); g(f"v_add_u32 v{vpv+2*T+1}, 0x400, v3")
    g(f"v_mul_u32_u24 v2, 272, v{n}"); g(f"v_lshrrev_b32 v3, 1, v{gg}"); g(f"v_lshl_add_u32 v{vpw}, v3, 4, v2"); g(f"v_and_b32 v3, 1, v{gg}"); g(f"v_lshl_add_u32 v{vpw}, v3, 2, v{vpw}")
    g(f"s_lshl_b32 s56, {sHX}, 7"); g(f"s_xor_b32 s58, s56, 0x80"); g(f"s_lshl_b32 s59, s3, 5"); g(f"s_add_u32 s59, s59, {L_P}")
    g("s_add_u32 s24, s58, s59"); g("s_add_u32 s59, s56, s59")
    g(f"v_add_u32 v{vpw+1}, s24, v{vpw}"); g(f"v_add_u32 v{vpw}, s59, v{vpw}")
    g(f"v_lshl_add_u32 v2, v{gg}, 4, v2"); g(f"s_add_u32 s56, s56, {L_P}"); g(f"s_add_u32 s58, s58, {L_P}")
    g(f"v_add_u32 v{vpr}, s56, v2"); g(f"v_add_u32 v{vpr+1}, s58, v2")
    g(f"v_lshlrev_b32 v{vmx}, 2, v{n}"); g(f"v_add_u32 v{vmx}, {L_MX}, v{vmx}")
    g(f"v_lshlrev_b32 v{vqd}, 6, v{n}"); g(f"v_lshl_add_u32 v{vqd}, v{gg}, 4, v{vqd}")
    g(f"v_add_u32 v{vqr}, {L_QA}, v{vj}")
    sQAl, sQAm, sSTs = "s27", "s30", "s31"
    g(f"""
    s_lshl_b32 {sQAm}, s3, 12
    s_lshr_b32 s56, s7, 5
    s_lshl1_add_u32 s56, s56, s6
    s_lshl_b32 s56, s56, 14
    s_add_u32 {sQAl}, s56, {sQAm}
    s_add_u32 {sQAl}, {sQAl}, {QA}
    s_add_u32 {sQAm}, {sQAm}, {L_QA}
    s_lshl_b32 {sSTs}, s6, 14
    s_lshl_b32 s56, s7, 6
    s_add_u32 {sSTs}, {sSTs}, s56
    s_add_u32 {sSTs}, {sSTs}, {ST}
    """)
    g(f"v_add_u32 v{vqc}, {sQAm}, v{vj}")
    g(f"v_lshlrev_b32 v{vst}, 12, v{r}"); g(f"v_lshl_add_u32 v{vst}, v{c4}, 4, v{vst}")
    vpo2 = g.v()
    g(f"s_lshl2_add_u32 s56, {sRid}, s3"); g("s_lshl_b32 s56, s56, 13"); g(f"v_add_u32 v{vpo2}, s56, v{vfo}")
    vf1, vf2 = g.v(), g.v()
    srd(60, 512*1376*2); srd(64, 512*1376*2)
    g("s_bfe_u32 s56, s4, 0x20002"); g("s_mul_i32 s58, s5, 3"); g("s_cmp_lt_u32 s56, 3"); g("s_cselect_b32 s58, s58, 64"); g("s_add_u32 s56, s56, s58"); g("s_and_b32 s58, s4, 3")
    g("s_lshl2_add_u32 s24, s58, s3"); g(f"s_mul_i32 s24, s24, {32*2752}"); g("s_lshl_b32 s25, s56, 7"); g("s_add_u32 s24, s24, s25")
    g("s_lshl2_add_u32 s25, s56, s58"); g("s_lshl2_add_u32 s25, s25, s3"); g("s_lshl_b32 s25, s25, 12")
    g("s_mov_b32 s70, s56"); g("s_mov_b32 s71, s58")
    g("s_cmp_lt_u32 s56, 22"); g(f"s_cselect_b32 s24, s24, {OOB}")
    g(f"v_lshrrev_b32 v2, 1, v1"); g(f"v_mul_u32_u24 v{vf1}, 2752, v2"); g("v_and_b32 v2, 1, v1"); g("v_mul_u32_u24 v2, 124, v2"); g(f"v_add_u32 v{vf1}, v{vf1}, v2")
    g(f"v_and_b32 v{vf2}, 31, v1"); g(f"v_lshlrev_b32 v{vf2}, 7, v{vf2}")
    vzA = g.v()
    g(f"v_mov_b32 v{vzA}, 0"); g(f"s_lshl_b32 s38, {sRid}, 7"); g(f"s_add_u32 s36, s38, {HA}"); g("s_lshl2_add_u32 s37, s3, s36"); g(f"s_add_u32 s38, s38, {HW}")
    if cmb: g(f"s_lshl2_add_u32 s37, {sRid}, s3"); g("s_lshl_b32 s37, s37, 2"); g(f"s_add_u32 s37, s37, {HB-16}")
    xbA = g.v(16, 4); vxa = g.v()
    g(f"v_and_b32 v2, 1, v1"); g(f"v_lshlrev_b32 v{vxa}, 6, v2"); g(f"v_lshl_add_u32 v{vxa}, v{gg}, 4, v{vxa}")
    g(f"s_lshl2_add_u32 s39, s6, {'s3' if fk else 's71'}"); g("s_lshl_b32 s39, s39, 9"); g(f"s_add_u32 s39, s39, {XNG}")
    g(f"s_lshr_b32 s58, {sRid}, 2"); g("s_lshl_b32 s58, s58, 11"); g(f"s_add_u32 s58, s58, {HP}")
    g(f"s_lshl_b32 s44, {sW}, 9"); g("s_add_u32 s44, s44, s58"); g("s_lshl_b32 s45, s71, 7"); g("s_add_u32 s44, s44, s45"); g("s_lshl_b32 s45, s71, 9"); g("s_add_u32 s45, s45, s58")
    ones = g.v(4, 4)
    for k in range(4): g(f"v_mov_b32 v{ones+k}, 0x3f803f80")
    if adl == 1: pfk_load(); abody(0, 0); abody(1, 0)
    g(f"v_mov_b32 v2, 0xff800000")
    g(f"ds_write_b32 v{vmx}, v2")
    g("v_mov_b32 v3, 0")
    g(f"ds_write_b32 v{vmx}, v3 offset:64")
    g.lwait0()
    g(f"s_mul_i32 {sT}, {sE}, 0x9E3779B1"); g(f"s_add_u32 {sT}, {sT}, 0x7F4A7C15")
    abody(2, 0); abody(3, 0)
    g(f"s_xor_b32 s58, {sRow}, 0x10000"); g("s_mov_b32 m0, s58"); g("s_add_u32 s33, s58, s57")
    abody(0, 1); abody(1, 1)
    g("s_waitcnt vmcnt(8)")
    g("s_barrier")
    for u in range(16): g.lds(f"ds_read_b128 {ar(4*u,4)}, v{vkq+(u&3)} offset:{(u>>2)*256}")
    if cmb:
        g("s_lshl_b32 s58, s6, 6"); g("s_add_u32 s58, s58, s7"); g("s_lshl_b32 s58, s58, 4"); g(f"s_add_u32 s58, s58, {FLA}")
        g(f"v_mov_b32 v2, {sT}"); g(f"s_cmp_eq_u32 {sW}, 0"); g("s_cselect_b64 exec, 1, 0")
        g(f"buffer_store_dword v2, v{vzA}, {WS}, s58 offen sc1")
        g("s_mov_b64 exec, -1")
    if not noflag: g(f"buffer_load_dword v{vfl}, v{l16}, {WS}, s34 offen sc1")
    vhq, vl4 = g.v(), g.v()
    g(f"s_lshl_b32 s46, s5, 8"); g(f"s_add_u32 s46, s46, {HQ}"); g(f"v_lshlrev_b32 v{vl4}, 2, v1")
    if qae: g(f"buffer_load_dword v{vhq}, v{vl4}, {WS}, s46 offen sc1")
    abody(2, 1); abody(3, 1)
    def ffn_prefetch():
        if not fk: g(f"buffer_load_dword v254, v{vzA}, {WS}, s44 offen")
        if pff:
            g(f"buffer_load_dword v255, v{vf1}, s[60:63], s24 offen")
            g(f"buffer_load_dword v255, v{vf2}, s[64:67], s25 offen")
    if pffe == 1: ffn_prefetch()
    for ks in range(2):
        for T in range(8):
            for hf in range(2):
                g.lds(f"ds_read_b64_tr_b16 {ar(128+(ks*8+T)*4+2*hf,2)}, v{vpv+2*T+hf} offset:{ks*32768}")
    for k in range(4): g(f"v_xor_b32 v{vkq+k}, 0x10000, v{vkq+k}")
    for k in range(16): g(f"v_xor_b32 v{vpv+k}, 0x10000, v{vpv+k}")
    g(f"s_waitcnt vmcnt({8 + (3 if pffe == 1 else 0)})")
    if not noflag:
        g(f"v_cmp_ne_u32 vcc, {sT}, v{vfl}")
        g("s_cbranch_vccnz L_Af1")
    g.label("L_Af1_x")
    g.stamp(11)
    qf = g.v(64, 4); chk = g.v()
    def qa_dma():
        for j in range(4): g(f"buffer_load_dwordx4 v{vqd}, {WS}, {sQAl} offen offset:{j*1024} sc1 lds")
    def qa_check():
        for j in range(4): g(f"ds_read_b128 {vr(qf+4*j,4)}, v{vqc} offset:{j*1024}")
        g.lwait0()
        g(f"v_max3_u32 v{chk}, v{qf+3}, v{qf+7}, v{qf+11}"); g(f"v_max_u32 v{chk}, v{chk}, v{qf+15}")
        g(f"v_cmp_eq_u32 vcc, -1, v{chk}")
    g(f"s_mov_b32 m0, {sQAm}")
    g(f"s_mov_b32 {sCnt}, 1")
    if hq:
        if qae:
            g(f"v_cmp_ne_u32 vcc, {sT}, v{vhq}")
            g("s_cbranch_vccnz L_Aq_l")
            qa_dma()
            g("s_waitcnt vmcnt(4)")
            g("s_branch L_Aq_m")
            g.label("L_Aq_l")
        g("s_waitcnt vmcnt(0)")
        g.label("L_Aq_m")
        g.stamp(5)
        for u in range(16): g.lds(f"ds_read_b128 {ar(64+4*u,4)}, v{vkq+(u&3)} offset:{(u>>2)*256}")
        if qae: g("s_cbranch_vccz L_Aq_n")
        hint_wait(g, "L_Ahq", 2, vl4, "s46", 0, sCnt)
        g(f"s_mov_b32 {sCnt}, 1")
        qa_dma()
        g.label("L_Aq_n")
    elif qal:
        g("s_waitcnt vmcnt(0)")
        qa_dma()
    else:
        qa_dma()
        g("s_waitcnt vmcnt(4)")
    if not hq:
        g.stamp(5)
        for u in range(16): g.lds(f"ds_read_b128 {ar(64+4*u,4)}, v{vkq+(u&3)} offset:{(u>>2)*256}")
    g("s_barrier")
    if not hq:
        g("s_waitcnt vmcnt(0) lgkmcnt(8)")
        qa_check()
        g("s_cbranch_vccz L_Aq_1")
        qa_dma()
        g.label("L_Aq_1")
    for ks in range(2):
        for T in range(8):
            for hf in range(2):
                g.lds(f"ds_read_b64_tr_b16 {ar(128+((ks+2)*8+T)*4+2*hf,2)}, v{vpv+2*T+hf} offset:{ks*32768}")
    if not hq: g("s_cbranch_vccz L_Aq_x")
    g("s_branch L_Aq_c")
    g.label("L_Aq")
    if qsl: g(f"s_sleep {qsl}")
    qa_dma()
    g.label("L_Aq_c")
    g(f"s_add_u32 {sCnt}, {sCnt}, 1"); g(f"s_cmp_gt_u32 {sCnt}, {SPIN}"); g("s_cbranch_scc1 L_Aq_y")
    g("s_waitcnt vmcnt(0) lgkmcnt(8)")
    save = list(g.lq)
    qa_check()
    g("s_cbranch_vccnz L_Aq")
    g.label("L_Aq_y")
    g("s_waitcnt vmcnt(0)")
    g.label("L_Aq_x")
    g.lq = save
    g.count(sCnt)
    g("s_barrier")
    g.stamp(6)
    SX = g.v(4, 4); SY = g.v(4, 4); O = g.v(32, 4); pfr = g.v(16, 4); LD = g.v(4, 4); pk = g.v(16, 4)
    EX = g.v(8, 4); STG = g.v(4, 4); mxv, t2 = g.v(), g.v()
    AHEAD = 10
    for u in range(AHEAD): g.lds(f"ds_read_b128 {vr(qf+4*u,4)}, v{vqr} offset:{u*1024}", ("q", u))
    if gate == 2:
        g(f"v_mov_b32 v{STG+2}, {sT}"); g(f"s_cmp_eq_u32 {sW}, 0"); g("s_cselect_b64 exec, 1, 0")
        g(f"buffer_store_dword v{STG+2}, v{vzA}, {WS}, s36 offen offset:32")
        g("s_mov_b64 exec, -1")
    if pfv:
        if pfv == 1: g("s_mov_b32 exec_lo, 0")
        g(f"global_load_dword v255, v6, s[68:69]")
        g("s_mov_b64 exec, -1")
    def xn_loads():
        for u in range(4): g(f"buffer_load_dwordx4 {vr(xbA+4*u,4)}, v{vxa}, {WS}, s39 offen offset:{u*128} sc1")
    if xnl == 0: xn_loads()
    if not pffe: ffn_prefetch()
    if pfo and pfoe: g(f"global_load_dword v255, v{vpo2}, s[28:29]")
    g(f"s_mov_b32 s56, {KSCALE:#x}")
    for u in range(16):
        g.lwait(("q", u))
        g(f"v_mfma_f32_16x16x32_bf16 {vr(SX,4)}, {ar(4*u,4)}, {vr(qf+4*u,4)}, {vr(SX,4) if u else 0}")
        if u + AHEAD < 16: g.lds(f"ds_read_b128 {vr(qf+4*(u+AHEAD),4)}, v{vqr} offset:{(u+AHEAD)*1024}", ("q", u + AHEAD))
    def my(u): g(f"v_mfma_f32_16x16x32_bf16 {vr(SY,4)}, {ar(64+4*u,4)}, {vr(qf+4*u,4)}, {vr(SY,4) if u else 0}")
    def pexp(H):
        for k in range(4): g(f"v_exp_f32 v{EX+4*H+k}, v{EX+4*H+k}")
    def pwrite(H):
        g(f"v_cvt_pk_bf16_f32 v{pk+2*H}, v{EX+4*H}, v{EX+4*H+2}"); g(f"v_cvt_pk_bf16_f32 v{pk+2*H+1}, v{EX+4*H+1}, v{EX+4*H+3}")
        g(f"ds_write2_b32 v{vpw+H}, v{pk+2*H}, v{pk+2*H+1} offset1:2")
    my(0); my(1); my(2)
    g("s_nop 4")
    g(f"v_max3_f32 v{mxv}, v{SX}, v{SX+1}, v{SX+2}")
    my(3)
    g(f"v_max_f32 v{mxv}, v{mxv}, v{SX+3}")
    g(f"ds_max_f32 v{vmx}, v{mxv}")
    my(4); my(5); my(6)
    g.lwait0()
    g("s_barrier")
    g(f"ds_read_b32 v{mxv}, v{vmx}")
    my(7); my(8); my(9)
    g.lwait0()
    g(f"v_mul_f32 v{STG}, s56, v{mxv}")
    my(10)
    for k in range(2): g(f"v_fma_f32 v{EX+k}, v{SX+k}, s56, -v{STG}")
    my(11)
    for k in range(2, 4): g(f"v_fma_f32 v{EX+k}, v{SX+k}, s56, -v{STG}")
    my(12)
    g(f"v_exp_f32 v{EX}, v{EX}")
    my(13)
    g(f"v_exp_f32 v{EX+1}, v{EX+1}")
    my(14)
    g(f"v_exp_f32 v{EX+2}, v{EX+2}")
    my(15)
    g(f"v_exp_f32 v{EX+3}, v{EX+3}")
    g(f"v_mov_b32 v{STG+2}, {sT}")
    pwrite(0)
    g(f"s_mov_b32 s57, {f2u(40.0):#x}")
    g("s_nop 1")
    for k in range(4): g(f"v_fma_f32 v{EX+4+k}, v{SY+k}, s56, -v{STG}")
    g(f"v_max3_f32 v{t2}, v{EX+4}, v{EX+5}, v{EX+6}")
    g(f"v_exp_f32 v{EX+4}, v{EX+4}")
    g(f"v_max_f32 v{t2}, v{t2}, v{EX+7}")
    g(f"v_exp_f32 v{EX+5}, v{EX+5}")
    g(f"v_cmp_lt_f32 vcc, s57, v{t2}")
    g(f"v_exp_f32 v{EX+6}, v{EX+6}")
    g(f"v_exp_f32 v{EX+7}, v{EX+7}")
    g("s_cbranch_vccnz L_Aovf")
    g.label("L_Aovf_x")
    pwrite(1)
    g.lwait0()
    g("s_barrier")
    g.stamp(7)
    g.label("L_Apv")
    g.lds(f"ds_read_b32 v{t2}, v{vmx} offset:64", "ovf")
    for ks in range(4): g.lds(f"ds_read_b128 {vr(pfr+4*ks,4)}, v{vpr+(ks>>1)} offset:{(ks&1)*64}", ("p", ks))
    g.lwait("ovf")
    g(f"v_cmp_ne_u32 vcc, 0, v{t2}")
    g("s_cbranch_vccnz L_Aslow")
    g(f"s_cmp_lg_u32 {sW}, 3"); g("s_cbranch_scc1 L_Anol")
    save = list(g.lq)
    g.lwait(("p", 3))
    for ks in range(4): g(f"v_mfma_f32_16x16x32_bf16 {vr(LD,4)}, {vr(ones,4)}, {vr(pfr+4*ks,4)}, {vr(LD,4) if ks else 0}")
    g.label("L_Anol")
    g.lq = save
    def epi(b):
        for q in range(2):
            g(f"v_cvt_pk_bf16_f32 v{pk+4*b+2*q}, v{O+8*b+4*q}, v{O+8*b+4*q+1}")
            yield
            g(f"v_cvt_pk_bf16_f32 v{pk+4*b+2*q+1}, v{O+8*b+4*q+2}, v{O+8*b+4*q+3}")
            yield
        g(f"buffer_store_dwordx4 {vr(pk+4*b,4)}, v{vpo}, {WS}, {sPOs} offen offset:{b*128} sc1")
        if hint and b == hpos:
            g("s_mov_b64 exec, 1")
            g(f"buffer_store_dword v{STG+2}, v{vzA}, {WS}, s37 offen offset:16")
            g("s_mov_b64 exec, -1")
        yield
    pend = None
    for b in range(4):
        cnt = 0
        for ks in range(4):
            if b == 0: g.lwait(("p", ks))
            for T in (2 * b, 2 * b + 1):
                g(f"v_mfma_f32_16x16x32_bf16 {vr(O+4*T,4)}, {ar(128+(ks*8+T)*4,4)}, {vr(pfr+4*ks,4)}, {vr(O+4*T,4) if ks else 0}")
                cnt += 1
                if b == 0 and cnt == 8:
                    g(f"s_cmp_lg_u32 {sW}, 3"); g("s_cbranch_scc1 L_Anos")
                    g(f"v_mov_b32 v{STG+1}, v{LD}")
                    g("s_mov_b64 exec, 0xffff")
                    g(f"buffer_store_dwordx4 {vr(STG,4)}, v{vst}, {WS}, {sSTs} offen sc1")
                    if hint and not cmb:
                        g("s_mov_b64 exec, 1")
                        g(f"buffer_store_dword v{STG+2}, v{vzA}, {WS}, s36 offen")
                    g("s_mov_b64 exec, -1")
                    g.label("L_Anos")
                if pend is not None and cnt >= 4:
                    if cnt == 4: g("s_nop 1")
                    next(pend, None)
        if pend is not None:
            for _ in pend: pass
        pend = epi(b)
    g("s_nop 4")
    for _ in pend: pass
    g.stamp(4)
    L_F1, L_F2 = 0, 0x4000
    xb = xbA; ta = qf + 16; w2f = qf + 32; hp = qf + 48; acc = O; Da = SX; hpv = LD; hlo = EX; hhi = EX + 2
    vw2 = vpv; vA = vpv + 8; vt1, vt2, vh, vop = vpv + 12, vpv + 13, vpv + 14, vpv + 15
    L_H = 0x8000
    if fk:
        g(f"v_lshrrev_b32 v2, 1, v1"); g(f"v_mul_u32_u24 v{vt1}, 2752, v2"); g(f"v_and_b32 v2, 1, v1"); g(f"v_lshlrev_b32 v2, 4, v2"); g(f"v_add_u32 v{vt1}, v2, v{vt1}")
        g(f"v_lshl_add_u32 v{vh}, v{gg}, 5, v2"); g(f"v_add_u32 v{vh}, {L_H}, v{vh}")
    else:
        g(f"v_lshrrev_b32 v2, 3, v1"); g(f"v_mul_u32_u24 v{vt1}, 2752, v2"); g(f"v_and_b32 v2, 7, v1"); g(f"v_lshl_add_u32 v{vt1}, v2, 4, v{vt1}")
        g(f"v_lshlrev_b32 v{vh}, 6, v2"); g(f"v_lshl_add_u32 v{vh}, v{gg}, 4, v{vh}")
    g(f"v_lshlrev_b32 v2, 1, v{gg}"); g(f"v_xor_b32 v2, v2, v{n}"); g(f"v_lshlrev_b32 v2, 4, v2"); g(f"v_lshl_add_u32 v{vA}, v{gg}, 10, v2"); g(f"v_xor_b32 v3, 0x80, v{vA}")
    g(f"v_add_u32 v{vA+1}, 3072, v3"); g(f"v_add_u32 v{vA+2}, 6144, v{vA}"); g(f"v_add_u32 v{vA+3}, 9216, v3")
    g(f"s_lshl_b32 s59, {sW}, 12"); g("s_mov_b32 m0, s59")
    g("s_lshl2_add_u32 s25, s70, s71"); g("s_lshl_b32 s32, s25, 14"); g(f"s_lshl_b32 s33, {sW}, 8"); g("s_add_u32 s32, s32, s33")
    if poack: g("s_waitcnt vmcnt(0)")
    g.stamp(12)
    g("s_cmp_ge_u32 s70, 22"); g("s_cbranch_scc1 L_Anf1")
    if fk:
        if not pff: g(f"buffer_load_dword v255, v{vf1}, s[60:63], s24 offen")
        g(f"s_mul_i32 s24, {sW}, {128*2752}"); g("s_lshl_b32 s58, s25, 5"); g("s_add_u32 s24, s24, s58")
    if xnl == 1: xn_loads()
    for j in range(4):
        if j: g("s_add_u32 m0, m0, 0x400"); g(f"s_add_u32 s24, s24, {(32 if fk else 8)*2752}")
        g(f"buffer_load_dwordx4 v{vt1}, s[60:63], s24 offen lds")
    g(f"s_add_u32 m0, s59, {L_F2}"); g("s_nop 0")
    for j in range(4): g(f"buffer_load_dwordx4 v{vA+j}, s[64:67], s32 offen offset:{j*1024} lds")
    g.label("L_Anf1")
    if pfo and not pfoe: g(f"global_load_dword v255, v{vpo2}, s[28:29]")
    g("s_cmp_ge_u32 s70, 22"); g("s_cbranch_scc1 L_Anf2")
    g(f"v_lshl_add_u32 v{vt2}, v{gg}, 3, v{r}"); g(f"v_lshlrev_b32 v{vt2}, {5 if fk else 7}, v{vt2}"); g(f"v_lshl_add_u32 v{vt2}, v{c4}, 3, v{vt2}")
    g(f"s_lshl_b32 s58, {sW}, {12 if fk else 5}"); g(f"v_add_u32 v{vt2}, s58, v{vt2}")
    g(f"v_and_b32 v2, 1, v{gg}"); g(f"v_lshl_or_b32 v2, v2, 2, v{r}"); g(f"v_lshlrev_b32 v2, 5, v2"); g(f"v_lshl_or_b32 v2, v{c4}, 3, v2")
    g(f"v_lshl_add_u32 v3, v{gg}, 2, v{r}"); g(f"v_lshlrev_b32 v3, 8, v3"); g(f"s_add_u32 s58, s59, {L_F2}"); g(f"v_add_u32 v3, s58, v3")
    for tl in range(8):
        g(f"v_xor_b32 v{vw2+tl}, {tl*32}, v2"); g(f"v_add_u32 v{vw2+tl}, v{vw2+tl}, v3")
    g(f"v_lshrrev_b32 v{vop}, 1, v1"); g(f"v_mul_u32_u24 v{vop}, {OPS}, v{vop}"); g(f"v_and_b32 v2, 1, v1"); g(f"v_lshl_or_b32 v{vop}, v2, 4, v{vop}")
    g("s_lshl_b32 s25, s25, 5"); g(f"s_mul_i32 s58, {sW}, {32*OPS}"); g("s_add_u32 s25, s25, s58"); g(f"s_add_u32 s25, s25, {OP + 128*32}")
    g(f"v_mov_b32 v{hpv+2}, {sT}")
    if opr: g(f"buffer_load_dword v254, v{vop}, {WS}, s25 offen")
    g.stamp(1)
    g(f"s_waitcnt vmcnt({(5 if (pfo and not pfoe) else 4) + (1 if opr else 0)})")
    g.stamp(2)
    if fk:
        for u in range(4):
            for hf in range(2): g.lds(f"ds_read_b64_tr_b16 {vr(ta+4*u+2*hf,2)}, v{vt2} offset:{u*1024+hf*128}", ("w1", u))
        g(f"s_lshl_b32 s58, {sW}, 7"); g(f"v_add_u32 v2, s58, v{vh}")
        for u in range(4):
            g.lwait(("w1", u))
            g(f"v_mfma_f32_16x16x32_bf16 {vr(Da,4)}, {vr(ta+4*u,4)}, {vr(xb+4*u,4)}, {vr(Da,4) if u else 0}")
        g(f"s_waitcnt vmcnt({(1 if (pfo and not pfoe) else 0) + (1 if opr else 0)})")
        for tl in range(8): g.lds(f"ds_read_b64_tr_b16 {vr(w2f+2*tl,2)}, v{vw2+tl}")
        g.lds(f"ds_write_b128 v2, {vr(Da,4)}")
        g.lwait0()
        g("s_barrier")
        g.stamp(14)
        for k in range(4): g.lds(f"ds_read_b128 {vr(ta+4*k,4)}, v{vh} offset:{k*128}")
        g.lwait0()
        for k in range(2):
            g(f"v_pk_add_f32 {vr(ta+2*k,2)}, {vr(ta+2*k,2)}, {vr(ta+4+2*k,2)}"); g(f"v_pk_add_f32 {vr(ta+8+2*k,2)}, {vr(ta+8+2*k,2)}, {vr(ta+12+2*k,2)}")
        for k in range(2): g(f"v_pk_add_f32 {vr(hp+2*k,2)}, {vr(ta+2*k,2)}, {vr(ta+8+2*k,2)}")
    else:
        g("s_barrier")
        g.stamp(14)
        for u in range(4):
            for hf in range(2): g.lds(f"ds_read_b64_tr_b16 {vr(ta+4*u+2*hf,2)}, v{vt2} offset:{u*4096+hf*512}", ("w1", u))
        for u in range(4):
            g.lwait(("w1", u))
            g(f"v_mfma_f32_16x16x32_bf16 {vr(Da,4)}, {vr(ta+4*u,4)}, {vr(xb+4*u,4)}, {vr(Da,4) if u else 0}")
        g("s_mov_b32 exec_lo, 0x00030003"); g("s_mov_b32 exec_hi, 0x00030003")
        g("s_nop 5")
        g(f"v_cvt_pk_bf16_f32 v{hpv}, v{Da}, v{Da+1}"); g(f"v_cvt_pk_bf16_f32 v{hpv+1}, v{Da+2}, v{Da+3}")
        g(f"buffer_store_dwordx4 {vr(hpv,4)}, v{vh}, {WS}, s44 offen")
        g("s_mov_b64 exec, -1")
        def hp_restore():
            g("s_mov_b32 exec_lo, 0x00030003"); g("s_mov_b32 exec_hi, 0x00030003")
            g(f"buffer_store_dwordx4 {vr(hpv,4)}, v{vh}, {WS}, s44 offen sc1")
            g("s_mov_b64 exec, -1")
        g(f"s_mov_b32 {sCnt}, 0")
        g.label("L_Ah")
        g(f"s_cmp_lg_u32 {sCnt}, 6"); g("s_cbranch_scc1 L_Ah_n")
        hp_restore()
        g.label("L_Ah_n")
        g(f"buffer_load_dwordx3 {vr(hp+4,3)}, v{vh}, {WS}, s45 offen sc1")
        g(f"s_add_u32 {sCnt}, {sCnt}, 1"); g(f"s_cmp_gt_u32 {sCnt}, {SPIN}"); g("s_cbranch_scc1 L_Ah_x")
        g("s_waitcnt vmcnt(0)")
        g(f"v_cmp_ne_u32 vcc, {sT}, v{hp+6}")
        g("s_cbranch_vccnz L_Ah")
        g.label("L_Ah_x")
        g("s_waitcnt vmcnt(0)")
        g.stamp(3)
        hp_restore()
        for tl in range(8): g.lds(f"ds_read_b64_tr_b16 {vr(w2f+2*tl,2)}, v{vw2+tl}")
        g(f"v_lshlrev_b32 v{hp}, 16, v{hp+4}"); g(f"v_and_b32 v{hp+1}, 0xffff0000, v{hp+4}")
        g(f"v_lshlrev_b32 v{hp+2}, 16, v{hp+5}"); g(f"v_and_b32 v{hp+3}, 0xffff0000, v{hp+5}")
        for k in range(4): g(f"v_add_f32_dpp v{hp+k}, v{hp+k}, v{hp+k} quad_perm:[2,3,0,1] {DPPF}")
        for k in range(4): g(f"v_add_f32_dpp v{hp+k}, v{hp+k}, v{hp+k} row_ror:4 {DPPF}")
    g(f"v_cvt_pk_bf16_f32 v{hp+4}, v{hp}, v{hp+1}"); g(f"v_cvt_pk_bf16_f32 v{hp+5}, v{hp+2}, v{hp+3}")
    g(f"v_lshlrev_b32 v{hp}, 16, v{hp+4}"); g(f"v_and_b32 v{hp+1}, 0xffff0000, v{hp+4}")
    g(f"v_lshlrev_b32 v{hp+2}, 16, v{hp+5}"); g(f"v_and_b32 v{hp+3}, 0xffff0000, v{hp+5}")
    for k in range(4): g(f"v_mul_f32 v{hp+8+k}, {f2u(-1.4426950408889634):#x}, v{hp+k}")
    for k in range(4): g(f"v_exp_f32 v{hp+8+k}, v{hp+8+k}")
    g("s_nop 0")
    for k in range(4): g(f"v_add_f32 v{hp+8+k}, 1.0, v{hp+8+k}")
    for k in range(4): g(f"v_rcp_f32 v{hp+8+k}, v{hp+8+k}")
    g("s_nop 0")
    for k in range(4): g(f"v_mul_f32 v{hp+k}, v{hp+k}, v{hp+8+k}")
    g(f"v_cvt_pk_bf16_f32 v{hp+4}, v{hp}, v{hp+1}"); g(f"v_cvt_pk_bf16_f32 v{hp+5}, v{hp+2}, v{hp+3}")
    g("s_mov_b32 s56, 0x00030003"); g("s_mov_b32 s57, s56"); g("s_lshl_b64 s[58:59], s[56:57], 8")
    for k in range(2):
        g(f"v_cndmask_b32 v{hlo+k}, 0, v{hp+4+k}, s[56:57]"); g(f"v_cndmask_b32 v{hhi+k}, 0, v{hp+4+k}, s[58:59]")
    g.lwait0()
    TLO = (0, 1, 4, 5); THI = (2, 3, 6, 7)
    for k in range(4): g(f"v_mfma_f32_16x16x16_bf16 {vr(acc+4*k,4)}, {vr(hlo,2)}, {vr(w2f+2*TLO[k],2)}, 0")
    for k in range(4): g(f"v_mfma_f32_16x16x16_bf16 {vr(acc+4*k,4)}, {vr(hhi,2)}, {vr(w2f+2*THI[k],2)}, {vr(acc+4*k,4)}")
    out_pack(acc, pk, pk + 4, hpv, vop, "s25")
    g.label("L_Anf2")
    g.stamp(8)
    g(f"s_cmp_lg_u32 {sW}, 0"); g("s_cbranch_scc1 L_Aend0")
    op = qf
    g(f"s_mul_i32 s56, {sRid}, {OPS}"); g(f"s_add_u32 s56, s56, {OP}"); g("s_add_u32 s57, s56, 0x1000")
    g(f"buffer_load_ushort v{xr}, v{vro}, {X}, {sRo} offen")
    raw = op + 32
    g(f"v_mov_b32 v{raw+24}, 0"); g(f"v_mov_b32 v{raw+25}, 0"); g(f"v_mov_b32 v{raw+26}, {sT}")
    if hintr:
        if rall:
            g(f"s_lshl_b32 s38, s5, 8"); g(f"s_add_u32 s38, s38, {HW}")
            hint_wait(g, "L_Rh", 2, vl4, "s38", 0, sCnt)
        else: hint_wait(g, "L_Rh", 2, vzA, "s38", 0, sCnt)
    g(f"s_mov_b32 {sCnt}, 0")
    g.label("L_R")
    for j in range(7):
        if j == 6: g("s_mov_b32 exec_hi, 0xffff")
        g(f"buffer_load_dwordx3 {vr(raw+4*j,3)}, v{vj}, {WS}, {'s56' if j < 4 else 's57'} offen offset:{(j&3)*1024} sc1")
    g("s_mov_b32 exec_hi, -1")
    g(f"s_add_u32 {sCnt}, {sCnt}, 1"); g(f"s_cmp_gt_u32 {sCnt}, {SPIN}"); g("s_cbranch_scc1 L_R_x")
    for j in range(7):
        g(f"s_waitcnt vmcnt({6-j})")
        g(f"v_sad_u32 v{chk}, v{raw+2+4*j}, {sT}, {('v%d' % chk) if j else 0}")
        d = op + 4 * (j & 1) if j < 2 else op + 8
        for k in range(2):
            g(f"v_lshlrev_b32 v{d+2*k}, 16, v{raw+4*j+k}"); g(f"v_and_b32 v{d+2*k+1}, 0xffff0000, v{raw+4*j+k}")
        if j >= 2:
            for k in range(2): g(f"v_pk_add_f32 {vr(op+4*(j&1)+2*k,2)}, {vr(op+4*(j&1)+2*k,2)}, {vr(op+8+2*k,2)}")
    g(f"v_cmp_ne_u32 vcc, 0, v{chk}")
    g("s_cbranch_vccnz L_R")
    g.label("L_R_x")
    g.count(sCnt)
    g("s_waitcnt vmcnt(0)")
    g.stamp(9)
    for k in range(2): g(f"v_pk_add_f32 {vr(op+2*k,2)}, {vr(op+2*k,2)}, {vr(op+4+2*k,2)}")
    g(f"v_lshlrev_b32 v{xr}, 16, v{xr}")
    g("s_nop 1")
    g(f"v_permlane16_swap_b32 v{op}, v{op+1}"); g(f"v_permlane16_swap_b32 v{op+2}, v{op+3}")
    g("s_nop 0")
    g(f"v_add_f32 v{op}, v{op}, v{op+1}"); g(f"v_add_f32 v{op+2}, v{op+2}, v{op+3}")
    g("s_nop 1")
    g(f"v_permlane32_swap_b32 v{op}, v{op+2}")
    g("s_nop 0")
    g(f"v_add_f32 v{op}, v{op}, v{op+2}")
    for k in (2, 4, 8):
        g("s_nop 1"); g(f"v_add_f32_dpp v{op}, v{op}, v{op} row_ror:{k} {DPPF}")
    g(f"v_add_f32 v{op}, v{op}, v{xr}")
    g("s_mov_b32 exec_lo, 0x00030003"); g("s_mov_b32 exec_hi, 0x00030003")
    g(f"v_cvt_pk_bf16_f32 v{op}, v{op}, v{op}")
    g(f"buffer_store_short v{op}, v{vro}, {OUT}, {sRo} offen {('', 'sc1', 'sc0 sc1', 'nt')[osc]}")
    g(f"s_cmp_lg_u32 {sRid}, 0"); g("s_cbranch_scc1 L_Aend")
    g("s_mov_b64 exec, 1"); g(f"v_mov_b32 v2, {sT}"); g("v_mov_b32 v3, 0")
    g(f"buffer_store_dword v2, v3, {WS}, 0 offen sc1")
    g("s_branch L_Aend")
    g.label("L_Aend0")
    g.label("L_Aend")
    g.stamp(10)
    dump_stamps(g, "A")
    g("s_endpgm")
    g.label("L_Aovf")
    g(f"v_mov_b32 v{t2}, 1")
    g(f"ds_write_b32 v{vmx}, v{t2} offset:64")
    g("s_branch L_Aovf_x")
    g.label("L_Aslow")
    g(f"v_max3_f32 v{mxv}, v{SY}, v{SY+1}, v{SY+2}"); g(f"v_max_f32 v{mxv}, v{mxv}, v{SY+3}")
    g(f"ds_max_f32 v{vmx}, v{mxv}")
    g("s_waitcnt lgkmcnt(0)"); g("s_barrier")
    g(f"ds_read_b32 v{mxv}, v{vmx}"); g(f"v_mov_b32 v{t2}, 0"); g(f"ds_write_b32 v{vmx}, v{t2} offset:64")
    g("s_waitcnt lgkmcnt(0)")
    g(f"v_mul_f32 v{STG}, s56, v{mxv}")
    for k in range(8): g(f"v_fma_f32 v{EX+k}, v{SX+k}, s56, -v{STG}")
    pexp(0); pexp(1); g("s_nop 0")
    pwrite(0); pwrite(1)
    g("s_waitcnt lgkmcnt(0)"); g("s_barrier")
    g("s_branch L_Apv")
    flag_fallback(g, "L_Af1", vfl, l16, "s34", sCnt)
    g.label("L_end")
    body = "\n".join(g.L)
    tab = ""

    hdr = open("parallel_sum__compressed_kv_cla__dense_activation_silu__decode.s.ref").read().split("; Override launch")[0]
    return f"""{hdr}; @launch grid=(256,1,1) block=(256,1,1) lds={LDS_BYTES}
.amdgcn_target "amdgcn-amd-amdhsa--gfx950"
.set HINT_LIMIT, 40
.text
.globl {KNAME}
.p2align 8
.type {KNAME},@function
{KNAME}:
{body}
    s_endpgm
{tab}.section .rodata,"a"
.p2align 6
.amdhsa_kernel {KNAME}
  .amdhsa_next_free_vgpr 512
  .amdhsa_next_free_sgpr 102
  .amdhsa_accum_offset 256
  .amdhsa_group_segment_fixed_size 0
  .amdhsa_kernarg_size 96
  .amdhsa_user_sgpr_count 2
  .amdhsa_user_sgpr_kernarg_segment_ptr 1
  .amdhsa_system_sgpr_workgroup_id_x 1
.end_amdhsa_kernel
"""

if __name__ == "__main__":
    dbg = 3 if "--debug3" in sys.argv else 2 if "--debug2" in sys.argv else (1 if "--debug" in sys.argv else 0)
    out = [a for a in sys.argv[1:] if not a.startswith("--")][0]
    kw = {}
    for a in sys.argv[1:]:
        if a.startswith("--thr="): kw["thr"] = tuple(int(x) for x in a[6:].split(","))
        if a.startswith("--swap="): kw["swap"] = int(a[7:])
        for nm in ("touch", "pfk", "pfo", "pf2", "pfc", "noflag", "wdelay", "loc", "stw", "slp", "pad", "rslp", "p2t", "est", "pfoe", "hint", "qal", "hintr", "hsl", "dq", "wke", "qack", "qsl", "hq", "nts", "gate", "pff", "poack", "pfv", "wv1", "fgate", "rall", "pg", "wow", "gw", "xnl", "pffe", "cmb", "hre", "adl", "noclr", "fwait", "hqe", "nat", "opr", "qae", "fk", "wk2", "hpos", "pre0", "osc", "tlb"):
            if a.startswith(f"--{nm}="): kw[nm] = int(a.split("=")[1])
    open(out, "w").write(build(dbg, **kw))
```

```python
import sys, struct

KNAME = "parallel_sum__compressed_kv_cla__dense_activation_silu__decode_kernel"

QP, CP, QA, ST, OP, PO, TS = 0x10000, 0x30000, 0x50000, 0x380000, 0x400000, 0x100000, 0x340000
FL1, HQ, HP, HA, HW = 0x68000, 0x6C000, 0x70000, 0x60000, 0x64000
XNG, FLA, HB, FLB = 0x6E000, 0x69000, 0x6D000, 0x80000
OPS = 7168
WS_REC = 0x500000
OOB = 0x40000000
L_WQ, L_WUK, L_WUV, L_WO, L_W1, L_W2, L_XN, L_LAT = 0, 0x8000, 0, 0x10000, 0x18000, 0x1C000, 0x20000, 0x20900
XNP = 1056
L_QA, L_P, L_MX = 0x20000, 0x24000, 0x25200
LDS_BYTES = 0x25400
SPIN = 20000

def f2u(x): return struct.unpack("<I", struct.pack("<f", x))[0]
KSCALE = f2u(128 ** -0.5 * 1.4426950408889634)

class G:
    def __init__(self, debug=False):
        self.L = []; self.debug = debug; self.nv = 0; self.names = {}; self.nstamp = 0; self.lq = []; self.maxv = 0
    def __call__(self, s):
        for ln in s.strip().split("\n"):
            self.L.append("    " + ln.strip())
    def label(self, s): self.L.append(s + ":")
    def c(self, s): self.L.append("    ; " + s)
    def reset_v(self, start): self.nv = start
    def v(self, n=1, al=None):
        if al is None: al = 1 if n == 1 else 2
        self.nv = (self.nv + al - 1) // al * al
        r = self.nv; self.nv += n; self.maxv = max(self.maxv, self.nv)
        assert self.nv <= 254, "out of VGPRs"
        return r
    def stamp(self, i):
        if self.debug == 3 and i not in (0, 10): return
        if self.debug == 2:
            if i == 11: return
            if i == 14: i = 11
        if self.debug == 1 and i == 13: return
        if self.debug:
            assert i < 15
            self(f"s_memrealtime s[{72+2*i}:{73+2*i}]")
    def count(self, cnt):
        if self.debug == 1:
            self(f"s_min_u32 s99, {cnt}, 63"); self("s_lshl_b32 s98, s98, 6"); self("s_or_b32 s98, s98, s99")
    def lds(self, s, tag=None):
        if len(self.lq) >= 15:
            self.lwait(self.lq[len(self.lq) - 15])
        self(s); self.lq.append(tag if tag is not None else object())
    def lwait(self, tag):
        if tag not in self.lq: return
        k = max(i for i, t in enumerate(self.lq) if t == tag)
        n = len(self.lq) - 1 - k
        self(f"s_waitcnt lgkmcnt({n})")
        self.lq = self.lq[k + 1:]
    def lwait0(self):
        self("s_waitcnt lgkmcnt(0)"); self.lq = []

def vr(a, n): return f"v[{a}:{a+n-1}]" if n > 1 else f"v{a}"
def ar(a, n): return f"a[{a}:{a+n-1}]"

sW, sS, sX, sH, sQT = "s3", "s4", "s5", "s6", "s7"
WS, X, WQ, WUK, WUV, WO, W1, W2, DBG, CKV, OUT = ("s[8:11]", "s[12:15]", "s[16:19]", "s[20:23]", "s[24:27]", "s[28:31]",
                                                  "s[32:35]", "s[36:39]", "s[44:47]", "s[48:51]", "s[52:55]")
sT, sE = "s42", "s43"
sHG, sSP = "s6", "s7"
DPPF = "row_mask:0xf bank_mask:0xf"

def reduce32(g, op, s, t):
    for k in (8, 4, 2, 1):
        g(f"v_{op}_f32_dpp v{s}, v{s}, v{s} row_ror:{k} {DPPF}")
        g("s_nop 1")
    g(f"v_mov_b32 v{t}, v{s}")
    g("s_nop 1")
    g(f"v_permlane16_swap_b32 v{t}, v{s}")
    g("s_nop 0")
    g(f"v_{op}_f32 v{s}, v{s}, v{t}")

def reduce64(g, op, s, t):
    reduce32(g, op, s, t)
    g(f"v_mov_b32 v{t}, v{s}")
    g("s_nop 1")
    g(f"v_permlane32_swap_b32 v{t}, v{s}")
    g("s_nop 0")
    g(f"v_{op}_f32 v{s}, v{s}, v{t}")

def flag_fallback(g, name, vfl, vfo, soff, cnt, pair=False):
    g.label(name)
    g(f"s_mov_b32 {cnt}, 0")
    g.label(name + "_l")
    g("s_sleep 2")
    if pair: g(f"buffer_load_dwordx2 {vr(vfl,2)}, v{vfo}, {WS}, {soff} offen sc1")
    else: g(f"buffer_load_dword v{vfl}, v{vfo}, {WS}, {soff} offen sc1")
    g(f"s_add_u32 {cnt}, {cnt}, 1"); g(f"s_cmp_gt_u32 {cnt}, {SPIN}"); g(f"s_cbranch_scc1 {name}_x")
    g("s_waitcnt vmcnt(0)")
    if pair: g(f"v_cmp_ne_u64 vcc, s[40:41], {vr(vfl,2)}")
    else: g(f"v_cmp_ne_u32 vcc, {sT}, v{vfl}")
    g(f"s_cbranch_vccnz {name}_l")
    g(f"s_branch {name}_x")

HINTN = 3000
def hint_wait(g, name, vt, vz, soff, off, cnt):
    g(f"s_mov_b32 {cnt}, 0")
    g.label(name)
    g(f"buffer_load_dword v{vt}, v{vz}, {WS}, {soff} offen offset:{off} sc1")
    g(f"s_add_u32 {cnt}, {cnt}, 1"); g(f"s_cmp_gt_u32 {cnt}, HINT_LIMIT"); g(f"s_cbranch_scc1 {name}_x")
    g("s_waitcnt vmcnt(0)")
    g(f"v_cmp_ne_u32 vcc, {sT}, v{vt}")
    g(f"s_cbranch_vccnz {name}")
    g.label(name + "_x")

def dump_stamps(g, role=None):
    if not g.debug: return
    g.lwait0()
    if g.debug == 3:
        lo = 0 if role == "W" else 128
        g(f"s_sub_u32 s56, s2, {lo}"); g("s_cmp_ge_u32 s56, 8"); g(f"s_cbranch_scc1 L_nod{role}"); g(f"s_cmp_lg_u32 {sW}, 0"); g(f"s_cbranch_scc1 L_nod{role}")
        g("s_lshl_b32 s60, s56, 2")
        g("s_mov_b64 exec, -1"); g(f"v_mov_b32 v2, s{72 if role == 'W' else 92}"); g("v_mov_b32 v3, 0")
        g("s_mov_b32 s58, 256"); g("s_mov_b32 s59, 0x20000"); g("s_mov_b64 s[56:57], s[100:101]"); g("s_mov_b64 exec, 1")
        g(f"buffer_store_dword v2, v3, s[56:59], s60 offen offset:{0 if role == 'W' else 32}")
        g.label(f"L_nod{role}")
        return
    if g.debug == 2:
        wg, sel, base = (0, (3, 1, 12, 6, 11, 8, 10, 2), 0) if role == "W" else (128 + 3, (1, 2, 5, 6, 7, 8, 9, 10), 32)
        g(f"s_lshl2_add_u32 s56, s2, {sW}"); g(f"s_cmp_lg_u32 s56, {wg*4}"); g(f"s_cbranch_scc1 L_nod{role}")
        g("s_mov_b64 exec, -1"); g("v_mov_b32 v2, 0")
        for i, k in enumerate(sel):
            g(f"s_sub_u32 s57, s{72+2*k}, s72"); g(f"v_writelane_b32 v2, s57, {i}")
        g("s_mov_b32 s102, 0" if False else "s_nop 0")
        g("s_mov_b32 s58, 256"); g("s_mov_b32 s59, 0x20000"); g("s_mov_b64 s[56:57], s[100:101]")
        g("v_lshlrev_b32 v3, 2, v1"); g("s_mov_b64 exec, 0xff")
        g(f"buffer_store_dword v2, v3, s[56:59], 0 offen offset:{base}")
        g.label(f"L_nod{role}")
        return
    g(f"s_lshl_b32 s56, s2, 2"); g(f"s_add_u32 s56, s56, {sW}"); g("s_lshl_b32 s56, s56, 6"); g(f"s_add_u32 s56, s56, {TS}")
    g("s_mov_b64 exec, -1")
    g("v_mov_b32 v2, 0")
    for i in range(15): g(f"v_writelane_b32 v2, s{72+2*i}, {i}")
    g("s_getreg_b32 s57, hwreg(HW_REG_XCC_ID)")
    g("v_writelane_b32 v2, s57, 15")
    g("v_lshlrev_b32 v3, 2, v1")
    g("s_mov_b64 exec, 0xffff")
    g(f"buffer_store_dword v2, v3, {WS}, s56 offen")

def build(debug=False, thr=(16, 0), swap=1, touch=0, pfk=1, pfo=1, pf2=1, pfc=0, noflag=0, wdelay=0, loc=1, stw=16, slp=1, pad=0, rslp=0, p2t=0, est=1, pfoe=1, hint=1, qal=0, hintr=1, hsl=0, dq=0, wke=1, qack=1, qsl=0, hq=1, nts=0, gate=1, pff=0, poack=0, pfv=0, wv1=6, fgate=0, rall=1, pg=1, wow=3, gw=-1, xnl=1, pffe=0, cmb=0, hre=0, adl=0, noclr=0, fwait=0, hqe=1, nat=1, opr=1, qae=1, fk=0, wk2=0, hpos=1, pre0=0, osc=0, tlb=0, pl=1, flae=1, dl=0, hl=0, spk=0, ty=0, fle=2, pga=1, pgh=0):
    g = G(debug)
    NS = 'nt ' if nts else ''
    g.stamp(0)
    g("""
    s_load_dwordx2 s[16:17], s[0:1], 16
    s_load_dwordx2 s[48:49], s[0:1], 8
    s_load_dwordx2 s[20:21], s[0:1], 24
    s_load_dwordx2 s[12:13], s[0:1], 0
    s_load_dwordx2 s[8:9], s[0:1], 88
    s_cmp_ge_u32 s2, 256
    s_cbranch_scc1 L_end
    v_lshrrev_b32 v2, 6, v0
    v_and_b32 v1, 63, v0
    s_lshr_b32 s4, s2, 3
    v_readfirstlane_b32 s3, v2
    s_and_b32 s5, s2, 7
    v_lshlrev_b32 v4, 4, v1
    s_cmp_ge_u32 s4, 16
    s_cbranch_scc1 L_A
    """)
    l16 = 4
    def srd(k, sz):
        g(f"s_mov_b32 s{k+2}, {sz}"); g(f"s_mov_b32 s{k+3}, 0x20000")
    def dbg_init():
        if debug:
            for i in range(1, 14): g(f"s_mov_b64 s[{72+2*i}:{73+2*i}], 0")
            if debug >= 2: g("s_load_dwordx2 s[100:101], s[0:1], 80")
            else: g("s_mov_b64 s[100:101], 0")
    g.reset_v(5)
    n, gg = g.v(), g.v()
    vqA, vqB = g.v(), g.v(); vq4 = g.v(4)
    xa = g.v(8, 4)
    sQAo, sOPo, sQoff = "s38", "s39", "s35"
    g(f"v_and_b32 v{n}, 15, v1"); g(f"v_lshrrev_b32 v{gg}, 4, v1")
    g(f"v_lshlrev_b32 v2, 1, v{gg}"); g(f"v_xor_b32 v2, v2, v{n}"); g(f"v_lshlrev_b32 v2, 4, v2"); g(f"v_lshl_add_u32 v{vqA}, v{gg}, 13, v2"); g(f"v_xor_b32 v{vqB}, 0x80, v{vqA}")
    g(f"v_add_u32 v{vq4+1}, {31744}, v{vqA}"); g(f"v_add_u32 v{vq4+2}, {2*31744}, v{vqB}"); g(f"v_add_u32 v{vq4+3}, {3*31744}, v{vqB}")
    srd(16, 4 << 20); srd(12, 2048); srd(8, WS_REC)
    PRE0 = f"""v_lshlrev_b32 v2, 7, v1
    s_lshl2_add_u32 s63, s6, s7
    s_lshl_b32 s63, s63, 10
    s_lshl_b32 s58, s3, 17
    s_add_u32 s63, s63, s58
    s_add_u32 s63, s63, {QP}""" if pre0 else "s_nop 0"
    sent = xa + 4
    for k in range(4): g(f"v_mov_b32 v{sent+k}, -1")
    g(f"v_lshrrev_b32 v3, 3, v1"); g(f"v_lshlrev_b32 v3, 10, v3"); g(f"v_and_b32 v2, 4, v1"); g(f"v_lshl_add_u32 v3, v2, 13, v3"); g(f"v_and_b32 v2, 3, v1"); g(f"v_lshl_add_u32 v3, v2, 4, v3")
    g(f"""
    s_lshr_b32 s6, s4, 2
    s_lshl2_add_u32 s6, s5, s6
    s_and_b32 s7, s4, 3
    s_lshl2_add_u32 s61, s7, s3
    s_lshl_b32 s61, s61, 18
    s_lshl_b32 s59, s6, 8
    s_add_u32 {sQoff}, s61, s59
    s_lshl_b32 s60, s3, 13
    s_mov_b32 m0, s60
    s_lshl_b32 s57, s3, 10
    s_lshr_b32 s62, s6, 4
    s_lshl2_add_u32 s62, s62, s7
    s_lshl_b32 s62, s62, 6
    s_and_b32 s63, s6, 15
    s_add_u32 s62, s62, s63
    s_lshl_b32 s62, s62, 6
    s_add_u32 s62, s62, {QA}
    {PRE0}
    s_cmp_eq_u32 s3, 2
    s_cselect_b32 exec_lo, -1, 0
    s_mov_b32 exec_hi, 0
    s_waitcnt lgkmcnt(0)
    """)
    g(f"buffer_store_dwordx4 {vr(sent,4)}, v3, {WS}, s62 offen sc1")
    g("s_cmp_lt_u32 s3, 2"); g("s_cselect_b64 exec, -1, 0")
    def quad(srdname, soff):
        g(f"buffer_load_dwordx4 v{vqA}, {srdname}, {soff} offen nt lds")
        for k in range(1, 4): g(f"buffer_load_dwordx4 v{vq4+k}, {srdname}, {soff} offen offset:{k*1024} nt lds")
    g(f"buffer_load_dwordx4 {vr(xa,4)}, v{l16}, {X}, s57 offen")
    if pre0:
        g("s_and_b32 exec_lo, exec_lo, 0xff"); g("s_mov_b32 exec_hi, 0")
        g(f"buffer_load_dword v254, v2, {WS}, s63 offen")
    g("s_mov_b64 exec, -1")
    quad(WQ, sQoff)
    g("s_add_u32 m0, m0, 0x1000"); g(f"s_add_u32 s61, {sQoff}, 0x20000")
    quad(WQ, "s61")
    g("s_branch L_W2")
    wv = g.nv
    g.label("L_A")
    if tlb:
        g("""
        s_and_b32 s56, s4, 15
        s_lshr_b32 s62, s56, 2
        s_lshl3_add_u32 s62, s62, 32
        s_and_b32 s63, s56, 3
        s_lshl_b32 s63, s63, 20
        s_lshr_b32 s58, s56, 1
        s_lshl3_add_u32 s58, s58, 24
        s_and_b32 s59, s56, 1
        s_mul_i32 s59, s59, 0x150000
        s_cmp_ge_u32 s56, 8
        s_cselect_b32 s62, s58, s62
        s_cselect_b32 s63, s59, s63
        s_and_b32 s59, s56, 3
        s_lshl_b32 s59, s59, 21
        s_cmp_eq_u32 s56, 12
        s_cselect_b32 s58, 0, 16
        s_add_u32 s58, s58, 72
        s_cmp_ge_u32 s56, 12
        s_cselect_b32 s62, s58, s62
        s_cselect_b32 s63, s59, s63
        s_load_dwordx2 s[64:65], s[0:1], s62
        """)
    vt4 = 8
    sPOs, sRow, sCnt, sRid = "s18", "s19", "s22", "s23"
    g(f"""
    s_and_b32 s6, s4, 1
    s_bfe_u32 s56, s4, 0x30001
    s_lshl3_add_u32 s7, s5, s56
    s_lshl_b32 s57, s7, 17
    """)
    if swap: g(f"s_lshl2_add_u32 {sRow}, s6, s3"); g(f"s_lshl_b32 {sRow}, {sRow}, 14")
    else: g(f"s_lshl_b32 {sRow}, s3, 14")
    srd(48, 8 << 20)
    g(f"s_mov_b32 m0, {sRow}"); g(f"s_add_u32 s33, {sRow}, s57")
    vpo = 7
    srd(8, WS_REC)
    g(f"""
    s_lshl_b32 {sPOs}, s6, 5
    s_add_u32 {sPOs}, {sPOs}, s3
    s_lshl_b32 {sPOs}, {sPOs}, 15
    s_lshl_b32 s56, s7, 9
    s_add_u32 {sPOs}, {sPOs}, s56
    s_add_u32 {sPOs}, {sPOs}, {PO}
    """)
    g(f"v_bfe_u32 v{vpo}, v1, 1, 3"); g(f"v_lshlrev_b32 v{vpo}, 17, v{vpo}"); g(f"v_and_b32 v2, 1, v1"); g(f"v_lshl_add_u32 v{vpo}, v2, 6, v{vpo}"); g(f"v_and_b32 v2, 48, v1"); g(f"v_add_u32 v{vpo}, v2, v{vpo}")
    for k in range(4): g(f"v_mov_b32 v{vt4+k}, -1")
    def a_clear():
        for b in range(4): g(f"buffer_store_dwordx4 {vr(vt4,4)}, v{vpo}, {WS}, {sPOs} offen offset:{b*128} sc1")
        g("s_nop 1")
    if pfk:
        g("""
        s_and_b32 s60, s4, 3
        s_lshl2_add_u32 s60, s60, s3
        s_lshl_b32 s60, s60, 18
        s_bfe_u32 s61, s4, 0x20002
        s_lshl2_add_u32 s61, s5, s61
        s_lshl_b32 s61, s61, 8
        s_add_u32 s60, s60, s61
        v_lshrrev_b32 v2, 1, v1
        v_and_b32 v3, 1, v1
        v_lshlrev_b32 v2, 13, v2
        v_lshl_add_u32 v2, v3, 7, v2
        v_add_u32 v6, s60, v2
        """)
    def pfk_load():
        if pfk:
            if pfk == 2: g("s_cmp_lt_u32 s3, 2"); g("s_cselect_b64 exec, -1, 0")
            if pfk == 3: g("s_mov_b32 exec_lo, 0")
            g("global_load_dword v255, v6, s[20:21]")
            if pfk >= 2: g("s_mov_b64 exec, -1")
    if tlb: g("v_mov_b32 v3, s63"); g("s_cmp_eq_u32 s3, 3"); g("s_cselect_b64 exec, 1, 0")
    g("s_waitcnt lgkmcnt(0)")
    if tlb: g("global_load_dword v254, v3, s[64:65]"); g("s_mov_b64 exec, -1")
    if not adl: pfk_load()
    if not noclr: a_clear()
    if fwait: g(f's_waitcnt vmcnt({0 if noclr else 4})')
    def abody(a, half):
        if a == 0:
            for k in range(1, 4): g(f"v_xor_b32 v{vt4+k}, {k*16}, v{l16}")
            regs = [l16, vt4 + 1, vt4 + 2, vt4 + 3]
        else:
            for k in range(4): g(f"v_xor_b32 v{vt4+k}, {(4*a+k)*16}, v{l16}")
            regs = [vt4 + k for k in range(4)]
        for k in range(4):
            j = 4 * a + k
            if half == 0 and thr[0] <= j < thr[1] + thr[0]: g(f"s_waitcnt vmcnt({thr[0]-1})")
            g(f"buffer_load_dwordx4 v{regs[k]}, {CKV}, s33 offen offset:{k*1024} {NS}lds")
        if a < 3: g("s_add_u32 m0, m0, 0x1000"); g("s_add_u32 s33, s33, 0x1000")
    if not adl: abody(0, 0); abody(1, 0)
    g(f"""
    s_getpc_b64 s[40:41]
L_pc:
    v_lshlrev_b32 v2, 3, v4
    s_lshl2_add_u32 s56, s4, s3
    v_add_u32 v3, 0x2000, v2
    v_min_u32 v3, L_end-L_pc, v3
    s_cmp_eq_u32 s56, 64
    s_cselect_b64 exec, -1, 0
    global_load_dword v255, v2, s[40:41]
    global_load_dword v255, v3, s[40:41]
    s_mov_b64 exec, -1
    s_branch L_A2
    """)

    g.label("L_W2")
    g.reset_v(wv)
    g("""
    s_load_dword s43, s[8:9], 0
    s_load_dwordx2 s[24:25], s[0:1], 32
    s_load_dwordx2 s[28:29], s[0:1], 40
    """)
    dbg_init()
    srd(20, 4 << 20)
    g(f"s_add_u32 {sQAo}, s62, s57")
    if not pre0:
        if loc:
            g(f"v_and_b32 v2, 0x70, v{l16}"); g(f"v_lshlrev_b32 v2, 3, v2"); g("s_lshl2_add_u32 s63, s6, s7"); g("s_lshl_b32 s63, s63, 10"); g("s_lshl_b32 s62, s3, 17"); g("s_add_u32 s63, s63, s62"); g(f"s_add_u32 s63, s63, {QP}")
            g("s_cmp_lt_u32 s3, 2"); g("s_cselect_b64 exec, 0xff, 0")
            g(f"buffer_load_dword v254, v2, {WS}, s63 offen")
            g("s_mov_b64 exec, -1")
    vqa, vop = g.v(), g.v()
    vk = g.v(8); vkr = g.v(4)
    g(f"v_xor_b32 v2, v{n}, v{gg}"); g(f"v_lshlrev_b32 v2, 4, v2"); g(f"v_lshl_add_u32 v{vk}, v{gg}, 13, v2")
    for k in range(1, 8):
        g(f"v_xor_b32 v{vk+k}, {(k>>1)*64}, v{vk}")
        if k & 3: g(f"v_add_u32 v{vk+k}, {(k&3)*31744}, v{vk+k}")
    def wuk_quad(a):
        g(f"s_add_u32 m0, s60, {L_WUK + a*0x1000}"); g(f"s_add_u32 s61, {sQoff}, {a*0x20000}")
        for k in range(4): g(f"buffer_load_dwordx4 v{vk+4*a+k}, {WUK}, s61 offen offset:{k*1024} {NS}lds")
    if wke == 1: wuk_quad(0)
    r, c4 = g.v(), g.v()
    g(f"v_bfe_u32 v{r}, v1, 2, 2"); g(f"v_and_b32 v{c4}, 3, v1")
    vxf, vtr, vqps, vqpl, vf = g.v(), g.v(), g.v(), g.v(), g.v()
    g(f"v_lshl_add_u32 v3, v{r}, 3, v{c4}"); g(f"v_lshl_add_u32 v2, v3, 8, v2"); g(f"s_add_u32 s64, s60, {L_WUK}"); g(f"v_add_u32 v{vkr}, s64, v2")
    for k in range(1, 4): g(f"v_xor_b32 v{vkr+k}, {k*64}, v{vkr}")
    g(f"v_lshlrev_b32 v{vqa}, 13, v1"); g(f"v_and_b32 v{vqa}, 0x8000, v{vqa}"); g(f"v_lshl_or_b32 v{vqa}, v{gg}, 4, v{vqa}")
    g(f"v_and_b32 v2, 1, v1"); g(f"v_mul_u32_u24 v{vxf}, {XNP}, v2"); g(f"v_lshl_add_u32 v{vxf}, v{gg}, 4, v{vxf}")
    g(f"s_lshl_b32 s63, s7, 8"); g(f"s_add_u32 s63, s63, {L_XN}"); g(f"v_add_u32 v{vxf}, s63, v{vxf}")
    g(f"v_lshlrev_b32 v{vqps}, 9, v2"); g(f"v_lshl_add_u32 v{vqps}, v{gg}, {4 if nat else 5}, v{vqps}"); g(f"v_and_b32 v2, 2, v1"); g(f"v_lshl_add_u32 v{vqps}, v2, {5 if nat else 3}, v{vqps}")
    g(f"v_and_b32 v2, 1, v{gg}"); g(f"v_lshl_or_b32 v2, v2, 2, v{r}"); g(f"v_lshlrev_b32 v{vf}, 5, v2")
    g(f"s_lshl_b32 s63, s3, 6"); g(f"v_lshl_or_b32 v2, v{c4}, {3 if nat else 4}, s63"); g(f"v_xor_b32 v2, v2, v{vf}")
    g(f"v_lshl_add_u32 v{vtr}, v{gg}, 3, v{r}"); g(f"v_lshl_add_u32 v{vtr}, v{vtr}, 8, v2")
    vtr1 = g.v()
    g(f"v_xor_b32 v{vtr1}, 32, v{vtr}")
    def trad(T): return (f"v{vtr1 if T else vtr}", 0) if nat else (f"v{vtr}", 8 * T)
    g(f"v_bfe_u32 v2, v1, 2, 1"); g(f"v_lshl_add_u32 v{vqpl}, v{c4}, 1, v2"); g(f"v_lshlrev_b32 v{vqpl}, 9, v{vqpl}"); g(f"v_lshl_add_u32 v{vqpl}, v{gg}, 5, v{vqpl}")
    g(f"v_and_b32 v2, 8, v1"); g(f"v_lshl_add_u32 v{vqpl}, v2, 1, v{vqpl}")
    g(f"""
    s_lshl_b32 s68, s6, 12
    s_add_u32 s68, s68, {QP}
    s_lshl_b32 s63, s7, 10
    s_add_u32 s67, s68, s63
    s_lshl_b32 s63, s3, 7
    s_add_u32 s67, s67, s63
    s_mov_b32 s70, 0xcccccccc
    s_mov_b32 s71, s70
    s_lshl4_add_u32 s66, s5, s4
    s_lshl2_add_u32 s66, s66, s3
    s_lshl_b32 s66, s66, 2
    s_add_u32 s66, s66, {HQ}
    s_lshl2_add_u32 s69, s6, s7
    s_lshl_b32 s44, s69, 4
    s_add_u32 s44, s44, {FL1}
    """)
    Ga = g.v(4, 4); vT = Ga
    f = g.v(16, 2); m = g.v(2); t = g.v(); s2 = g.v(8, 2)
    g("s_cmp_lt_u32 s3, 2"); g("s_cbranch_scc1 L_W_ln")
    g("s_waitcnt lgkmcnt(0)")
    g(f"s_mul_i32 {sT}, {sE}, 0x9E3779B1"); g(f"s_add_u32 {sT}, {sT}, 0x7F4A7C15")
    g(f"v_mov_b32 v{vT}, {sT}")
    if wke == 2: wuk_quad(0); wuk_quad(1)
    g("v_mov_b32 v3, 0"); g("s_cmp_eq_u32 s3, 2"); g("s_cselect_b64 exec, 1, 0")
    g(f"s_waitcnt vmcnt({4 * wke})")
    g(f"buffer_store_dword v{vT}, v3, {WS}, s44 offen sc1")
    g("s_mov_b64 exec, -1")
    g("s_branch L_W_b0")
    g.label("L_W_ln")
    g(f"s_mul_i32 s63, s3, {XNP}"); g(f"s_add_u32 s63, s63, {L_XN}"); g(f"v_add_u32 v3, s63, v{l16}")
    g(f"s_waitcnt vmcnt({(9 if loc else 8) + (4 if wke == 1 else 0)})")
    d = f + 8
    for k in range(4):
        g(f"v_lshlrev_b32 v{f+2*k}, 16, v{xa+k}"); g(f"v_and_b32 v{f+2*k+1}, 0xffff0000, v{xa+k}")
    g(f"v_pk_add_f32 {vr(s2,2)}, {vr(f,2)}, {vr(f+2,2)}"); g(f"v_pk_add_f32 {vr(s2+2,2)}, {vr(f+4,2)}, {vr(f+6,2)}")
    g(f"v_pk_add_f32 {vr(s2,2)}, {vr(s2,2)}, {vr(s2+2,2)}")
    g(f"v_add_f32 v{m}, v{s2}, v{s2+1}"); g("s_nop 1")
    reduce64(g, "add", m, t)
    g(f"v_mul_f32 v{m}, {f2u(1/512):#x}, v{m}")
    for k in range(4): g(f"v_pk_add_f32 {vr(d+2*k,2)}, {vr(f+2*k,2)}, {vr(m,2)} op_sel_hi:[1,0] neg_lo:[0,1] neg_hi:[0,1]")
    g(f"v_pk_mul_f32 {vr(s2,2)}, {vr(d,2)}, {vr(d,2)}"); g(f"v_pk_mul_f32 {vr(s2+2,2)}, {vr(d+2,2)}, {vr(d+2,2)}")
    g(f"v_pk_fma_f32 {vr(s2,2)}, {vr(d+4,2)}, {vr(d+4,2)}, {vr(s2,2)}"); g(f"v_pk_fma_f32 {vr(s2+2,2)}, {vr(d+6,2)}, {vr(d+6,2)}, {vr(s2+2,2)}")
    g(f"v_pk_add_f32 {vr(s2,2)}, {vr(s2,2)}, {vr(s2+2,2)}")
    va = s2 + 4
    g(f"v_add_f32 v{va}, v{s2}, v{s2+1}")
    g(f"v_cvt_pk_bf16_f32 v{m}, v{m}, v{m}"); g(f"v_and_b32 v{m}, 0xffff0000, v{m}")
    reduce64(g, "add", va, t)
    g(f"v_mul_f32 v{va}, {f2u(1/512):#x}, v{va}")
    for k in range(2): g(f"v_pk_add_f32 {vr(f+2*k,2)}, {vr(f+2*k,2)}, {vr(m,2)} op_sel_hi:[1,0] neg_lo:[0,1] neg_hi:[0,1]")
    g(f"v_cvt_pk_bf16_f32 v{va}, v{va}, v{va}")
    for k in range(2, 4): g(f"v_pk_add_f32 {vr(f+2*k,2)}, {vr(f+2*k,2)}, {vr(m,2)} op_sel_hi:[1,0] neg_lo:[0,1] neg_hi:[0,1]")
    g(f"v_and_b32 v{va}, 0xffff0000, v{va}")
    g(f"v_add_f32 v{va}, {f2u(1e-5):#x}, v{va}")
    g(f"v_cvt_pk_bf16_f32 v{xa}, v{f}, v{f+1}")
    g(f"v_cvt_pk_bf16_f32 v{va}, v{va}, v{va}")
    g(f"v_cvt_pk_bf16_f32 v{xa+1}, v{f+2}, v{f+3}")
    g(f"v_and_b32 v{va}, 0xffff0000, v{va}")
    g(f"v_sqrt_f32 v{va}, v{va}")
    g(f"v_cvt_pk_bf16_f32 v{xa+2}, v{f+4}, v{f+5}"); g(f"v_cvt_pk_bf16_f32 v{xa+3}, v{f+6}, v{f+7}")
    g(f"v_cvt_pk_bf16_f32 v{va}, v{va}, v{va}")
    for k in range(2):
        g(f"v_lshlrev_b32 v{f+2*k}, 16, v{xa+k}"); g(f"v_and_b32 v{f+2*k+1}, 0xffff0000, v{xa+k}")
    g(f"v_and_b32 v{m}, 0xffff0000, v{va}")
    g(f"v_rcp_f32 v{m}, v{m}")
    for k in range(2, 4):
        g(f"v_lshlrev_b32 v{f+2*k}, 16, v{xa+k}"); g(f"v_and_b32 v{f+2*k+1}, 0xffff0000, v{xa+k}")
    for k in range(4): g(f"v_pk_mul_f32 {vr(f+2*k,2)}, {vr(f+2*k,2)}, {vr(m,2)} op_sel_hi:[1,0]")
    for k in range(4): g(f"v_cvt_pk_bf16_f32 v{xa+k}, v{f+2*k}, v{f+2*k+1}")
    g(f"ds_write_b128 v3, {vr(xa,4)}")
    if not dq and not qack: g.stamp(3)
    g("s_waitcnt lgkmcnt(0)"); g.lq = []
    g(f"s_mul_i32 {sT}, {sE}, 0x9E3779B1"); g(f"s_add_u32 {sT}, {sT}, 0x7F4A7C15")
    g(f"v_mov_b32 v{vT}, {sT}")
    if wke == 2: wuk_quad(0); wuk_quad(1)
    g(f"s_waitcnt vmcnt({(1 if (loc and not pre0) else 0) + 4 * wke})")
    if dq: g.stamp(3)
    g.label("L_W_b0")
    g("s_mov_b32 s1, s69")
    g("s_barrier")
    g.stamp(1)
    xb = g.v(16, 4); wk = g.v(32, 4); ta = g.v(16, 4); Da = g.v(4, 4); Db = g.v(4, 4)
    qf = g.v(32, 4); chk = g.v()
    tq = qf
    for u in range(4):
        g.lds(f"ds_read_b128 {vr(xb+4*u,4)}, v{vxf} offset:{u*64}")
        for T in range(2):
            for hf in range(2):
                g.lds(f"ds_read_b64_tr_b16 {vr(tq+8*u+4*T+2*hf,2)}, {trad(T)[0]} offset:{L_WQ + u*8192 + hf*1024 + trad(T)[1]}", ("tr", u, T))
    if wk2: wuk_quad(1)
    for u in range(4):
        g.lwait(("tr", u, 0))
        g(f"v_mfma_f32_16x16x32_bf16 {vr(Da,4)}, {vr(tq+8*u,4)}, {vr(xb+4*u,4)}, {vr(Da,4) if u else 0}")
        g.lwait(("tr", u, 1))
        g(f"v_mfma_f32_16x16x32_bf16 {vr(Db,4)}, {vr(tq+8*u+4,4)}, {vr(xb+4*u,4)}, {vr(Db,4) if u else 0}")
    def pack_granule(msk):
        g(f"v_cvt_pk_bf16_f32 v{Ga+2}, v{Da}, v{Da+1}"); g(f"v_cvt_pk_bf16_f32 v{Ga+3}, v{Da+2}, v{Da+3}")
        g(f"v_cvt_pk_bf16_f32 v2, v{Db}, v{Db+1}"); g(f"v_cvt_pk_bf16_f32 v3, v{Db+2}, v{Db+3}")
        g(f"v_cndmask_b32 v{Ga+2}, v{Ga+2}, v2, {msk}"); g(f"v_cndmask_b32 v{Ga+3}, v{Ga+3}, v3, {msk}")
    g("s_mov_b32 exec_lo, 0x000f000f"); g("s_mov_b32 exec_hi, 0x000f000f")
    g("s_nop 4")
    pack_granule("s[70:71]")
    g(f"buffer_store_dwordx4 {vr(Ga,4)}, v{vqps}, {WS}, s67 offen {'' if loc else 'sc1'}")
    g("s_mov_b64 exec, -1")
    g.stamp(4)
    g("s_and_b32 s62, s6, 15"); g("s_cmp_lg_u32 s62, 0"); g("s_cbranch_scc1 L_W_nx")
    g("s_lshr_b32 s62, s6, 4"); g("s_lshl2_add_u32 s62, s62, s7"); g("s_lshl_b32 s62, s62, 9"); g(f"s_add_u32 s62, s62, {XNG}")
    g(f"v_lshlrev_b32 v2, 6, v{n}"); g(f"v_lshl_add_u32 v2, v{gg}, 4, v2")
    g("s_cmp_eq_u32 s3, 0"); g("s_cselect_b32 exec_lo, 0x00030003, 0"); g("s_mov_b32 exec_hi, exec_lo")
    for u in range(4): g(f"buffer_store_dwordx4 {vr(xb+4*u,4)}, v2, {WS}, s62 offen offset:{u*128} sc1")
    g("s_mov_b64 exec, -1")
    g.label("L_W_nx")
    def qp_loads():
        for u in range(4): g(f"buffer_load_dwordx4 {vr(qf+8*u,4)}, v{vqpl}, {WS}, s68 offen offset:{u*128} sc1")
    g("s_mov_b32 s63, 0")
    if wke == 0: wuk_quad(0)
    if wke <= 1 and not wk2: wuk_quad(1)
    if pl:
        g("s_waitcnt vmcnt(0)")
        qp_loads()
    else:
        qp_loads()
        g(f"s_waitcnt vmcnt({5 if wk2 else 4})")
    g.stamp(12)
    for u in range(4):
        for T in range(2): g.lds(f"ds_read_b128 {vr(wk+16*T+4*u,4)}, v{vkr+u} offset:{T*1024}")
    if debug == 1: g("s_waitcnt vmcnt(0)"); g.stamp(3)
    g("s_branch L_Wa_c")
    g.label("L_Wa")
    def restore(vaddr, soff):
        g("s_mov_b32 exec_lo, 0x000f000f"); g("s_mov_b32 exec_hi, 0x000f000f")
        g(f"buffer_store_dwordx4 {vr(Ga,4)}, v{vaddr}, {WS}, {soff} offen sc1")
        g("s_mov_b64 exec, -1")
    if loc:
        g("s_cmp_lg_u32 s63, 4"); g("s_cbranch_scc1 L_Wa_n")
        restore(vqps, "s67")
        g.label("L_Wa_n")
    qp_loads()
    g.label("L_Wa_c")
    g("s_add_u32 s63, s63, 1"); g(f"s_cmp_gt_u32 s63, {SPIN}"); g("s_cbranch_scc1 L_Wa_x")
    g("s_waitcnt vmcnt(0)")
    for u in range(4): g(f"v_sad_u32 v{chk}, v{qf+8*u}, {sT}, {('v%d' % chk) if u else 0}")
    g(f"v_cmp_ne_u32 vcc, 0, v{chk}")
    g("s_cbranch_vccnz L_Wa")
    g.label("L_Wa_x")
    g.count("s63")
    g("s_waitcnt vmcnt(0)")
    for u in range(4):
        for k in range(2): g(f"v_mov_b32_dpp v{qf+8*u+4+k}, v{qf+8*u+2+k} row_ror:8 {DPPF}")
    g.lwait0()
    g.stamp(5)
    for u in range(4):
        g(f"v_mfma_f32_16x16x32_bf16 {vr(Da,4)}, {vr(wk+4*u,4)}, {vr(qf+8*u+2,4)}, {vr(Da,4) if u else 0}")
        g(f"v_mfma_f32_16x16x32_bf16 {vr(Db,4)}, {vr(wk+16+4*u,4)}, {vr(qf+8*u+2,4)}, {vr(Db,4) if u else 0}")
    g("s_nop 6")
    for k in range(8): g(f"v_add_f32_dpp v{Da+k}, v{Da+k}, v{Da+k} quad_perm:[1,0,3,2] {DPPF}")
    assert Db == Da + 4
    for k in range(8): g(f"v_add_f32_dpp v{Da+k}, v{Da+k}, v{Da+k} quad_perm:[2,3,0,1] {DPPF}")
    qo = g.v(4, 4)
    for k in range(4): g(f"v_cvt_pk_bf16_f32 v{qo+k}, v{Da+2*k}, v{Da+2*k+1}")
    g("s_mov_b32 exec_lo, 0x00110011"); g("s_mov_b32 exec_hi, 0x00110011")
    g(f"buffer_store_dwordx4 {vr(qo,4)}, v{vqa}, {WS}, {sQAo} offen sc1")
    if hqe:
        g("s_mov_b64 exec, 1")
        g(f"buffer_store_dword v{vT}, v{l16}, {WS}, s66 offen")
    g("s_mov_b64 exec, -1")
    g.stamp(6)
    g(f"s_lshl_b32 s58, {sW}, 8")
    vA, vB = vk, vk + 1
    g(f"v_and_b32 v2, 0xff, v{vqA}"); g(f"v_lshl_add_u32 v{vA}, v{gg}, 10, v2"); g(f"v_xor_b32 v{vB}, 0x80, v{vA}")
    g(f"v_add_u32 v{vk+2}, 3072, v{vA}"); g(f"v_add_u32 v{vk+5}, 6144, v{vB}"); g(f"v_add_u32 v{vk+6}, 9216, v{vB}")
    hpv = g.v(4, 4); vz = g.v()
    sWOo = "s46"
    g(f"v_mov_b32 v{vz}, 0")
    if not hqe:
        g("v_mov_b32 v3, 0"); g("s_mov_b64 exec, 1")
        g("s_waitcnt vmcnt(0)"); g.stamp(3)
        g(f"buffer_store_dword v{vT}, v3, {WS}, s66 offen")
        g("s_mov_b64 exec, -1")
    if loc: restore(vqps, "s67")
    def wuv_quad(a):
        g(f"s_add_u32 m0, s60, {L_WUV + a*0x1000}"); g(f"s_add_u32 s61, {sQoff}, {a*0x20000}")
        quad(WUV, "s61")
    srd(24, 4 << 20)
    if pga: g("s_waitcnt vmcnt(0)")
    for a in range(pg): wuv_quad(a)
    sPOo = "s17"
    g(f"s_lshr_b32 {sPOo}, s6, 1"); g(f"s_lshl2_add_u32 {sPOo}, {sPOo}, s7"); g(f"s_lshl_b32 {sPOo}, {sPOo}, 15"); g(f"s_add_u32 {sPOo}, {sPOo}, s60")
    g("s_and_b32 s63, s6, 1"); g("s_lshl_b32 s63, s63, 6"); g(f"s_add_u32 {sPOo}, {sPOo}, s63"); g(f"s_add_u32 {sPOo}, {sPOo}, {PO}"); g(f"s_add_u32 s47, {sPOo}, 0x1000")
    vpl = g.v()
    g(f"v_lshlrev_b32 v{vpl}, 9, v{gg}"); g(f"v_lshl_add_u32 v{vpl}, v{r}, 7, v{vpl}"); g(f"v_lshl_add_u32 v{vpl}, v{c4}, 4, v{vpl}")
    g(f"v_lshrrev_b32 v{vop}, 1, v1"); g(f"v_mul_u32_u24 v{vop}, {OPS}, v{vop}"); g(f"v_and_b32 v2, 1, v1"); g(f"v_lshl_or_b32 v{vop}, v2, 4, v{vop}")
    g(f"""
    s_lshl4_add_u32 s62, s5, s4
    s_lshl_b32 s62, s62, 5
    s_mul_i32 s63, s3, {32*OPS}
    s_add_u32 s62, s62, s63
    s_add_u32 {sOPo}, s62, {OP}
    """)
    vwo = f
    srd(28, 4 << 20)
    acc = g.v(16, 4)
    uv = wk; wo = 0
    vlw, vlr, vcs, vclo, vbp = g.v(), g.v(), g.v(), g.v(), g.v()
    mk = f + 8
    g(f"v_lshl_or_b32 v{vf}, v{c4}, 3, v{vf}")
    g(f"v_lshlrev_b32 v{vlw}, 6, v{r}"); g(f"v_lshl_add_u32 v{vlw}, v{gg}, 5, v{vlw}"); g(f"v_lshl_add_u32 v{vlw}, v{c4}, 3, v{vlw}")
    g(f"s_mul_i32 s62, {sW}, 288"); g(f"s_add_u32 s62, s62, {L_LAT}"); g(f"v_add_u32 v{vlw}, s62, v{vlw}")
    g(f"v_mul_u32_u24 v{vlr}, 288, v{c4}"); g(f"v_lshl_add_u32 v{vlr}, v{gg}, 4, v{vlr}"); g(f"v_add_u32 v{vlr}, {L_LAT}, v{vlr}")
    g(f"v_bfe_u32 v{vcs}, v1, 1, 1"); g(f"v_lshlrev_b32 v{vcs}, 9, v{vcs}"); g(f"v_lshl_add_u32 v{vcs}, v{gg}, {4 if nat else 5}, v{vcs}"); g(f"v_and_b32 v2, 1, v1"); g(f"v_lshl_add_u32 v{vcs}, v2, {6 if nat else 4}, v{vcs}")
    g(f"v_and_b32 v2, 7, v1"); g(f"v_lshlrev_b32 v2, 9, v2"); g(f"v_lshl_add_u32 v2, v{gg}, 5, v2")
    g(f"v_and_b32 v3, 8, v1"); g(f"v_lshl_add_u32 v{vclo}, v3, 1, v2")
    g(f"s_lshl_b32 s62, {sW}, 6"); g(f"v_lshlrev_b32 v{vbp}, 2, v{gg}"); g(f"v_add_u32 v{vbp}, s62, v{vbp}")
    g(f"v_and_b32 v2, 1, v1"); g(f"v_lshlrev_b32 v2, 4, v2"); g(f"v_mov_b32 v3, 0xffff"); g(f"v_lshlrev_b32 v3, v2, v3"); g(f"v_bfe_u32 v2, v1, 1, 2")
    for k in range(4):
        g(f"v_cmp_eq_u32 vcc, {k}, v2"); g("s_nop 1"); g(f"v_cndmask_b32 v{mk+k}, 0, v3, vcc")
    g(f"s_lshl_b32 {sWOo}, s1, 15"); g(f"s_add_u32 {sWOo}, {sWOo}, s58")
    g(f"v_lshl_add_u32 v3, v{gg}, 3, v{r}"); g(f"v_lshlrev_b32 v3, 8, v3"); g(f"s_add_u32 s62, s60, {L_WO}"); g(f"v_add_u32 v3, s62, v3")
    for tl in range(8):
        g(f"v_xor_b32 v{vwo+tl}, {tl*32}, v{vf}"); g(f"v_add_u32 v{vwo+tl}, v{vwo+tl}, v3")
    g(f"v_mov_b32 v{hpv+2}, v{vT}")
    ALH = g.v(8, 4)
    for k in range(8): g(f"v_mov_b32 v{ALH+k}, 0")
    def wo_quad():
        for j, rg in enumerate((vA, vk + 2, vk + 5, vk + 6)):
            g(f"buffer_load_dwordx4 v{rg}, {WO}, {sWOo} offen offset:{j*1024} {NS}lds")
    def uv_reads():
        for u in range(4):
            for T in range(2):
                for hf in range(2):
                    g.lds(f"ds_read_b64_tr_b16 {vr(uv+16*T+4*u+2*hf,2)}, {trad(T)[0]} offset:{L_WUV + u*8192 + hf*1024 + trad(T)[1]}")
    def wuv_stream():
        for a in range(pg, 2):
            if gw >= 0 and a > 0: g(f"s_waitcnt vmcnt({gw})")
            wuv_quad(a)
    if gate == 1:
        g(f"s_lshl_b32 s62, s5, 8"); g(f"s_add_u32 s62, s62, {HQ}"); g("v_lshlrev_b32 v3, 2, v1")
        hint_wait(g, "L_Wg", 2, 3, "s62", 0, "s63")
    if gate == 2:
        g("s_lshl4_add_u32 s62, s5, s4"); g("s_lshl_b32 s62, s62, 7"); g(f"s_add_u32 s62, s62, {HA}")
        hint_wait(g, "L_Wg", 2, vz, "s62", 32, "s63")
    g.stamp(14)
    wuv_stream()
    def wo_stream():
        g(f"s_add_u32 m0, s60, {L_WO}"); g("s_nop 0")
        if gw >= 0 and wow: g(f"s_waitcnt vmcnt({gw})")
        wo_quad()
        g("s_add_u32 m0, m0, 0x1000"); g(f"s_add_u32 {sWOo}, {sWOo}, 0x4000")
        if gw >= 0 and wow: g(f"s_waitcnt vmcnt({gw})")
        wo_quad()
    def wo_reads():
        for tl in range(8):
            for hf in range(2): g.lds(f"ds_read_b64_tr_b16 {ar(wo+4*tl+2*hf,2)}, v{vwo+tl} offset:{hf*1024}")
    if wow == 1: wo_stream()
    if wow == 3:
        g(f"s_add_u32 m0, s60, {L_WO}"); g("s_nop 0")
        wo_quad()
    if opr: g(f"buffer_load_dword v254, v{vop}, {WS}, {sOPo} offen")
    vfw = g.v(4, 4); vfa = g.v()
    if cmb and fle == 1:
        g("s_lshr_b32 s44, s6, 4"); g("s_lshl_b32 s44, s44, 10"); g(f"s_add_u32 s44, s44, {FLA}")
        g(f"buffer_load_dword v{vfw}, v{l16}, {WS}, s44 offen sc1")
    if cmb and fle == 2:
        g("s_lshr_b32 s44, s6, 4"); g("s_lshl_b32 s44, s44, 13"); g(f"s_add_u32 s44, s44, {FLB}"); g(f"v_lshlrev_b32 v{vfa}, 7, v1")
        g(f"buffer_load_dwordx4 {vr(vfw,4)}, v{vfa}, {WS}, s44 offen sc1")
    def flb_check():
        for k in range(4): g(f"v_sad_u32 v2, v{vfw+k}, {sT}, {'v2' if k else 0}")
        g("v_cmp_ne_u32 vcc, 0, v2")
    sSTo, sCPs, sCPl, sCnt, sBl, sRL = "s16", "s18", "s19", "s20", "s21", "s22"
    g(f"s_lshr_b32 {sSTo}, s6, 2"); g(f"s_lshl_b32 {sSTo}, {sSTo}, 8"); g("s_and_b32 s63, s6, 3"); g(f"s_add_u32 {sSTo}, {sSTo}, s63"); g(f"s_lshl_b32 {sSTo}, {sSTo}, 4"); g(f"s_add_u32 {sSTo}, {sSTo}, {ST}")
    vst = g.v()
    g(f"v_lshlrev_b32 v{vst}, 6, v1")
    g(f"s_lshl_b32 s62, s6, 12"); g(f"s_add_u32 s62, s62, {CP}")
    g(f"s_lshl_b32 s63, s7, 7"); g(f"s_add_u32 {sCPl}, s62, s63")
    g(f"s_lshl_b32 s63, s7, 10"); g(f"s_add_u32 {sCPs}, s62, s63"); g(f"s_lshl_b32 s63, {sW}, 7"); g(f"s_add_u32 {sCPs}, {sCPs}, s63")
    g(f"s_lshr_b32 {sBl}, {sW}, 1"); g(f"s_lshl_b32 {sBl}, {sBl}, 5")
    g("s_mov_b32 s70, 0xaaaaaaaa"); g("s_mov_b32 s71, s70")
    g(f"s_waitcnt vmcnt({(8 if wow == 1 else 4 if wow == 3 else 0) + (1 if opr else 0) + (1 if (cmb and fle) else 0)})")
    g("s_barrier")
    g.stamp(7)
    if wow == 2: wo_stream()
    if wow == 3:
        g("s_add_u32 m0, m0, 0x1000"); g(f"s_add_u32 {sWOo}, {sWOo}, 0x4000")
        wo_quad()
    uv_reads()
    if wow:
        g("s_waitcnt vmcnt(0)")
        wo_reads()
    g.stamp(8)
    TLO = (0, 1, 4, 5); THI = (2, 3, 6, 7)
    stt = xa; pf = qf; af = ta; wd = xa + 4; mx = xa + 5; wb = f + 12
    sHA = "s45"
    def po_loads():
        for u in range(4): g(f"buffer_load_dwordx4 {vr(pf+4*u,4)}, v{vpl}, {WS}, {sPOo if u < 2 else 's47'} offen offset:{(u&1)*2048} sc1")
    if cmb:
        if not fle:
            g("s_lshr_b32 s44, s6, 4"); g("s_lshl_b32 s44, s44, 10"); g(f"s_add_u32 s44, s44, {FLA}")
            g(f"buffer_load_dword v{vfw}, v{l16}, {WS}, s44 offen sc1")
        g(f"s_lshl_b32 s63, s5, 8"); g(f"s_add_u32 s63, s63, {HB}"); g("v_lshlrev_b32 v3, 2, v1")
        g("s_waitcnt vmcnt(0)")
        if fle == 2: flb_check()
        else: g(f"v_cmp_ne_u32 vcc, {sT}, v{vfw}")
        g("s_cbranch_vccnz L_Wfa")
        g.label("L_Wfa_x")
        hint_wait(g, "L_Wh1", 2, 3, "s63", 0, sCnt)
        g(f"s_mov_b32 {sCnt}, 0")
        g(f"buffer_load_dwordx3 {vr(stt,3)}, v{vst}, {WS}, {sSTo} offen sc1")
        po_loads()
        if not wow: wo_stream()
        g(f"s_waitcnt vmcnt({4 if wow else 12})")
        g("s_branch L_Ws_c")
        g.label("L_Ws")
        g(f"buffer_load_dwordx3 {vr(stt,3)}, v{vst}, {WS}, {sSTo} offen sc1")
        po_loads()
        g(f"s_add_u32 {sCnt}, {sCnt}, 1"); g(f"s_cmp_gt_u32 {sCnt}, {SPIN}"); g("s_cbranch_scc1 L_Ws_x")
        g("s_waitcnt vmcnt(4)")
        g.label("L_Ws_c")
        g(f"v_cmp_ne_u32 vcc, {sT}, v{stt+2}")
        g("s_cbranch_vccnz L_Ws")
        g.label("L_Ws_x")
        g.count(sCnt)
        g.stamp(9)
    else:
        if hint:
            g("s_and_b32 s62, s4, 14"); g("s_lshr_b32 s63, s5, 2"); g("s_or_b32 s62, s62, s63"); g("s_lshl4_add_u32 s62, s5, s62"); g("s_lshl_b32 s62, s62, 7")
            g(f"s_add_u32 {sHA}, s62, {HA}"); g(f"s_lshl2_add_u32 s62, s7, {sHA}")
            hint_wait(g, "L_Wh1", 2, vz, sHA, 0, sCnt)
        g(f"s_mov_b32 {sCnt}, 0")
        g.label("L_Ws")
        if slp: g(f"s_sleep {slp}")
        g(f"buffer_load_dwordx3 {vr(stt,3)}, v{vst}, {WS}, {sSTo} offen sc1")
        if hint: g(f"buffer_load_dword v{stt+3}, v{vz}, {WS}, s62 offen offset:16 sc1")
        g(f"s_add_u32 {sCnt}, {sCnt}, 1"); g(f"s_cmp_gt_u32 {sCnt}, {SPIN}"); g("s_cbranch_scc1 L_Ws_x")
        g("s_waitcnt vmcnt(0)")
        g(f"v_cmp_ne_u32 vcc, {sT}, v{stt+2}")
        g("s_cbranch_vccnz L_Ws")
        g.label("L_Ws_x")
        g.count(sCnt)
        g("s_waitcnt vmcnt(0)")
        g.stamp(9)
        def po_loads():
            for u in range(4): g(f"buffer_load_dwordx4 {vr(pf+4*u,4)}, v{vpl}, {WS}, {sPOo if u < 2 else 's47'} offen offset:{(u&1)*2048} sc1")
        def po_first():
            po_loads()
            if not wow: wo_stream()
        if hint:
            g(f"v_cmp_ne_u32 s[64:65], {sT}, v{stt+3}")
            g("s_cmp_lg_u64 s[64:65], 0"); g("s_cbranch_scc1 L_Wp_n1")
            po_first()
            g.label("L_Wp_n1")
    g(f"v_mov_b32 v{mx}, v{stt}"); g("s_nop 1")
    reduce32(g, "max", mx, t)
    g(f"v_sub_f32 v{mx}, v{stt}, v{mx}")
    g(f"v_exp_f32 v{mx}, v{mx}")
    g("s_nop 0")
    g(f"v_cvt_pk_bf16_f32 v{wd}, v{mx}, v{mx}")
    for u in range(4): g.lds(f"ds_bpermute_b32 v{wb+u}, v{vbp}, v{wd} offset:{16*u}")
    g(f"v_and_b32 v{mx}, 0xffff0000, v{wd}")
    g(f"v_mul_f32 v{mx}, v{mx}, v{stt+1}"); g("s_nop 1")
    reduce32(g, "add", mx, t)
    g(f"v_rcp_f32 v{mx}, v{mx}")
    g.lwait0()
    for u in range(4):
        for k in range(4): g(f"v_and_b32 v{af+4*u+k}, v{wb+u}, v{mk+k}")
    g(f"v_readlane_b32 {sRL}, v{mx}, {sBl}")
    if not cmb:
        if hint:
            g("s_cmp_eq_u64 s[64:65], 0"); g("s_cbranch_scc1 L_Wp_n2")
            hint_wait(g, "L_Wh2", 2, vz, "s62", 16, sCnt)
        po_first()
        g.label("L_Wp_n2")
    if rall:
        g("s_lshl4_add_u32 s62, s5, s4"); g("s_lshl2_add_u32 s62, s62, s3"); g("s_lshl_b32 s62, s62, 2"); g(f"s_add_u32 s62, s62, {HW}")
    else:
        g("s_lshl4_add_u32 s62, s5, s4"); g("s_lshl_b32 s62, s62, 7"); g(f"s_add_u32 s62, s62, {HW}")
    g(f"s_mov_b32 s61, {sCnt}")
    g(f"s_mov_b32 {sCnt}, 0")
    if wow: g("s_branch L_Wp_c")
    else:
        if cmb:
            g(f"s_cmp_lg_u32 s61, 0"); g("s_cbranch_scc1 L_Wp_c")
        g("s_waitcnt vmcnt(8)")
        g("s_branch L_Wp_d")
    g.label("L_Wp")
    po_loads()
    g.label("L_Wp_c")
    g(f"s_add_u32 {sCnt}, {sCnt}, 1"); g(f"s_cmp_gt_u32 {sCnt}, {SPIN}"); g("s_cbranch_scc1 L_Wp_x")
    g("s_waitcnt vmcnt(0)")
    g.label("L_Wp_d")
    g(f"v_max3_u32 v{chk}, v{pf+3}, v{pf+7}, v{pf+11}"); g(f"v_max_u32 v{chk}, v{chk}, v{pf+15}")
    g(f"v_cmp_eq_u32 vcc, -1, v{chk}")
    g("s_cbranch_vccnz L_Wp")
    g.label("L_Wp_x")
    g.count(sCnt)
    g.stamp(10)
    for u in range(4): g(f"v_mfma_f32_16x16x32_bf16 {vr(Da,4)}, {vr(af+4*u,4)}, {vr(pf+4*u,4)}, {vr(Da,4) if u else 0}")
    g("s_mov_b32 exec_hi, 0")
    g("s_nop 6")
    for k in range(4): g(f"v_mul_f32 v{Da+k}, {sRL}, v{Da+k}")
    g(f"v_cvt_pk_bf16_f32 v{qo}, v{Da}, v{Da+1}"); g(f"v_cvt_pk_bf16_f32 v{qo+1}, v{Da+2}, v{Da+3}")
    g(f"ds_write_b64 v{vlw}, {vr(qo,2)}")
    g("s_mov_b64 exec, -1")
    g.lwait0()
    g("s_barrier")
    for u in range(4): g.lds(f"ds_read_b128 {vr(xb+4*u,4)}, v{vlr} offset:{u*64}", ("lf", u))
    for u in range(4):
        g.lwait(("lf", u))
        g(f"v_mfma_f32_16x16x32_bf16 {vr(Da,4)}, {vr(uv+4*u,4)}, {vr(xb+4*u,4)}, {vr(Da,4) if u else 0}")
        g(f"v_mfma_f32_16x16x32_bf16 {vr(Db,4)}, {vr(uv+16+4*u,4)}, {vr(xb+4*u,4)}, {vr(Db,4) if u else 0}")
    g("s_nop 6")
    for k in range(8): g(f"v_add_f32_dpp v{Da+k}, v{Da+k}, v{Da+k} quad_perm:[1,0,3,2] {DPPF}")
    g("s_mov_b32 exec_lo, 0x000f000f"); g("s_mov_b32 exec_hi, 0x000f000f")
    pack_granule("s[70:71]")
    g(f"buffer_store_dwordx4 {vr(Ga,4)}, v{vcs}, {WS}, {sCPs} offen {'' if loc else 'sc1'}")
    g("s_mov_b64 exec, -1")
    g.stamp(11)
    cl = pf
    g(f"s_mov_b32 {sCnt}, 1")
    if dl:
        g(f"s_waitcnt vmcnt({1 if dl == 1 else 0})")
        wo_reads()
        g(f"buffer_load_dwordx4 {vr(cl,4)}, v{vclo}, {WS}, {sCPl} offen sc1")
    else:
        g(f"buffer_load_dwordx4 {vr(cl,4)}, v{vclo}, {WS}, {sCPl} offen sc1")
        if not wow:
            g("s_waitcnt vmcnt(2)")
            wo_reads()
    g("s_branch L_Wd_c")
    g.label("L_Wd")
    if loc:
        g(f"s_cmp_lg_u32 {sCnt}, 6"); g("s_cbranch_scc1 L_Wd_n")
        restore(vcs, sCPs)
        g.label("L_Wd_n")
    g(f"buffer_load_dwordx4 {vr(cl,4)}, v{vclo}, {WS}, {sCPl} offen sc1")
    g(f"s_add_u32 {sCnt}, {sCnt}, 1"); g(f"s_cmp_gt_u32 {sCnt}, {SPIN}"); g("s_cbranch_scc1 L_Wd_x")
    g.label("L_Wd_c")
    g("s_waitcnt vmcnt(0)")
    g(f"v_cmp_ne_u32 vcc, {sT}, v{cl}")
    g("s_cbranch_vccnz L_Wd")
    g.label("L_Wd_x")
    g.count(sCnt)
    g("s_waitcnt vmcnt(0)")
    def done_hint():
        if rall: g("s_mov_b64 exec, 1")
        else: g(f"s_cmp_eq_u32 {sW}, 0"); g("s_cselect_b64 exec, 1, 0")
        g(f"buffer_store_dword v{vT}, v{vz}, {WS}, s62 offen")
        g("s_mov_b64 exec, -1")
    if hintr and hre: done_hint()
    AL, AH = ALH, ALH + 4
    for k in range(2):
        g(f"v_mov_b32_dpp v{AL+k}, v{cl+2+k} quad_perm:[0,1,2,3] row_mask:0xf bank_mask:0x3")
        g(f"v_mov_b32_dpp v{AL+2+k}, v{cl+2+k} row_ror:8 row_mask:0xf bank_mask:0x3")
        g(f"v_mov_b32_dpp v{AH+k}, v{cl+2+k} row_ror:8 row_mask:0xf bank_mask:0xc")
        g(f"v_mov_b32_dpp v{AH+2+k}, v{cl+2+k} quad_perm:[0,1,2,3] row_mask:0xf bank_mask:0xc")
    g.lwait0()
    g("s_nop 0")
    for k in range(4): g(f"v_mfma_f32_16x16x32_bf16 {vr(acc+4*k,4)}, {vr(AL,4)}, {ar(wo+4*TLO[k],4)}, 0")
    for k in range(4): g(f"v_mfma_f32_16x16x32_bf16 {vr(acc+4*k,4)}, {vr(AH,4)}, {ar(wo+4*THI[k],4)}, {vr(acc+4*k,4)}")
    def out_pack(acc, R, U, dst, vaddr, soff):
        g("s_nop 4")
        g(f"v_pk_add_f32 {vr(R,2)}, {vr(acc,2)}, {vr(acc+2,2)}")
        g(f"v_pk_add_f32 {vr(U,2)}, {vr(acc+4,2)}, {vr(acc+6,2)}")
        g(f"v_pk_add_f32 {vr(R+2,2)}, {vr(acc+8,2)}, {vr(acc+10,2)}")
        g(f"v_pk_add_f32 {vr(U+2,2)}, {vr(acc+12,2)}, {vr(acc+14,2)}")
        g("s_nop 0")
        for k in range(4): g(f"v_permlane16_swap_b32 v{R+k}, v{U+k}")
        g("s_nop 0")
        g(f"v_pk_add_f32 {vr(R,2)}, {vr(R,2)}, {vr(U,2)}"); g(f"v_pk_add_f32 {vr(R+2,2)}, {vr(R+2,2)}, {vr(U+2,2)}")
        g(f"v_cvt_pk_bf16_f32 v{dst}, v{R}, v{R+1}"); g(f"v_cvt_pk_bf16_f32 v{dst+1}, v{R+2}, v{R+3}")
        g(f"buffer_store_dwordx4 {vr(dst,4)}, v{vaddr}, {WS}, {soff} offen sc1")
    out_pack(acc, qo, Da, hpv, vop, sOPo)
    if hintr and not hre: done_hint()
    if loc: restore(vcs, sCPs)
    g.stamp(2)
    dump_stamps(g, "W")
    g("s_endpgm")
    if cmb and fle == 2:
        g.label("L_Wfa")
        g(f"s_mov_b32 {sCnt}, 0")
        g.label("L_Wfa_l")
        g("s_sleep 2")
        g(f"buffer_load_dwordx4 {vr(vfw,4)}, v{vfa}, {WS}, s44 offen sc1")
        g(f"s_add_u32 {sCnt}, {sCnt}, 1"); g(f"s_cmp_gt_u32 {sCnt}, {SPIN}"); g("s_cbranch_scc1 L_Wfa_x")
        g("s_waitcnt vmcnt(0)")
        flb_check()
        g("s_cbranch_vccnz L_Wfa_l")
        g("s_branch L_Wfa_x")
    elif cmb: flag_fallback(g, "L_Wfa", vfw, l16, "s44", sCnt)

    g.label("L_A2")
    g.lq = []
    g("""
    s_load_dword s43, s[8:9], 0
    s_load_dwordx2 s[52:53], s[0:1], 72
    s_load_dwordx2 s[28:29], s[0:1], 40
    s_load_dwordx2 s[60:61], s[0:1], 56
    s_load_dwordx2 s[68:69], s[0:1], 32
    s_load_dwordx2 s[64:65], s[0:1], 64
    """)
    dbg_init()
    g.reset_v(12)
    vj = l16
    vfl, vfo = g.v(), g.v()
    srd(12, 2048); srd(52, 2048)
    g(f"v_lshlrev_b32 v{vfo}, 7, v1"); g("s_lshl_b32 s34, s6, 10"); g(f"s_add_u32 s34, s34, {FL1}")
    n, gg, r, c4 = g.v(), g.v(), g.v(), g.v()
    g(f"v_and_b32 v{n}, 15, v1"); g(f"v_lshrrev_b32 v{gg}, 4, v1"); g(f"v_bfe_u32 v{r}, v1, 2, 2"); g(f"v_and_b32 v{c4}, 3, v1")
    sHX = "s35"
    g(f"s_mov_b32 {sHX}, {'s6' if swap else 0}")
    vro, xr = g.v(), g.v()
    g(f"v_and_b32 v2, 1, v{gg}"); g(f"v_lshlrev_b32 v{vro}, 10, v2"); g(f"v_lshrrev_b32 v2, 1, v{gg}"); g(f"v_lshl_add_u32 v{vro}, v2, 7, v{vro}")
    g(f"v_and_b32 v2, 1, v1"); g(f"v_lshl_add_u32 v{vro}, v2, 1, v{vro}")
    sRo = "s26"
    g(f"""
    s_sub_u32 s56, s4, 16
    s_lshl4_add_u32 {sRid}, s5, s56
    s_lshr_b32 s56, {sRid}, 5
    s_lshl_b32 {sRo}, s56, 8
    s_bfe_u32 s56, {sRid}, 0x20003
    s_lshl_b32 s56, s56, 5
    s_add_u32 {sRo}, {sRo}, s56
    s_and_b32 s56, {sRid}, 7
    s_lshl2_add_u32 {sRo}, s56, {sRo}
    """)
    if adl == 2: pfk_load(); abody(0, 0); abody(1, 0)
    vkq = g.v(4); vpv = g.v(16); vpw = g.v(2); vpr = g.v(2); vmx = g.v(); vqd = g.v(); vqr = g.v(); vqc = g.v(); vst = g.v()
    for k in range(4):
        g(f"v_add_u32 v2, {4*k}, v{gg}"); g(f"v_xor_b32 v2, v2, v{n}"); g(f"v_lshlrev_b32 v2, 4, v2"); g(f"v_lshl_add_u32 v2, v{n}, 10, v2"); g(f"v_add_u32 v{vkq+k}, {sRow}, v2")
    g(f"v_and_b32 v2, 1, v{gg}"); g(f"v_lshlrev_b32 v2, 2, v2"); g(f"v_add_lshl_u32 v2, v2, v{r}, 1")
    g(f"v_lshrrev_b32 v3, 1, v{c4}"); g(f"v_xor_b32 v2, v2, v3"); g(f"v_lshlrev_b32 v2, 4, v2")
    g(f"v_and_b32 v3, 1, v1"); g(f"v_lshl_add_u32 v2, v3, 3, v2")
    g(f"v_lshl_add_u32 v3, v{gg}, 2, v{r}"); g(f"v_lshl_add_u32 v2, v3, 11, v2")
    g(f"s_lshl_b32 s56, {sHX}, 16"); g(f"s_lshl_b32 s58, s3, 8"); g("s_add_u32 s56, s56, s58"); g(f"v_add_u32 v2, s56, v2")
    for T in range(8):
        g(f"v_xor_b32 v{vpv+2*T}, {T*32}, v2")
        g(f"v_xor_b32 v3, {T*32+16}, v2"); g(f"v_add_u32 v{vpv+2*T+1}, 0x400, v3")
    g(f"v_mul_u32_u24 v2, 272, v{n}"); g(f"v_lshrrev_b32 v3, 1, v{gg}"); g(f"v_lshl_add_u32 v{vpw}, v3, 4, v2"); g(f"v_and_b32 v3, 1, v{gg}"); g(f"v_lshl_add_u32 v{vpw}, v3, 2, v{vpw}")
    g(f"s_lshl_b32 s56, {sHX}, 7"); g(f"s_xor_b32 s58, s56, 0x80"); g(f"s_lshl_b32 s59, s3, 5"); g(f"s_add_u32 s59, s59, {L_P}")
    g("s_add_u32 s24, s58, s59"); g("s_add_u32 s59, s56, s59")
    g(f"v_add_u32 v{vpw+1}, s24, v{vpw}"); g(f"v_add_u32 v{vpw}, s59, v{vpw}")
    g(f"v_lshl_add_u32 v2, v{gg}, 4, v2"); g(f"s_add_u32 s56, s56, {L_P}"); g(f"s_add_u32 s58, s58, {L_P}")
    g(f"v_add_u32 v{vpr}, s56, v2"); g(f"v_add_u32 v{vpr+1}, s58, v2")
    g(f"v_lshlrev_b32 v{vmx}, 2, v{n}"); g(f"v_add_u32 v{vmx}, {L_MX}, v{vmx}")
    g(f"v_lshlrev_b32 v{vqd}, 6, v{n}"); g(f"v_lshl_add_u32 v{vqd}, v{gg}, 4, v{vqd}")
    g(f"v_add_u32 v{vqr}, {L_QA}, v{vj}")
    sQAl, sQAm, sSTs = "s27", "s30", "s31"
    g(f"""
    s_lshl_b32 {sQAm}, s3, 12
    s_lshr_b32 s56, s7, 5
    s_lshl1_add_u32 s56, s56, s6
    s_lshl_b32 s56, s56, 14
    s_add_u32 {sQAl}, s56, {sQAm}
    s_add_u32 {sQAl}, {sQAl}, {QA}
    s_add_u32 {sQAm}, {sQAm}, {L_QA}
    s_lshl_b32 {sSTs}, s6, 14
    s_lshl_b32 s56, s7, 6
    s_add_u32 {sSTs}, {sSTs}, s56
    s_add_u32 {sSTs}, {sSTs}, {ST}
    """)
    g(f"v_add_u32 v{vqc}, {sQAm}, v{vj}")
    g(f"v_lshlrev_b32 v{vst}, 12, v{r}"); g(f"v_lshl_add_u32 v{vst}, v{c4}, 4, v{vst}")
    vpo2 = g.v()
    if wow == 3:
        g(f"s_lshl_b32 s56, {sRid}, 3"); g("s_add_u32 s56, s56, s3"); g("s_add_u32 s56, s56, 4"); g("s_lshl_b32 s56, s56, 12"); g(f"v_and_b32 v{vpo2}, 0xf80, v{vfo}"); g(f"v_add_u32 v{vpo2}, s56, v{vpo2}")
    else:
        g(f"s_lshl2_add_u32 s56, {sRid}, s3"); g("s_lshl_b32 s56, s56, 13"); g(f"v_add_u32 v{vpo2}, s56, v{vfo}")
    vf1, vf2 = g.v(), g.v()
    srd(60, 512*1376*2); srd(64, 512*1376*2)
    g("s_bfe_u32 s56, s4, 0x20002"); g("s_mul_i32 s58, s5, 3"); g("s_cmp_lt_u32 s56, 3"); g("s_cselect_b32 s58, s58, 64"); g("s_add_u32 s56, s56, s58"); g("s_and_b32 s58, s4, 3")
    g("s_lshl2_add_u32 s24, s58, s3"); g(f"s_mul_i32 s24, s24, {32*2752}"); g("s_lshl_b32 s25, s56, 7"); g("s_add_u32 s24, s24, s25")
    g("s_lshl2_add_u32 s25, s56, s58"); g("s_lshl2_add_u32 s25, s25, s3"); g("s_lshl_b32 s25, s25, 12")
    g("s_mov_b32 s70, s56"); g("s_mov_b32 s71, s58")
    g("s_cmp_lt_u32 s56, 22"); g(f"s_cselect_b32 s24, s24, {OOB}")
    g(f"v_lshrrev_b32 v2, 1, v1"); g(f"v_mul_u32_u24 v{vf1}, 2752, v2"); g("v_and_b32 v2, 1, v1"); g("v_mul_u32_u24 v2, 124, v2"); g(f"v_add_u32 v{vf1}, v{vf1}, v2")
    g(f"v_and_b32 v{vf2}, 31, v1"); g(f"v_lshlrev_b32 v{vf2}, 7, v{vf2}")
    vzA = g.v()
    g(f"v_mov_b32 v{vzA}, 0"); g(f"s_lshl_b32 s38, {sRid}, 7"); g(f"s_add_u32 s36, s38, {HA}"); g("s_lshl2_add_u32 s37, s3, s36"); g(f"s_add_u32 s38, s38, {HW}")
    if cmb: g(f"s_lshl2_add_u32 s37, {sRid}, s3"); g("s_lshl_b32 s37, s37, 2"); g(f"s_add_u32 s37, s37, {HB-16}")
    xbA = g.v(16, 4); vxa = g.v()
    g(f"v_and_b32 v2, 1, v1"); g(f"v_lshlrev_b32 v{vxa}, 6, v2"); g(f"v_lshl_add_u32 v{vxa}, v{gg}, 4, v{vxa}")
    g(f"s_lshl2_add_u32 s39, s6, {'s3' if fk else 's71'}"); g("s_lshl_b32 s39, s39, 9"); g(f"s_add_u32 s39, s39, {XNG}")
    g(f"s_lshr_b32 s58, {sRid}, 2"); g("s_lshl_b32 s58, s58, 11"); g(f"s_add_u32 s58, s58, {HP}")
    g(f"s_lshl_b32 s44, {sW}, 9"); g("s_add_u32 s44, s44, s58"); g("s_lshl_b32 s45, s71, 7"); g("s_add_u32 s44, s44, s45"); g("s_lshl_b32 s45, s71, 9"); g("s_add_u32 s45, s45, s58")
    ones = g.v(4, 4)
    for k in range(4): g(f"v_mov_b32 v{ones+k}, 0x3f803f80")
    if adl == 1: pfk_load(); abody(0, 0); abody(1, 0)
    g(f"v_mov_b32 v2, 0xff800000")
    g(f"ds_write_b32 v{vmx}, v2")
    g("v_mov_b32 v3, 0")
    g(f"ds_write_b32 v{vmx}, v3 offset:64")
    g.lwait0()
    g(f"s_mul_i32 {sT}, {sE}, 0x9E3779B1"); g(f"s_add_u32 {sT}, {sT}, 0x7F4A7C15")
    if cmb and fle == 2:
        g("s_lshl_b32 s58, s6, 6"); g("s_add_u32 s58, s58, s7"); g("s_lshl_b32 s58, s58, 5"); g("s_add_u32 s58, s58, s3"); g("s_lshl_b32 s58, s58, 2"); g(f"s_add_u32 s58, s58, {FLB}")
        g(f"v_mov_b32 v2, {sT}"); g("s_mov_b64 exec, 1")
        g("s_waitcnt vmcnt(8)")
        g(f"buffer_store_dword v2, v{vzA}, {WS}, s58 offen sc1")
        g("s_mov_b64 exec, -1")
    abody(2, 0); abody(3, 0)
    g(f"s_xor_b32 s58, {sRow}, 0x10000"); g("s_mov_b32 m0, s58"); g("s_add_u32 s33, s58, s57")
    abody(0, 1); abody(1, 1)
    g("s_waitcnt vmcnt(8)")
    g("s_barrier")
    for u in range(16): g.lds(f"ds_read_b128 {ar(4*u,4)}, v{vkq+(u&3)} offset:{(u>>2)*256}")
    def fla_store():
        if cmb:
            g("s_lshl_b32 s58, s6, 6"); g("s_add_u32 s58, s58, s7"); g("s_lshl_b32 s58, s58, 4"); g(f"s_add_u32 s58, s58, {FLA}")
            g(f"v_mov_b32 v2, {sT}"); g(f"s_cmp_eq_u32 {sW}, 0"); g("s_cselect_b64 exec, 1, 0")
            g(f"buffer_store_dword v2, v{vzA}, {WS}, s58 offen sc1")
            g("s_mov_b64 exec, -1")
    if flae == 1 and fle != 2: fla_store()
    if not noflag: g(f"buffer_load_dword v{vfl}, v{l16}, {WS}, s34 offen sc1")
    vhq, vl4 = g.v(), g.v()
    g(f"s_lshl_b32 s46, s5, 8"); g(f"s_add_u32 s46, s46, {HQ}"); g(f"v_lshlrev_b32 v{vl4}, 2, v1")
    if qae: g(f"buffer_load_dword v{vhq}, v{vl4}, {WS}, s46 offen sc1")
    abody(2, 1); abody(3, 1)
    def ffn_prefetch():
        if not fk: g(f"buffer_load_dword v254, v{vzA}, {WS}, s44 offen")
        if pff:
            if pff in (1, 3): g(f"buffer_load_dword v255, v{vf1}, s[60:63], s24 offen")
            if pff == 4:
                g("s_mov_b32 exec_hi, 0"); g(f"buffer_load_dword v255, v{vf1}, s[60:63], s24 offen"); g("s_mov_b32 exec_hi, -1")
            if pff in (1, 2): g(f"buffer_load_dword v255, v{vf2}, s[64:67], s25 offen")
    if pffe == 1: ffn_prefetch()
    for ks in range(2):
        for T in range(8):
            for hf in range(2):
                g.lds(f"ds_read_b64_tr_b16 {ar(128+(ks*8+T)*4+2*hf,2)}, v{vpv+2*T+hf} offset:{ks*32768}")
    for k in range(4): g(f"v_xor_b32 v{vkq+k}, 0x10000, v{vkq+k}")
    for k in range(16): g(f"v_xor_b32 v{vpv+k}, 0x10000, v{vpv+k}")
    g(f"s_waitcnt vmcnt({8 + (3 if pffe == 1 else 0)})")
    if not noflag:
        g(f"v_cmp_ne_u32 vcc, {sT}, v{vfl}")
        g("s_cbranch_vccnz L_Af1")
    g.label("L_Af1_x")
    g.stamp(11)
    qf = g.v(64, 4); chk = g.v()
    def qa_dma():
        for j in range(4): g(f"buffer_load_dwordx4 v{vqd}, {WS}, {sQAl} offen offset:{j*1024} sc1 lds")
    def qa_check():
        for j in range(4): g(f"ds_read_b128 {vr(qf+4*j,4)}, v{vqc} offset:{j*1024}")
        g.lwait0()
        g(f"v_max3_u32 v{chk}, v{qf+3}, v{qf+7}, v{qf+11}"); g(f"v_max_u32 v{chk}, v{chk}, v{qf+15}")
        g(f"v_cmp_eq_u32 vcc, -1, v{chk}")
    g(f"s_mov_b32 m0, {sQAm}")
    g(f"s_mov_b32 {sCnt}, 1")
    if hq:
        if qae:
            g(f"v_cmp_ne_u32 vcc, {sT}, v{vhq}")
            if spk:
                g("s_bcnt1_i32_b64 s58, vcc"); g(f"s_cmp_le_u32 s58, {spk}"); g("s_cselect_b64 vcc, 0, vcc")
            g("s_cbranch_vccnz L_Aq_l")
            qa_dma()
            g("s_waitcnt vmcnt(4)")
            g("s_branch L_Aq_m")
            g.label("L_Aq_l")
        g("s_waitcnt vmcnt(0)")
        g.label("L_Aq_m")
        g.stamp(5)
        for u in range(16): g.lds(f"ds_read_b128 {ar(64+4*u,4)}, v{vkq+(u&3)} offset:{(u>>2)*256}")
        if flae == 2: fla_store()
        if qae: g("s_cbranch_vccz L_Aq_n")
        hint_wait(g, "L_Ahq", 2, vl4, "s46", 0, sCnt)
        g(f"s_mov_b32 {sCnt}, 1")
        qa_dma()
        g.label("L_Aq_n")
    elif qal:
        g("s_waitcnt vmcnt(0)")
        qa_dma()
    else:
        qa_dma()
        g("s_waitcnt vmcnt(4)")
    if not hq:
        g.stamp(5)
        for u in range(16): g.lds(f"ds_read_b128 {ar(64+4*u,4)}, v{vkq+(u&3)} offset:{(u>>2)*256}")
    if not ty: g("s_barrier")
    if not hq:
        g("s_waitcnt vmcnt(0) lgkmcnt(8)")
        qa_check()
        g("s_cbranch_vccz L_Aq_1")
        qa_dma()
        g.label("L_Aq_1")
    def try_(ks, T, hf):
        g.lds(f"ds_read_b64_tr_b16 {ar(128+((ks+2)*8+T)*4+2*hf,2)}, v{vpv+2*T+hf} offset:{ks*32768}", ("ty", ks, T))
    if not ty:
        for ks in range(2):
            for T in range(8):
                for hf in range(2): try_(ks, T, hf)
    if not hq: g("s_cbranch_vccz L_Aq_x")
    g("s_branch L_Aq_c")
    g.label("L_Aq")
    if spk: hint_wait(g, "L_Ahq2", 2, vl4, "s46", 0, "s58")
    if qsl: g(f"s_sleep {qsl}")
    qa_dma()
    g.label("L_Aq_c")
    g(f"s_add_u32 {sCnt}, {sCnt}, 1"); g(f"s_cmp_gt_u32 {sCnt}, {SPIN}"); g("s_cbranch_scc1 L_Aq_y")
    g("s_waitcnt vmcnt(0) lgkmcnt(8)")
    save = list(g.lq)
    qa_check()
    g("s_cbranch_vccnz L_Aq")
    g.label("L_Aq_y")
    g("s_waitcnt vmcnt(0) lgkmcnt(0)")
    g.label("L_Aq_x")
    g.lq = []
    g.count(sCnt)
    g("s_barrier")
    g.stamp(6)
    SX = g.v(4, 4); SY = g.v(4, 4); O = g.v(32, 4); pfr = g.v(16, 4); LD = g.v(4, 4); pk = g.v(16, 4)
    EX = g.v(8, 4); STG = g.v(4, 4); mxv, t2 = g.v(), g.v()
    AHEAD = 10
    for u in range(AHEAD): g.lds(f"ds_read_b128 {vr(qf+4*u,4)}, v{vqr} offset:{u*1024}", ("q", u))
    if gate == 2:
        g(f"v_mov_b32 v{STG+2}, {sT}"); g(f"s_cmp_eq_u32 {sW}, 0"); g("s_cselect_b64 exec, 1, 0")
        g(f"buffer_store_dword v{STG+2}, v{vzA}, {WS}, s36 offen offset:32")
        g("s_mov_b64 exec, -1")
    if pfv:
        if pfv == 1: g("s_mov_b32 exec_lo, 0")
        g(f"global_load_dword v255, v6, s[68:69]")
        g("s_mov_b64 exec, -1")
    def xn_loads():
        for u in range(4): g(f"buffer_load_dwordx4 {vr(xbA+4*u,4)}, v{vxa}, {WS}, s39 offen offset:{u*128} sc1")
    if xnl == 0: xn_loads()
    if not pffe: ffn_prefetch()
    if pfo and pfoe: g(f"global_load_dword v255, v{vpo2}, s[28:29]")
    g(f"s_mov_b32 s56, {KSCALE:#x}")
    for u in range(16):
        g.lwait(("q", u))
        g(f"v_mfma_f32_16x16x32_bf16 {vr(SX,4)}, {ar(4*u,4)}, {vr(qf+4*u,4)}, {vr(SX,4) if u else 0}")
        if u + AHEAD < 16: g.lds(f"ds_read_b128 {vr(qf+4*(u+AHEAD),4)}, v{vqr} offset:{(u+AHEAD)*1024}", ("q", u + AHEAD))
    def my(u): g(f"v_mfma_f32_16x16x32_bf16 {vr(SY,4)}, {ar(64+4*u,4)}, {vr(qf+4*u,4)}, {vr(SY,4) if u else 0}")
    def pexp(H):
        for k in range(4): g(f"v_exp_f32 v{EX+4*H+k}, v{EX+4*H+k}")
    def pwrite(H):
        g(f"v_cvt_pk_bf16_f32 v{pk+2*H}, v{EX+4*H}, v{EX+4*H+2}"); g(f"v_cvt_pk_bf16_f32 v{pk+2*H+1}, v{EX+4*H+1}, v{EX+4*H+3}")
        g(f"ds_write2_b32 v{vpw+H}, v{pk+2*H}, v{pk+2*H+1} offset1:2")
    my(0); my(1); my(2)
    g("s_nop 4")
    g(f"v_max3_f32 v{mxv}, v{SX}, v{SX+1}, v{SX+2}")
    my(3)
    g(f"v_max_f32 v{mxv}, v{mxv}, v{SX+3}")
    g(f"ds_max_f32 v{vmx}, v{mxv}")
    my(4); my(5); my(6)
    g.lwait0()
    g("s_barrier")
    g(f"ds_read_b32 v{mxv}, v{vmx}")
    my(7); my(8); my(9)
    g.lwait0()
    g(f"v_mul_f32 v{STG}, s56, v{mxv}")
    my(10)
    for k in range(2): g(f"v_fma_f32 v{EX+k}, v{SX+k}, s56, -v{STG}")
    my(11)
    for k in range(2, 4): g(f"v_fma_f32 v{EX+k}, v{SX+k}, s56, -v{STG}")
    my(12)
    g(f"v_exp_f32 v{EX}, v{EX}")
    my(13)
    g(f"v_exp_f32 v{EX+1}, v{EX+1}")
    my(14)
    g(f"v_exp_f32 v{EX+2}, v{EX+2}")
    my(15)
    g(f"v_exp_f32 v{EX+3}, v{EX+3}")
    g(f"v_mov_b32 v{STG+2}, {sT}")
    pwrite(0)
    g(f"s_mov_b32 s57, {f2u(40.0):#x}")
    if hpos == -2:
        g("s_mov_b64 exec, 1")
        g(f"buffer_store_dword v{STG+2}, v{vzA}, {WS}, s37 offen offset:16")
        g("s_mov_b64 exec, -1")
    else: g("s_nop 1")
    for k in range(4): g(f"v_fma_f32 v{EX+4+k}, v{SY+k}, s56, -v{STG}")
    g(f"v_max3_f32 v{t2}, v{EX+4}, v{EX+5}, v{EX+6}")
    g(f"v_exp_f32 v{EX+4}, v{EX+4}")
    g(f"v_max_f32 v{t2}, v{t2}, v{EX+7}")
    g(f"v_exp_f32 v{EX+5}, v{EX+5}")
    g(f"v_cmp_lt_f32 vcc, s57, v{t2}")
    g(f"v_exp_f32 v{EX+6}, v{EX+6}")
    g(f"v_exp_f32 v{EX+7}, v{EX+7}")
    g("s_cbranch_vccnz L_Aovf")
    g.label("L_Aovf_x")
    pwrite(1)
    g.lwait0()
    g("s_barrier")
    g.stamp(7)
    def po_hint():
        g("s_mov_b64 exec, 1")
        g(f"buffer_store_dword v{STG+2}, v{vzA}, {WS}, s37 offen offset:16")
        g("s_mov_b64 exec, -1")
    if hpos == -1: po_hint()
    g.label("L_Apv")
    g.lds(f"ds_read_b32 v{t2}, v{vmx} offset:64", "ovf")
    for ks in range(4): g.lds(f"ds_read_b128 {vr(pfr+4*ks,4)}, v{vpr+(ks>>1)} offset:{(ks&1)*64}", ("p", ks))
    g.lwait("ovf")
    g(f"v_cmp_ne_u32 vcc, 0, v{t2}")
    g("s_cbranch_vccnz L_Aslow")
    g(f"s_cmp_lg_u32 {sW}, 3"); g("s_cbranch_scc1 L_Anol")
    save = list(g.lq)
    g.lwait(("p", 3))
    for ks in range(4): g(f"v_mfma_f32_16x16x32_bf16 {vr(LD,4)}, {vr(ones,4)}, {vr(pfr+4*ks,4)}, {vr(LD,4) if ks else 0}")
    g.label("L_Anol")
    g.lq = save
    def epi(b):
        for q in range(2):
            g(f"v_cvt_pk_bf16_f32 v{pk+4*b+2*q}, v{O+8*b+4*q}, v{O+8*b+4*q+1}")
            yield
            g(f"v_cvt_pk_bf16_f32 v{pk+4*b+2*q+1}, v{O+8*b+4*q+2}, v{O+8*b+4*q+3}")
            yield
        g(f"buffer_store_dwordx4 {vr(pk+4*b,4)}, v{vpo}, {WS}, {sPOs} offen offset:{b*128} sc1")
        if hint and b == hpos:
            g("s_mov_b64 exec, 1")
            g(f"buffer_store_dword v{STG+2}, v{vzA}, {WS}, s37 offen offset:16")
            g("s_mov_b64 exec, -1")
        yield
    def st_store():
        g(f"s_cmp_lg_u32 {sW}, 3"); g("s_cbranch_scc1 L_Anos")
        g(f"v_mov_b32 v{STG+1}, v{LD}")
        g("s_mov_b64 exec, 0xffff")
        g(f"buffer_store_dwordx4 {vr(STG,4)}, v{vst}, {WS}, {sSTs} offen sc1")
        if hint and not cmb:
            g("s_mov_b64 exec, 1")
            g(f"buffer_store_dword v{STG+2}, v{vzA}, {WS}, s36 offen")
        g("s_mov_b64 exec, -1")
        g.label("L_Anos")
    if ty:
        order = [(ks, T, hf) for b in range(4) for ks in range(2) for T in (2 * b, 2 * b + 1) for hf in range(2)]
        for k in range(4): try_(*order[k])
        nxt = 4
        for ks in range(2):
            g.lwait(("p", ks))
            for T in range(8):
                g(f"v_mfma_f32_16x16x32_bf16 {vr(O+4*T,4)}, {ar(128+(ks*8+T)*4,4)}, {vr(pfr+4*ks,4)}, {vr(O+4*T,4) if ks else 0}")
                for _ in range(2):
                    if nxt < 32: try_(*order[nxt]); nxt += 1
            if ks == 0: st_store()
        pend = None
        for b in range(4):
            cnt = 0
            for ks in (2, 3):
                for T in (2 * b, 2 * b + 1):
                    g.lwait(("ty", ks - 2, T))
                    g(f"v_mfma_f32_16x16x32_bf16 {vr(O+4*T,4)}, {ar(128+(ks*8+T)*4,4)}, {vr(pfr+4*ks,4)}, {vr(O+4*T,4)}")
                    cnt += 1
                    if b >= 2:
                        if b == 2 and cnt == 1: g("s_nop 1")
                        next(pend, None)
                        if cnt == 4: next(pend, None)
            if b >= 1: pend = epi(b - 1)
        g("s_nop 1")
        for _ in pend: pass
        for _ in epi(3): pass
    else:
        pend = None
        for b in range(4):
            cnt = 0
            for ks in range(4):
                if b == 0: g.lwait(("p", ks))
                for T in (2 * b, 2 * b + 1):
                    g(f"v_mfma_f32_16x16x32_bf16 {vr(O+4*T,4)}, {ar(128+(ks*8+T)*4,4)}, {vr(pfr+4*ks,4)}, {vr(O+4*T,4) if ks else 0}")
                    cnt += 1
                    if b == 0 and cnt == 8:
                        g(f"s_cmp_lg_u32 {sW}, 3"); g("s_cbranch_scc1 L_Anos")
                        g(f"v_mov_b32 v{STG+1}, v{LD}")
                        g("s_mov_b64 exec, 0xffff")
                        g(f"buffer_store_dwordx4 {vr(STG,4)}, v{vst}, {WS}, {sSTs} offen sc1")
                        if hint and not cmb:
                            g("s_mov_b64 exec, 1")
                            g(f"buffer_store_dword v{STG+2}, v{vzA}, {WS}, s36 offen")
                        g("s_mov_b64 exec, -1")
                        g.label("L_Anos")
                    if pend is not None and cnt >= 4:
                        if cnt == 4: g("s_nop 1")
                        next(pend, None)
            if pend is not None:
                for _ in pend: pass
            pend = epi(b)
        g("s_nop 4")
        for _ in pend: pass
    g.stamp(4)
    L_F1, L_F2 = 0, 0x4000
    xb = xbA; ta = qf + 16; w2f = qf + 32; hp = qf + 48; acc = O; Da = SX; hpv = LD; hlo = EX; hhi = EX + 2
    vw2 = vpv; vA = vpv + 8; vt1, vt2, vh, vop = vpv + 12, vpv + 13, vpv + 14, vpv + 15
    L_H = 0x8000
    if fk:
        g(f"v_lshrrev_b32 v2, 1, v1"); g(f"v_mul_u32_u24 v{vt1}, 2752, v2"); g(f"v_and_b32 v2, 1, v1"); g(f"v_lshlrev_b32 v2, 4, v2"); g(f"v_add_u32 v{vt1}, v2, v{vt1}")
        g(f"v_lshl_add_u32 v{vh}, v{gg}, 5, v2"); g(f"v_add_u32 v{vh}, {L_H}, v{vh}")
    else:
        g(f"v_lshrrev_b32 v2, 3, v1"); g(f"v_mul_u32_u24 v{vt1}, 2752, v2"); g(f"v_and_b32 v2, 7, v1"); g(f"v_lshl_add_u32 v{vt1}, v2, 4, v{vt1}")
        g(f"v_lshlrev_b32 v{vh}, 6, v2"); g(f"v_lshl_add_u32 v{vh}, v{gg}, 4, v{vh}")
    g(f"v_lshlrev_b32 v2, 1, v{gg}"); g(f"v_xor_b32 v2, v2, v{n}"); g(f"v_lshlrev_b32 v2, 4, v2"); g(f"v_lshl_add_u32 v{vA}, v{gg}, 10, v2"); g(f"v_xor_b32 v3, 0x80, v{vA}")
    g(f"v_add_u32 v{vA+1}, 3072, v3"); g(f"v_add_u32 v{vA+2}, 6144, v{vA}"); g(f"v_add_u32 v{vA+3}, 9216, v3")
    g(f"s_lshl_b32 s59, {sW}, 12"); g(f"s_lshl_b32 s58, {sHX}, 16"); g("s_add_u32 s59, s59, s58"); g("s_mov_b32 m0, s59")
    g("s_lshl2_add_u32 s25, s70, s71"); g("s_lshl_b32 s32, s25, 14"); g(f"s_lshl_b32 s33, {sW}, 8"); g("s_add_u32 s32, s32, s33")
    if poack: g("s_waitcnt vmcnt(0)")
    g.stamp(12)
    g("s_cmp_ge_u32 s70, 22"); g("s_cbranch_scc1 L_Anf1")
    if fk:
        if not pff: g(f"buffer_load_dword v255, v{vf1}, s[60:63], s24 offen")
        g(f"s_mul_i32 s24, {sW}, {128*2752}"); g("s_lshl_b32 s58, s25, 5"); g("s_add_u32 s24, s24, s58")
    if xnl == 1: xn_loads()
    for j in range(4):
        if j: g("s_add_u32 m0, m0, 0x400"); g(f"s_add_u32 s24, s24, {(32 if fk else 8)*2752}")
        g(f"buffer_load_dwordx4 v{vt1}, s[60:63], s24 offen lds")
    g(f"s_add_u32 m0, s59, {L_F2}"); g("s_nop 0")
    for j in range(4): g(f"buffer_load_dwordx4 v{vA+j}, s[64:67], s32 offen offset:{j*1024} lds")
    g.label("L_Anf1")
    if pfo and not pfoe: g(f"global_load_dword v255, v{vpo2}, s[28:29]")
    g("s_cmp_ge_u32 s70, 22"); g("s_cbranch_scc1 L_Anf2")
    g(f"v_lshl_add_u32 v{vt2}, v{gg}, 3, v{r}"); g(f"v_lshlrev_b32 v{vt2}, {5 if fk else 7}, v{vt2}"); g(f"v_lshl_add_u32 v{vt2}, v{c4}, 3, v{vt2}")
    g(f"s_lshl_b32 s58, {sW}, {12 if fk else 5}"); g(f"v_add_u32 v{vt2}, s58, v{vt2}"); g(f"s_lshl_b32 s58, {sHX}, 16"); g(f"v_add_u32 v{vt2}, s58, v{vt2}")
    g(f"v_and_b32 v2, 1, v{gg}"); g(f"v_lshl_or_b32 v2, v2, 2, v{r}"); g(f"v_lshlrev_b32 v2, 5, v2"); g(f"v_lshl_or_b32 v2, v{c4}, 3, v2")
    g(f"v_lshl_add_u32 v3, v{gg}, 2, v{r}"); g(f"v_lshlrev_b32 v3, 8, v3"); g(f"s_add_u32 s58, s59, {L_F2}"); g(f"v_add_u32 v3, s58, v3")
    for tl in range(8):
        g(f"v_xor_b32 v{vw2+tl}, {tl*32}, v2"); g(f"v_add_u32 v{vw2+tl}, v{vw2+tl}, v3")
    g(f"v_lshrrev_b32 v{vop}, 1, v1"); g(f"v_mul_u32_u24 v{vop}, {OPS}, v{vop}"); g(f"v_and_b32 v2, 1, v1"); g(f"v_lshl_or_b32 v{vop}, v2, 4, v{vop}")
    g("s_lshl_b32 s25, s25, 5"); g(f"s_mul_i32 s58, {sW}, {32*OPS}"); g("s_add_u32 s25, s25, s58"); g(f"s_add_u32 s25, s25, {OP + 128*32}")
    g(f"v_mov_b32 v{hpv+2}, {sT}")
    if opr: g(f"buffer_load_dword v254, v{vop}, {WS}, s25 offen")
    g.stamp(1)
    g(f"s_waitcnt vmcnt({(5 if (pfo and not pfoe) else 4) + (1 if opr else 0)})")
    g.stamp(2)
    if fk:
        for u in range(4):
            for hf in range(2): g.lds(f"ds_read_b64_tr_b16 {vr(ta+4*u+2*hf,2)}, v{vt2} offset:{u*1024+hf*128}", ("w1", u))
        g(f"s_lshl_b32 s58, {sW}, 7"); g(f"v_add_u32 v2, s58, v{vh}")
        for u in range(4):
            g.lwait(("w1", u))
            g(f"v_mfma_f32_16x16x32_bf16 {vr(Da,4)}, {vr(ta+4*u,4)}, {vr(xb+4*u,4)}, {vr(Da,4) if u else 0}")
        g(f"s_waitcnt vmcnt({(1 if (pfo and not pfoe) else 0) + (1 if opr else 0)})")
        for tl in range(8): g.lds(f"ds_read_b64_tr_b16 {vr(w2f+2*tl,2)}, v{vw2+tl}")
        g.lds(f"ds_write_b128 v2, {vr(Da,4)}")
        g.lwait0()
        g("s_barrier")
        g.stamp(14)
        for k in range(4): g.lds(f"ds_read_b128 {vr(ta+4*k,4)}, v{vh} offset:{k*128}")
        g.lwait0()
        for k in range(2):
            g(f"v_pk_add_f32 {vr(ta+2*k,2)}, {vr(ta+2*k,2)}, {vr(ta+4+2*k,2)}"); g(f"v_pk_add_f32 {vr(ta+8+2*k,2)}, {vr(ta+8+2*k,2)}, {vr(ta+12+2*k,2)}")
        for k in range(2): g(f"v_pk_add_f32 {vr(hp+2*k,2)}, {vr(ta+2*k,2)}, {vr(ta+8+2*k,2)}")
    else:
        g("s_barrier")
        g.stamp(14)
        for u in range(4):
            for hf in range(2): g.lds(f"ds_read_b64_tr_b16 {vr(ta+4*u+2*hf,2)}, v{vt2} offset:{u*4096+hf*512}", ("w1", u))
        for u in range(4):
            g.lwait(("w1", u))
            g(f"v_mfma_f32_16x16x32_bf16 {vr(Da,4)}, {vr(ta+4*u,4)}, {vr(xb+4*u,4)}, {vr(Da,4) if u else 0}")
        g("s_mov_b32 exec_lo, 0x00030003"); g("s_mov_b32 exec_hi, 0x00030003")
        g("s_nop 5")
        g(f"v_cvt_pk_bf16_f32 v{hpv}, v{Da}, v{Da+1}"); g(f"v_cvt_pk_bf16_f32 v{hpv+1}, v{Da+2}, v{Da+3}")
        g(f"buffer_store_dwordx4 {vr(hpv,4)}, v{vh}, {WS}, s44 offen")
        g("s_mov_b64 exec, -1")
        def hp_restore():
            g("s_mov_b32 exec_lo, 0x00030003"); g("s_mov_b32 exec_hi, 0x00030003")
            g(f"buffer_store_dwordx4 {vr(hpv,4)}, v{vh}, {WS}, s44 offen sc1")
            g("s_mov_b64 exec, -1")
        g(f"s_mov_b32 {sCnt}, 0")
        g.label("L_Ah")
        g(f"s_cmp_lg_u32 {sCnt}, 6"); g("s_cbranch_scc1 L_Ah_n")
        hp_restore()
        g.label("L_Ah_n")
        g(f"buffer_load_dwordx3 {vr(hp+4,3)}, v{vh}, {WS}, s45 offen sc1")
        g(f"s_add_u32 {sCnt}, {sCnt}, 1"); g(f"s_cmp_gt_u32 {sCnt}, {SPIN}"); g("s_cbranch_scc1 L_Ah_x")
        g("s_waitcnt vmcnt(0)")
        g(f"v_cmp_ne_u32 vcc, {sT}, v{hp+6}")
        g("s_cbranch_vccnz L_Ah")
        g.label("L_Ah_x")
        g("s_waitcnt vmcnt(0)")
        g.stamp(3)
        hp_restore()
        for tl in range(8): g.lds(f"ds_read_b64_tr_b16 {vr(w2f+2*tl,2)}, v{vw2+tl}")
        g(f"v_lshlrev_b32 v{hp}, 16, v{hp+4}"); g(f"v_and_b32 v{hp+1}, 0xffff0000, v{hp+4}")
        g(f"v_lshlrev_b32 v{hp+2}, 16, v{hp+5}"); g(f"v_and_b32 v{hp+3}, 0xffff0000, v{hp+5}")
        for k in range(4): g(f"v_add_f32_dpp v{hp+k}, v{hp+k}, v{hp+k} quad_perm:[2,3,0,1] {DPPF}")
        for k in range(4): g(f"v_add_f32_dpp v{hp+k}, v{hp+k}, v{hp+k} row_ror:4 {DPPF}")
    g(f"v_cvt_pk_bf16_f32 v{hp+4}, v{hp}, v{hp+1}"); g(f"v_cvt_pk_bf16_f32 v{hp+5}, v{hp+2}, v{hp+3}")
    g(f"v_lshlrev_b32 v{hp}, 16, v{hp+4}"); g(f"v_and_b32 v{hp+1}, 0xffff0000, v{hp+4}")
    g(f"v_lshlrev_b32 v{hp+2}, 16, v{hp+5}"); g(f"v_and_b32 v{hp+3}, 0xffff0000, v{hp+5}")
    for k in range(4): g(f"v_mul_f32 v{hp+8+k}, {f2u(-1.4426950408889634):#x}, v{hp+k}")
    for k in range(4): g(f"v_exp_f32 v{hp+8+k}, v{hp+8+k}")
    g("s_nop 0")
    for k in range(4): g(f"v_add_f32 v{hp+8+k}, 1.0, v{hp+8+k}")
    for k in range(4): g(f"v_rcp_f32 v{hp+8+k}, v{hp+8+k}")
    g("s_nop 0")
    for k in range(4): g(f"v_mul_f32 v{hp+k}, v{hp+k}, v{hp+8+k}")
    g(f"v_cvt_pk_bf16_f32 v{hp+4}, v{hp}, v{hp+1}"); g(f"v_cvt_pk_bf16_f32 v{hp+5}, v{hp+2}, v{hp+3}")
    g("s_mov_b32 s56, 0x00030003"); g("s_mov_b32 s57, s56"); g("s_lshl_b64 s[58:59], s[56:57], 8")
    for k in range(2):
        g(f"v_cndmask_b32 v{hlo+k}, 0, v{hp+4+k}, s[56:57]"); g(f"v_cndmask_b32 v{hhi+k}, 0, v{hp+4+k}, s[58:59]")
    g.lwait0()
    TLO = (0, 1, 4, 5); THI = (2, 3, 6, 7)
    for k in range(4): g(f"v_mfma_f32_16x16x16_bf16 {vr(acc+4*k,4)}, {vr(hlo,2)}, {vr(w2f+2*TLO[k],2)}, 0")
    for k in range(4): g(f"v_mfma_f32_16x16x16_bf16 {vr(acc+4*k,4)}, {vr(hhi,2)}, {vr(w2f+2*THI[k],2)}, {vr(acc+4*k,4)}")
    out_pack(acc, pk, pk + 4, hpv, vop, "s25")
    g.label("L_Anf2")
    g.stamp(8)
    g(f"s_cmp_lg_u32 {sW}, 0"); g("s_cbranch_scc1 L_Aend0")
    op = qf
    g(f"s_mul_i32 s56, {sRid}, {OPS}"); g(f"s_add_u32 s56, s56, {OP}"); g("s_add_u32 s57, s56, 0x1000")
    g(f"buffer_load_ushort v{xr}, v{vro}, {X}, {sRo} offen")
    raw = op + 32
    g(f"v_mov_b32 v{raw+24}, 0"); g(f"v_mov_b32 v{raw+25}, 0"); g(f"v_mov_b32 v{raw+26}, {sT}")
    if hintr:
        if rall:
            g(f"s_lshl_b32 s38, s5, 8"); g(f"s_add_u32 s38, s38, {HW}")
            hint_wait(g, "L_Rh", 2, vl4, "s38", 0, sCnt)
        else: hint_wait(g, "L_Rh", 2, vzA, "s38", 0, sCnt)
    g(f"s_mov_b32 {sCnt}, 0")
    g.label("L_R")
    for j in range(7):
        if j == 6: g("s_mov_b32 exec_hi, 0xffff")
        g(f"buffer_load_dwordx3 {vr(raw+4*j,3)}, v{vj}, {WS}, {'s56' if j < 4 else 's57'} offen offset:{(j&3)*1024} sc1")
    g("s_mov_b32 exec_hi, -1")
    g(f"s_add_u32 {sCnt}, {sCnt}, 1"); g(f"s_cmp_gt_u32 {sCnt}, {SPIN}"); g("s_cbranch_scc1 L_R_x")
    for j in range(7):
        g(f"s_waitcnt vmcnt({6-j})")
        g(f"v_sad_u32 v{chk}, v{raw+2+4*j}, {sT}, {('v%d' % chk) if j else 0}")
        d = op + 4 * (j & 1) if j < 2 else op + 8
        for k in range(2):
            g(f"v_lshlrev_b32 v{d+2*k}, 16, v{raw+4*j+k}"); g(f"v_and_b32 v{d+2*k+1}, 0xffff0000, v{raw+4*j+k}")
        if j >= 2:
            for k in range(2): g(f"v_pk_add_f32 {vr(op+4*(j&1)+2*k,2)}, {vr(op+4*(j&1)+2*k,2)}, {vr(op+8+2*k,2)}")
    g(f"v_cmp_ne_u32 vcc, 0, v{chk}")
    g("s_cbranch_vccnz L_R")
    g.label("L_R_x")
    g.count(sCnt)
    g("s_waitcnt vmcnt(0)")
    g.stamp(9)
    for k in range(2): g(f"v_pk_add_f32 {vr(op+2*k,2)}, {vr(op+2*k,2)}, {vr(op+4+2*k,2)}")
    g(f"v_lshlrev_b32 v{xr}, 16, v{xr}")
    g("s_nop 1")
    g(f"v_permlane16_swap_b32 v{op}, v{op+1}"); g(f"v_permlane16_swap_b32 v{op+2}, v{op+3}")
    g("s_nop 0")
    g(f"v_add_f32 v{op}, v{op}, v{op+1}"); g(f"v_add_f32 v{op+2}, v{op+2}, v{op+3}")
    g("s_nop 1")
    g(f"v_permlane32_swap_b32 v{op}, v{op+2}")
    g("s_nop 0")
    g(f"v_add_f32 v{op}, v{op}, v{op+2}")
    for k in (2, 4, 8):
        g("s_nop 1"); g(f"v_add_f32_dpp v{op}, v{op}, v{op} row_ror:{k} {DPPF}")
    g(f"v_add_f32 v{op}, v{op}, v{xr}")
    g("s_mov_b32 exec_lo, 0x00030003"); g("s_mov_b32 exec_hi, 0x00030003")
    g(f"v_cvt_pk_bf16_f32 v{op}, v{op}, v{op}")
    g(f"buffer_store_short v{op}, v{vro}, {OUT}, {sRo} offen {('', 'sc1', 'sc0 sc1', 'nt')[osc]}")
    g(f"s_cmp_lg_u32 {sRid}, 0"); g("s_cbranch_scc1 L_Aend")
    g("s_mov_b64 exec, 1"); g(f"v_mov_b32 v2, {sT}"); g("v_mov_b32 v3, 0")
    g(f"buffer_store_dword v2, v3, {WS}, 0 offen sc1")
    g("s_branch L_Aend")
    g.label("L_Aend0")
    g.label("L_Aend")
    g.stamp(10)
    dump_stamps(g, "A")
    g("s_endpgm")
    g.label("L_Aovf")
    g(f"v_mov_b32 v{t2}, 1")
    g(f"ds_write_b32 v{vmx}, v{t2} offset:64")
    g("s_branch L_Aovf_x")
    g.label("L_Aslow")
    g(f"v_max3_f32 v{mxv}, v{SY}, v{SY+1}, v{SY+2}"); g(f"v_max_f32 v{mxv}, v{mxv}, v{SY+3}")
    g(f"ds_max_f32 v{vmx}, v{mxv}")
    g("s_waitcnt lgkmcnt(0)"); g("s_barrier")
    g(f"ds_read_b32 v{mxv}, v{vmx}"); g(f"v_mov_b32 v{t2}, 0"); g(f"ds_write_b32 v{vmx}, v{t2} offset:64")
    g("s_waitcnt lgkmcnt(0)")
    g(f"v_mul_f32 v{STG}, s56, v{mxv}")
    for k in range(8): g(f"v_fma_f32 v{EX+k}, v{SX+k}, s56, -v{STG}")
    pexp(0); pexp(1); g("s_nop 0")
    pwrite(0); pwrite(1)
    g("s_waitcnt lgkmcnt(0)"); g("s_barrier")
    g("s_branch L_Apv")
    flag_fallback(g, "L_Af1", vfl, l16, "s34", sCnt)
    g.label("L_end")
    body = "\n".join(g.L)
    tab = ""

    hdr = open("parallel_sum__compressed_kv_cla__dense_activation_silu__decode.s.ref").read().split("; Override launch")[0]
    return f"""{hdr}; @launch grid=(256,1,1) block=(256,1,1) lds={LDS_BYTES}
.amdgcn_target "amdgcn-amd-amdhsa--gfx950"
.set HINT_LIMIT, 40
.text
.globl {KNAME}
.p2align 8
.type {KNAME},@function
{KNAME}:
{body}
    s_endpgm
{tab}.section .rodata,"a"
.p2align 6
.amdhsa_kernel {KNAME}
  .amdhsa_next_free_vgpr 512
  .amdhsa_next_free_sgpr 102
  .amdhsa_accum_offset 256
  .amdhsa_group_segment_fixed_size 0
  .amdhsa_kernarg_size 96
  .amdhsa_user_sgpr_count 2
  .amdhsa_user_sgpr_kernarg_segment_ptr 1
  .amdhsa_system_sgpr_workgroup_id_x 1
.end_amdhsa_kernel
"""

if __name__ == "__main__":
    dbg = 3 if "--debug3" in sys.argv else 2 if "--debug2" in sys.argv else (1 if "--debug" in sys.argv else 0)
    out = [a for a in sys.argv[1:] if not a.startswith("--")][0]
    kw = {}
    for a in sys.argv[1:]:
        if a.startswith("--thr="): kw["thr"] = tuple(int(x) for x in a[6:].split(","))
        if a.startswith("--swap="): kw["swap"] = int(a[7:])
        for nm in ("touch", "pfk", "pfo", "pf2", "pfc", "noflag", "wdelay", "loc", "stw", "slp", "pad", "rslp", "p2t", "est", "pfoe", "hint", "qal", "hintr", "hsl", "dq", "wke", "qack", "qsl", "hq", "nts", "gate", "pff", "poack", "pfv", "wv1", "fgate", "rall", "pg", "wow", "gw", "xnl", "pffe", "cmb", "hre", "adl", "noclr", "fwait", "hqe", "nat", "opr", "qae", "fk", "wk2", "hpos", "pre0", "osc", "tlb", "pl", "flae", "dl", "hl", "spk", "ty", "fle", "pga", "pgh"):
            if a.startswith(f"--{nm}="): kw[nm] = int(a.split("=")[1])
    open(out, "w").write(build(dbg, **kw))
```

```python
import sys, struct

KNAME = "parallel_sum__compressed_kv_cla__dense_activation_silu__decode_kernel"

QP, CP, QA, ST, OP, PO, TS = 0x10000, 0x30000, 0x50000, 0x380000, 0x400000, 0x100000, 0x340000
FL1, HQ, HP, HA, HW = 0x68000, 0x6C000, 0x70000, 0x60000, 0x64000
XNG, FLA, HB, FLB = 0x6E000, 0x69000, 0x6D000, 0x80000
OPS = 7168
WS_REC = 0x500000
OOB = 0x40000000
L_WQ, L_WUK, L_WUV, L_WO, L_W1, L_W2, L_XN, L_LAT = 0, 0x8000, 0, 0x10000, 0x18000, 0x1C000, 0x20000, 0x20900
XNP = 1056
L_QA, L_P, L_MX = 0x20000, 0x24000, 0x25200
LDS_BYTES = 0x25400
SPIN = 20000

def f2u(x): return struct.unpack("<I", struct.pack("<f", x))[0]
KSCALE = f2u(128 ** -0.5 * 1.4426950408889634)

class G:
    def __init__(self, debug=False):
        self.L = []; self.debug = debug; self.nv = 0; self.names = {}; self.nstamp = 0; self.lq = []; self.maxv = 0
    def __call__(self, s):
        for ln in s.strip().split("\n"):
            self.L.append("    " + ln.strip())
    def label(self, s): self.L.append(s + ":")
    def c(self, s): self.L.append("    ; " + s)
    def reset_v(self, start): self.nv = start
    def v(self, n=1, al=None):
        if al is None: al = 1 if n == 1 else 2
        self.nv = (self.nv + al - 1) // al * al
        r = self.nv; self.nv += n; self.maxv = max(self.maxv, self.nv)
        assert self.nv <= 254, "out of VGPRs"
        return r
    def stamp(self, i):
        if self.debug == 3 and i not in (0, 10): return
        if self.debug == 2:
            if i == 11: return
            if i == 14: i = 11
        if self.debug == 1 and i == 13: return
        if self.debug:
            assert i < 15
            self(f"s_memrealtime s[{72+2*i}:{73+2*i}]")
    def count(self, cnt):
        if self.debug == 1:
            self(f"s_min_u32 s99, {cnt}, 63"); self("s_lshl_b32 s98, s98, 6"); self("s_or_b32 s98, s98, s99")
    def lds(self, s, tag=None):
        if len(self.lq) >= 15:
            self.lwait(self.lq[len(self.lq) - 15])
        self(s); self.lq.append(tag if tag is not None else object())
    def lwait(self, tag):
        if tag not in self.lq: return
        k = max(i for i, t in enumerate(self.lq) if t == tag)
        n = len(self.lq) - 1 - k
        self(f"s_waitcnt lgkmcnt({n})")
        self.lq = self.lq[k + 1:]
    def lwait0(self):
        self("s_waitcnt lgkmcnt(0)"); self.lq = []

def vr(a, n): return f"v[{a}:{a+n-1}]" if n > 1 else f"v{a}"
def ar(a, n): return f"a[{a}:{a+n-1}]"

sW, sS, sX, sH, sQT = "s3", "s4", "s5", "s6", "s7"
WS, X, WQ, WUK, WUV, WO, W1, W2, DBG, CKV, OUT = ("s[8:11]", "s[12:15]", "s[16:19]", "s[20:23]", "s[24:27]", "s[28:31]",
                                                  "s[32:35]", "s[36:39]", "s[44:47]", "s[48:51]", "s[52:55]")
sT, sE = "s42", "s43"
sHG, sSP = "s6", "s7"
DPPF = "row_mask:0xf bank_mask:0xf"

def reduce32(g, op, s, t):
    for k in (8, 4, 2, 1):
        g(f"v_{op}_f32_dpp v{s}, v{s}, v{s} row_ror:{k} {DPPF}")
        g("s_nop 1")
    g(f"v_mov_b32 v{t}, v{s}")
    g("s_nop 1")
    g(f"v_permlane16_swap_b32 v{t}, v{s}")
    g("s_nop 0")
    g(f"v_{op}_f32 v{s}, v{s}, v{t}")

def reduce64(g, op, s, t):
    reduce32(g, op, s, t)
    g(f"v_mov_b32 v{t}, v{s}")
    g("s_nop 1")
    g(f"v_permlane32_swap_b32 v{t}, v{s}")
    g("s_nop 0")
    g(f"v_{op}_f32 v{s}, v{s}, v{t}")

def flag_fallback(g, name, vfl, vfo, soff, cnt, pair=False):
    g.label(name)
    g(f"s_mov_b32 {cnt}, 0")
    g.label(name + "_l")
    g("s_sleep 2")
    if pair: g(f"buffer_load_dwordx2 {vr(vfl,2)}, v{vfo}, {WS}, {soff} offen sc1")
    else: g(f"buffer_load_dword v{vfl}, v{vfo}, {WS}, {soff} offen sc1")
    g(f"s_add_u32 {cnt}, {cnt}, 1"); g(f"s_cmp_gt_u32 {cnt}, {SPIN}"); g(f"s_cbranch_scc1 {name}_x")
    g("s_waitcnt vmcnt(0)")
    if pair: g(f"v_cmp_ne_u64 vcc, s[40:41], {vr(vfl,2)}")
    else: g(f"v_cmp_ne_u32 vcc, {sT}, v{vfl}")
    g(f"s_cbranch_vccnz {name}_l")
    g(f"s_branch {name}_x")

HINTN = 3000
def hint_wait(g, name, vt, vz, soff, off, cnt):
    g(f"s_mov_b32 {cnt}, 0")
    g.label(name)
    g(f"buffer_load_dword v{vt}, v{vz}, {WS}, {soff} offen offset:{off} sc1")
    g(f"s_add_u32 {cnt}, {cnt}, 1"); g(f"s_cmp_gt_u32 {cnt}, HINT_LIMIT"); g(f"s_cbranch_scc1 {name}_x")
    g("s_waitcnt vmcnt(0)")
    g(f"v_cmp_ne_u32 vcc, {sT}, v{vt}")
    g(f"s_cbranch_vccnz {name}")
    g.label(name + "_x")

def dump_stamps(g, role=None):
    if not g.debug: return
    g.lwait0()
    if g.debug == 3:
        lo = 0 if role == "W" else 128
        g(f"s_sub_u32 s56, s2, {lo}"); g("s_cmp_ge_u32 s56, 8"); g(f"s_cbranch_scc1 L_nod{role}"); g(f"s_cmp_lg_u32 {sW}, 0"); g(f"s_cbranch_scc1 L_nod{role}")
        g("s_lshl_b32 s60, s56, 2")
        g("s_mov_b64 exec, -1"); g(f"v_mov_b32 v2, s{72 if role == 'W' else 92}"); g("v_mov_b32 v3, 0")
        g("s_mov_b32 s58, 256"); g("s_mov_b32 s59, 0x20000"); g("s_mov_b64 s[56:57], s[100:101]"); g("s_mov_b64 exec, 1")
        g(f"buffer_store_dword v2, v3, s[56:59], s60 offen offset:{0 if role == 'W' else 32}")
        g.label(f"L_nod{role}")
        return
    if g.debug == 2:
        wg, sel, base = (0, (3, 1, 12, 6, 11, 8, 10, 2), 0) if role == "W" else (128 + 3, (1, 2, 5, 6, 7, 8, 9, 10), 32)
        g(f"s_lshl2_add_u32 s56, s2, {sW}"); g(f"s_cmp_lg_u32 s56, {wg*4}"); g(f"s_cbranch_scc1 L_nod{role}")
        g("s_mov_b64 exec, -1"); g("v_mov_b32 v2, 0")
        for i, k in enumerate(sel):
            g(f"s_sub_u32 s57, s{72+2*k}, s72"); g(f"v_writelane_b32 v2, s57, {i}")
        g("s_mov_b32 s102, 0" if False else "s_nop 0")
        g("s_mov_b32 s58, 256"); g("s_mov_b32 s59, 0x20000"); g("s_mov_b64 s[56:57], s[100:101]")
        g("v_lshlrev_b32 v3, 2, v1"); g("s_mov_b64 exec, 0xff")
        g(f"buffer_store_dword v2, v3, s[56:59], 0 offen offset:{base}")
        g.label(f"L_nod{role}")
        return
    g(f"s_lshl_b32 s56, s2, 2"); g(f"s_add_u32 s56, s56, {sW}"); g("s_lshl_b32 s56, s56, 6"); g(f"s_add_u32 s56, s56, {TS}")
    g("s_mov_b64 exec, -1")
    g("v_mov_b32 v2, 0")
    for i in range(15): g(f"v_writelane_b32 v2, s{72+2*i}, {i}")
    g("s_getreg_b32 s57, hwreg(HW_REG_XCC_ID)")
    g("v_writelane_b32 v2, s57, 15")
    g("v_lshlrev_b32 v3, 2, v1")
    g("s_mov_b64 exec, 0xffff")
    g(f"buffer_store_dword v2, v3, {WS}, s56 offen")

def build(debug=False, thr=(16, 0), swap=1, touch=0, pfk=1, pfo=1, pf2=1, pfc=0, noflag=0, wdelay=0, loc=1, stw=16, slp=1, pad=0, rslp=0, p2t=0, est=1, pfoe=1, hint=1, qal=0, hintr=1, hsl=0, dq=0, wke=1, qack=1, qsl=0, hq=1, nts=0, gate=1, pff=0, poack=0, pfv=0, wv1=6, fgate=0, rall=1, pg=1, wow=3, gw=-1, xnl=1, pffe=0, cmb=0, hre=0, adl=0, noclr=0, fwait=0, hqe=1, nat=1, opr=1, qae=1, fk=0, wk2=0, hpos=1, pre0=0, osc=0, tlb=0, pl=1, flae=1, dl=0, hl=0, spk=32, ty=0, fle=2, pga=1, pgh=0, pf2a=0, qcl=0, clf=0, gpk=0, gk=8):
    g = G(debug)
    NS = 'nt ' if nts else ''
    g.stamp(0)
    g("""
    s_load_dwordx2 s[16:17], s[0:1], 16
    s_load_dwordx2 s[48:49], s[0:1], 8
    s_load_dwordx2 s[20:21], s[0:1], 24
    s_load_dwordx2 s[12:13], s[0:1], 0
    s_load_dwordx2 s[8:9], s[0:1], 88
    s_cmp_ge_u32 s2, 256
    s_cbranch_scc1 L_end
    v_lshrrev_b32 v2, 6, v0
    v_and_b32 v1, 63, v0
    s_lshr_b32 s4, s2, 3
    v_readfirstlane_b32 s3, v2
    s_and_b32 s5, s2, 7
    v_lshlrev_b32 v4, 4, v1
    s_cmp_ge_u32 s4, 16
    s_cbranch_scc1 L_A
    """)
    l16 = 4
    def srd(k, sz):
        g(f"s_mov_b32 s{k+2}, {sz}"); g(f"s_mov_b32 s{k+3}, 0x20000")
    def dbg_init():
        if debug:
            for i in range(1, 14): g(f"s_mov_b64 s[{72+2*i}:{73+2*i}], 0")
            if debug >= 2: g("s_load_dwordx2 s[100:101], s[0:1], 80")
            else: g("s_mov_b64 s[100:101], 0")
    g.reset_v(5)
    n, gg = g.v(), g.v()
    vqA, vqB = g.v(), g.v(); vq4 = g.v(4)
    xa = g.v(8, 4)
    sQAo, sOPo, sQoff = "s38", "s39", "s35"
    g(f"v_and_b32 v{n}, 15, v1"); g(f"v_lshrrev_b32 v{gg}, 4, v1")
    g(f"v_lshlrev_b32 v2, 1, v{gg}"); g(f"v_xor_b32 v2, v2, v{n}"); g(f"v_lshlrev_b32 v2, 4, v2"); g(f"v_lshl_add_u32 v{vqA}, v{gg}, 13, v2"); g(f"v_xor_b32 v{vqB}, 0x80, v{vqA}")
    g(f"v_add_u32 v{vq4+1}, {31744}, v{vqA}"); g(f"v_add_u32 v{vq4+2}, {2*31744}, v{vqB}"); g(f"v_add_u32 v{vq4+3}, {3*31744}, v{vqB}")
    srd(16, 4 << 20); srd(12, 2048); srd(8, WS_REC)
    PRE0 = f"""v_lshlrev_b32 v2, 7, v1
    s_lshl2_add_u32 s63, s6, s7
    s_lshl_b32 s63, s63, 10
    s_lshl_b32 s58, s3, 17
    s_add_u32 s63, s63, s58
    s_add_u32 s63, s63, {QP}""" if pre0 else "s_nop 0"
    sent = xa + 4
    for k in range(4): g(f"v_mov_b32 v{sent+k}, -1")
    g(f"v_lshrrev_b32 v3, 3, v1"); g(f"v_lshlrev_b32 v3, 10, v3"); g(f"v_and_b32 v2, 4, v1"); g(f"v_lshl_add_u32 v3, v2, 13, v3"); g(f"v_and_b32 v2, 3, v1"); g(f"v_lshl_add_u32 v3, v2, 4, v3")
    g(f"""
    s_lshr_b32 s6, s4, 2
    s_lshl2_add_u32 s6, s5, s6
    s_and_b32 s7, s4, 3
    s_lshl2_add_u32 s61, s7, s3
    s_lshl_b32 s61, s61, 18
    s_lshl_b32 s59, s6, 8
    s_add_u32 {sQoff}, s61, s59
    s_lshl_b32 s60, s3, 13
    s_mov_b32 m0, s60
    s_lshl_b32 s57, s3, 10
    s_lshr_b32 s62, s6, 4
    s_lshl2_add_u32 s62, s62, s7
    s_lshl_b32 s62, s62, 6
    s_and_b32 s63, s6, 15
    s_add_u32 s62, s62, s63
    s_lshl_b32 s62, s62, 6
    s_add_u32 s62, s62, {QA}
    {PRE0}
    s_cmp_eq_u32 s3, 2
    s_cselect_b32 exec_lo, -1, 0
    s_mov_b32 exec_hi, 0
    s_waitcnt lgkmcnt(0)
    """)
    if not qcl: g(f"buffer_store_dwordx4 {vr(sent,4)}, v3, {WS}, s62 offen sc1")
    g("s_cmp_lt_u32 s3, 2"); g("s_cselect_b64 exec, -1, 0")
    def quad(srdname, soff):
        g(f"buffer_load_dwordx4 v{vqA}, {srdname}, {soff} offen nt lds")
        for k in range(1, 4): g(f"buffer_load_dwordx4 v{vq4+k}, {srdname}, {soff} offen offset:{k*1024} nt lds")
    g(f"buffer_load_dwordx4 {vr(xa,4)}, v{l16}, {X}, s57 offen")
    if pre0:
        g("s_and_b32 exec_lo, exec_lo, 0xff"); g("s_mov_b32 exec_hi, 0")
        g(f"buffer_load_dword v254, v2, {WS}, s63 offen")
    g("s_mov_b64 exec, -1")
    quad(WQ, sQoff)
    g("s_add_u32 m0, m0, 0x1000"); g(f"s_add_u32 s61, {sQoff}, 0x20000")
    quad(WQ, "s61")
    if qcl:
        g("s_cmp_eq_u32 s3, 2"); g("s_cselect_b32 exec_lo, -1, 0"); g("s_mov_b32 exec_hi, 0")
        g(f"buffer_store_dwordx4 {vr(sent,4)}, v3, {WS}, s62 offen sc1")
        g("s_mov_b64 exec, -1")
    g("s_branch L_W2")
    wv = g.nv
    g.label("L_A")
    if tlb:
        g("""
        s_and_b32 s56, s4, 15
        s_lshr_b32 s62, s56, 2
        s_lshl3_add_u32 s62, s62, 32
        s_and_b32 s63, s56, 3
        s_lshl_b32 s63, s63, 20
        s_lshr_b32 s58, s56, 1
        s_lshl3_add_u32 s58, s58, 24
        s_and_b32 s59, s56, 1
        s_mul_i32 s59, s59, 0x150000
        s_cmp_ge_u32 s56, 8
        s_cselect_b32 s62, s58, s62
        s_cselect_b32 s63, s59, s63
        s_and_b32 s59, s56, 3
        s_lshl_b32 s59, s59, 21
        s_cmp_eq_u32 s56, 12
        s_cselect_b32 s58, 0, 16
        s_add_u32 s58, s58, 72
        s_cmp_ge_u32 s56, 12
        s_cselect_b32 s62, s58, s62
        s_cselect_b32 s63, s59, s63
        s_load_dwordx2 s[64:65], s[0:1], s62
        """)
    vt4 = 8
    sPOs, sRow, sCnt, sRid = "s18", "s19", "s22", "s23"
    g(f"""
    s_and_b32 s6, s4, 1
    s_bfe_u32 s56, s4, 0x30001
    s_lshl3_add_u32 s7, s5, s56
    s_lshl_b32 s57, s7, 17
    """)
    if swap: g(f"s_lshl2_add_u32 {sRow}, s6, s3"); g(f"s_lshl_b32 {sRow}, {sRow}, 14")
    else: g(f"s_lshl_b32 {sRow}, s3, 14")
    srd(48, 8 << 20)
    g(f"s_mov_b32 m0, {sRow}"); g(f"s_add_u32 s33, {sRow}, s57")
    vpo = 7
    srd(8, WS_REC)
    g(f"""
    s_lshl_b32 {sPOs}, s6, 5
    s_add_u32 {sPOs}, {sPOs}, s3
    s_lshl_b32 {sPOs}, {sPOs}, 15
    s_lshl_b32 s56, s7, 9
    s_add_u32 {sPOs}, {sPOs}, s56
    s_add_u32 {sPOs}, {sPOs}, {PO}
    """)
    g(f"v_bfe_u32 v{vpo}, v1, 1, 3"); g(f"v_lshlrev_b32 v{vpo}, 17, v{vpo}"); g(f"v_and_b32 v2, 1, v1"); g(f"v_lshl_add_u32 v{vpo}, v2, 6, v{vpo}"); g(f"v_and_b32 v2, 48, v1"); g(f"v_add_u32 v{vpo}, v2, v{vpo}")
    for k in range(4): g(f"v_mov_b32 v{vt4+k}, -1")
    def a_clear():
        for b in range(4): g(f"buffer_store_dwordx4 {vr(vt4,4)}, v{vpo}, {WS}, {sPOs} offen offset:{b*128} sc1")
        g("s_nop 1")
    if pfk:
        g("""
        s_and_b32 s60, s4, 3
        s_lshl2_add_u32 s60, s60, s3
        s_lshl_b32 s60, s60, 18
        s_bfe_u32 s61, s4, 0x20002
        s_lshl2_add_u32 s61, s5, s61
        s_lshl_b32 s61, s61, 8
        s_add_u32 s60, s60, s61
        v_lshrrev_b32 v2, 1, v1
        v_and_b32 v3, 1, v1
        v_lshlrev_b32 v2, 13, v2
        v_lshl_add_u32 v2, v3, 7, v2
        v_add_u32 v6, s60, v2
        """)
    def pfk_load():
        if pfk:
            if pfk == 2: g("s_cmp_lt_u32 s3, 2"); g("s_cselect_b64 exec, -1, 0")
            if pfk == 3: g("s_mov_b32 exec_lo, 0")
            g("global_load_dword v255, v6, s[20:21]")
            if pfk >= 2: g("s_mov_b64 exec, -1")
    if tlb: g("v_mov_b32 v3, s63"); g("s_cmp_eq_u32 s3, 3"); g("s_cselect_b64 exec, 1, 0")
    g("s_waitcnt lgkmcnt(0)")
    if tlb: g("global_load_dword v254, v3, s[64:65]"); g("s_mov_b64 exec, -1")
    if clf: a_clear()
    if not adl: pfk_load()
    if not noclr and not clf: a_clear()
    if fwait: g(f's_waitcnt vmcnt({0 if noclr else 4})')
    def abody(a, half):
        if a == 0:
            for k in range(1, 4): g(f"v_xor_b32 v{vt4+k}, {k*16}, v{l16}")
            regs = [l16, vt4 + 1, vt4 + 2, vt4 + 3]
        else:
            for k in range(4): g(f"v_xor_b32 v{vt4+k}, {(4*a+k)*16}, v{l16}")
            regs = [vt4 + k for k in range(4)]
        for k in range(4):
            j = 4 * a + k
            if half == 0 and thr[0] <= j < thr[1] + thr[0]: g(f"s_waitcnt vmcnt({thr[0]-1})")
            g(f"buffer_load_dwordx4 v{regs[k]}, {CKV}, s33 offen offset:{k*1024} {NS}lds")
        if a < 3: g("s_add_u32 m0, m0, 0x1000"); g("s_add_u32 s33, s33, 0x1000")
    if not adl: abody(0, 0); abody(1, 0)
    g(f"""
    s_getpc_b64 s[40:41]
L_pc:
    v_lshlrev_b32 v2, 3, v4
    s_lshl2_add_u32 s56, s4, s3
    v_add_u32 v3, 0x2000, v2
    v_min_u32 v3, L_end-L_pc, v3
    s_cmp_eq_u32 s56, 64
    s_cselect_b64 exec, -1, 0
    global_load_dword v255, v2, s[40:41]
    global_load_dword v255, v3, s[40:41]
    s_mov_b64 exec, -1
    s_branch L_A2
    """)

    g.label("L_W2")
    g.reset_v(wv)
    g("""
    s_load_dword s43, s[8:9], 0
    s_load_dwordx2 s[24:25], s[0:1], 32
    s_load_dwordx2 s[28:29], s[0:1], 40
    """)
    dbg_init()
    srd(20, 4 << 20)
    g(f"s_add_u32 {sQAo}, s62, s57")
    if not pre0:
        if loc:
            g(f"v_and_b32 v2, 0x70, v{l16}"); g(f"v_lshlrev_b32 v2, 3, v2"); g("s_lshl2_add_u32 s63, s6, s7"); g("s_lshl_b32 s63, s63, 10"); g("s_lshl_b32 s62, s3, 17"); g("s_add_u32 s63, s63, s62"); g(f"s_add_u32 s63, s63, {QP}")
            g("s_cmp_lt_u32 s3, 2"); g("s_cselect_b64 exec, 0xff, 0")
            g(f"buffer_load_dword v254, v2, {WS}, s63 offen")
            g("s_mov_b64 exec, -1")
    vqa, vop = g.v(), g.v()
    vk = g.v(8); vkr = g.v(4)
    g(f"v_xor_b32 v2, v{n}, v{gg}"); g(f"v_lshlrev_b32 v2, 4, v2"); g(f"v_lshl_add_u32 v{vk}, v{gg}, 13, v2")
    for k in range(1, 8):
        g(f"v_xor_b32 v{vk+k}, {(k>>1)*64}, v{vk}")
        if k & 3: g(f"v_add_u32 v{vk+k}, {(k&3)*31744}, v{vk+k}")
    def wuk_quad(a):
        g(f"s_add_u32 m0, s60, {L_WUK + a*0x1000}"); g(f"s_add_u32 s61, {sQoff}, {a*0x20000}")
        for k in range(4): g(f"buffer_load_dwordx4 v{vk+4*a+k}, {WUK}, s61 offen offset:{k*1024} {NS}lds")
    if wke == 1: wuk_quad(0)
    r, c4 = g.v(), g.v()
    g(f"v_bfe_u32 v{r}, v1, 2, 2"); g(f"v_and_b32 v{c4}, 3, v1")
    vxf, vtr, vqps, vqpl, vf = g.v(), g.v(), g.v(), g.v(), g.v()
    g(f"v_lshl_add_u32 v3, v{r}, 3, v{c4}"); g(f"v_lshl_add_u32 v2, v3, 8, v2"); g(f"s_add_u32 s64, s60, {L_WUK}"); g(f"v_add_u32 v{vkr}, s64, v2")
    for k in range(1, 4): g(f"v_xor_b32 v{vkr+k}, {k*64}, v{vkr}")
    g(f"v_lshlrev_b32 v{vqa}, 13, v1"); g(f"v_and_b32 v{vqa}, 0x8000, v{vqa}"); g(f"v_lshl_or_b32 v{vqa}, v{gg}, 4, v{vqa}")
    g(f"v_and_b32 v2, 1, v1"); g(f"v_mul_u32_u24 v{vxf}, {XNP}, v2"); g(f"v_lshl_add_u32 v{vxf}, v{gg}, 4, v{vxf}")
    g(f"s_lshl_b32 s63, s7, 8"); g(f"s_add_u32 s63, s63, {L_XN}"); g(f"v_add_u32 v{vxf}, s63, v{vxf}")
    g(f"v_lshlrev_b32 v{vqps}, 9, v2"); g(f"v_lshl_add_u32 v{vqps}, v{gg}, {4 if nat else 5}, v{vqps}"); g(f"v_and_b32 v2, 2, v1"); g(f"v_lshl_add_u32 v{vqps}, v2, {5 if nat else 3}, v{vqps}")
    g(f"v_and_b32 v2, 1, v{gg}"); g(f"v_lshl_or_b32 v2, v2, 2, v{r}"); g(f"v_lshlrev_b32 v{vf}, 5, v2")
    g(f"s_lshl_b32 s63, s3, 6"); g(f"v_lshl_or_b32 v2, v{c4}, {3 if nat else 4}, s63"); g(f"v_xor_b32 v2, v2, v{vf}")
    g(f"v_lshl_add_u32 v{vtr}, v{gg}, 3, v{r}"); g(f"v_lshl_add_u32 v{vtr}, v{vtr}, 8, v2")
    vtr1 = g.v()
    g(f"v_xor_b32 v{vtr1}, 32, v{vtr}")
    def trad(T): return (f"v{vtr1 if T else vtr}", 0) if nat else (f"v{vtr}", 8 * T)
    g(f"v_bfe_u32 v2, v1, 2, 1"); g(f"v_lshl_add_u32 v{vqpl}, v{c4}, 1, v2"); g(f"v_lshlrev_b32 v{vqpl}, 9, v{vqpl}"); g(f"v_lshl_add_u32 v{vqpl}, v{gg}, 5, v{vqpl}")
    g(f"v_and_b32 v2, 8, v1"); g(f"v_lshl_add_u32 v{vqpl}, v2, 1, v{vqpl}")
    g(f"""
    s_lshl_b32 s68, s6, 12
    s_add_u32 s68, s68, {QP}
    s_lshl_b32 s63, s7, 10
    s_add_u32 s67, s68, s63
    s_lshl_b32 s63, s3, 7
    s_add_u32 s67, s67, s63
    s_mov_b32 s70, 0xcccccccc
    s_mov_b32 s71, s70
    s_lshl4_add_u32 s66, s5, s4
    s_lshl2_add_u32 s66, s66, s3
    s_lshl_b32 s66, s66, 2
    s_add_u32 s66, s66, {HQ}
    s_lshl2_add_u32 s69, s6, s7
    s_lshl_b32 s44, s69, 4
    s_add_u32 s44, s44, {FL1}
    """)
    Ga = g.v(4, 4); vT = Ga
    f = g.v(16, 2); m = g.v(2); t = g.v(); s2 = g.v(8, 2)
    g("s_cmp_lt_u32 s3, 2"); g("s_cbranch_scc1 L_W_ln")
    g("s_waitcnt lgkmcnt(0)")
    g(f"s_mul_i32 {sT}, {sE}, 0x9E3779B1"); g(f"s_add_u32 {sT}, {sT}, 0x7F4A7C15")
    g(f"v_mov_b32 v{vT}, {sT}")
    if wke == 2: wuk_quad(0); wuk_quad(1)
    if qcl:
        g(f"s_waitcnt vmcnt({4 * wke + 1})")
        g("s_cmp_eq_u32 s3, 2"); g("s_cbranch_scc1 L_W_b0")
        g(f"s_waitcnt vmcnt({4 * wke})")
    else:
        g("v_mov_b32 v3, 0"); g("s_cmp_eq_u32 s3, 2"); g("s_cselect_b64 exec, 1, 0")
        g(f"s_waitcnt vmcnt({4 * wke})")
        g(f"buffer_store_dword v{vT}, v3, {WS}, s44 offen sc1")
        g("s_mov_b64 exec, -1")
    g("s_branch L_W_b0")
    g.label("L_W_ln")
    g(f"s_mul_i32 s63, s3, {XNP}"); g(f"s_add_u32 s63, s63, {L_XN}"); g(f"v_add_u32 v3, s63, v{l16}")
    g(f"s_waitcnt vmcnt({(9 if loc else 8) + (4 if wke == 1 else 0)})")
    d = f + 8
    for k in range(4):
        g(f"v_lshlrev_b32 v{f+2*k}, 16, v{xa+k}"); g(f"v_and_b32 v{f+2*k+1}, 0xffff0000, v{xa+k}")
    g(f"v_pk_add_f32 {vr(s2,2)}, {vr(f,2)}, {vr(f+2,2)}"); g(f"v_pk_add_f32 {vr(s2+2,2)}, {vr(f+4,2)}, {vr(f+6,2)}")
    g(f"v_pk_add_f32 {vr(s2,2)}, {vr(s2,2)}, {vr(s2+2,2)}")
    g(f"v_add_f32 v{m}, v{s2}, v{s2+1}"); g("s_nop 1")
    reduce64(g, "add", m, t)
    g(f"v_mul_f32 v{m}, {f2u(1/512):#x}, v{m}")
    for k in range(4): g(f"v_pk_add_f32 {vr(d+2*k,2)}, {vr(f+2*k,2)}, {vr(m,2)} op_sel_hi:[1,0] neg_lo:[0,1] neg_hi:[0,1]")
    g(f"v_pk_mul_f32 {vr(s2,2)}, {vr(d,2)}, {vr(d,2)}"); g(f"v_pk_mul_f32 {vr(s2+2,2)}, {vr(d+2,2)}, {vr(d+2,2)}")
    g(f"v_pk_fma_f32 {vr(s2,2)}, {vr(d+4,2)}, {vr(d+4,2)}, {vr(s2,2)}"); g(f"v_pk_fma_f32 {vr(s2+2,2)}, {vr(d+6,2)}, {vr(d+6,2)}, {vr(s2+2,2)}")
    g(f"v_pk_add_f32 {vr(s2,2)}, {vr(s2,2)}, {vr(s2+2,2)}")
    va = s2 + 4
    g(f"v_add_f32 v{va}, v{s2}, v{s2+1}")
    g(f"v_cvt_pk_bf16_f32 v{m}, v{m}, v{m}"); g(f"v_and_b32 v{m}, 0xffff0000, v{m}")
    reduce64(g, "add", va, t)
    g(f"v_mul_f32 v{va}, {f2u(1/512):#x}, v{va}")
    for k in range(2): g(f"v_pk_add_f32 {vr(f+2*k,2)}, {vr(f+2*k,2)}, {vr(m,2)} op_sel_hi:[1,0] neg_lo:[0,1] neg_hi:[0,1]")
    g(f"v_cvt_pk_bf16_f32 v{va}, v{va}, v{va}")
    for k in range(2, 4): g(f"v_pk_add_f32 {vr(f+2*k,2)}, {vr(f+2*k,2)}, {vr(m,2)} op_sel_hi:[1,0] neg_lo:[0,1] neg_hi:[0,1]")
    g(f"v_and_b32 v{va}, 0xffff0000, v{va}")
    g(f"v_add_f32 v{va}, {f2u(1e-5):#x}, v{va}")
    g(f"v_cvt_pk_bf16_f32 v{xa}, v{f}, v{f+1}")
    g(f"v_cvt_pk_bf16_f32 v{va}, v{va}, v{va}")
    g(f"v_cvt_pk_bf16_f32 v{xa+1}, v{f+2}, v{f+3}")
    g(f"v_and_b32 v{va}, 0xffff0000, v{va}")
    g(f"v_sqrt_f32 v{va}, v{va}")
    g(f"v_cvt_pk_bf16_f32 v{xa+2}, v{f+4}, v{f+5}"); g(f"v_cvt_pk_bf16_f32 v{xa+3}, v{f+6}, v{f+7}")
    g(f"v_cvt_pk_bf16_f32 v{va}, v{va}, v{va}")
    for k in range(2):
        g(f"v_lshlrev_b32 v{f+2*k}, 16, v{xa+k}"); g(f"v_and_b32 v{f+2*k+1}, 0xffff0000, v{xa+k}")
    g(f"v_and_b32 v{m}, 0xffff0000, v{va}")
    g(f"v_rcp_f32 v{m}, v{m}")
    for k in range(2, 4):
        g(f"v_lshlrev_b32 v{f+2*k}, 16, v{xa+k}"); g(f"v_and_b32 v{f+2*k+1}, 0xffff0000, v{xa+k}")
    for k in range(4): g(f"v_pk_mul_f32 {vr(f+2*k,2)}, {vr(f+2*k,2)}, {vr(m,2)} op_sel_hi:[1,0]")
    for k in range(4): g(f"v_cvt_pk_bf16_f32 v{xa+k}, v{f+2*k}, v{f+2*k+1}")
    g(f"ds_write_b128 v3, {vr(xa,4)}")
    if not dq and not qack: g.stamp(3)
    g("s_waitcnt lgkmcnt(0)"); g.lq = []
    g(f"s_mul_i32 {sT}, {sE}, 0x9E3779B1"); g(f"s_add_u32 {sT}, {sT}, 0x7F4A7C15")
    g(f"v_mov_b32 v{vT}, {sT}")
    if wke == 2: wuk_quad(0); wuk_quad(1)
    g(f"s_waitcnt vmcnt({(1 if (loc and not pre0) else 0) + 4 * wke})")
    if dq: g.stamp(3)
    g.label("L_W_b0")
    g("s_mov_b32 s1, s69")
    g("s_barrier")
    g.stamp(1)
    xb = g.v(16, 4); wk = g.v(32, 4); ta = g.v(16, 4); Da = g.v(4, 4); Db = g.v(4, 4)
    qf = g.v(32, 4); chk = g.v()
    tq = qf
    for u in range(4):
        g.lds(f"ds_read_b128 {vr(xb+4*u,4)}, v{vxf} offset:{u*64}")
        for T in range(2):
            for hf in range(2):
                g.lds(f"ds_read_b64_tr_b16 {vr(tq+8*u+4*T+2*hf,2)}, {trad(T)[0]} offset:{L_WQ + u*8192 + hf*1024 + trad(T)[1]}", ("tr", u, T))
    if wk2: wuk_quad(1)
    for u in range(4):
        g.lwait(("tr", u, 0))
        g(f"v_mfma_f32_16x16x32_bf16 {vr(Da,4)}, {vr(tq+8*u,4)}, {vr(xb+4*u,4)}, {vr(Da,4) if u else 0}")
        g.lwait(("tr", u, 1))
        g(f"v_mfma_f32_16x16x32_bf16 {vr(Db,4)}, {vr(tq+8*u+4,4)}, {vr(xb+4*u,4)}, {vr(Db,4) if u else 0}")
    def pack_granule(msk):
        g(f"v_cvt_pk_bf16_f32 v{Ga+2}, v{Da}, v{Da+1}"); g(f"v_cvt_pk_bf16_f32 v{Ga+3}, v{Da+2}, v{Da+3}")
        g(f"v_cvt_pk_bf16_f32 v2, v{Db}, v{Db+1}"); g(f"v_cvt_pk_bf16_f32 v3, v{Db+2}, v{Db+3}")
        g(f"v_cndmask_b32 v{Ga+2}, v{Ga+2}, v2, {msk}"); g(f"v_cndmask_b32 v{Ga+3}, v{Ga+3}, v3, {msk}")
    g("s_mov_b32 exec_lo, 0x000f000f"); g("s_mov_b32 exec_hi, 0x000f000f")
    g("s_nop 4")
    pack_granule("s[70:71]")
    g(f"buffer_store_dwordx4 {vr(Ga,4)}, v{vqps}, {WS}, s67 offen {'' if loc else 'sc1'}")
    g("s_mov_b64 exec, -1")
    g.stamp(4)
    g("s_and_b32 s62, s6, 15"); g("s_cmp_lg_u32 s62, 0"); g("s_cbranch_scc1 L_W_nx")
    g("s_lshr_b32 s62, s6, 4"); g("s_lshl2_add_u32 s62, s62, s7"); g("s_lshl_b32 s62, s62, 9"); g(f"s_add_u32 s62, s62, {XNG}")
    g(f"v_lshlrev_b32 v2, 6, v{n}"); g(f"v_lshl_add_u32 v2, v{gg}, 4, v2")
    g("s_cmp_eq_u32 s3, 0"); g("s_cselect_b32 exec_lo, 0x00030003, 0"); g("s_mov_b32 exec_hi, exec_lo")
    for u in range(4): g(f"buffer_store_dwordx4 {vr(xb+4*u,4)}, v2, {WS}, s62 offen offset:{u*128} sc1")
    g("s_mov_b64 exec, -1")
    g.label("L_W_nx")
    def qp_loads():
        for u in range(4): g(f"buffer_load_dwordx4 {vr(qf+8*u,4)}, v{vqpl}, {WS}, s68 offen offset:{u*128} sc1")
    g("s_mov_b32 s63, 0")
    if wke == 0: wuk_quad(0)
    if wke <= 1 and not wk2: wuk_quad(1)
    if pl:
        g("s_waitcnt vmcnt(0)")
        qp_loads()
        if qcl:
            g("s_cmp_eq_u32 s3, 2"); g("s_cselect_b64 exec, 1, 0")
            g(f"buffer_store_dword v{vT}, v{l16}, {WS}, s44 offen sc1")
            g("s_mov_b64 exec, -1")
    else:
        qp_loads()
        g(f"s_waitcnt vmcnt({5 if wk2 else 4})")
    g.stamp(12)
    for u in range(4):
        for T in range(2): g.lds(f"ds_read_b128 {vr(wk+16*T+4*u,4)}, v{vkr+u} offset:{T*1024}")
    if debug == 1: g("s_waitcnt vmcnt(0)"); g.stamp(3)
    g("s_branch L_Wa_c")
    g.label("L_Wa")
    def restore(vaddr, soff):
        g("s_mov_b32 exec_lo, 0x000f000f"); g("s_mov_b32 exec_hi, 0x000f000f")
        g(f"buffer_store_dwordx4 {vr(Ga,4)}, v{vaddr}, {WS}, {soff} offen sc1")
        g("s_mov_b64 exec, -1")
    if loc:
        g("s_cmp_lg_u32 s63, 4"); g("s_cbranch_scc1 L_Wa_n")
        restore(vqps, "s67")
        g.label("L_Wa_n")
    qp_loads()
    g.label("L_Wa_c")
    g("s_add_u32 s63, s63, 1"); g(f"s_cmp_gt_u32 s63, {SPIN}"); g("s_cbranch_scc1 L_Wa_x")
    g("s_waitcnt vmcnt(0)")
    for u in range(4): g(f"v_sad_u32 v{chk}, v{qf+8*u}, {sT}, {('v%d' % chk) if u else 0}")
    g(f"v_cmp_ne_u32 vcc, 0, v{chk}")
    g("s_cbranch_vccnz L_Wa")
    g.label("L_Wa_x")
    g.count("s63")
    g("s_waitcnt vmcnt(0)")
    for u in range(4):
        for k in range(2): g(f"v_mov_b32_dpp v{qf+8*u+4+k}, v{qf+8*u+2+k} row_ror:8 {DPPF}")
    g.lwait0()
    g.stamp(5)
    for u in range(4):
        g(f"v_mfma_f32_16x16x32_bf16 {vr(Da,4)}, {vr(wk+4*u,4)}, {vr(qf+8*u+2,4)}, {vr(Da,4) if u else 0}")
        g(f"v_mfma_f32_16x16x32_bf16 {vr(Db,4)}, {vr(wk+16+4*u,4)}, {vr(qf+8*u+2,4)}, {vr(Db,4) if u else 0}")
    g("s_nop 6")
    for k in range(8): g(f"v_add_f32_dpp v{Da+k}, v{Da+k}, v{Da+k} quad_perm:[1,0,3,2] {DPPF}")
    assert Db == Da + 4
    for k in range(8): g(f"v_add_f32_dpp v{Da+k}, v{Da+k}, v{Da+k} quad_perm:[2,3,0,1] {DPPF}")
    qo = g.v(4, 4)
    for k in range(4): g(f"v_cvt_pk_bf16_f32 v{qo+k}, v{Da+2*k}, v{Da+2*k+1}")
    g("s_mov_b32 exec_lo, 0x00110011"); g("s_mov_b32 exec_hi, 0x00110011")
    g(f"buffer_store_dwordx4 {vr(qo,4)}, v{vqa}, {WS}, {sQAo} offen sc1")
    if hqe:
        g("s_mov_b64 exec, 1")
        g(f"buffer_store_dword v{vT}, v{l16}, {WS}, s66 offen")
    g("s_mov_b64 exec, -1")
    g.stamp(6)
    g(f"s_lshl_b32 s58, {sW}, 8")
    vA, vB = vk, vk + 1
    g(f"v_and_b32 v2, 0xff, v{vqA}"); g(f"v_lshl_add_u32 v{vA}, v{gg}, 10, v2"); g(f"v_xor_b32 v{vB}, 0x80, v{vA}")
    g(f"v_add_u32 v{vk+2}, 3072, v{vA}"); g(f"v_add_u32 v{vk+5}, 6144, v{vB}"); g(f"v_add_u32 v{vk+6}, 9216, v{vB}")
    hpv = g.v(4, 4); vz = g.v()
    sWOo = "s46"
    g(f"v_mov_b32 v{vz}, 0")
    if not hqe:
        g("v_mov_b32 v3, 0"); g("s_mov_b64 exec, 1")
        g("s_waitcnt vmcnt(0)"); g.stamp(3)
        g(f"buffer_store_dword v{vT}, v3, {WS}, s66 offen")
        g("s_mov_b64 exec, -1")
    if loc: restore(vqps, "s67")
    def wuv_quad(a):
        g(f"s_add_u32 m0, s60, {L_WUV + a*0x1000}"); g(f"s_add_u32 s61, {sQoff}, {a*0x20000}")
        quad(WUV, "s61")
    srd(24, 4 << 20)
    if gpk:
        g(f"s_lshl_b32 s62, s5, 8"); g(f"s_add_u32 s62, s62, {HQ}"); g("v_lshlrev_b32 v3, 2, v1")
        g(f"buffer_load_dword v2, v3, {WS}, s62 offen sc1")
    if pga: g("s_waitcnt vmcnt(0)")
    for a in range(pg): wuv_quad(a)
    if gpk:
        g(f"v_cmp_ne_u32 s[66:67], {sT}, v2")
        g("s_bcnt1_i32_b64 s63, s[66:67]"); g(f"s_cmp_le_u32 s63, {gk}"); g("s_cselect_b64 s[66:67], 0, s[66:67]"); g("s_cbranch_scc0 L_Wgp")
        wuv_quad(1)
        g.label("L_Wgp")
    sPOo = "s17"
    g(f"s_lshr_b32 {sPOo}, s6, 1"); g(f"s_lshl2_add_u32 {sPOo}, {sPOo}, s7"); g(f"s_lshl_b32 {sPOo}, {sPOo}, 15"); g(f"s_add_u32 {sPOo}, {sPOo}, s60")
    g("s_and_b32 s63, s6, 1"); g("s_lshl_b32 s63, s63, 6"); g(f"s_add_u32 {sPOo}, {sPOo}, s63"); g(f"s_add_u32 {sPOo}, {sPOo}, {PO}"); g(f"s_add_u32 s47, {sPOo}, 0x1000")
    vpl = g.v()
    g(f"v_lshlrev_b32 v{vpl}, 9, v{gg}"); g(f"v_lshl_add_u32 v{vpl}, v{r}, 7, v{vpl}"); g(f"v_lshl_add_u32 v{vpl}, v{c4}, 4, v{vpl}")
    g(f"v_lshrrev_b32 v{vop}, 1, v1"); g(f"v_mul_u32_u24 v{vop}, {OPS}, v{vop}"); g(f"v_and_b32 v2, 1, v1"); g(f"v_lshl_or_b32 v{vop}, v2, 4, v{vop}")
    g(f"""
    s_lshl4_add_u32 s62, s5, s4
    s_lshl_b32 s62, s62, 5
    s_mul_i32 s63, s3, {32*OPS}
    s_add_u32 s62, s62, s63
    s_add_u32 {sOPo}, s62, {OP}
    """)
    vwo = f
    srd(28, 4 << 20)
    acc = g.v(16, 4)
    uv = wk; wo = 0
    vlw, vlr, vcs, vclo, vbp = g.v(), g.v(), g.v(), g.v(), g.v()
    mk = f + 8
    g(f"v_lshl_or_b32 v{vf}, v{c4}, 3, v{vf}")
    g(f"v_lshlrev_b32 v{vlw}, 6, v{r}"); g(f"v_lshl_add_u32 v{vlw}, v{gg}, 5, v{vlw}"); g(f"v_lshl_add_u32 v{vlw}, v{c4}, 3, v{vlw}")
    g(f"s_mul_i32 s62, {sW}, 288"); g(f"s_add_u32 s62, s62, {L_LAT}"); g(f"v_add_u32 v{vlw}, s62, v{vlw}")
    g(f"v_mul_u32_u24 v{vlr}, 288, v{c4}"); g(f"v_lshl_add_u32 v{vlr}, v{gg}, 4, v{vlr}"); g(f"v_add_u32 v{vlr}, {L_LAT}, v{vlr}")
    g(f"v_bfe_u32 v{vcs}, v1, 1, 1"); g(f"v_lshlrev_b32 v{vcs}, 9, v{vcs}"); g(f"v_lshl_add_u32 v{vcs}, v{gg}, {4 if nat else 5}, v{vcs}"); g(f"v_and_b32 v2, 1, v1"); g(f"v_lshl_add_u32 v{vcs}, v2, {6 if nat else 4}, v{vcs}")
    g(f"v_and_b32 v2, 7, v1"); g(f"v_lshlrev_b32 v2, 9, v2"); g(f"v_lshl_add_u32 v2, v{gg}, 5, v2")
    g(f"v_and_b32 v3, 8, v1"); g(f"v_lshl_add_u32 v{vclo}, v3, 1, v2")
    g(f"s_lshl_b32 s62, {sW}, 6"); g(f"v_lshlrev_b32 v{vbp}, 2, v{gg}"); g(f"v_add_u32 v{vbp}, s62, v{vbp}")
    g(f"v_and_b32 v2, 1, v1"); g(f"v_lshlrev_b32 v2, 4, v2"); g(f"v_mov_b32 v3, 0xffff"); g(f"v_lshlrev_b32 v3, v2, v3"); g(f"v_bfe_u32 v2, v1, 1, 2")
    for k in range(4):
        g(f"v_cmp_eq_u32 vcc, {k}, v2"); g("s_nop 1"); g(f"v_cndmask_b32 v{mk+k}, 0, v3, vcc")
    g(f"s_lshl_b32 {sWOo}, s1, 15"); g(f"s_add_u32 {sWOo}, {sWOo}, s58")
    g(f"v_lshl_add_u32 v3, v{gg}, 3, v{r}"); g(f"v_lshlrev_b32 v3, 8, v3"); g(f"s_add_u32 s62, s60, {L_WO}"); g(f"v_add_u32 v3, s62, v3")
    for tl in range(8):
        g(f"v_xor_b32 v{vwo+tl}, {tl*32}, v{vf}"); g(f"v_add_u32 v{vwo+tl}, v{vwo+tl}, v3")
    g(f"v_mov_b32 v{hpv+2}, v{vT}")
    ALH = g.v(8, 4)
    for k in range(8): g(f"v_mov_b32 v{ALH+k}, 0")
    def wo_quad():
        for j, rg in enumerate((vA, vk + 2, vk + 5, vk + 6)):
            g(f"buffer_load_dwordx4 v{rg}, {WO}, {sWOo} offen offset:{j*1024} {NS}lds")
    def uv_reads():
        for u in range(4):
            for T in range(2):
                for hf in range(2):
                    g.lds(f"ds_read_b64_tr_b16 {vr(uv+16*T+4*u+2*hf,2)}, {trad(T)[0]} offset:{L_WUV + u*8192 + hf*1024 + trad(T)[1]}")
    def wuv_stream():
        for a in range(pg, 2):
            if gw >= 0 and a > 0: g(f"s_waitcnt vmcnt({gw})")
            wuv_quad(a)
    if gpk: g("s_cmp_eq_u64 s[66:67], 0"); g("s_cbranch_scc1 L_Wgo")
    if gate == 1:
        g(f"s_lshl_b32 s62, s5, 8"); g(f"s_add_u32 s62, s62, {HQ}"); g("v_lshlrev_b32 v3, 2, v1")
        hint_wait(g, "L_Wg", 2, 3, "s62", 0, "s63")
    if gate == 2:
        g("s_lshl4_add_u32 s62, s5, s4"); g("s_lshl_b32 s62, s62, 7"); g(f"s_add_u32 s62, s62, {HA}")
        hint_wait(g, "L_Wg", 2, vz, "s62", 32, "s63")
    wuv_stream()
    if gpk: g.label("L_Wgo")
    g.stamp(14)
    def wo_stream():
        g(f"s_add_u32 m0, s60, {L_WO}"); g("s_nop 0")
        if gw >= 0 and wow: g(f"s_waitcnt vmcnt({gw})")
        wo_quad()
        g("s_add_u32 m0, m0, 0x1000"); g(f"s_add_u32 {sWOo}, {sWOo}, 0x4000")
        if gw >= 0 and wow: g(f"s_waitcnt vmcnt({gw})")
        wo_quad()
    def wo_reads():
        for tl in range(8):
            for hf in range(2): g.lds(f"ds_read_b64_tr_b16 {ar(wo+4*tl+2*hf,2)}, v{vwo+tl} offset:{hf*1024}")
    if wow == 1: wo_stream()
    if wow == 3:
        g(f"s_add_u32 m0, s60, {L_WO}"); g("s_nop 0")
        wo_quad()
    if opr: g(f"buffer_load_dword v254, v{vop}, {WS}, {sOPo} offen")
    vfw = g.v(4, 4); vfa = g.v()
    if cmb and fle == 1:
        g("s_lshr_b32 s44, s6, 4"); g("s_lshl_b32 s44, s44, 10"); g(f"s_add_u32 s44, s44, {FLA}")
        g(f"buffer_load_dword v{vfw}, v{l16}, {WS}, s44 offen sc1")
    if cmb and fle == 2:
        g("s_lshr_b32 s44, s6, 4"); g("s_lshl_b32 s44, s44, 13"); g(f"s_add_u32 s44, s44, {FLB}"); g(f"v_lshlrev_b32 v{vfa}, 7, v1")
        g(f"buffer_load_dwordx4 {vr(vfw,4)}, v{vfa}, {WS}, s44 offen sc1")
    def flb_check():
        for k in range(4): g(f"v_sad_u32 v2, v{vfw+k}, {sT}, {'v2' if k else 0}")
        g("v_cmp_ne_u32 vcc, 0, v2")
    sSTo, sCPs, sCPl, sCnt, sBl, sRL = "s16", "s18", "s19", "s20", "s21", "s22"
    g(f"s_lshr_b32 {sSTo}, s6, 2"); g(f"s_lshl_b32 {sSTo}, {sSTo}, 8"); g("s_and_b32 s63, s6, 3"); g(f"s_add_u32 {sSTo}, {sSTo}, s63"); g(f"s_lshl_b32 {sSTo}, {sSTo}, 4"); g(f"s_add_u32 {sSTo}, {sSTo}, {ST}")
    vst = g.v()
    g(f"v_lshlrev_b32 v{vst}, 6, v1")
    g(f"s_lshl_b32 s62, s6, 12"); g(f"s_add_u32 s62, s62, {CP}")
    g(f"s_lshl_b32 s63, s7, 7"); g(f"s_add_u32 {sCPl}, s62, s63")
    g(f"s_lshl_b32 s63, s7, 10"); g(f"s_add_u32 {sCPs}, s62, s63"); g(f"s_lshl_b32 s63, {sW}, 7"); g(f"s_add_u32 {sCPs}, {sCPs}, s63")
    g(f"s_lshr_b32 {sBl}, {sW}, 1"); g(f"s_lshl_b32 {sBl}, {sBl}, 5")
    g("s_mov_b32 s70, 0xaaaaaaaa"); g("s_mov_b32 s71, s70")
    g(f"s_waitcnt vmcnt({(8 if wow == 1 else 4 if wow == 3 else 0) + (1 if opr else 0) + (1 if (cmb and fle) else 0)})")
    g("s_barrier")
    g.stamp(7)
    if wow == 2: wo_stream()
    if wow == 3:
        g("s_add_u32 m0, m0, 0x1000"); g(f"s_add_u32 {sWOo}, {sWOo}, 0x4000")
        wo_quad()
    uv_reads()
    if wow:
        g("s_waitcnt vmcnt(0)")
        wo_reads()
    g.stamp(8)
    TLO = (0, 1, 4, 5); THI = (2, 3, 6, 7)
    stt = xa; pf = qf; af = ta; wd = xa + 4; mx = xa + 5; wb = f + 12
    sHA = "s45"
    def po_loads():
        for u in range(4): g(f"buffer_load_dwordx4 {vr(pf+4*u,4)}, v{vpl}, {WS}, {sPOo if u < 2 else 's47'} offen offset:{(u&1)*2048} sc1")
    if cmb:
        if not fle:
            g("s_lshr_b32 s44, s6, 4"); g("s_lshl_b32 s44, s44, 10"); g(f"s_add_u32 s44, s44, {FLA}")
            g(f"buffer_load_dword v{vfw}, v{l16}, {WS}, s44 offen sc1")
        g(f"s_lshl_b32 s63, s5, 8"); g(f"s_add_u32 s63, s63, {HB}"); g("v_lshlrev_b32 v3, 2, v1")
        g("s_waitcnt vmcnt(0)")
        if fle == 2: flb_check()
        else: g(f"v_cmp_ne_u32 vcc, {sT}, v{vfw}")
        g("s_cbranch_vccnz L_Wfa")
        g.label("L_Wfa_x")
        hint_wait(g, "L_Wh1", 2, 3, "s63", 0, sCnt)
        g(f"s_mov_b32 {sCnt}, 0")
        g(f"buffer_load_dwordx3 {vr(stt,3)}, v{vst}, {WS}, {sSTo} offen sc1")
        po_loads()
        if not wow: wo_stream()
        g(f"s_waitcnt vmcnt({4 if wow else 12})")
        g("s_branch L_Ws_c")
        g.label("L_Ws")
        g(f"buffer_load_dwordx3 {vr(stt,3)}, v{vst}, {WS}, {sSTo} offen sc1")
        po_loads()
        g(f"s_add_u32 {sCnt}, {sCnt}, 1"); g(f"s_cmp_gt_u32 {sCnt}, {SPIN}"); g("s_cbranch_scc1 L_Ws_x")
        g("s_waitcnt vmcnt(4)")
        g.label("L_Ws_c")
        g(f"v_cmp_ne_u32 vcc, {sT}, v{stt+2}")
        g("s_cbranch_vccnz L_Ws")
        g.label("L_Ws_x")
        g.count(sCnt)
        g.stamp(9)
    else:
        if hint:
            g("s_and_b32 s62, s4, 14"); g("s_lshr_b32 s63, s5, 2"); g("s_or_b32 s62, s62, s63"); g("s_lshl4_add_u32 s62, s5, s62"); g("s_lshl_b32 s62, s62, 7")
            g(f"s_add_u32 {sHA}, s62, {HA}"); g(f"s_lshl2_add_u32 s62, s7, {sHA}")
            hint_wait(g, "L_Wh1", 2, vz, sHA, 0, sCnt)
        g(f"s_mov_b32 {sCnt}, 0")
        g.label("L_Ws")
        if slp: g(f"s_sleep {slp}")
        g(f"buffer_load_dwordx3 {vr(stt,3)}, v{vst}, {WS}, {sSTo} offen sc1")
        if hint: g(f"buffer_load_dword v{stt+3}, v{vz}, {WS}, s62 offen offset:16 sc1")
        g(f"s_add_u32 {sCnt}, {sCnt}, 1"); g(f"s_cmp_gt_u32 {sCnt}, {SPIN}"); g("s_cbranch_scc1 L_Ws_x")
        g("s_waitcnt vmcnt(0)")
        g(f"v_cmp_ne_u32 vcc, {sT}, v{stt+2}")
        g("s_cbranch_vccnz L_Ws")
        g.label("L_Ws_x")
        g.count(sCnt)
        g("s_waitcnt vmcnt(0)")
        g.stamp(9)
        def po_loads():
            for u in range(4): g(f"buffer_load_dwordx4 {vr(pf+4*u,4)}, v{vpl}, {WS}, {sPOo if u < 2 else 's47'} offen offset:{(u&1)*2048} sc1")
        def po_first():
            po_loads()
            if not wow: wo_stream()
        if hint:
            g(f"v_cmp_ne_u32 s[64:65], {sT}, v{stt+3}")
            g("s_cmp_lg_u64 s[64:65], 0"); g("s_cbranch_scc1 L_Wp_n1")
            po_first()
            g.label("L_Wp_n1")
    g(f"v_mov_b32 v{mx}, v{stt}"); g("s_nop 1")
    reduce32(g, "max", mx, t)
    g(f"v_sub_f32 v{mx}, v{stt}, v{mx}")
    g(f"v_exp_f32 v{mx}, v{mx}")
    g("s_nop 0")
    g(f"v_cvt_pk_bf16_f32 v{wd}, v{mx}, v{mx}")
    for u in range(4): g.lds(f"ds_bpermute_b32 v{wb+u}, v{vbp}, v{wd} offset:{16*u}")
    g(f"v_and_b32 v{mx}, 0xffff0000, v{wd}")
    g(f"v_mul_f32 v{mx}, v{mx}, v{stt+1}"); g("s_nop 1")
    reduce32(g, "add", mx, t)
    g(f"v_rcp_f32 v{mx}, v{mx}")
    g.lwait0()
    for u in range(4):
        for k in range(4): g(f"v_and_b32 v{af+4*u+k}, v{wb+u}, v{mk+k}")
    g(f"v_readlane_b32 {sRL}, v{mx}, {sBl}")
    if not cmb:
        if hint:
            g("s_cmp_eq_u64 s[64:65], 0"); g("s_cbranch_scc1 L_Wp_n2")
            hint_wait(g, "L_Wh2", 2, vz, "s62", 16, sCnt)
        po_first()
        g.label("L_Wp_n2")
    if rall:
        g("s_lshl4_add_u32 s62, s5, s4"); g("s_lshl2_add_u32 s62, s62, s3"); g("s_lshl_b32 s62, s62, 2"); g(f"s_add_u32 s62, s62, {HW}")
    else:
        g("s_lshl4_add_u32 s62, s5, s4"); g("s_lshl_b32 s62, s62, 7"); g(f"s_add_u32 s62, s62, {HW}")
    g(f"s_mov_b32 s61, {sCnt}")
    g(f"s_mov_b32 {sCnt}, 0")
    if wow: g("s_branch L_Wp_c")
    else:
        if cmb:
            g(f"s_cmp_lg_u32 s61, 0"); g("s_cbranch_scc1 L_Wp_c")
        g("s_waitcnt vmcnt(8)")
        g("s_branch L_Wp_d")
    g.label("L_Wp")
    po_loads()
    g.label("L_Wp_c")
    g(f"s_add_u32 {sCnt}, {sCnt}, 1"); g(f"s_cmp_gt_u32 {sCnt}, {SPIN}"); g("s_cbranch_scc1 L_Wp_x")
    g("s_waitcnt vmcnt(0)")
    g.label("L_Wp_d")
    g(f"v_max3_u32 v{chk}, v{pf+3}, v{pf+7}, v{pf+11}"); g(f"v_max_u32 v{chk}, v{chk}, v{pf+15}")
    g(f"v_cmp_eq_u32 vcc, -1, v{chk}")
    g("s_cbranch_vccnz L_Wp")
    g.label("L_Wp_x")
    g.count(sCnt)
    g.stamp(10)
    for u in range(4): g(f"v_mfma_f32_16x16x32_bf16 {vr(Da,4)}, {vr(af+4*u,4)}, {vr(pf+4*u,4)}, {vr(Da,4) if u else 0}")
    g("s_mov_b32 exec_hi, 0")
    g("s_nop 6")
    for k in range(4): g(f"v_mul_f32 v{Da+k}, {sRL}, v{Da+k}")
    g(f"v_cvt_pk_bf16_f32 v{qo}, v{Da}, v{Da+1}"); g(f"v_cvt_pk_bf16_f32 v{qo+1}, v{Da+2}, v{Da+3}")
    g(f"ds_write_b64 v{vlw}, {vr(qo,2)}")
    g("s_mov_b64 exec, -1")
    g.lwait0()
    g("s_barrier")
    for u in range(4): g.lds(f"ds_read_b128 {vr(xb+4*u,4)}, v{vlr} offset:{u*64}", ("lf", u))
    for u in range(4):
        g.lwait(("lf", u))
        g(f"v_mfma_f32_16x16x32_bf16 {vr(Da,4)}, {vr(uv+4*u,4)}, {vr(xb+4*u,4)}, {vr(Da,4) if u else 0}")
        g(f"v_mfma_f32_16x16x32_bf16 {vr(Db,4)}, {vr(uv+16+4*u,4)}, {vr(xb+4*u,4)}, {vr(Db,4) if u else 0}")
    g("s_nop 6")
    for k in range(8): g(f"v_add_f32_dpp v{Da+k}, v{Da+k}, v{Da+k} quad_perm:[1,0,3,2] {DPPF}")
    g("s_mov_b32 exec_lo, 0x000f000f"); g("s_mov_b32 exec_hi, 0x000f000f")
    pack_granule("s[70:71]")
    g(f"buffer_store_dwordx4 {vr(Ga,4)}, v{vcs}, {WS}, {sCPs} offen {'' if loc else 'sc1'}")
    g("s_mov_b64 exec, -1")
    g.stamp(11)
    cl = pf
    g(f"s_mov_b32 {sCnt}, 1")
    if dl:
        g(f"s_waitcnt vmcnt({1 if dl == 1 else 0})")
        wo_reads()
        g(f"buffer_load_dwordx4 {vr(cl,4)}, v{vclo}, {WS}, {sCPl} offen sc1")
    else:
        g(f"buffer_load_dwordx4 {vr(cl,4)}, v{vclo}, {WS}, {sCPl} offen sc1")
        if not wow:
            g("s_waitcnt vmcnt(2)")
            wo_reads()
    g("s_branch L_Wd_c")
    g.label("L_Wd")
    if loc:
        g(f"s_cmp_lg_u32 {sCnt}, 6"); g("s_cbranch_scc1 L_Wd_n")
        restore(vcs, sCPs)
        g.label("L_Wd_n")
    g(f"buffer_load_dwordx4 {vr(cl,4)}, v{vclo}, {WS}, {sCPl} offen sc1")
    g(f"s_add_u32 {sCnt}, {sCnt}, 1"); g(f"s_cmp_gt_u32 {sCnt}, {SPIN}"); g("s_cbranch_scc1 L_Wd_x")
    g.label("L_Wd_c")
    g("s_waitcnt vmcnt(0)")
    g(f"v_cmp_ne_u32 vcc, {sT}, v{cl}")
    g("s_cbranch_vccnz L_Wd")
    g.label("L_Wd_x")
    g.count(sCnt)
    g("s_waitcnt vmcnt(0)")
    def done_hint():
        if rall: g("s_mov_b64 exec, 1")
        else: g(f"s_cmp_eq_u32 {sW}, 0"); g("s_cselect_b64 exec, 1, 0")
        g(f"buffer_store_dword v{vT}, v{vz}, {WS}, s62 offen")
        g("s_mov_b64 exec, -1")
    if hintr and hre: done_hint()
    AL, AH = ALH, ALH + 4
    for k in range(2):
        g(f"v_mov_b32_dpp v{AL+k}, v{cl+2+k} quad_perm:[0,1,2,3] row_mask:0xf bank_mask:0x3")
        g(f"v_mov_b32_dpp v{AL+2+k}, v{cl+2+k} row_ror:8 row_mask:0xf bank_mask:0x3")
        g(f"v_mov_b32_dpp v{AH+k}, v{cl+2+k} row_ror:8 row_mask:0xf bank_mask:0xc")
        g(f"v_mov_b32_dpp v{AH+2+k}, v{cl+2+k} quad_perm:[0,1,2,3] row_mask:0xf bank_mask:0xc")
    g.lwait0()
    g("s_nop 0")
    for k in range(4): g(f"v_mfma_f32_16x16x32_bf16 {vr(acc+4*k,4)}, {vr(AL,4)}, {ar(wo+4*TLO[k],4)}, 0")
    for k in range(4): g(f"v_mfma_f32_16x16x32_bf16 {vr(acc+4*k,4)}, {vr(AH,4)}, {ar(wo+4*THI[k],4)}, {vr(acc+4*k,4)}")
    def out_pack(acc, R, U, dst, vaddr, soff):
        g("s_nop 4")
        g(f"v_pk_add_f32 {vr(R,2)}, {vr(acc,2)}, {vr(acc+2,2)}")
        g(f"v_pk_add_f32 {vr(U,2)}, {vr(acc+4,2)}, {vr(acc+6,2)}")
        g(f"v_pk_add_f32 {vr(R+2,2)}, {vr(acc+8,2)}, {vr(acc+10,2)}")
        g(f"v_pk_add_f32 {vr(U+2,2)}, {vr(acc+12,2)}, {vr(acc+14,2)}")
        g("s_nop 0")
        for k in range(4): g(f"v_permlane16_swap_b32 v{R+k}, v{U+k}")
        g("s_nop 0")
        g(f"v_pk_add_f32 {vr(R,2)}, {vr(R,2)}, {vr(U,2)}"); g(f"v_pk_add_f32 {vr(R+2,2)}, {vr(R+2,2)}, {vr(U+2,2)}")
        g(f"v_cvt_pk_bf16_f32 v{dst}, v{R}, v{R+1}"); g(f"v_cvt_pk_bf16_f32 v{dst+1}, v{R+2}, v{R+3}")
        g(f"buffer_store_dwordx4 {vr(dst,4)}, v{vaddr}, {WS}, {soff} offen sc1")
    out_pack(acc, qo, Da, hpv, vop, sOPo)
    if hintr and not hre: done_hint()
    if loc: restore(vcs, sCPs)
    g.stamp(2)
    dump_stamps(g, "W")
    g("s_endpgm")
    if cmb and fle == 2:
        g.label("L_Wfa")
        g(f"s_mov_b32 {sCnt}, 0")
        g.label("L_Wfa_l")
        g("s_sleep 2")
        g(f"buffer_load_dwordx4 {vr(vfw,4)}, v{vfa}, {WS}, s44 offen sc1")
        g(f"s_add_u32 {sCnt}, {sCnt}, 1"); g(f"s_cmp_gt_u32 {sCnt}, {SPIN}"); g("s_cbranch_scc1 L_Wfa_x")
        g("s_waitcnt vmcnt(0)")
        flb_check()
        g("s_cbranch_vccnz L_Wfa_l")
        g("s_branch L_Wfa_x")
    elif cmb: flag_fallback(g, "L_Wfa", vfw, l16, "s44", sCnt)

    g.label("L_A2")
    g.lq = []
    g("""
    s_load_dword s43, s[8:9], 0
    s_load_dwordx2 s[52:53], s[0:1], 72
    s_load_dwordx2 s[28:29], s[0:1], 40
    s_load_dwordx2 s[60:61], s[0:1], 56
    s_load_dwordx2 s[68:69], s[0:1], 32
    s_load_dwordx2 s[64:65], s[0:1], 64
    """)
    dbg_init()
    g.reset_v(12)
    vj = l16
    vfl, vfo = g.v(), g.v()
    srd(12, 2048); srd(52, 2048)
    g(f"v_lshlrev_b32 v{vfo}, 7, v1"); g("s_lshl_b32 s34, s6, 10"); g(f"s_add_u32 s34, s34, {FL1}")
    n, gg, r, c4 = g.v(), g.v(), g.v(), g.v()
    g(f"v_and_b32 v{n}, 15, v1"); g(f"v_lshrrev_b32 v{gg}, 4, v1"); g(f"v_bfe_u32 v{r}, v1, 2, 2"); g(f"v_and_b32 v{c4}, 3, v1")
    sHX = "s35"
    g(f"s_mov_b32 {sHX}, {'s6' if swap else 0}")
    vro, xr = g.v(), g.v()
    g(f"v_and_b32 v2, 1, v{gg}"); g(f"v_lshlrev_b32 v{vro}, 10, v2"); g(f"v_lshrrev_b32 v2, 1, v{gg}"); g(f"v_lshl_add_u32 v{vro}, v2, 7, v{vro}")
    g(f"v_and_b32 v2, 1, v1"); g(f"v_lshl_add_u32 v{vro}, v2, 1, v{vro}")
    sRo = "s26"
    g(f"""
    s_sub_u32 s56, s4, 16
    s_lshl4_add_u32 {sRid}, s5, s56
    s_lshr_b32 s56, {sRid}, 5
    s_lshl_b32 {sRo}, s56, 8
    s_bfe_u32 s56, {sRid}, 0x20003
    s_lshl_b32 s56, s56, 5
    s_add_u32 {sRo}, {sRo}, s56
    s_and_b32 s56, {sRid}, 7
    s_lshl2_add_u32 {sRo}, s56, {sRo}
    """)
    if adl == 2: pfk_load(); abody(0, 0); abody(1, 0)
    vkq = g.v(4); vpv = g.v(16); vpw = g.v(2); vpr = g.v(2); vmx = g.v(); vqd = g.v(); vqr = g.v(); vqc = g.v(); vst = g.v()
    for k in range(4):
        g(f"v_add_u32 v2, {4*k}, v{gg}"); g(f"v_xor_b32 v2, v2, v{n}"); g(f"v_lshlrev_b32 v2, 4, v2"); g(f"v_lshl_add_u32 v2, v{n}, 10, v2"); g(f"v_add_u32 v{vkq+k}, {sRow}, v2")
    g(f"v_and_b32 v2, 1, v{gg}"); g(f"v_lshlrev_b32 v2, 2, v2"); g(f"v_add_lshl_u32 v2, v2, v{r}, 1")
    g(f"v_lshrrev_b32 v3, 1, v{c4}"); g(f"v_xor_b32 v2, v2, v3"); g(f"v_lshlrev_b32 v2, 4, v2")
    g(f"v_and_b32 v3, 1, v1"); g(f"v_lshl_add_u32 v2, v3, 3, v2")
    g(f"v_lshl_add_u32 v3, v{gg}, 2, v{r}"); g(f"v_lshl_add_u32 v2, v3, 11, v2")
    g(f"s_lshl_b32 s56, {sHX}, 16"); g(f"s_lshl_b32 s58, s3, 8"); g("s_add_u32 s56, s56, s58"); g(f"v_add_u32 v2, s56, v2")
    for T in range(8):
        g(f"v_xor_b32 v{vpv+2*T}, {T*32}, v2")
        g(f"v_xor_b32 v3, {T*32+16}, v2"); g(f"v_add_u32 v{vpv+2*T+1}, 0x400, v3")
    g(f"v_mul_u32_u24 v2, 272, v{n}"); g(f"v_lshrrev_b32 v3, 1, v{gg}"); g(f"v_lshl_add_u32 v{vpw}, v3, 4, v2"); g(f"v_and_b32 v3, 1, v{gg}"); g(f"v_lshl_add_u32 v{vpw}, v3, 2, v{vpw}")
    g(f"s_lshl_b32 s56, {sHX}, 7"); g(f"s_xor_b32 s58, s56, 0x80"); g(f"s_lshl_b32 s59, s3, 5"); g(f"s_add_u32 s59, s59, {L_P}")
    g("s_add_u32 s24, s58, s59"); g("s_add_u32 s59, s56, s59")
    g(f"v_add_u32 v{vpw+1}, s24, v{vpw}"); g(f"v_add_u32 v{vpw}, s59, v{vpw}")
    g(f"v_lshl_add_u32 v2, v{gg}, 4, v2"); g(f"s_add_u32 s56, s56, {L_P}"); g(f"s_add_u32 s58, s58, {L_P}")
    g(f"v_add_u32 v{vpr}, s56, v2"); g(f"v_add_u32 v{vpr+1}, s58, v2")
    g(f"v_lshlrev_b32 v{vmx}, 2, v{n}"); g(f"v_add_u32 v{vmx}, {L_MX}, v{vmx}")
    g(f"v_lshlrev_b32 v{vqd}, 6, v{n}"); g(f"v_lshl_add_u32 v{vqd}, v{gg}, 4, v{vqd}")
    g(f"v_add_u32 v{vqr}, {L_QA}, v{vj}")
    sQAl, sQAm, sSTs = "s27", "s30", "s31"
    g(f"""
    s_lshl_b32 {sQAm}, s3, 12
    s_lshr_b32 s56, s7, 5
    s_lshl1_add_u32 s56, s56, s6
    s_lshl_b32 s56, s56, 14
    s_add_u32 {sQAl}, s56, {sQAm}
    s_add_u32 {sQAl}, {sQAl}, {QA}
    s_add_u32 {sQAm}, {sQAm}, {L_QA}
    s_lshl_b32 {sSTs}, s6, 14
    s_lshl_b32 s56, s7, 6
    s_add_u32 {sSTs}, {sSTs}, s56
    s_add_u32 {sSTs}, {sSTs}, {ST}
    """)
    g(f"v_add_u32 v{vqc}, {sQAm}, v{vj}")
    g(f"v_lshlrev_b32 v{vst}, 12, v{r}"); g(f"v_lshl_add_u32 v{vst}, v{c4}, 4, v{vst}")
    vpo2 = g.v()
    if wow == 3:
        g(f"s_lshl_b32 s56, {sRid}, 3"); g("s_add_u32 s56, s56, s3"); g("s_add_u32 s56, s56, 4"); g("s_lshl_b32 s56, s56, 12"); g(f"v_and_b32 v{vpo2}, 0xf80, v{vfo}"); g(f"v_add_u32 v{vpo2}, s56, v{vpo2}")
    else:
        g(f"s_lshl2_add_u32 s56, {sRid}, s3"); g("s_lshl_b32 s56, s56, 13"); g(f"v_add_u32 v{vpo2}, s56, v{vfo}")
    vf1, vf2 = g.v(), g.v()
    srd(60, 512*1376*2); srd(64, 512*1376*2)
    g("s_bfe_u32 s56, s4, 0x20002"); g("s_mul_i32 s58, s5, 3"); g("s_cmp_lt_u32 s56, 3"); g("s_cselect_b32 s58, s58, 64"); g("s_add_u32 s56, s56, s58"); g("s_and_b32 s58, s4, 3")
    g("s_lshl2_add_u32 s24, s58, s3"); g(f"s_mul_i32 s24, s24, {32*2752}"); g("s_lshl_b32 s25, s56, 7"); g("s_add_u32 s24, s24, s25")
    g("s_lshl2_add_u32 s25, s56, s58"); g("s_lshl2_add_u32 s25, s25, s3"); g("s_lshl_b32 s25, s25, 12")
    g("s_mov_b32 s70, s56"); g("s_mov_b32 s71, s58")
    g("s_cmp_lt_u32 s56, 22"); g(f"s_cselect_b32 s24, s24, {OOB}")
    g(f"v_lshrrev_b32 v2, 1, v1"); g(f"v_mul_u32_u24 v{vf1}, 2752, v2"); g("v_and_b32 v2, 1, v1"); g("v_mul_u32_u24 v2, 124, v2"); g(f"v_add_u32 v{vf1}, v{vf1}, v2")
    g(f"v_and_b32 v{vf2}, 31, v1"); g(f"v_lshlrev_b32 v{vf2}, 7, v{vf2}")
    vzA = g.v()
    g(f"v_mov_b32 v{vzA}, 0"); g(f"s_lshl_b32 s38, {sRid}, 7"); g(f"s_add_u32 s36, s38, {HA}"); g("s_lshl2_add_u32 s37, s3, s36"); g(f"s_add_u32 s38, s38, {HW}")
    if cmb: g(f"s_lshl2_add_u32 s37, {sRid}, s3"); g("s_lshl_b32 s37, s37, 2"); g(f"s_add_u32 s37, s37, {HB-16}")
    xbA = g.v(16, 4); vxa = g.v()
    g(f"v_and_b32 v2, 1, v1"); g(f"v_lshlrev_b32 v{vxa}, 6, v2"); g(f"v_lshl_add_u32 v{vxa}, v{gg}, 4, v{vxa}")
    g(f"s_lshl2_add_u32 s39, s6, {'s3' if fk else 's71'}"); g("s_lshl_b32 s39, s39, 9"); g(f"s_add_u32 s39, s39, {XNG}")
    g(f"s_lshr_b32 s58, {sRid}, 2"); g("s_lshl_b32 s58, s58, 11"); g(f"s_add_u32 s58, s58, {HP}")
    g(f"s_lshl_b32 s44, {sW}, 9"); g("s_add_u32 s44, s44, s58"); g("s_lshl_b32 s45, s71, 7"); g("s_add_u32 s44, s44, s45"); g("s_lshl_b32 s45, s71, 9"); g("s_add_u32 s45, s45, s58")
    ones = g.v(4, 4)
    for k in range(4): g(f"v_mov_b32 v{ones+k}, 0x3f803f80")
    if adl == 1: pfk_load(); abody(0, 0); abody(1, 0)
    g(f"v_mov_b32 v2, 0xff800000")
    g(f"ds_write_b32 v{vmx}, v2")
    g("v_mov_b32 v3, 0")
    g(f"ds_write_b32 v{vmx}, v3 offset:64")
    g.lwait0()
    g(f"s_mul_i32 {sT}, {sE}, 0x9E3779B1"); g(f"s_add_u32 {sT}, {sT}, 0x7F4A7C15")
    if cmb and fle == 2:
        g("s_lshl_b32 s58, s6, 6"); g("s_add_u32 s58, s58, s7"); g("s_lshl_b32 s58, s58, 5"); g("s_add_u32 s58, s58, s3"); g("s_lshl_b32 s58, s58, 2"); g(f"s_add_u32 s58, s58, {FLB}")
        g(f"v_mov_b32 v2, {sT}"); g("s_mov_b64 exec, 1")
        g("s_waitcnt vmcnt(8)")
        g(f"buffer_store_dword v2, v{vzA}, {WS}, s58 offen sc1")
        g("s_mov_b64 exec, -1")
    abody(2, 0); abody(3, 0)
    g(f"s_xor_b32 s58, {sRow}, 0x10000"); g("s_mov_b32 m0, s58"); g("s_add_u32 s33, s58, s57")
    abody(0, 1); abody(1, 1)
    g("s_waitcnt vmcnt(8)")
    g("s_barrier")
    for u in range(16): g.lds(f"ds_read_b128 {ar(4*u,4)}, v{vkq+(u&3)} offset:{(u>>2)*256}")
    def fla_store():
        if cmb:
            g("s_lshl_b32 s58, s6, 6"); g("s_add_u32 s58, s58, s7"); g("s_lshl_b32 s58, s58, 4"); g(f"s_add_u32 s58, s58, {FLA}")
            g(f"v_mov_b32 v2, {sT}"); g(f"s_cmp_eq_u32 {sW}, 0"); g("s_cselect_b64 exec, 1, 0")
            g(f"buffer_store_dword v2, v{vzA}, {WS}, s58 offen sc1")
            g("s_mov_b64 exec, -1")
    if flae == 1 and fle != 2: fla_store()
    if not noflag: g(f"buffer_load_dword v{vfl}, v{l16}, {WS}, s34 offen sc1")
    vhq, vl4 = g.v(), g.v()
    g(f"s_lshl_b32 s46, s5, 8"); g(f"s_add_u32 s46, s46, {HQ}"); g(f"v_lshlrev_b32 v{vl4}, 2, v1")
    if qae: g(f"buffer_load_dword v{vhq}, v{vl4}, {WS}, s46 offen sc1")
    abody(2, 1); abody(3, 1)
    def ffn_prefetch():
        if not fk: g(f"buffer_load_dword v254, v{vzA}, {WS}, s44 offen")
        if pff:
            if pff in (1, 3): g(f"buffer_load_dword v255, v{vf1}, s[60:63], s24 offen")
            if pff == 4:
                g("s_mov_b32 exec_hi, 0"); g(f"buffer_load_dword v255, v{vf1}, s[60:63], s24 offen"); g("s_mov_b32 exec_hi, -1")
            if pff in (1, 2): g(f"buffer_load_dword v255, v{vf2}, s[64:67], s25 offen")
    if pffe == 1: ffn_prefetch()
    for ks in range(2):
        for T in range(8):
            for hf in range(2):
                g.lds(f"ds_read_b64_tr_b16 {ar(128+(ks*8+T)*4+2*hf,2)}, v{vpv+2*T+hf} offset:{ks*32768}")
    for k in range(4): g(f"v_xor_b32 v{vkq+k}, 0x10000, v{vkq+k}")
    for k in range(16): g(f"v_xor_b32 v{vpv+k}, 0x10000, v{vpv+k}")
    g(f"s_waitcnt vmcnt({8 + (3 if pffe == 1 else 0)})")
    if not noflag:
        g(f"v_cmp_ne_u32 vcc, {sT}, v{vfl}")
        g("s_cbranch_vccnz L_Af1")
    g.label("L_Af1_x")
    g.stamp(11)
    qf = g.v(64, 4); chk = g.v()
    def qa_dma():
        for j in range(4): g(f"buffer_load_dwordx4 v{vqd}, {WS}, {sQAl} offen offset:{j*1024} sc1 lds")
    def qa_check():
        for j in range(4): g(f"ds_read_b128 {vr(qf+4*j,4)}, v{vqc} offset:{j*1024}")
        g.lwait0()
        g(f"v_max3_u32 v{chk}, v{qf+3}, v{qf+7}, v{qf+11}"); g(f"v_max_u32 v{chk}, v{chk}, v{qf+15}")
        g(f"v_cmp_eq_u32 vcc, -1, v{chk}")
    g(f"s_mov_b32 m0, {sQAm}")
    g(f"s_mov_b32 {sCnt}, 1")
    if hq:
        if qae:
            g(f"v_cmp_ne_u32 vcc, {sT}, v{vhq}")
            if spk:
                g("s_bcnt1_i32_b64 s58, vcc"); g(f"s_cmp_le_u32 s58, {spk}"); g("s_cselect_b64 vcc, 0, vcc")
            g("s_cbranch_vccnz L_Aq_l")
            qa_dma()
            g("s_waitcnt vmcnt(4)")
            g("s_branch L_Aq_m")
            g.label("L_Aq_l")
        g("s_waitcnt vmcnt(0)")
        g.label("L_Aq_m")
        g.stamp(5)
        for u in range(16): g.lds(f"ds_read_b128 {ar(64+4*u,4)}, v{vkq+(u&3)} offset:{(u>>2)*256}")
        if flae == 2: fla_store()
        if qae: g("s_cbranch_vccz L_Aq_n")
        hint_wait(g, "L_Ahq", 2, vl4, "s46", 0, sCnt)
        g(f"s_mov_b32 {sCnt}, 1")
        qa_dma()
        g.label("L_Aq_n")
    elif qal:
        g("s_waitcnt vmcnt(0)")
        qa_dma()
    else:
        qa_dma()
        g("s_waitcnt vmcnt(4)")
    if not hq:
        g.stamp(5)
        for u in range(16): g.lds(f"ds_read_b128 {ar(64+4*u,4)}, v{vkq+(u&3)} offset:{(u>>2)*256}")
    if not ty: g("s_barrier")
    if not hq:
        g("s_waitcnt vmcnt(0) lgkmcnt(8)")
        qa_check()
        g("s_cbranch_vccz L_Aq_1")
        qa_dma()
        g.label("L_Aq_1")
    def try_(ks, T, hf):
        g.lds(f"ds_read_b64_tr_b16 {ar(128+((ks+2)*8+T)*4+2*hf,2)}, v{vpv+2*T+hf} offset:{ks*32768}", ("ty", ks, T))
    if not ty:
        for ks in range(2):
            for T in range(8):
                for hf in range(2): try_(ks, T, hf)
    if not hq: g("s_cbranch_vccz L_Aq_x")
    g("s_branch L_Aq_c")
    g.label("L_Aq")
    if spk: hint_wait(g, "L_Ahq2", 2, vl4, "s46", 0, "s58")
    if qsl: g(f"s_sleep {qsl}")
    qa_dma()
    g.label("L_Aq_c")
    g(f"s_add_u32 {sCnt}, {sCnt}, 1"); g(f"s_cmp_gt_u32 {sCnt}, {SPIN}"); g("s_cbranch_scc1 L_Aq_y")
    g("s_waitcnt vmcnt(0) lgkmcnt(8)")
    save = list(g.lq)
    qa_check()
    g("s_cbranch_vccnz L_Aq")
    g.label("L_Aq_y")
    g("s_waitcnt vmcnt(0) lgkmcnt(0)")
    g.label("L_Aq_x")
    g.lq = []
    g.count(sCnt)
    g("s_barrier")
    g.stamp(6)
    SX = g.v(4, 4); SY = g.v(4, 4); O = g.v(32, 4); pfr = g.v(16, 4); LD = g.v(4, 4); pk = g.v(16, 4)
    EX = g.v(8, 4); STG = g.v(4, 4); mxv, t2 = g.v(), g.v()
    AHEAD = 10
    for u in range(AHEAD): g.lds(f"ds_read_b128 {vr(qf+4*u,4)}, v{vqr} offset:{u*1024}", ("q", u))
    if gate == 2:
        g(f"v_mov_b32 v{STG+2}, {sT}"); g(f"s_cmp_eq_u32 {sW}, 0"); g("s_cselect_b64 exec, 1, 0")
        g(f"buffer_store_dword v{STG+2}, v{vzA}, {WS}, s36 offen offset:32")
        g("s_mov_b64 exec, -1")
    if pfv:
        if pfv == 1: g("s_mov_b32 exec_lo, 0")
        g(f"global_load_dword v255, v6, s[68:69]")
        g("s_mov_b64 exec, -1")
    def xn_loads():
        for u in range(4): g(f"buffer_load_dwordx4 {vr(xbA+4*u,4)}, v{vxa}, {WS}, s39 offen offset:{u*128} sc1")
    if xnl == 0: xn_loads()
    if not pffe: ffn_prefetch()
    if pfo and pfoe: g(f"global_load_dword v255, v{vpo2}, s[28:29]")
    g(f"s_mov_b32 s56, {KSCALE:#x}")
    for u in range(16):
        g.lwait(("q", u))
        g(f"v_mfma_f32_16x16x32_bf16 {vr(SX,4)}, {ar(4*u,4)}, {vr(qf+4*u,4)}, {vr(SX,4) if u else 0}")
        if u + AHEAD < 16: g.lds(f"ds_read_b128 {vr(qf+4*(u+AHEAD),4)}, v{vqr} offset:{(u+AHEAD)*1024}", ("q", u + AHEAD))
    def my(u): g(f"v_mfma_f32_16x16x32_bf16 {vr(SY,4)}, {ar(64+4*u,4)}, {vr(qf+4*u,4)}, {vr(SY,4) if u else 0}")
    def pexp(H):
        for k in range(4): g(f"v_exp_f32 v{EX+4*H+k}, v{EX+4*H+k}")
    def pwrite(H):
        g(f"v_cvt_pk_bf16_f32 v{pk+2*H}, v{EX+4*H}, v{EX+4*H+2}"); g(f"v_cvt_pk_bf16_f32 v{pk+2*H+1}, v{EX+4*H+1}, v{EX+4*H+3}")
        g(f"ds_write2_b32 v{vpw+H}, v{pk+2*H}, v{pk+2*H+1} offset1:2")
    my(0); my(1); my(2)
    g("s_nop 4")
    g(f"v_max3_f32 v{mxv}, v{SX}, v{SX+1}, v{SX+2}")
    my(3)
    g(f"v_max_f32 v{mxv}, v{mxv}, v{SX+3}")
    g(f"ds_max_f32 v{vmx}, v{mxv}")
    my(4); my(5); my(6)
    g.lwait0()
    g("s_barrier")
    g(f"ds_read_b32 v{mxv}, v{vmx}")
    my(7); my(8); my(9)
    g.lwait0()
    g(f"v_mul_f32 v{STG}, s56, v{mxv}")
    my(10)
    for k in range(2): g(f"v_fma_f32 v{EX+k}, v{SX+k}, s56, -v{STG}")
    my(11)
    for k in range(2, 4): g(f"v_fma_f32 v{EX+k}, v{SX+k}, s56, -v{STG}")
    my(12)
    g(f"v_exp_f32 v{EX}, v{EX}")
    my(13)
    g(f"v_exp_f32 v{EX+1}, v{EX+1}")
    my(14)
    g(f"v_exp_f32 v{EX+2}, v{EX+2}")
    my(15)
    g(f"v_exp_f32 v{EX+3}, v{EX+3}")
    g(f"v_mov_b32 v{STG+2}, {sT}")
    pwrite(0)
    g(f"s_mov_b32 s57, {f2u(40.0):#x}")
    if hpos == -2:
        g("s_mov_b64 exec, 1")
        g(f"buffer_store_dword v{STG+2}, v{vzA}, {WS}, s37 offen offset:16")
        g("s_mov_b64 exec, -1")
    else: g("s_nop 1")
    for k in range(4): g(f"v_fma_f32 v{EX+4+k}, v{SY+k}, s56, -v{STG}")
    g(f"v_max3_f32 v{t2}, v{EX+4}, v{EX+5}, v{EX+6}")
    g(f"v_exp_f32 v{EX+4}, v{EX+4}")
    g(f"v_max_f32 v{t2}, v{t2}, v{EX+7}")
    g(f"v_exp_f32 v{EX+5}, v{EX+5}")
    g(f"v_cmp_lt_f32 vcc, s57, v{t2}")
    g(f"v_exp_f32 v{EX+6}, v{EX+6}")
    g(f"v_exp_f32 v{EX+7}, v{EX+7}")
    g("s_cbranch_vccnz L_Aovf")
    g.label("L_Aovf_x")
    pwrite(1)
    g.lwait0()
    g("s_barrier")
    g.stamp(7)
    def po_hint():
        g("s_mov_b64 exec, 1")
        g(f"buffer_store_dword v{STG+2}, v{vzA}, {WS}, s37 offen offset:16")
        g("s_mov_b64 exec, -1")
    if hpos == -1: po_hint()
    g.label("L_Apv")
    g.lds(f"ds_read_b32 v{t2}, v{vmx} offset:64", "ovf")
    for ks in range(4): g.lds(f"ds_read_b128 {vr(pfr+4*ks,4)}, v{vpr+(ks>>1)} offset:{(ks&1)*64}", ("p", ks))
    g.lwait("ovf")
    g(f"v_cmp_ne_u32 vcc, 0, v{t2}")
    g("s_cbranch_vccnz L_Aslow")
    g(f"s_cmp_lg_u32 {sW}, 3"); g("s_cbranch_scc1 L_Anol")
    save = list(g.lq)
    g.lwait(("p", 3))
    for ks in range(4): g(f"v_mfma_f32_16x16x32_bf16 {vr(LD,4)}, {vr(ones,4)}, {vr(pfr+4*ks,4)}, {vr(LD,4) if ks else 0}")
    g.label("L_Anol")
    g.lq = save
    def epi(b):
        for q in range(2):
            g(f"v_cvt_pk_bf16_f32 v{pk+4*b+2*q}, v{O+8*b+4*q}, v{O+8*b+4*q+1}")
            yield
            g(f"v_cvt_pk_bf16_f32 v{pk+4*b+2*q+1}, v{O+8*b+4*q+2}, v{O+8*b+4*q+3}")
            yield
        g(f"buffer_store_dwordx4 {vr(pk+4*b,4)}, v{vpo}, {WS}, {sPOs} offen offset:{b*128} sc1")
        if hint and b == hpos:
            g("s_mov_b64 exec, 1")
            g(f"buffer_store_dword v{STG+2}, v{vzA}, {WS}, s37 offen offset:16")
            g("s_mov_b64 exec, -1")
        yield
    def st_store():
        g(f"s_cmp_lg_u32 {sW}, 3"); g("s_cbranch_scc1 L_Anos")
        g(f"v_mov_b32 v{STG+1}, v{LD}")
        g("s_mov_b64 exec, 0xffff")
        g(f"buffer_store_dwordx4 {vr(STG,4)}, v{vst}, {WS}, {sSTs} offen sc1")
        if hint and not cmb:
            g("s_mov_b64 exec, 1")
            g(f"buffer_store_dword v{STG+2}, v{vzA}, {WS}, s36 offen")
        g("s_mov_b64 exec, -1")
        g.label("L_Anos")
    if ty:
        order = [(ks, T, hf) for b in range(4) for ks in range(2) for T in (2 * b, 2 * b + 1) for hf in range(2)]
        for k in range(4): try_(*order[k])
        nxt = 4
        for ks in range(2):
            g.lwait(("p", ks))
            for T in range(8):
                g(f"v_mfma_f32_16x16x32_bf16 {vr(O+4*T,4)}, {ar(128+(ks*8+T)*4,4)}, {vr(pfr+4*ks,4)}, {vr(O+4*T,4) if ks else 0}")
                for _ in range(2):
                    if nxt < 32: try_(*order[nxt]); nxt += 1
            if ks == 0: st_store()
        pend = None
        for b in range(4):
            cnt = 0
            for ks in (2, 3):
                for T in (2 * b, 2 * b + 1):
                    g.lwait(("ty", ks - 2, T))
                    g(f"v_mfma_f32_16x16x32_bf16 {vr(O+4*T,4)}, {ar(128+(ks*8+T)*4,4)}, {vr(pfr+4*ks,4)}, {vr(O+4*T,4)}")
                    cnt += 1
                    if b >= 2:
                        if b == 2 and cnt == 1: g("s_nop 1")
                        next(pend, None)
                        if cnt == 4: next(pend, None)
            if b >= 1: pend = epi(b - 1)
        g("s_nop 1")
        for _ in pend: pass
        for _ in epi(3): pass
    else:
        pend = None
        for b in range(4):
            cnt = 0
            for ks in range(4):
                if b == 0: g.lwait(("p", ks))
                for T in (2 * b, 2 * b + 1):
                    g(f"v_mfma_f32_16x16x32_bf16 {vr(O+4*T,4)}, {ar(128+(ks*8+T)*4,4)}, {vr(pfr+4*ks,4)}, {vr(O+4*T,4) if ks else 0}")
                    cnt += 1
                    if b == 0 and cnt == 8:
                        g(f"s_cmp_lg_u32 {sW}, 3"); g("s_cbranch_scc1 L_Anos")
                        g(f"v_mov_b32 v{STG+1}, v{LD}")
                        g("s_mov_b64 exec, 0xffff")
                        g(f"buffer_store_dwordx4 {vr(STG,4)}, v{vst}, {WS}, {sSTs} offen sc1")
                        if hint and not cmb:
                            g("s_mov_b64 exec, 1")
                            g(f"buffer_store_dword v{STG+2}, v{vzA}, {WS}, s36 offen")
                        g("s_mov_b64 exec, -1")
                        g.label("L_Anos")
                    if pend is not None and cnt >= 4:
                        if cnt == 4: g("s_nop 1")
                        next(pend, None)
            if pend is not None:
                for _ in pend: pass
            pend = epi(b)
        g("s_nop 4")
        for _ in pend: pass
    g.stamp(4)
    L_F1, L_F2 = 0, 0x4000
    xb = xbA; ta = qf + 16; w2f = qf + 32; hp = qf + 48; acc = O; Da = SX; hpv = LD; hlo = EX; hhi = EX + 2
    vw2 = vpv; vA = vpv + 8; vt1, vt2, vh, vop = vpv + 12, vpv + 13, vpv + 14, vpv + 15
    L_H = 0x8000
    if fk:
        g(f"v_lshrrev_b32 v2, 1, v1"); g(f"v_mul_u32_u24 v{vt1}, 2752, v2"); g(f"v_and_b32 v2, 1, v1"); g(f"v_lshlrev_b32 v2, 4, v2"); g(f"v_add_u32 v{vt1}, v2, v{vt1}")
        g(f"v_lshl_add_u32 v{vh}, v{gg}, 5, v2"); g(f"v_add_u32 v{vh}, {L_H}, v{vh}")
    else:
        g(f"v_lshrrev_b32 v2, 3, v1"); g(f"v_mul_u32_u24 v{vt1}, 2752, v2"); g(f"v_and_b32 v2, 7, v1"); g(f"v_lshl_add_u32 v{vt1}, v2, 4, v{vt1}")
        g(f"v_lshlrev_b32 v{vh}, 6, v2"); g(f"v_lshl_add_u32 v{vh}, v{gg}, 4, v{vh}")
    g(f"v_lshlrev_b32 v2, 1, v{gg}"); g(f"v_xor_b32 v2, v2, v{n}"); g(f"v_lshlrev_b32 v2, 4, v2"); g(f"v_lshl_add_u32 v{vA}, v{gg}, 10, v2"); g(f"v_xor_b32 v3, 0x80, v{vA}")
    g(f"v_add_u32 v{vA+1}, 3072, v3"); g(f"v_add_u32 v{vA+2}, 6144, v{vA}"); g(f"v_add_u32 v{vA+3}, 9216, v3")
    g(f"s_lshl_b32 s59, {sW}, 12"); g(f"s_lshl_b32 s58, {sHX}, 16"); g("s_add_u32 s59, s59, s58"); g("s_mov_b32 m0, s59")
    g("s_lshl2_add_u32 s25, s70, s71"); g("s_lshl_b32 s32, s25, 14"); g(f"s_lshl_b32 s33, {sW}, 8"); g("s_add_u32 s32, s32, s33")
    if poack: g("s_waitcnt vmcnt(0)")
    g.stamp(12)
    g("s_cmp_ge_u32 s70, 22"); g("s_cbranch_scc1 L_Anf1")
    if fk:
        if not pff: g(f"buffer_load_dword v255, v{vf1}, s[60:63], s24 offen")
        g(f"s_mul_i32 s24, {sW}, {128*2752}"); g("s_lshl_b32 s58, s25, 5"); g("s_add_u32 s24, s24, s58")
    if xnl == 1: xn_loads()
    for j in range(4):
        if j: g("s_add_u32 m0, m0, 0x400"); g(f"s_add_u32 s24, s24, {(32 if fk else 8)*2752}")
        g(f"buffer_load_dwordx4 v{vt1}, s[60:63], s24 offen lds")
    g(f"s_add_u32 m0, s59, {L_F2}"); g("s_nop 0")
    for j in range(4): g(f"buffer_load_dwordx4 v{vA+j}, s[64:67], s32 offen offset:{j*1024} lds")
    if pf2a:
        g("s_branch L_Anf1b")
    g.label("L_Anf1")
    if pf2a:
        g("s_cmp_lt_u32 s70, 64"); g("s_cbranch_scc1 L_Anf1b")
        g(f"s_mul_i32 s58, s5, 3"); g(f"s_add_u32 s58, s58, {sW}"); g("s_lshl2_add_u32 s58, s58, s71"); g("s_lshl_b32 s58, s58, 14")
        g(f"s_cmp_lt_u32 {sW}, 3"); g(f"s_cselect_b32 s58, s58, {OOB}"); g("s_add_u32 s59, s58, 0x2000")
        g(f"buffer_load_dword v255, v{vfo}, s[64:67], s58 offen"); g(f"buffer_load_dword v255, v{vfo}, s[64:67], s59 offen")
        g.label("L_Anf1b")
    if pfo and not pfoe: g(f"global_load_dword v255, v{vpo2}, s[28:29]")
    g("s_cmp_ge_u32 s70, 22"); g("s_cbranch_scc1 L_Anf2")
    g(f"v_lshl_add_u32 v{vt2}, v{gg}, 3, v{r}"); g(f"v_lshlrev_b32 v{vt2}, {5 if fk else 7}, v{vt2}"); g(f"v_lshl_add_u32 v{vt2}, v{c4}, 3, v{vt2}")
    g(f"s_lshl_b32 s58, {sW}, {12 if fk else 5}"); g(f"v_add_u32 v{vt2}, s58, v{vt2}"); g(f"s_lshl_b32 s58, {sHX}, 16"); g(f"v_add_u32 v{vt2}, s58, v{vt2}")
    g(f"v_and_b32 v2, 1, v{gg}"); g(f"v_lshl_or_b32 v2, v2, 2, v{r}"); g(f"v_lshlrev_b32 v2, 5, v2"); g(f"v_lshl_or_b32 v2, v{c4}, 3, v2")
    g(f"v_lshl_add_u32 v3, v{gg}, 2, v{r}"); g(f"v_lshlrev_b32 v3, 8, v3"); g(f"s_add_u32 s58, s59, {L_F2}"); g(f"v_add_u32 v3, s58, v3")
    for tl in range(8):
        g(f"v_xor_b32 v{vw2+tl}, {tl*32}, v2"); g(f"v_add_u32 v{vw2+tl}, v{vw2+tl}, v3")
    g(f"v_lshrrev_b32 v{vop}, 1, v1"); g(f"v_mul_u32_u24 v{vop}, {OPS}, v{vop}"); g(f"v_and_b32 v2, 1, v1"); g(f"v_lshl_or_b32 v{vop}, v2, 4, v{vop}")
    g("s_lshl_b32 s25, s25, 5"); g(f"s_mul_i32 s58, {sW}, {32*OPS}"); g("s_add_u32 s25, s25, s58"); g(f"s_add_u32 s25, s25, {OP + 128*32}")
    g(f"v_mov_b32 v{hpv+2}, {sT}")
    if opr: g(f"buffer_load_dword v254, v{vop}, {WS}, s25 offen")
    g.stamp(1)
    g(f"s_waitcnt vmcnt({(5 if (pfo and not pfoe) else 4) + (1 if opr else 0)})")
    g.stamp(2)
    if fk:
        for u in range(4):
            for hf in range(2): g.lds(f"ds_read_b64_tr_b16 {vr(ta+4*u+2*hf,2)}, v{vt2} offset:{u*1024+hf*128}", ("w1", u))
        g(f"s_lshl_b32 s58, {sW}, 7"); g(f"v_add_u32 v2, s58, v{vh}")
        for u in range(4):
            g.lwait(("w1", u))
            g(f"v_mfma_f32_16x16x32_bf16 {vr(Da,4)}, {vr(ta+4*u,4)}, {vr(xb+4*u,4)}, {vr(Da,4) if u else 0}")
        g(f"s_waitcnt vmcnt({(1 if (pfo and not pfoe) else 0) + (1 if opr else 0)})")
        for tl in range(8): g.lds(f"ds_read_b64_tr_b16 {vr(w2f+2*tl,2)}, v{vw2+tl}")
        g.lds(f"ds_write_b128 v2, {vr(Da,4)}")
        g.lwait0()
        g("s_barrier")
        g.stamp(14)
        for k in range(4): g.lds(f"ds_read_b128 {vr(ta+4*k,4)}, v{vh} offset:{k*128}")
        g.lwait0()
        for k in range(2):
            g(f"v_pk_add_f32 {vr(ta+2*k,2)}, {vr(ta+2*k,2)}, {vr(ta+4+2*k,2)}"); g(f"v_pk_add_f32 {vr(ta+8+2*k,2)}, {vr(ta+8+2*k,2)}, {vr(ta+12+2*k,2)}")
        for k in range(2): g(f"v_pk_add_f32 {vr(hp+2*k,2)}, {vr(ta+2*k,2)}, {vr(ta+8+2*k,2)}")
    else:
        g("s_barrier")
        g.stamp(14)
        for u in range(4):
            for hf in range(2): g.lds(f"ds_read_b64_tr_b16 {vr(ta+4*u+2*hf,2)}, v{vt2} offset:{u*4096+hf*512}", ("w1", u))
        for u in range(4):
            g.lwait(("w1", u))
            g(f"v_mfma_f32_16x16x32_bf16 {vr(Da,4)}, {vr(ta+4*u,4)}, {vr(xb+4*u,4)}, {vr(Da,4) if u else 0}")
        g("s_mov_b32 exec_lo, 0x00030003"); g("s_mov_b32 exec_hi, 0x00030003")
        g("s_nop 5")
        g(f"v_cvt_pk_bf16_f32 v{hpv}, v{Da}, v{Da+1}"); g(f"v_cvt_pk_bf16_f32 v{hpv+1}, v{Da+2}, v{Da+3}")
        g(f"buffer_store_dwordx4 {vr(hpv,4)}, v{vh}, {WS}, s44 offen")
        g("s_mov_b64 exec, -1")
        def hp_restore():
            g("s_mov_b32 exec_lo, 0x00030003"); g("s_mov_b32 exec_hi, 0x00030003")
            g(f"buffer_store_dwordx4 {vr(hpv,4)}, v{vh}, {WS}, s44 offen sc1")
            g("s_mov_b64 exec, -1")
        g(f"s_mov_b32 {sCnt}, 0")
        g.label("L_Ah")
        g(f"s_cmp_lg_u32 {sCnt}, 6"); g("s_cbranch_scc1 L_Ah_n")
        hp_restore()
        g.label("L_Ah_n")
        g(f"buffer_load_dwordx3 {vr(hp+4,3)}, v{vh}, {WS}, s45 offen sc1")
        g(f"s_add_u32 {sCnt}, {sCnt}, 1"); g(f"s_cmp_gt_u32 {sCnt}, {SPIN}"); g("s_cbranch_scc1 L_Ah_x")
        g("s_waitcnt vmcnt(0)")
        g(f"v_cmp_ne_u32 vcc, {sT}, v{hp+6}")
        g("s_cbranch_vccnz L_Ah")
        g.label("L_Ah_x")
        g("s_waitcnt vmcnt(0)")
        g.stamp(3)
        hp_restore()
        for tl in range(8): g.lds(f"ds_read_b64_tr_b16 {vr(w2f+2*tl,2)}, v{vw2+tl}")
        g(f"v_lshlrev_b32 v{hp}, 16, v{hp+4}"); g(f"v_and_b32 v{hp+1}, 0xffff0000, v{hp+4}")
        g(f"v_lshlrev_b32 v{hp+2}, 16, v{hp+5}"); g(f"v_and_b32 v{hp+3}, 0xffff0000, v{hp+5}")
        for k in range(4): g(f"v_add_f32_dpp v{hp+k}, v{hp+k}, v{hp+k} quad_perm:[2,3,0,1] {DPPF}")
        for k in range(4): g(f"v_add_f32_dpp v{hp+k}, v{hp+k}, v{hp+k} row_ror:4 {DPPF}")
    g(f"v_cvt_pk_bf16_f32 v{hp+4}, v{hp}, v{hp+1}"); g(f"v_cvt_pk_bf16_f32 v{hp+5}, v{hp+2}, v{hp+3}")
    g(f"v_lshlrev_b32 v{hp}, 16, v{hp+4}"); g(f"v_and_b32 v{hp+1}, 0xffff0000, v{hp+4}")
    g(f"v_lshlrev_b32 v{hp+2}, 16, v{hp+5}"); g(f"v_and_b32 v{hp+3}, 0xffff0000, v{hp+5}")
    for k in range(4): g(f"v_mul_f32 v{hp+8+k}, {f2u(-1.4426950408889634):#x}, v{hp+k}")
    for k in range(4): g(f"v_exp_f32 v{hp+8+k}, v{hp+8+k}")
    g("s_nop 0")
    for k in range(4): g(f"v_add_f32 v{hp+8+k}, 1.0, v{hp+8+k}")
    for k in range(4): g(f"v_rcp_f32 v{hp+8+k}, v{hp+8+k}")
    g("s_nop 0")
    for k in range(4): g(f"v_mul_f32 v{hp+k}, v{hp+k}, v{hp+8+k}")
    g(f"v_cvt_pk_bf16_f32 v{hp+4}, v{hp}, v{hp+1}"); g(f"v_cvt_pk_bf16_f32 v{hp+5}, v{hp+2}, v{hp+3}")
    g("s_mov_b32 s56, 0x00030003"); g("s_mov_b32 s57, s56"); g("s_lshl_b64 s[58:59], s[56:57], 8")
    for k in range(2):
        g(f"v_cndmask_b32 v{hlo+k}, 0, v{hp+4+k}, s[56:57]"); g(f"v_cndmask_b32 v{hhi+k}, 0, v{hp+4+k}, s[58:59]")
    g.lwait0()
    TLO = (0, 1, 4, 5); THI = (2, 3, 6, 7)
    for k in range(4): g(f"v_mfma_f32_16x16x16_bf16 {vr(acc+4*k,4)}, {vr(hlo,2)}, {vr(w2f+2*TLO[k],2)}, 0")
    for k in range(4): g(f"v_mfma_f32_16x16x16_bf16 {vr(acc+4*k,4)}, {vr(hhi,2)}, {vr(w2f+2*THI[k],2)}, {vr(acc+4*k,4)}")
    out_pack(acc, pk, pk + 4, hpv, vop, "s25")
    g.label("L_Anf2")
    g.stamp(8)
    g(f"s_cmp_lg_u32 {sW}, 0"); g("s_cbranch_scc1 L_Aend0")
    op = qf
    g(f"s_mul_i32 s56, {sRid}, {OPS}"); g(f"s_add_u32 s56, s56, {OP}"); g("s_add_u32 s57, s56, 0x1000")
    g(f"buffer_load_ushort v{xr}, v{vro}, {X}, {sRo} offen")
    raw = op + 32
    g(f"v_mov_b32 v{raw+24}, 0"); g(f"v_mov_b32 v{raw+25}, 0"); g(f"v_mov_b32 v{raw+26}, {sT}")
    if hintr:
        if rall:
            g(f"s_lshl_b32 s38, s5, 8"); g(f"s_add_u32 s38, s38, {HW}")
            hint_wait(g, "L_Rh", 2, vl4, "s38", 0, sCnt)
        else: hint_wait(g, "L_Rh", 2, vzA, "s38", 0, sCnt)
    g(f"s_mov_b32 {sCnt}, 0")
    g.label("L_R")
    for j in range(7):
        if j == 6: g("s_mov_b32 exec_hi, 0xffff")
        g(f"buffer_load_dwordx3 {vr(raw+4*j,3)}, v{vj}, {WS}, {'s56' if j < 4 else 's57'} offen offset:{(j&3)*1024} sc1")
    g("s_mov_b32 exec_hi, -1")
    g(f"s_add_u32 {sCnt}, {sCnt}, 1"); g(f"s_cmp_gt_u32 {sCnt}, {SPIN}"); g("s_cbranch_scc1 L_R_x")
    for j in range(7):
        g(f"s_waitcnt vmcnt({6-j})")
        g(f"v_sad_u32 v{chk}, v{raw+2+4*j}, {sT}, {('v%d' % chk) if j else 0}")
        d = op + 4 * (j & 1) if j < 2 else op + 8
        for k in range(2):
            g(f"v_lshlrev_b32 v{d+2*k}, 16, v{raw+4*j+k}"); g(f"v_and_b32 v{d+2*k+1}, 0xffff0000, v{raw+4*j+k}")
        if j >= 2:
            for k in range(2): g(f"v_pk_add_f32 {vr(op+4*(j&1)+2*k,2)}, {vr(op+4*(j&1)+2*k,2)}, {vr(op+8+2*k,2)}")
    g(f"v_cmp_ne_u32 vcc, 0, v{chk}")
    g("s_cbranch_vccnz L_R")
    g.label("L_R_x")
    g.count(sCnt)
    g("s_waitcnt vmcnt(0)")
    g.stamp(9)
    for k in range(2): g(f"v_pk_add_f32 {vr(op+2*k,2)}, {vr(op+2*k,2)}, {vr(op+4+2*k,2)}")
    g(f"v_lshlrev_b32 v{xr}, 16, v{xr}")
    g("s_nop 1")
    g(f"v_permlane16_swap_b32 v{op}, v{op+1}"); g(f"v_permlane16_swap_b32 v{op+2}, v{op+3}")
    g("s_nop 0")
    g(f"v_add_f32 v{op}, v{op}, v{op+1}"); g(f"v_add_f32 v{op+2}, v{op+2}, v{op+3}")
    g("s_nop 1")
    g(f"v_permlane32_swap_b32 v{op}, v{op+2}")
    g("s_nop 0")
    g(f"v_add_f32 v{op}, v{op}, v{op+2}")
    for k in (2, 4, 8):
        g("s_nop 1"); g(f"v_add_f32_dpp v{op}, v{op}, v{op} row_ror:{k} {DPPF}")
    g(f"v_add_f32 v{op}, v{op}, v{xr}")
    g("s_mov_b32 exec_lo, 0x00030003"); g("s_mov_b32 exec_hi, 0x00030003")
    g(f"v_cvt_pk_bf16_f32 v{op}, v{op}, v{op}")
    g(f"buffer_store_short v{op}, v{vro}, {OUT}, {sRo} offen {('', 'sc1', 'sc0 sc1', 'nt')[osc]}")
    g(f"s_cmp_lg_u32 {sRid}, 0"); g("s_cbranch_scc1 L_Aend")
    g("s_mov_b64 exec, 1"); g(f"v_mov_b32 v2, {sT}"); g("v_mov_b32 v3, 0")
    g(f"buffer_store_dword v2, v3, {WS}, 0 offen sc1")
    g("s_branch L_Aend")
    g.label("L_Aend0")
    g.label("L_Aend")
    g.stamp(10)
    dump_stamps(g, "A")
    g("s_endpgm")
    g.label("L_Aovf")
    g(f"v_mov_b32 v{t2}, 1")
    g(f"ds_write_b32 v{vmx}, v{t2} offset:64")
    g("s_branch L_Aovf_x")
    g.label("L_Aslow")
    g(f"v_max3_f32 v{mxv}, v{SY}, v{SY+1}, v{SY+2}"); g(f"v_max_f32 v{mxv}, v{mxv}, v{SY+3}")
    g(f"ds_max_f32 v{vmx}, v{mxv}")
    g("s_waitcnt lgkmcnt(0)"); g("s_barrier")
    g(f"ds_read_b32 v{mxv}, v{vmx}"); g(f"v_mov_b32 v{t2}, 0"); g(f"ds_write_b32 v{vmx}, v{t2} offset:64")
    g("s_waitcnt lgkmcnt(0)")
    g(f"v_mul_f32 v{STG}, s56, v{mxv}")
    for k in range(8): g(f"v_fma_f32 v{EX+k}, v{SX+k}, s56, -v{STG}")
    pexp(0); pexp(1); g("s_nop 0")
    pwrite(0); pwrite(1)
    g("s_waitcnt lgkmcnt(0)"); g("s_barrier")
    g("s_branch L_Apv")
    flag_fallback(g, "L_Af1", vfl, l16, "s34", sCnt)
    g.label("L_end")
    body = "\n".join(g.L)
    tab = ""

    hdr = open("parallel_sum__compressed_kv_cla__dense_activation_silu__decode.s.ref").read().split("; Override launch")[0]
    return f"""{hdr}; @launch grid=(256,1,1) block=(256,1,1) lds={LDS_BYTES}
.amdgcn_target "amdgcn-amd-amdhsa--gfx950"
.set HINT_LIMIT, 40
.text
.globl {KNAME}
.p2align 8
.type {KNAME},@function
{KNAME}:
{body}
    s_endpgm
{tab}.section .rodata,"a"
.p2align 6
.amdhsa_kernel {KNAME}
  .amdhsa_next_free_vgpr 512
  .amdhsa_next_free_sgpr 102
  .amdhsa_accum_offset 256
  .amdhsa_group_segment_fixed_size 0
  .amdhsa_kernarg_size 96
  .amdhsa_user_sgpr_count 2
  .amdhsa_user_sgpr_kernarg_segment_ptr 1
  .amdhsa_system_sgpr_workgroup_id_x 1
.end_amdhsa_kernel
"""

if __name__ == "__main__":
    dbg = 3 if "--debug3" in sys.argv else 2 if "--debug2" in sys.argv else (1 if "--debug" in sys.argv else 0)
    out = [a for a in sys.argv[1:] if not a.startswith("--")][0]
    kw = {}
    for a in sys.argv[1:]:
        if a.startswith("--thr="): kw["thr"] = tuple(int(x) for x in a[6:].split(","))
        if a.startswith("--swap="): kw["swap"] = int(a[7:])
        for nm in ("touch", "pfk", "pfo", "pf2", "pfc", "noflag", "wdelay", "loc", "stw", "slp", "pad", "rslp", "p2t", "est", "pfoe", "hint", "qal", "hintr", "hsl", "dq", "wke", "qack", "qsl", "hq", "nts", "gate", "pff", "poack", "pfv", "wv1", "fgate", "rall", "pg", "wow", "gw", "xnl", "pffe", "cmb", "hre", "adl", "noclr", "fwait", "hqe", "nat", "opr", "qae", "fk", "wk2", "hpos", "pre0", "osc", "tlb", "pl", "flae", "dl", "hl", "spk", "ty", "fle", "pga", "pgh", "pf2a", "qcl", "clf", "gpk", "gk"):
            if a.startswith(f"--{nm}="): kw[nm] = int(a.split("=")[1])
    open(out, "w").write(build(dbg, **kw))
```

```python
import sys, struct

KNAME = "parallel_sum__compressed_kv_cla__dense_activation_silu__decode_kernel"

QP, CP, QA, ST, OP, PO, TS = 0x10000, 0x30000, 0x50000, 0x380000, 0x400000, 0x100000, 0x340000
FL1, HQ, HP, HA, HW = 0x68000, 0x6C000, 0x70000, 0x60000, 0x64000
XNG, FLA, HB, FLB = 0x6E000, 0x69000, 0x6D000, 0x80000
OPS = 7168
WS_REC = 0x500000
OOB = 0x40000000
L_WQ, L_WUK, L_WUV, L_WO, L_W1, L_W2, L_XN, L_LAT = 0, 0x8000, 0, 0x10000, 0x18000, 0x1C000, 0x20000, 0x20900
XNP = 1056
L_QA, L_P, L_MX = 0x20000, 0x24000, 0x25200
LDS_BYTES = 0x25400
SPIN = 20000

def f2u(x): return struct.unpack("<I", struct.pack("<f", x))[0]
KSCALE = f2u(128 ** -0.5 * 1.4426950408889634)

class G:
    def __init__(self, debug=False):
        self.L = []; self.debug = debug; self.nv = 0; self.names = {}; self.nstamp = 0; self.lq = []; self.maxv = 0
    def __call__(self, s):
        for ln in s.strip().split("\n"):
            self.L.append("    " + ln.strip())
    def label(self, s): self.L.append(s + ":")
    def c(self, s): self.L.append("    ; " + s)
    def reset_v(self, start): self.nv = start
    def v(self, n=1, al=None):
        if al is None: al = 1 if n == 1 else 2
        self.nv = (self.nv + al - 1) // al * al
        r = self.nv; self.nv += n; self.maxv = max(self.maxv, self.nv)
        assert self.nv <= 254, "out of VGPRs"
        return r
    def stamp(self, i):
        if self.debug == 3 and i not in (0, 10): return
        if self.debug == 2:
            if i == 11: return
            if i == 14: i = 11
        if self.debug == 1 and i == 13: return
        if self.debug:
            assert i < 15
            self(f"s_memrealtime s[{72+2*i}:{73+2*i}]")
    def count(self, cnt):
        if self.debug == 1:
            self(f"s_min_u32 s99, {cnt}, 63"); self("s_lshl_b32 s98, s98, 6"); self("s_or_b32 s98, s98, s99")
    def lds(self, s, tag=None):
        if len(self.lq) >= 15:
            self.lwait(self.lq[len(self.lq) - 15])
        self(s); self.lq.append(tag if tag is not None else object())
    def lwait(self, tag):
        if tag not in self.lq: return
        k = max(i for i, t in enumerate(self.lq) if t == tag)
        n = len(self.lq) - 1 - k
        self(f"s_waitcnt lgkmcnt({n})")
        self.lq = self.lq[k + 1:]
    def lwait0(self):
        self("s_waitcnt lgkmcnt(0)"); self.lq = []

def vr(a, n): return f"v[{a}:{a+n-1}]" if n > 1 else f"v{a}"
def ar(a, n): return f"a[{a}:{a+n-1}]"

sW, sS, sX, sH, sQT = "s3", "s4", "s5", "s6", "s7"
WS, X, WQ, WUK, WUV, WO, W1, W2, DBG, CKV, OUT = ("s[8:11]", "s[12:15]", "s[16:19]", "s[20:23]", "s[24:27]", "s[28:31]",
                                                  "s[32:35]", "s[36:39]", "s[44:47]", "s[48:51]", "s[52:55]")
sT, sE = "s42", "s43"
sHG, sSP = "s6", "s7"
DPPF = "row_mask:0xf bank_mask:0xf"

def reduce32(g, op, s, t):
    for k in (8, 4, 2, 1):
        g(f"v_{op}_f32_dpp v{s}, v{s}, v{s} row_ror:{k} {DPPF}")
        g("s_nop 1")
    g(f"v_mov_b32 v{t}, v{s}")
    g("s_nop 1")
    g(f"v_permlane16_swap_b32 v{t}, v{s}")
    g("s_nop 0")
    g(f"v_{op}_f32 v{s}, v{s}, v{t}")

def reduce64(g, op, s, t):
    reduce32(g, op, s, t)
    g(f"v_mov_b32 v{t}, v{s}")
    g("s_nop 1")
    g(f"v_permlane32_swap_b32 v{t}, v{s}")
    g("s_nop 0")
    g(f"v_{op}_f32 v{s}, v{s}, v{t}")

def flag_fallback(g, name, vfl, vfo, soff, cnt, pair=False):
    g.label(name)
    g(f"s_mov_b32 {cnt}, 0")
    g.label(name + "_l")
    g("s_sleep 2")
    if pair: g(f"buffer_load_dwordx2 {vr(vfl,2)}, v{vfo}, {WS}, {soff} offen sc1")
    else: g(f"buffer_load_dword v{vfl}, v{vfo}, {WS}, {soff} offen sc1")
    g(f"s_add_u32 {cnt}, {cnt}, 1"); g(f"s_cmp_gt_u32 {cnt}, {SPIN}"); g(f"s_cbranch_scc1 {name}_x")
    g("s_waitcnt vmcnt(0)")
    if pair: g(f"v_cmp_ne_u64 vcc, s[40:41], {vr(vfl,2)}")
    else: g(f"v_cmp_ne_u32 vcc, {sT}, v{vfl}")
    g(f"s_cbranch_vccnz {name}_l")
    g(f"s_branch {name}_x")

HSLEEP = 0
def hint_wait(g, name, vt, vz, soff, off, cnt):
    g(f"s_mov_b32 {cnt}, 0")
    g.label(name)
    if HSLEEP: g(f"s_sleep {HSLEEP}")
    g(f"buffer_load_dword v{vt}, v{vz}, {WS}, {soff} offen offset:{off} sc1")
    g(f"s_add_u32 {cnt}, {cnt}, 1"); g(f"s_cmp_gt_u32 {cnt}, HINT_LIMIT"); g(f"s_cbranch_scc1 {name}_x")
    g("s_waitcnt vmcnt(0)")
    g(f"v_cmp_ne_u32 vcc, {sT}, v{vt}")
    g(f"s_cbranch_vccnz {name}")
    g.label(name + "_x")

def dump_stamps(g, role=None):
    if not g.debug: return
    g.lwait0()
    if g.debug == 3:
        lo = 0 if role == "W" else 128
        g(f"s_sub_u32 s56, s2, {lo}"); g("s_cmp_ge_u32 s56, 8"); g(f"s_cbranch_scc1 L_nod{role}"); g(f"s_cmp_lg_u32 {sW}, 0"); g(f"s_cbranch_scc1 L_nod{role}")
        g("s_lshl_b32 s60, s56, 2")
        g("s_mov_b64 exec, -1"); g(f"v_mov_b32 v2, s{72 if role == 'W' else 92}"); g("v_mov_b32 v3, 0")
        g("s_mov_b32 s58, 256"); g("s_mov_b32 s59, 0x20000"); g("s_mov_b64 s[56:57], s[100:101]"); g("s_mov_b64 exec, 1")
        g(f"buffer_store_dword v2, v3, s[56:59], s60 offen offset:{0 if role == 'W' else 32}")
        g.label(f"L_nod{role}")
        return
    if g.debug == 2:
        wg, sel, base = (0, (3, 1, 12, 6, 11, 8, 10, 2), 0) if role == "W" else (128 + 3, (1, 2, 5, 6, 7, 8, 9, 10), 32)
        g(f"s_lshl2_add_u32 s56, s2, {sW}"); g(f"s_cmp_lg_u32 s56, {wg*4}"); g(f"s_cbranch_scc1 L_nod{role}")
        g("s_mov_b64 exec, -1"); g("v_mov_b32 v2, 0")
        for i, k in enumerate(sel):
            g(f"s_sub_u32 s57, s{72+2*k}, s72"); g(f"v_writelane_b32 v2, s57, {i}")
        g("s_mov_b32 s102, 0" if False else "s_nop 0")
        g("s_mov_b32 s58, 256"); g("s_mov_b32 s59, 0x20000"); g("s_mov_b64 s[56:57], s[100:101]")
        g("v_lshlrev_b32 v3, 2, v1"); g("s_mov_b64 exec, 0xff")
        g(f"buffer_store_dword v2, v3, s[56:59], 0 offen offset:{base}")
        g.label(f"L_nod{role}")
        return
    g(f"s_lshl_b32 s56, s2, 2"); g(f"s_add_u32 s56, s56, {sW}"); g("s_lshl_b32 s56, s56, 6"); g(f"s_add_u32 s56, s56, {TS}")
    g("s_mov_b64 exec, -1")
    g("v_mov_b32 v2, 0")
    for i in range(15): g(f"v_writelane_b32 v2, s{72+2*i}, {i}")
    g("s_getreg_b32 s57, hwreg(HW_REG_XCC_ID)")
    g("v_writelane_b32 v2, s57, 15")
    g("v_lshlrev_b32 v3, 2, v1")
    g("s_mov_b64 exec, 0xffff")
    g(f"buffer_store_dword v2, v3, {WS}, s56 offen")

DOC = '''; ---------------------------------------------------------------------------------------------
; ---------------------------------------------------------------------------------------------
'''

def build(debug=False, thr=(16, 0), swap=1, touch=0, pfk=1, pfo=1, pf2=1, pfc=0, noflag=0, wdelay=0, loc=1, stw=16, slp=1, pad=0, rslp=0, p2t=0, est=1, pfoe=1, hint=1, qal=0, hintr=1, hsl=0, dq=0, wke=1, qack=1, qsl=0, hq=1, nts=0, gate=1, pff=0, poack=0, pfv=0, wv1=6, fgate=0, rall=1, pg=1, wow=3, gw=-1, xnl=1, pffe=0, cmb=0, hre=0, adl=0, noclr=0, fwait=0, hqe=1, nat=1, opr=1, qae=1, fk=0, wk2=0, hpos=1, pre0=0, osc=0, tlb=0, pl=1, flae=1, dl=0, hl=0, spk=32, ty=0, fle=2, pga=1, pgh=0, pf2a=0, qcl=0, clf=0, gpk=0, gk=8, ins=0, rfa=1, h1a=0):
    g = G(debug)
    NS = 'nt ' if nts else ''
    g.stamp(0)
    g("""
    s_load_dwordx2 s[16:17], s[0:1], 16
    s_load_dwordx2 s[48:49], s[0:1], 8
    s_load_dwordx2 s[20:21], s[0:1], 24
    s_load_dwordx2 s[12:13], s[0:1], 0
    s_load_dwordx2 s[8:9], s[0:1], 88
    s_cmp_ge_u32 s2, 256
    s_cbranch_scc1 L_end
    v_lshrrev_b32 v2, 6, v0
    v_and_b32 v1, 63, v0
    s_lshr_b32 s4, s2, 3
    v_readfirstlane_b32 s3, v2
    s_and_b32 s5, s2, 7
    v_lshlrev_b32 v4, 4, v1
    s_cmp_ge_u32 s4, 16
    s_cbranch_scc1 L_A
    """)
    l16 = 4
    def srd(k, sz):
        g(f"s_mov_b32 s{k+2}, {sz}"); g(f"s_mov_b32 s{k+3}, 0x20000")
    def dbg_init():
        if debug:
            for i in range(1, 14): g(f"s_mov_b64 s[{72+2*i}:{73+2*i}], 0")
            if debug >= 2: g("s_load_dwordx2 s[100:101], s[0:1], 80")
            else: g("s_mov_b64 s[100:101], 0")
    g.reset_v(5)
    n, gg = g.v(), g.v()
    vqA, vqB = g.v(), g.v(); vq4 = g.v(4)
    xa = g.v(8, 4)
    sQAo, sOPo, sQoff = "s38", "s39", "s35"
    g(f"v_and_b32 v{n}, 15, v1"); g(f"v_lshrrev_b32 v{gg}, 4, v1")
    g(f"v_lshlrev_b32 v2, 1, v{gg}"); g(f"v_xor_b32 v2, v2, v{n}"); g(f"v_lshlrev_b32 v2, 4, v2"); g(f"v_lshl_add_u32 v{vqA}, v{gg}, 13, v2"); g(f"v_xor_b32 v{vqB}, 0x80, v{vqA}")
    g(f"v_add_u32 v{vq4+1}, {31744}, v{vqA}"); g(f"v_add_u32 v{vq4+2}, {2*31744}, v{vqB}"); g(f"v_add_u32 v{vq4+3}, {3*31744}, v{vqB}")
    srd(16, 4 << 20); srd(12, 2048); srd(8, WS_REC)
    PRE0 = f"""v_lshlrev_b32 v2, 7, v1
    s_lshl2_add_u32 s63, s6, s7
    s_lshl_b32 s63, s63, 10
    s_lshl_b32 s58, s3, 17
    s_add_u32 s63, s63, s58
    s_add_u32 s63, s63, {QP}""" if pre0 else "s_nop 0"
    sent = xa + 4
    for k in range(4): g(f"v_mov_b32 v{sent+k}, -1")
    g(f"v_lshrrev_b32 v3, 3, v1"); g(f"v_lshlrev_b32 v3, 10, v3"); g(f"v_and_b32 v2, 4, v1"); g(f"v_lshl_add_u32 v3, v2, 13, v3"); g(f"v_and_b32 v2, 3, v1"); g(f"v_lshl_add_u32 v3, v2, 4, v3")
    g(f"""
    s_lshr_b32 s6, s4, 2
    s_lshl2_add_u32 s6, s5, s6
    s_and_b32 s7, s4, 3
    s_lshl2_add_u32 s61, s7, s3
    s_lshl_b32 s61, s61, 18
    s_lshl_b32 s59, s6, 8
    s_add_u32 {sQoff}, s61, s59
    s_lshl_b32 s60, s3, 13
    s_mov_b32 m0, s60
    s_lshl_b32 s57, s3, 10
    s_lshr_b32 s62, s6, 4
    s_lshl2_add_u32 s62, s62, s7
    s_lshl_b32 s62, s62, 6
    s_and_b32 s63, s6, 15
    s_add_u32 s62, s62, s63
    s_lshl_b32 s62, s62, 6
    s_add_u32 s62, s62, {QA}
    {PRE0}
    s_cmp_eq_u32 s3, 2
    s_cselect_b32 exec_lo, -1, 0
    s_mov_b32 exec_hi, 0
    s_waitcnt lgkmcnt(0)
    """)
    if not qcl: g(f"buffer_store_dwordx4 {vr(sent,4)}, v3, {WS}, s62 offen sc1")
    g("s_cmp_lt_u32 s3, 2"); g("s_cselect_b64 exec, -1, 0")
    def quad(srdname, soff):
        g(f"buffer_load_dwordx4 v{vqA}, {srdname}, {soff} offen nt lds")
        for k in range(1, 4): g(f"buffer_load_dwordx4 v{vq4+k}, {srdname}, {soff} offen offset:{k*1024} nt lds")
    g(f"buffer_load_dwordx4 {vr(xa,4)}, v{l16}, {X}, s57 offen")
    if pre0:
        g("s_and_b32 exec_lo, exec_lo, 0xff"); g("s_mov_b32 exec_hi, 0")
        g(f"buffer_load_dword v254, v2, {WS}, s63 offen")
    g("s_mov_b64 exec, -1")
    quad(WQ, sQoff)
    g("s_add_u32 m0, m0, 0x1000"); g(f"s_add_u32 s61, {sQoff}, 0x20000")
    quad(WQ, "s61")
    if qcl:
        g("s_cmp_eq_u32 s3, 2"); g("s_cselect_b32 exec_lo, -1, 0"); g("s_mov_b32 exec_hi, 0")
        g(f"buffer_store_dwordx4 {vr(sent,4)}, v3, {WS}, s62 offen sc1")
        g("s_mov_b64 exec, -1")
    g("s_branch L_W2")
    wv = g.nv
    g.label("L_A")
    if tlb:
        g("""
        s_and_b32 s56, s4, 15
        s_lshr_b32 s62, s56, 2
        s_lshl3_add_u32 s62, s62, 32
        s_and_b32 s63, s56, 3
        s_lshl_b32 s63, s63, 20
        s_lshr_b32 s58, s56, 1
        s_lshl3_add_u32 s58, s58, 24
        s_and_b32 s59, s56, 1
        s_mul_i32 s59, s59, 0x150000
        s_cmp_ge_u32 s56, 8
        s_cselect_b32 s62, s58, s62
        s_cselect_b32 s63, s59, s63
        s_and_b32 s59, s56, 3
        s_lshl_b32 s59, s59, 21
        s_cmp_eq_u32 s56, 12
        s_cselect_b32 s58, 0, 16
        s_add_u32 s58, s58, 72
        s_cmp_ge_u32 s56, 12
        s_cselect_b32 s62, s58, s62
        s_cselect_b32 s63, s59, s63
        s_load_dwordx2 s[64:65], s[0:1], s62
        """)
    vt4 = 8
    sPOs, sRow, sCnt, sRid = "s18", "s19", "s22", "s23"
    g(f"""
    s_and_b32 s6, s4, 1
    s_bfe_u32 s56, s4, 0x30001
    s_lshl3_add_u32 s7, s5, s56
    s_lshl_b32 s57, s7, 17
    """)
    if swap: g(f"s_lshl2_add_u32 {sRow}, s6, s3"); g(f"s_lshl_b32 {sRow}, {sRow}, 14")
    else: g(f"s_lshl_b32 {sRow}, s3, 14")
    srd(48, 8 << 20)
    g(f"s_mov_b32 m0, {sRow}"); g(f"s_add_u32 s33, {sRow}, s57")
    vpo = 7
    srd(8, WS_REC)
    g(f"""
    s_lshl_b32 {sPOs}, s6, 5
    s_add_u32 {sPOs}, {sPOs}, s3
    s_lshl_b32 {sPOs}, {sPOs}, 15
    s_lshl_b32 s56, s7, 9
    s_add_u32 {sPOs}, {sPOs}, s56
    s_add_u32 {sPOs}, {sPOs}, {PO}
    """)
    g(f"v_bfe_u32 v{vpo}, v1, 1, 3"); g(f"v_lshlrev_b32 v{vpo}, 17, v{vpo}"); g(f"v_and_b32 v2, 1, v1"); g(f"v_lshl_add_u32 v{vpo}, v2, 6, v{vpo}"); g(f"v_and_b32 v2, 48, v1"); g(f"v_add_u32 v{vpo}, v2, v{vpo}")
    for k in range(4): g(f"v_mov_b32 v{vt4+k}, -1")
    def a_clear():
        for b in range(4): g(f"buffer_store_dwordx4 {vr(vt4,4)}, v{vpo}, {WS}, {sPOs} offen offset:{b*128} sc1")
        g("s_nop 1")
    if pfk:
        g("""
        s_and_b32 s60, s4, 3
        s_lshl2_add_u32 s60, s60, s3
        s_lshl_b32 s60, s60, 18
        s_bfe_u32 s61, s4, 0x20002
        s_lshl2_add_u32 s61, s5, s61
        s_lshl_b32 s61, s61, 8
        s_add_u32 s60, s60, s61
        v_lshrrev_b32 v2, 1, v1
        v_and_b32 v3, 1, v1
        v_lshlrev_b32 v2, 13, v2
        v_lshl_add_u32 v2, v3, 7, v2
        v_add_u32 v6, s60, v2
        """)
    def pfk_load():
        if pfk:
            if pfk == 2: g("s_cmp_lt_u32 s3, 2"); g("s_cselect_b64 exec, -1, 0")
            if pfk == 3: g("s_mov_b32 exec_lo, 0")
            g("global_load_dword v255, v6, s[20:21]")
            if pfk >= 2: g("s_mov_b64 exec, -1")
    if tlb: g("v_mov_b32 v3, s63"); g("s_cmp_eq_u32 s3, 3"); g("s_cselect_b64 exec, 1, 0")
    g("s_waitcnt lgkmcnt(0)")
    if tlb: g("global_load_dword v254, v3, s[64:65]"); g("s_mov_b64 exec, -1")
    if clf: a_clear()
    if not adl: pfk_load()
    if not noclr and not clf: a_clear()
    if fwait: g(f's_waitcnt vmcnt({0 if noclr else 4})')
    def abody(a, half):
        if a == 0:
            for k in range(1, 4): g(f"v_xor_b32 v{vt4+k}, {k*16}, v{l16}")
            regs = [l16, vt4 + 1, vt4 + 2, vt4 + 3]
        else:
            for k in range(4): g(f"v_xor_b32 v{vt4+k}, {(4*a+k)*16}, v{l16}")
            regs = [vt4 + k for k in range(4)]
        for k in range(4):
            j = 4 * a + k
            if half == 0 and thr[0] <= j < thr[1] + thr[0]: g(f"s_waitcnt vmcnt({thr[0]-1})")
            g(f"buffer_load_dwordx4 v{regs[k]}, {CKV}, s33 offen offset:{k*1024} {NS}lds")
        if a < 3: g("s_add_u32 m0, m0, 0x1000"); g("s_add_u32 s33, s33, 0x1000")
    if not adl: abody(0, 0); abody(1, 0)
    g(f"""
    s_getpc_b64 s[40:41]
L_pc:
    v_lshlrev_b32 v2, 3, v4
    s_lshl2_add_u32 s56, s4, s3
    v_add_u32 v3, 0x2000, v2
    v_min_u32 v3, L_end-L_pc, v3
    s_cmp_eq_u32 s56, 64
    s_cselect_b64 exec, -1, 0
    global_load_dword v255, v2, s[40:41]
    global_load_dword v255, v3, s[40:41]
    s_mov_b64 exec, -1
    s_branch L_A2
    """)

    g.label("L_W2")
    g.reset_v(wv)
    g("""
    s_load_dword s43, s[8:9], 0
    s_load_dwordx2 s[24:25], s[0:1], 32
    s_load_dwordx2 s[28:29], s[0:1], 40
    """)
    dbg_init()
    srd(20, 4 << 20)
    g(f"s_add_u32 {sQAo}, s62, s57")
    if not pre0:
        if loc:
            g(f"v_and_b32 v2, 0x70, v{l16}"); g(f"v_lshlrev_b32 v2, 3, v2"); g("s_lshl2_add_u32 s63, s6, s7"); g("s_lshl_b32 s63, s63, 10"); g("s_lshl_b32 s62, s3, 17"); g("s_add_u32 s63, s63, s62"); g(f"s_add_u32 s63, s63, {QP}")
            g("s_cmp_lt_u32 s3, 2"); g("s_cselect_b64 exec, 0xff, 0")
            g(f"buffer_load_dword v254, v2, {WS}, s63 offen")
            g("s_mov_b64 exec, -1")
    vqa, vop = g.v(), g.v()
    vk = g.v(8); vkr = g.v(4)
    g(f"v_xor_b32 v2, v{n}, v{gg}"); g(f"v_lshlrev_b32 v2, 4, v2"); g(f"v_lshl_add_u32 v{vk}, v{gg}, 13, v2")
    for k in range(1, 8):
        g(f"v_xor_b32 v{vk+k}, {(k>>1)*64}, v{vk}")
        if k & 3: g(f"v_add_u32 v{vk+k}, {(k&3)*31744}, v{vk+k}")
    def wuk_quad(a):
        g(f"s_add_u32 m0, s60, {L_WUK + a*0x1000}"); g(f"s_add_u32 s61, {sQoff}, {a*0x20000}")
        for k in range(4): g(f"buffer_load_dwordx4 v{vk+4*a+k}, {WUK}, s61 offen offset:{k*1024} {NS}lds")
    if wke == 1: wuk_quad(0)
    r, c4 = g.v(), g.v()
    g(f"v_bfe_u32 v{r}, v1, 2, 2"); g(f"v_and_b32 v{c4}, 3, v1")
    vxf, vtr, vqps, vqpl, vf = g.v(), g.v(), g.v(), g.v(), g.v()
    g(f"v_lshl_add_u32 v3, v{r}, 3, v{c4}"); g(f"v_lshl_add_u32 v2, v3, 8, v2"); g(f"s_add_u32 s64, s60, {L_WUK}"); g(f"v_add_u32 v{vkr}, s64, v2")
    for k in range(1, 4): g(f"v_xor_b32 v{vkr+k}, {k*64}, v{vkr}")
    g(f"v_lshlrev_b32 v{vqa}, 13, v1"); g(f"v_and_b32 v{vqa}, 0x8000, v{vqa}"); g(f"v_lshl_or_b32 v{vqa}, v{gg}, 4, v{vqa}")
    g(f"v_and_b32 v2, 1, v1"); g(f"v_mul_u32_u24 v{vxf}, {XNP}, v2"); g(f"v_lshl_add_u32 v{vxf}, v{gg}, 4, v{vxf}")
    g(f"s_lshl_b32 s63, s7, 8"); g(f"s_add_u32 s63, s63, {L_XN}"); g(f"v_add_u32 v{vxf}, s63, v{vxf}")
    g(f"v_lshlrev_b32 v{vqps}, 9, v2"); g(f"v_lshl_add_u32 v{vqps}, v{gg}, {4 if nat else 5}, v{vqps}"); g(f"v_and_b32 v2, 2, v1"); g(f"v_lshl_add_u32 v{vqps}, v2, {5 if nat else 3}, v{vqps}")
    g(f"v_and_b32 v2, 1, v{gg}"); g(f"v_lshl_or_b32 v2, v2, 2, v{r}"); g(f"v_lshlrev_b32 v{vf}, 5, v2")
    g(f"s_lshl_b32 s63, s3, 6"); g(f"v_lshl_or_b32 v2, v{c4}, {3 if nat else 4}, s63"); g(f"v_xor_b32 v2, v2, v{vf}")
    g(f"v_lshl_add_u32 v{vtr}, v{gg}, 3, v{r}"); g(f"v_lshl_add_u32 v{vtr}, v{vtr}, 8, v2")
    vtr1 = g.v()
    g(f"v_xor_b32 v{vtr1}, 32, v{vtr}")
    def trad(T): return (f"v{vtr1 if T else vtr}", 0) if nat else (f"v{vtr}", 8 * T)
    g(f"v_bfe_u32 v2, v1, 2, 1"); g(f"v_lshl_add_u32 v{vqpl}, v{c4}, 1, v2"); g(f"v_lshlrev_b32 v{vqpl}, 9, v{vqpl}"); g(f"v_lshl_add_u32 v{vqpl}, v{gg}, 5, v{vqpl}")
    g(f"v_and_b32 v2, 8, v1"); g(f"v_lshl_add_u32 v{vqpl}, v2, 1, v{vqpl}")
    g(f"""
    s_lshl_b32 s68, s6, 12
    s_add_u32 s68, s68, {QP}
    s_lshl_b32 s63, s7, 10
    s_add_u32 s67, s68, s63
    s_lshl_b32 s63, s3, 7
    s_add_u32 s67, s67, s63
    s_mov_b32 s70, 0xcccccccc
    s_mov_b32 s71, s70
    s_lshl4_add_u32 s66, s5, s4
    s_lshl2_add_u32 s66, s66, s3
    s_lshl_b32 s66, s66, 2
    s_add_u32 s66, s66, {HQ}
    s_lshl2_add_u32 s69, s6, s7
    s_lshl_b32 s44, s69, 4
    s_add_u32 s44, s44, {FL1}
    """)
    Ga = g.v(4, 4); vT = Ga
    f = g.v(16, 2); m = g.v(2); t = g.v(); s2 = g.v(8, 2)
    g("s_cmp_lt_u32 s3, 2"); g("s_cbranch_scc1 L_W_ln")
    g("s_waitcnt lgkmcnt(0)")
    g(f"s_mul_i32 {sT}, {sE}, 0x9E3779B1"); g(f"s_add_u32 {sT}, {sT}, 0x7F4A7C15")
    g(f"v_mov_b32 v{vT}, {sT}")
    if wke == 2: wuk_quad(0); wuk_quad(1)
    if qcl:
        g(f"s_waitcnt vmcnt({4 * wke + 1})")
        g("s_cmp_eq_u32 s3, 2"); g("s_cbranch_scc1 L_W_b0")
        g(f"s_waitcnt vmcnt({4 * wke})")
    else:
        g("v_mov_b32 v3, 0"); g("s_cmp_eq_u32 s3, 2"); g("s_cselect_b64 exec, 1, 0")
        g(f"s_waitcnt vmcnt({4 * wke})")
        g(f"buffer_store_dword v{vT}, v3, {WS}, s44 offen sc1")
        g("s_mov_b64 exec, -1")
    g("s_branch L_W_b0")
    g.label("L_W_ln")
    g(f"s_mul_i32 s63, s3, {XNP}"); g(f"s_add_u32 s63, s63, {L_XN}"); g(f"v_add_u32 v3, s63, v{l16}")
    g(f"s_waitcnt vmcnt({(9 if loc else 8) + (4 if wke == 1 else 0)})")
    d = f + 8
    for k in range(4):
        g(f"v_lshlrev_b32 v{f+2*k}, 16, v{xa+k}"); g(f"v_and_b32 v{f+2*k+1}, 0xffff0000, v{xa+k}")
    g(f"v_pk_add_f32 {vr(s2,2)}, {vr(f,2)}, {vr(f+2,2)}"); g(f"v_pk_add_f32 {vr(s2+2,2)}, {vr(f+4,2)}, {vr(f+6,2)}")
    g(f"v_pk_add_f32 {vr(s2,2)}, {vr(s2,2)}, {vr(s2+2,2)}")
    g(f"v_add_f32 v{m}, v{s2}, v{s2+1}"); g("s_nop 1")
    reduce64(g, "add", m, t)
    g(f"v_mul_f32 v{m}, {f2u(1/512):#x}, v{m}")
    for k in range(4): g(f"v_pk_add_f32 {vr(d+2*k,2)}, {vr(f+2*k,2)}, {vr(m,2)} op_sel_hi:[1,0] neg_lo:[0,1] neg_hi:[0,1]")
    g(f"v_pk_mul_f32 {vr(s2,2)}, {vr(d,2)}, {vr(d,2)}"); g(f"v_pk_mul_f32 {vr(s2+2,2)}, {vr(d+2,2)}, {vr(d+2,2)}")
    g(f"v_pk_fma_f32 {vr(s2,2)}, {vr(d+4,2)}, {vr(d+4,2)}, {vr(s2,2)}"); g(f"v_pk_fma_f32 {vr(s2+2,2)}, {vr(d+6,2)}, {vr(d+6,2)}, {vr(s2+2,2)}")
    g(f"v_pk_add_f32 {vr(s2,2)}, {vr(s2,2)}, {vr(s2+2,2)}")
    va = s2 + 4
    g(f"v_add_f32 v{va}, v{s2}, v{s2+1}")
    g(f"v_cvt_pk_bf16_f32 v{m}, v{m}, v{m}"); g(f"v_and_b32 v{m}, 0xffff0000, v{m}")
    reduce64(g, "add", va, t)
    g(f"v_mul_f32 v{va}, {f2u(1/512):#x}, v{va}")
    for k in range(2): g(f"v_pk_add_f32 {vr(f+2*k,2)}, {vr(f+2*k,2)}, {vr(m,2)} op_sel_hi:[1,0] neg_lo:[0,1] neg_hi:[0,1]")
    g(f"v_cvt_pk_bf16_f32 v{va}, v{va}, v{va}")
    for k in range(2, 4): g(f"v_pk_add_f32 {vr(f+2*k,2)}, {vr(f+2*k,2)}, {vr(m,2)} op_sel_hi:[1,0] neg_lo:[0,1] neg_hi:[0,1]")
    g(f"v_and_b32 v{va}, 0xffff0000, v{va}")
    g(f"v_add_f32 v{va}, {f2u(1e-5):#x}, v{va}")
    g(f"v_cvt_pk_bf16_f32 v{xa}, v{f}, v{f+1}")
    g(f"v_cvt_pk_bf16_f32 v{va}, v{va}, v{va}")
    g(f"v_cvt_pk_bf16_f32 v{xa+1}, v{f+2}, v{f+3}")
    g(f"v_and_b32 v{va}, 0xffff0000, v{va}")
    g(f"v_sqrt_f32 v{va}, v{va}")
    g(f"v_cvt_pk_bf16_f32 v{xa+2}, v{f+4}, v{f+5}"); g(f"v_cvt_pk_bf16_f32 v{xa+3}, v{f+6}, v{f+7}")
    g(f"v_cvt_pk_bf16_f32 v{va}, v{va}, v{va}")
    for k in range(2):
        g(f"v_lshlrev_b32 v{f+2*k}, 16, v{xa+k}"); g(f"v_and_b32 v{f+2*k+1}, 0xffff0000, v{xa+k}")
    g(f"v_and_b32 v{m}, 0xffff0000, v{va}")
    g(f"v_rcp_f32 v{m}, v{m}")
    for k in range(2, 4):
        g(f"v_lshlrev_b32 v{f+2*k}, 16, v{xa+k}"); g(f"v_and_b32 v{f+2*k+1}, 0xffff0000, v{xa+k}")
    for k in range(4): g(f"v_pk_mul_f32 {vr(f+2*k,2)}, {vr(f+2*k,2)}, {vr(m,2)} op_sel_hi:[1,0]")
    for k in range(4): g(f"v_cvt_pk_bf16_f32 v{xa+k}, v{f+2*k}, v{f+2*k+1}")
    g(f"ds_write_b128 v3, {vr(xa,4)}")
    if not dq and not qack: g.stamp(3)
    g("s_waitcnt lgkmcnt(0)"); g.lq = []
    g(f"s_mul_i32 {sT}, {sE}, 0x9E3779B1"); g(f"s_add_u32 {sT}, {sT}, 0x7F4A7C15")
    g(f"v_mov_b32 v{vT}, {sT}")
    if wke == 2: wuk_quad(0); wuk_quad(1)
    g(f"s_waitcnt vmcnt({(1 if (loc and not pre0) else 0) + 4 * wke})")
    if dq: g.stamp(3)
    g.label("L_W_b0")
    g("s_mov_b32 s1, s69")
    g("s_barrier")
    g.stamp(1)
    xb = g.v(16, 4); wk = g.v(32, 4); ta = g.v(16, 4); Da = g.v(4, 4); Db = g.v(4, 4)
    qf = g.v(32, 4); chk = g.v()
    tq = qf
    for u in range(4):
        g.lds(f"ds_read_b128 {vr(xb+4*u,4)}, v{vxf} offset:{u*64}")
        for T in range(2):
            for hf in range(2):
                g.lds(f"ds_read_b64_tr_b16 {vr(tq+8*u+4*T+2*hf,2)}, {trad(T)[0]} offset:{L_WQ + u*8192 + hf*1024 + trad(T)[1]}", ("tr", u, T))
    if wk2: wuk_quad(1)
    for u in range(4):
        g.lwait(("tr", u, 0))
        g(f"v_mfma_f32_16x16x32_bf16 {vr(Da,4)}, {vr(tq+8*u,4)}, {vr(xb+4*u,4)}, {vr(Da,4) if u else 0}")
        g.lwait(("tr", u, 1))
        g(f"v_mfma_f32_16x16x32_bf16 {vr(Db,4)}, {vr(tq+8*u+4,4)}, {vr(xb+4*u,4)}, {vr(Db,4) if u else 0}")
    def pack_granule(msk):
        g(f"v_cvt_pk_bf16_f32 v{Ga+2}, v{Da}, v{Da+1}"); g(f"v_cvt_pk_bf16_f32 v{Ga+3}, v{Da+2}, v{Da+3}")
        g(f"v_cvt_pk_bf16_f32 v2, v{Db}, v{Db+1}"); g(f"v_cvt_pk_bf16_f32 v3, v{Db+2}, v{Db+3}")
        g(f"v_cndmask_b32 v{Ga+2}, v{Ga+2}, v2, {msk}"); g(f"v_cndmask_b32 v{Ga+3}, v{Ga+3}, v3, {msk}")
    g("s_mov_b32 exec_lo, 0x000f000f"); g("s_mov_b32 exec_hi, 0x000f000f")
    g("s_nop 4")
    pack_granule("s[70:71]")
    g(f"buffer_store_dwordx4 {vr(Ga,4)}, v{vqps}, {WS}, s67 offen {'' if loc else 'sc1'}")
    g("s_mov_b64 exec, -1")
    g.stamp(4)
    g("s_and_b32 s62, s6, 15"); g("s_cmp_lg_u32 s62, 0"); g("s_cbranch_scc1 L_W_nx")
    g("s_lshr_b32 s62, s6, 4"); g("s_lshl2_add_u32 s62, s62, s7"); g("s_lshl_b32 s62, s62, 9"); g(f"s_add_u32 s62, s62, {XNG}")
    g(f"v_lshlrev_b32 v2, 6, v{n}"); g(f"v_lshl_add_u32 v2, v{gg}, 4, v2")
    g("s_cmp_eq_u32 s3, 0"); g("s_cselect_b32 exec_lo, 0x00030003, 0"); g("s_mov_b32 exec_hi, exec_lo")
    for u in range(4): g(f"buffer_store_dwordx4 {vr(xb+4*u,4)}, v2, {WS}, s62 offen offset:{u*128} sc1")
    g("s_mov_b64 exec, -1")
    g.label("L_W_nx")
    def qp_loads():
        for u in range(4): g(f"buffer_load_dwordx4 {vr(qf+8*u,4)}, v{vqpl}, {WS}, s68 offen offset:{u*128} sc1")
    g("s_mov_b32 s63, 0")
    if wke == 0: wuk_quad(0)
    if wke <= 1 and not wk2: wuk_quad(1)
    if pl:
        g("s_waitcnt vmcnt(0)")
        qp_loads()
        if qcl:
            g("s_cmp_eq_u32 s3, 2"); g("s_cselect_b64 exec, 1, 0")
            g(f"buffer_store_dword v{vT}, v{l16}, {WS}, s44 offen sc1")
            g("s_mov_b64 exec, -1")
    else:
        qp_loads()
        g(f"s_waitcnt vmcnt({5 if wk2 else 4})")
    g.stamp(12)
    for u in range(4):
        for T in range(2): g.lds(f"ds_read_b128 {vr(wk+16*T+4*u,4)}, v{vkr+u} offset:{T*1024}")
    if debug == 1: g("s_waitcnt vmcnt(0)"); g.stamp(3)
    g("s_branch L_Wa_c")
    g.label("L_Wa")
    def restore(vaddr, soff):
        g("s_mov_b32 exec_lo, 0x000f000f"); g("s_mov_b32 exec_hi, 0x000f000f")
        g(f"buffer_store_dwordx4 {vr(Ga,4)}, v{vaddr}, {WS}, {soff} offen sc1")
        g("s_mov_b64 exec, -1")
    if loc:
        g("s_cmp_lg_u32 s63, 4"); g("s_cbranch_scc1 L_Wa_n")
        restore(vqps, "s67")
        g.label("L_Wa_n")
    qp_loads()
    g.label("L_Wa_c")
    g("s_add_u32 s63, s63, 1"); g(f"s_cmp_gt_u32 s63, {SPIN}"); g("s_cbranch_scc1 L_Wa_x")
    g("s_waitcnt vmcnt(0)")
    for u in range(4): g(f"v_sad_u32 v{chk}, v{qf+8*u}, {sT}, {('v%d' % chk) if u else 0}")
    g(f"v_cmp_ne_u32 vcc, 0, v{chk}")
    g("s_cbranch_vccnz L_Wa")
    g.label("L_Wa_x")
    g.count("s63")
    g("s_waitcnt vmcnt(0)")
    for u in range(4):
        for k in range(2): g(f"v_mov_b32_dpp v{qf+8*u+4+k}, v{qf+8*u+2+k} row_ror:8 {DPPF}")
    g.lwait0()
    g.stamp(5)
    for u in range(4):
        g(f"v_mfma_f32_16x16x32_bf16 {vr(Da,4)}, {vr(wk+4*u,4)}, {vr(qf+8*u+2,4)}, {vr(Da,4) if u else 0}")
        g(f"v_mfma_f32_16x16x32_bf16 {vr(Db,4)}, {vr(wk+16+4*u,4)}, {vr(qf+8*u+2,4)}, {vr(Db,4) if u else 0}")
    g("s_nop 6")
    for k in range(8): g(f"v_add_f32_dpp v{Da+k}, v{Da+k}, v{Da+k} quad_perm:[1,0,3,2] {DPPF}")
    assert Db == Da + 4
    for k in range(8): g(f"v_add_f32_dpp v{Da+k}, v{Da+k}, v{Da+k} quad_perm:[2,3,0,1] {DPPF}")
    qo = g.v(4, 4)
    for k in range(4): g(f"v_cvt_pk_bf16_f32 v{qo+k}, v{Da+2*k}, v{Da+2*k+1}")
    g("s_mov_b32 exec_lo, 0x00110011"); g("s_mov_b32 exec_hi, 0x00110011")
    g(f"buffer_store_dwordx4 {vr(qo,4)}, v{vqa}, {WS}, {sQAo} offen sc1")
    if hqe:
        g("s_mov_b64 exec, 1")
        g(f"buffer_store_dword v{vT}, v{l16}, {WS}, s66 offen")
    g("s_mov_b64 exec, -1")
    g.stamp(6)
    g(f"s_lshl_b32 s58, {sW}, 8")
    vA, vB = vk, vk + 1
    g(f"v_and_b32 v2, 0xff, v{vqA}"); g(f"v_lshl_add_u32 v{vA}, v{gg}, 10, v2"); g(f"v_xor_b32 v{vB}, 0x80, v{vA}")
    g(f"v_add_u32 v{vk+2}, 3072, v{vA}"); g(f"v_add_u32 v{vk+5}, 6144, v{vB}"); g(f"v_add_u32 v{vk+6}, 9216, v{vB}")
    hpv = g.v(4, 4); vz = g.v()
    sWOo = "s46"
    g(f"v_mov_b32 v{vz}, 0")
    if not hqe:
        g("v_mov_b32 v3, 0"); g("s_mov_b64 exec, 1")
        g("s_waitcnt vmcnt(0)"); g.stamp(3)
        g(f"buffer_store_dword v{vT}, v3, {WS}, s66 offen")
        g("s_mov_b64 exec, -1")
    if loc: restore(vqps, "s67")
    def wuv_quad(a):
        g(f"s_add_u32 m0, s60, {L_WUV + a*0x1000}"); g(f"s_add_u32 s61, {sQoff}, {a*0x20000}")
        quad(WUV, "s61")
    srd(24, 4 << 20)
    if gpk:
        g(f"s_lshl_b32 s62, s5, 8"); g(f"s_add_u32 s62, s62, {HQ}"); g("v_lshlrev_b32 v3, 2, v1")
        g(f"buffer_load_dword v2, v3, {WS}, s62 offen sc1")
    if pga: g("s_waitcnt vmcnt(0)")
    for a in range(pg): wuv_quad(a)
    if gpk:
        g(f"v_cmp_ne_u32 s[66:67], {sT}, v2")
        g("s_bcnt1_i32_b64 s63, s[66:67]"); g(f"s_cmp_le_u32 s63, {gk}"); g("s_cselect_b64 s[66:67], 0, s[66:67]"); g("s_cbranch_scc0 L_Wgp")
        wuv_quad(1)
        g.label("L_Wgp")
    sPOo = "s17"
    g(f"s_lshr_b32 {sPOo}, s6, 1"); g(f"s_lshl2_add_u32 {sPOo}, {sPOo}, s7"); g(f"s_lshl_b32 {sPOo}, {sPOo}, 15"); g(f"s_add_u32 {sPOo}, {sPOo}, s60")
    g("s_and_b32 s63, s6, 1"); g("s_lshl_b32 s63, s63, 6"); g(f"s_add_u32 {sPOo}, {sPOo}, s63"); g(f"s_add_u32 {sPOo}, {sPOo}, {PO}"); g(f"s_add_u32 s47, {sPOo}, 0x1000")
    vpl = g.v()
    g(f"v_lshlrev_b32 v{vpl}, 9, v{gg}"); g(f"v_lshl_add_u32 v{vpl}, v{r}, 7, v{vpl}"); g(f"v_lshl_add_u32 v{vpl}, v{c4}, 4, v{vpl}")
    g(f"v_lshrrev_b32 v{vop}, 1, v1"); g(f"v_mul_u32_u24 v{vop}, {OPS}, v{vop}"); g(f"v_and_b32 v2, 1, v1"); g(f"v_lshl_or_b32 v{vop}, v2, 4, v{vop}")
    g(f"""
    s_lshl4_add_u32 s62, s5, s4
    s_lshl_b32 s62, s62, 5
    s_mul_i32 s63, s3, {32*OPS}
    s_add_u32 s62, s62, s63
    s_add_u32 {sOPo}, s62, {OP}
    """)
    vwo = f
    srd(28, 4 << 20)
    acc = g.v(16, 4)
    uv = wk; wo = 0
    vlw, vlr, vcs, vclo, vbp = g.v(), g.v(), g.v(), g.v(), g.v()
    mk = f + 8
    g(f"v_lshl_or_b32 v{vf}, v{c4}, 3, v{vf}")
    g(f"v_lshlrev_b32 v{vlw}, 6, v{r}"); g(f"v_lshl_add_u32 v{vlw}, v{gg}, 5, v{vlw}"); g(f"v_lshl_add_u32 v{vlw}, v{c4}, 3, v{vlw}")
    g(f"s_mul_i32 s62, {sW}, 288"); g(f"s_add_u32 s62, s62, {L_LAT}"); g(f"v_add_u32 v{vlw}, s62, v{vlw}")
    g(f"v_mul_u32_u24 v{vlr}, 288, v{c4}"); g(f"v_lshl_add_u32 v{vlr}, v{gg}, 4, v{vlr}"); g(f"v_add_u32 v{vlr}, {L_LAT}, v{vlr}")
    g(f"v_bfe_u32 v{vcs}, v1, 1, 1"); g(f"v_lshlrev_b32 v{vcs}, 9, v{vcs}"); g(f"v_lshl_add_u32 v{vcs}, v{gg}, {4 if nat else 5}, v{vcs}"); g(f"v_and_b32 v2, 1, v1"); g(f"v_lshl_add_u32 v{vcs}, v2, {6 if nat else 4}, v{vcs}")
    g(f"v_and_b32 v2, 7, v1"); g(f"v_lshlrev_b32 v2, 9, v2"); g(f"v_lshl_add_u32 v2, v{gg}, 5, v2")
    g(f"v_and_b32 v3, 8, v1"); g(f"v_lshl_add_u32 v{vclo}, v3, 1, v2")
    g(f"s_lshl_b32 s62, {sW}, 6"); g(f"v_lshlrev_b32 v{vbp}, 2, v{gg}"); g(f"v_add_u32 v{vbp}, s62, v{vbp}")
    g(f"v_and_b32 v2, 1, v1"); g(f"v_lshlrev_b32 v2, 4, v2"); g(f"v_mov_b32 v3, 0xffff"); g(f"v_lshlrev_b32 v3, v2, v3"); g(f"v_bfe_u32 v2, v1, 1, 2")
    for k in range(4):
        g(f"v_cmp_eq_u32 vcc, {k}, v2"); g("s_nop 1"); g(f"v_cndmask_b32 v{mk+k}, 0, v3, vcc")
    g(f"s_lshl_b32 {sWOo}, s1, 15"); g(f"s_add_u32 {sWOo}, {sWOo}, s58")
    g(f"v_lshl_add_u32 v3, v{gg}, 3, v{r}"); g(f"v_lshlrev_b32 v3, 8, v3"); g(f"s_add_u32 s62, s60, {L_WO}"); g(f"v_add_u32 v3, s62, v3")
    for tl in range(8):
        g(f"v_xor_b32 v{vwo+tl}, {tl*32}, v{vf}"); g(f"v_add_u32 v{vwo+tl}, v{vwo+tl}, v3")
    g(f"v_mov_b32 v{hpv+2}, v{vT}")
    ALH = g.v(8, 4)
    for k in range(8): g(f"v_mov_b32 v{ALH+k}, 0")
    def wo_quad():
        for j, rg in enumerate((vA, vk + 2, vk + 5, vk + 6)):
            g(f"buffer_load_dwordx4 v{rg}, {WO}, {sWOo} offen offset:{j*1024} {NS}lds")
    def uv_reads():
        for u in range(4):
            for T in range(2):
                for hf in range(2):
                    g.lds(f"ds_read_b64_tr_b16 {vr(uv+16*T+4*u+2*hf,2)}, {trad(T)[0]} offset:{L_WUV + u*8192 + hf*1024 + trad(T)[1]}")
    def wuv_stream():
        for a in range(pg, 2):
            if gw >= 0 and a > 0: g(f"s_waitcnt vmcnt({gw})")
            wuv_quad(a)
    if gpk: g("s_cmp_eq_u64 s[66:67], 0"); g("s_cbranch_scc1 L_Wgo")
    if gate == 1:
        g(f"s_lshl_b32 s62, s5, 8"); g(f"s_add_u32 s62, s62, {HQ}"); g("v_lshlrev_b32 v3, 2, v1")
        hint_wait(g, "L_Wg", 2, 3, "s62", 0, "s63")
    if gate == 2:
        g("s_lshl4_add_u32 s62, s5, s4"); g("s_lshl_b32 s62, s62, 7"); g(f"s_add_u32 s62, s62, {HA}")
        hint_wait(g, "L_Wg", 2, vz, "s62", 32, "s63")
    wuv_stream()
    if gpk: g.label("L_Wgo")
    g.stamp(14)
    def wo_stream():
        g(f"s_add_u32 m0, s60, {L_WO}"); g("s_nop 0")
        if gw >= 0 and wow: g(f"s_waitcnt vmcnt({gw})")
        wo_quad()
        g("s_add_u32 m0, m0, 0x1000"); g(f"s_add_u32 {sWOo}, {sWOo}, 0x4000")
        if gw >= 0 and wow: g(f"s_waitcnt vmcnt({gw})")
        wo_quad()
    def wo_reads():
        for tl in range(8):
            for hf in range(2): g.lds(f"ds_read_b64_tr_b16 {ar(wo+4*tl+2*hf,2)}, v{vwo+tl} offset:{hf*1024}")
    if wow == 1: wo_stream()
    if wow == 3:
        g(f"s_add_u32 m0, s60, {L_WO}"); g("s_nop 0")
        wo_quad()
    if opr: g(f"buffer_load_dword v254, v{vop}, {WS}, {sOPo} offen")
    vfw = g.v(4, 4); vfa = g.v()
    if cmb and fle == 1:
        g("s_lshr_b32 s44, s6, 4"); g("s_lshl_b32 s44, s44, 10"); g(f"s_add_u32 s44, s44, {FLA}")
        g(f"buffer_load_dword v{vfw}, v{l16}, {WS}, s44 offen sc1")
    if cmb and fle == 2:
        g("s_lshr_b32 s44, s6, 4"); g("s_lshl_b32 s44, s44, 13"); g(f"s_add_u32 s44, s44, {FLB}"); g(f"v_lshlrev_b32 v{vfa}, 7, v1")
        g(f"buffer_load_dwordx4 {vr(vfw,4)}, v{vfa}, {WS}, s44 offen sc1")
    def flb_check():
        for k in range(4): g(f"v_sad_u32 v2, v{vfw+k}, {sT}, {'v2' if k else 0}")
        g("v_cmp_ne_u32 vcc, 0, v2")
    sSTo, sCPs, sCPl, sCnt, sBl, sRL = "s16", "s18", "s19", "s20", "s21", "s22"
    g(f"s_lshr_b32 {sSTo}, s6, 2"); g(f"s_lshl_b32 {sSTo}, {sSTo}, 8"); g("s_and_b32 s63, s6, 3"); g(f"s_add_u32 {sSTo}, {sSTo}, s63"); g(f"s_lshl_b32 {sSTo}, {sSTo}, 4"); g(f"s_add_u32 {sSTo}, {sSTo}, {ST}")
    vst = g.v()
    g(f"v_lshlrev_b32 v{vst}, 6, v1")
    g(f"s_lshl_b32 s62, s6, 12"); g(f"s_add_u32 s62, s62, {CP}")
    g(f"s_lshl_b32 s63, s7, 7"); g(f"s_add_u32 {sCPl}, s62, s63")
    g(f"s_lshl_b32 s63, s7, 10"); g(f"s_add_u32 {sCPs}, s62, s63"); g(f"s_lshl_b32 s63, {sW}, 7"); g(f"s_add_u32 {sCPs}, {sCPs}, s63")
    g(f"s_lshr_b32 {sBl}, {sW}, 1"); g(f"s_lshl_b32 {sBl}, {sBl}, 5")
    g("s_mov_b32 s70, 0xaaaaaaaa"); g("s_mov_b32 s71, s70")
    g(f"s_waitcnt vmcnt({(8 if wow == 1 else 4 if wow == 3 else 0) + (1 if opr else 0) + (1 if (cmb and fle) else 0)})")
    g("s_barrier")
    g.stamp(7)
    if wow == 2: wo_stream()
    if wow == 3:
        g("s_add_u32 m0, m0, 0x1000"); g(f"s_add_u32 {sWOo}, {sWOo}, 0x4000")
        wo_quad()
    uv_reads()
    if wow:
        g("s_waitcnt vmcnt(0)")
        wo_reads()
    g.stamp(8)
    TLO = (0, 1, 4, 5); THI = (2, 3, 6, 7)
    stt = xa; pf = qf; af = ta; wd = xa + 4; mx = xa + 5; wb = f + 12
    sHA = "s45"
    def po_loads():
        for u in range(4): g(f"buffer_load_dwordx4 {vr(pf+4*u,4)}, v{vpl}, {WS}, {sPOo if u < 2 else 's47'} offen offset:{(u&1)*2048} sc1")
    if cmb:
        if not fle:
            g("s_lshr_b32 s44, s6, 4"); g("s_lshl_b32 s44, s44, 10"); g(f"s_add_u32 s44, s44, {FLA}")
            g(f"buffer_load_dword v{vfw}, v{l16}, {WS}, s44 offen sc1")
        g(f"s_lshl_b32 s63, s5, 8"); g(f"s_add_u32 s63, s63, {HB}"); g("v_lshlrev_b32 v3, 2, v1")
        g("s_waitcnt vmcnt(0)")
        if fle == 2: flb_check()
        else: g(f"v_cmp_ne_u32 vcc, {sT}, v{vfw}")
        g("s_cbranch_vccnz L_Wfa")
        g.label("L_Wfa_x")
        hint_wait(g, "L_Wh1", 2, 3, "s63", 0, sCnt)
        g(f"s_mov_b32 {sCnt}, 0")
        g(f"buffer_load_dwordx3 {vr(stt,3)}, v{vst}, {WS}, {sSTo} offen sc1")
        po_loads()
        if not wow: wo_stream()
        g(f"s_waitcnt vmcnt({4 if wow else 12})")
        g("s_branch L_Ws_c")
        g.label("L_Ws")
        g(f"buffer_load_dwordx3 {vr(stt,3)}, v{vst}, {WS}, {sSTo} offen sc1")
        po_loads()
        g(f"s_add_u32 {sCnt}, {sCnt}, 1"); g(f"s_cmp_gt_u32 {sCnt}, {SPIN}"); g("s_cbranch_scc1 L_Ws_x")
        g("s_waitcnt vmcnt(4)")
        g.label("L_Ws_c")
        g(f"v_cmp_ne_u32 vcc, {sT}, v{stt+2}")
        g("s_cbranch_vccnz L_Ws")
        g.label("L_Ws_x")
        g.count(sCnt)
        g.stamp(9)
    else:
        if hint:
            g("s_and_b32 s62, s4, 14"); g("s_lshr_b32 s63, s5, 2"); g("s_or_b32 s62, s62, s63"); g("s_lshl4_add_u32 s62, s5, s62"); g("s_lshl_b32 s62, s62, 7")
            g(f"s_add_u32 {sHA}, s62, {HA}"); g(f"s_lshl2_add_u32 s62, s7, {sHA}")
            if h1a:
                g(f"s_lshl_b32 s63, s5, 6"); g(f"s_add_u32 s63, s63, {HB}")
                if h1a == 1: g(f"v_lshlrev_b32 v3, 2, v{n}")
                else:
                    g("v_and_b32 v3, 7, v1"); g("v_lshlrev_b32 v3, 3, v3"); g("s_lshr_b32 s61, s5, 2"); g("s_lshl2_add_u32 s63, s61, s63")
                hint_wait(g, "L_Wh1", 2, 3, "s63", 0, sCnt)
            else: hint_wait(g, "L_Wh1", 2, vz, sHA, 0, sCnt)
        g(f"s_mov_b32 {sCnt}, 0")
        g.label("L_Ws")
        if slp: g(f"s_sleep {slp}")
        g(f"buffer_load_dwordx3 {vr(stt,3)}, v{vst}, {WS}, {sSTo} offen sc1")
        if hint: g(f"buffer_load_dword v{stt+3}, v{vz}, {WS}, s62 offen offset:16 sc1")
        g(f"s_add_u32 {sCnt}, {sCnt}, 1"); g(f"s_cmp_gt_u32 {sCnt}, {SPIN}"); g("s_cbranch_scc1 L_Ws_x")
        g("s_waitcnt vmcnt(0)")
        g(f"v_cmp_ne_u32 vcc, {sT}, v{stt+2}")
        g("s_cbranch_vccnz L_Ws")
        g.label("L_Ws_x")
        g.count(sCnt)
        g("s_waitcnt vmcnt(0)")
        g.stamp(9)
        def po_loads():
            for u in range(4): g(f"buffer_load_dwordx4 {vr(pf+4*u,4)}, v{vpl}, {WS}, {sPOo if u < 2 else 's47'} offen offset:{(u&1)*2048} sc1")
        def po_first():
            po_loads()
            if not wow: wo_stream()
        if hint:
            g(f"v_cmp_ne_u32 s[64:65], {sT}, v{stt+3}")
            g("s_cmp_lg_u64 s[64:65], 0"); g("s_cbranch_scc1 L_Wp_n1")
            po_first()
            g.label("L_Wp_n1")
    g(f"v_mov_b32 v{mx}, v{stt}"); g("s_nop 1")
    reduce32(g, "max", mx, t)
    g(f"v_sub_f32 v{mx}, v{stt}, v{mx}")
    g(f"v_exp_f32 v{mx}, v{mx}")
    g("s_nop 0")
    g(f"v_cvt_pk_bf16_f32 v{wd}, v{mx}, v{mx}")
    for u in range(4): g.lds(f"ds_bpermute_b32 v{wb+u}, v{vbp}, v{wd} offset:{16*u}")
    g(f"v_and_b32 v{mx}, 0xffff0000, v{wd}")
    g(f"v_mul_f32 v{mx}, v{mx}, v{stt+1}"); g("s_nop 1")
    reduce32(g, "add", mx, t)
    g(f"v_rcp_f32 v{mx}, v{mx}")
    g.lwait0()
    for u in range(4):
        for k in range(4): g(f"v_and_b32 v{af+4*u+k}, v{wb+u}, v{mk+k}")
    g(f"v_readlane_b32 {sRL}, v{mx}, {sBl}")
    if not cmb:
        if hint:
            g("s_cmp_eq_u64 s[64:65], 0"); g("s_cbranch_scc1 L_Wp_n2")
            hint_wait(g, "L_Wh2", 2, vz, "s62", 16, sCnt)
        po_first()
        g.label("L_Wp_n2")
    if rall:
        g("s_lshl4_add_u32 s62, s5, s4"); g("s_lshl2_add_u32 s62, s62, s3"); g(f"s_lshl_b32 s62, s62, {3 if rfa else 2}"); g(f"s_add_u32 s62, s62, {HW}")
    else:
        g("s_lshl4_add_u32 s62, s5, s4"); g("s_lshl_b32 s62, s62, 7"); g(f"s_add_u32 s62, s62, {HW}")
    g(f"s_mov_b32 s61, {sCnt}")
    g(f"s_mov_b32 {sCnt}, 0")
    if wow: g("s_branch L_Wp_c")
    else:
        if cmb:
            g(f"s_cmp_lg_u32 s61, 0"); g("s_cbranch_scc1 L_Wp_c")
        g("s_waitcnt vmcnt(8)")
        g("s_branch L_Wp_d")
    g.label("L_Wp")
    po_loads()
    g.label("L_Wp_c")
    g(f"s_add_u32 {sCnt}, {sCnt}, 1"); g(f"s_cmp_gt_u32 {sCnt}, {SPIN}"); g("s_cbranch_scc1 L_Wp_x")
    g("s_waitcnt vmcnt(0)")
    g.label("L_Wp_d")
    g(f"v_max3_u32 v{chk}, v{pf+3}, v{pf+7}, v{pf+11}"); g(f"v_max_u32 v{chk}, v{chk}, v{pf+15}")
    g(f"v_cmp_eq_u32 vcc, -1, v{chk}")
    g("s_cbranch_vccnz L_Wp")
    g.label("L_Wp_x")
    g.count(sCnt)
    g.stamp(10)
    for u in range(4): g(f"v_mfma_f32_16x16x32_bf16 {vr(Da,4)}, {vr(af+4*u,4)}, {vr(pf+4*u,4)}, {vr(Da,4) if u else 0}")
    g("s_mov_b32 exec_hi, 0")
    g("s_nop 6")
    for k in range(4): g(f"v_mul_f32 v{Da+k}, {sRL}, v{Da+k}")
    g(f"v_cvt_pk_bf16_f32 v{qo}, v{Da}, v{Da+1}"); g(f"v_cvt_pk_bf16_f32 v{qo+1}, v{Da+2}, v{Da+3}")
    g(f"ds_write_b64 v{vlw}, {vr(qo,2)}")
    g("s_mov_b64 exec, -1")
    g.lwait0()
    g("s_barrier")
    for u in range(4): g.lds(f"ds_read_b128 {vr(xb+4*u,4)}, v{vlr} offset:{u*64}", ("lf", u))
    for u in range(4):
        g.lwait(("lf", u))
        g(f"v_mfma_f32_16x16x32_bf16 {vr(Da,4)}, {vr(uv+4*u,4)}, {vr(xb+4*u,4)}, {vr(Da,4) if u else 0}")
        g(f"v_mfma_f32_16x16x32_bf16 {vr(Db,4)}, {vr(uv+16+4*u,4)}, {vr(xb+4*u,4)}, {vr(Db,4) if u else 0}")
    g("s_nop 6")
    for k in range(8): g(f"v_add_f32_dpp v{Da+k}, v{Da+k}, v{Da+k} quad_perm:[1,0,3,2] {DPPF}")
    g("s_mov_b32 exec_lo, 0x000f000f"); g("s_mov_b32 exec_hi, 0x000f000f")
    pack_granule("s[70:71]")
    g(f"buffer_store_dwordx4 {vr(Ga,4)}, v{vcs}, {WS}, {sCPs} offen {'' if loc else 'sc1'}")
    g("s_mov_b64 exec, -1")
    g.stamp(11)
    cl = pf
    g(f"s_mov_b32 {sCnt}, 1")
    if dl:
        g(f"s_waitcnt vmcnt({1 if dl == 1 else 0})")
        wo_reads()
        g(f"buffer_load_dwordx4 {vr(cl,4)}, v{vclo}, {WS}, {sCPl} offen sc1")
    else:
        g(f"buffer_load_dwordx4 {vr(cl,4)}, v{vclo}, {WS}, {sCPl} offen sc1")
        if not wow:
            g("s_waitcnt vmcnt(2)")
            wo_reads()
    g("s_branch L_Wd_c")
    g.label("L_Wd")
    if loc:
        g(f"s_cmp_lg_u32 {sCnt}, 6"); g("s_cbranch_scc1 L_Wd_n")
        restore(vcs, sCPs)
        g.label("L_Wd_n")
    g(f"buffer_load_dwordx4 {vr(cl,4)}, v{vclo}, {WS}, {sCPl} offen sc1")
    g(f"s_add_u32 {sCnt}, {sCnt}, 1"); g(f"s_cmp_gt_u32 {sCnt}, {SPIN}"); g("s_cbranch_scc1 L_Wd_x")
    g.label("L_Wd_c")
    g("s_waitcnt vmcnt(0)")
    g(f"v_cmp_ne_u32 vcc, {sT}, v{cl}")
    g("s_cbranch_vccnz L_Wd")
    g.label("L_Wd_x")
    g.count(sCnt)
    g("s_waitcnt vmcnt(0)")
    def done_hint():
        if rall: g("s_mov_b64 exec, 1")
        else: g(f"s_cmp_eq_u32 {sW}, 0"); g("s_cselect_b64 exec, 1, 0")
        g(f"buffer_store_dword v{vT}, v{vz}, {WS}, s62 offen")
        g("s_mov_b64 exec, -1")
    if hintr and hre: done_hint()
    AL, AH = ALH, ALH + 4
    for k in range(2):
        g(f"v_mov_b32_dpp v{AL+k}, v{cl+2+k} quad_perm:[0,1,2,3] row_mask:0xf bank_mask:0x3")
        g(f"v_mov_b32_dpp v{AL+2+k}, v{cl+2+k} row_ror:8 row_mask:0xf bank_mask:0x3")
        g(f"v_mov_b32_dpp v{AH+k}, v{cl+2+k} row_ror:8 row_mask:0xf bank_mask:0xc")
        g(f"v_mov_b32_dpp v{AH+2+k}, v{cl+2+k} quad_perm:[0,1,2,3] row_mask:0xf bank_mask:0xc")
    g.lwait0()
    g("s_nop 0")
    for k in range(4): g(f"v_mfma_f32_16x16x32_bf16 {vr(acc+4*k,4)}, {vr(AL,4)}, {ar(wo+4*TLO[k],4)}, 0")
    for k in range(4): g(f"v_mfma_f32_16x16x32_bf16 {vr(acc+4*k,4)}, {vr(AH,4)}, {ar(wo+4*THI[k],4)}, {vr(acc+4*k,4)}")
    def out_pack(acc, R, U, dst, vaddr, soff):
        g("s_nop 4")
        g(f"v_pk_add_f32 {vr(R,2)}, {vr(acc,2)}, {vr(acc+2,2)}")
        g(f"v_pk_add_f32 {vr(U,2)}, {vr(acc+4,2)}, {vr(acc+6,2)}")
        g(f"v_pk_add_f32 {vr(R+2,2)}, {vr(acc+8,2)}, {vr(acc+10,2)}")
        g(f"v_pk_add_f32 {vr(U+2,2)}, {vr(acc+12,2)}, {vr(acc+14,2)}")
        g("s_nop 0")
        for k in range(4): g(f"v_permlane16_swap_b32 v{R+k}, v{U+k}")
        g("s_nop 0")
        g(f"v_pk_add_f32 {vr(R,2)}, {vr(R,2)}, {vr(U,2)}"); g(f"v_pk_add_f32 {vr(R+2,2)}, {vr(R+2,2)}, {vr(U+2,2)}")
        g(f"v_cvt_pk_bf16_f32 v{dst}, v{R}, v{R+1}"); g(f"v_cvt_pk_bf16_f32 v{dst+1}, v{R+2}, v{R+3}")
        g(f"buffer_store_dwordx4 {vr(dst,4)}, v{vaddr}, {WS}, {soff} offen sc1")
    out_pack(acc, qo, Da, hpv, vop, sOPo)
    if hintr and not hre: done_hint()
    if loc: restore(vcs, sCPs)
    g.stamp(2)
    dump_stamps(g, "W")
    g("s_endpgm")
    if cmb and fle == 2:
        g.label("L_Wfa")
        g(f"s_mov_b32 {sCnt}, 0")
        g.label("L_Wfa_l")
        g("s_sleep 2")
        g(f"buffer_load_dwordx4 {vr(vfw,4)}, v{vfa}, {WS}, s44 offen sc1")
        g(f"s_add_u32 {sCnt}, {sCnt}, 1"); g(f"s_cmp_gt_u32 {sCnt}, {SPIN}"); g("s_cbranch_scc1 L_Wfa_x")
        g("s_waitcnt vmcnt(0)")
        flb_check()
        g("s_cbranch_vccnz L_Wfa_l")
        g("s_branch L_Wfa_x")
    elif cmb: flag_fallback(g, "L_Wfa", vfw, l16, "s44", sCnt)

    g.label("L_A2")
    g.lq = []
    g("""
    s_load_dword s43, s[8:9], 0
    s_load_dwordx2 s[52:53], s[0:1], 72
    s_load_dwordx2 s[28:29], s[0:1], 40
    s_load_dwordx2 s[60:61], s[0:1], 56
    s_load_dwordx2 s[68:69], s[0:1], 32
    s_load_dwordx2 s[64:65], s[0:1], 64
    """)
    dbg_init()
    g.reset_v(12)
    vj = l16
    vfl, vfo = g.v(), g.v()
    srd(12, 2048); srd(52, 2048)
    g(f"v_lshlrev_b32 v{vfo}, 7, v1"); g("s_lshl_b32 s34, s6, 10"); g(f"s_add_u32 s34, s34, {FL1}")
    n, gg, r, c4 = g.v(), g.v(), g.v(), g.v()
    g(f"v_and_b32 v{n}, 15, v1"); g(f"v_lshrrev_b32 v{gg}, 4, v1"); g(f"v_bfe_u32 v{r}, v1, 2, 2"); g(f"v_and_b32 v{c4}, 3, v1")
    sHX = "s35"
    g(f"s_mov_b32 {sHX}, {'s6' if swap else 0}")
    vro, xr = g.v(), g.v()
    g(f"v_and_b32 v2, 1, v{gg}"); g(f"v_lshlrev_b32 v{vro}, 10, v2"); g(f"v_lshrrev_b32 v2, 1, v{gg}"); g(f"v_lshl_add_u32 v{vro}, v2, 7, v{vro}")
    g(f"v_and_b32 v2, 1, v1"); g(f"v_lshl_add_u32 v{vro}, v2, 1, v{vro}")
    sRo = "s26"
    g(f"""
    s_sub_u32 s56, s4, 16
    s_lshl4_add_u32 {sRid}, s5, s56
    s_lshr_b32 s56, {sRid}, 5
    s_lshl_b32 {sRo}, s56, 8
    s_bfe_u32 s56, {sRid}, 0x20003
    s_lshl_b32 s56, s56, 5
    s_add_u32 {sRo}, {sRo}, s56
    s_and_b32 s56, {sRid}, 7
    s_lshl2_add_u32 {sRo}, s56, {sRo}
    """)
    if adl == 2: pfk_load(); abody(0, 0); abody(1, 0)
    vkq = g.v(4); vpv = g.v(16); vpw = g.v(2); vpr = g.v(2); vmx = g.v(); vqd = g.v(); vqr = g.v(); vqc = g.v(); vst = g.v()
    for k in range(4):
        g(f"v_add_u32 v2, {4*k}, v{gg}"); g(f"v_xor_b32 v2, v2, v{n}"); g(f"v_lshlrev_b32 v2, 4, v2"); g(f"v_lshl_add_u32 v2, v{n}, 10, v2"); g(f"v_add_u32 v{vkq+k}, {sRow}, v2")
    g(f"v_and_b32 v2, 1, v{gg}"); g(f"v_lshlrev_b32 v2, 2, v2"); g(f"v_add_lshl_u32 v2, v2, v{r}, 1")
    g(f"v_lshrrev_b32 v3, 1, v{c4}"); g(f"v_xor_b32 v2, v2, v3"); g(f"v_lshlrev_b32 v2, 4, v2")
    g(f"v_and_b32 v3, 1, v1"); g(f"v_lshl_add_u32 v2, v3, 3, v2")
    g(f"v_lshl_add_u32 v3, v{gg}, 2, v{r}"); g(f"v_lshl_add_u32 v2, v3, 11, v2")
    g(f"s_lshl_b32 s56, {sHX}, 16"); g(f"s_lshl_b32 s58, s3, 8"); g("s_add_u32 s56, s56, s58"); g(f"v_add_u32 v2, s56, v2")
    for T in range(8):
        g(f"v_xor_b32 v{vpv+2*T}, {T*32}, v2")
        g(f"v_xor_b32 v3, {T*32+16}, v2"); g(f"v_add_u32 v{vpv+2*T+1}, 0x400, v3")
    g(f"v_mul_u32_u24 v2, 272, v{n}"); g(f"v_lshrrev_b32 v3, 1, v{gg}"); g(f"v_lshl_add_u32 v{vpw}, v3, 4, v2"); g(f"v_and_b32 v3, 1, v{gg}"); g(f"v_lshl_add_u32 v{vpw}, v3, 2, v{vpw}")
    g(f"s_lshl_b32 s56, {sHX}, 7"); g(f"s_xor_b32 s58, s56, 0x80"); g(f"s_lshl_b32 s59, s3, 5"); g(f"s_add_u32 s59, s59, {L_P}")
    g("s_add_u32 s24, s58, s59"); g("s_add_u32 s59, s56, s59")
    g(f"v_add_u32 v{vpw+1}, s24, v{vpw}"); g(f"v_add_u32 v{vpw}, s59, v{vpw}")
    g(f"v_lshl_add_u32 v2, v{gg}, 4, v2"); g(f"s_add_u32 s56, s56, {L_P}"); g(f"s_add_u32 s58, s58, {L_P}")
    g(f"v_add_u32 v{vpr}, s56, v2"); g(f"v_add_u32 v{vpr+1}, s58, v2")
    g(f"v_lshlrev_b32 v{vmx}, 2, v{n}"); g(f"v_add_u32 v{vmx}, {L_MX}, v{vmx}")
    g(f"v_lshlrev_b32 v{vqd}, 6, v{n}"); g(f"v_lshl_add_u32 v{vqd}, v{gg}, 4, v{vqd}")
    g(f"v_add_u32 v{vqr}, {L_QA}, v{vj}")
    sQAl, sQAm, sSTs = "s27", "s30", "s31"
    g(f"""
    s_lshl_b32 {sQAm}, s3, 12
    s_lshr_b32 s56, s7, 5
    s_lshl1_add_u32 s56, s56, s6
    s_lshl_b32 s56, s56, 14
    s_add_u32 {sQAl}, s56, {sQAm}
    s_add_u32 {sQAl}, {sQAl}, {QA}
    s_add_u32 {sQAm}, {sQAm}, {L_QA}
    s_lshl_b32 {sSTs}, s6, 14
    s_lshl_b32 s56, s7, 6
    s_add_u32 {sSTs}, {sSTs}, s56
    s_add_u32 {sSTs}, {sSTs}, {ST}
    """)
    g(f"v_add_u32 v{vqc}, {sQAm}, v{vj}")
    g(f"v_lshlrev_b32 v{vst}, 12, v{r}"); g(f"v_lshl_add_u32 v{vst}, v{c4}, 4, v{vst}")
    vpo2 = g.v()
    if wow == 3:
        g(f"s_lshl_b32 s56, {sRid}, 3"); g("s_add_u32 s56, s56, s3"); g("s_add_u32 s56, s56, 4"); g("s_lshl_b32 s56, s56, 12"); g(f"v_and_b32 v{vpo2}, 0xf80, v{vfo}"); g(f"v_add_u32 v{vpo2}, s56, v{vpo2}")
    else:
        g(f"s_lshl2_add_u32 s56, {sRid}, s3"); g("s_lshl_b32 s56, s56, 13"); g(f"v_add_u32 v{vpo2}, s56, v{vfo}")
    vf1, vf2 = g.v(), g.v()
    srd(60, 512*1376*2); srd(64, 512*1376*2)
    g("s_bfe_u32 s56, s4, 0x20002"); g("s_mul_i32 s58, s5, 3"); g("s_cmp_lt_u32 s56, 3"); g("s_cselect_b32 s58, s58, 64"); g("s_add_u32 s56, s56, s58"); g("s_and_b32 s58, s4, 3")
    g("s_lshl2_add_u32 s24, s58, s3"); g(f"s_mul_i32 s24, s24, {32*2752}"); g("s_lshl_b32 s25, s56, 7"); g("s_add_u32 s24, s24, s25")
    g("s_lshl2_add_u32 s25, s56, s58"); g("s_lshl2_add_u32 s25, s25, s3"); g("s_lshl_b32 s25, s25, 12")
    g("s_mov_b32 s70, s56"); g("s_mov_b32 s71, s58")
    g("s_cmp_lt_u32 s56, 22"); g(f"s_cselect_b32 s24, s24, {OOB}")
    g(f"v_lshrrev_b32 v2, 1, v1"); g(f"v_mul_u32_u24 v{vf1}, 2752, v2"); g("v_and_b32 v2, 1, v1"); g("v_mul_u32_u24 v2, 124, v2"); g(f"v_add_u32 v{vf1}, v{vf1}, v2")
    g(f"v_and_b32 v{vf2}, 31, v1"); g(f"v_lshlrev_b32 v{vf2}, 7, v{vf2}")
    vzA = g.v()
    g(f"v_mov_b32 v{vzA}, 0"); g(f"s_lshl_b32 s38, {sRid}, 7"); g(f"s_add_u32 s36, s38, {HA}"); g("s_lshl2_add_u32 s37, s3, s36"); g(f"s_add_u32 s38, s38, {HW}")
    if h1a: g(f"s_lshl_b32 s36, {sRid}, 2"); g(f"s_add_u32 s36, s36, {HB}")
    if cmb: g(f"s_lshl2_add_u32 s37, {sRid}, s3"); g("s_lshl_b32 s37, s37, 2"); g(f"s_add_u32 s37, s37, {HB-16}")
    xbA = g.v(16, 4); vxa = g.v()
    g(f"v_and_b32 v2, 1, v1"); g(f"v_lshlrev_b32 v{vxa}, 6, v2"); g(f"v_lshl_add_u32 v{vxa}, v{gg}, 4, v{vxa}")
    g(f"s_lshl2_add_u32 s39, s6, {'s3' if fk else 's71'}"); g("s_lshl_b32 s39, s39, 9"); g(f"s_add_u32 s39, s39, {XNG}")
    g(f"s_lshr_b32 s58, {sRid}, 2"); g("s_lshl_b32 s58, s58, 11"); g(f"s_add_u32 s58, s58, {HP}")
    g(f"s_lshl_b32 s44, {sW}, 9"); g("s_add_u32 s44, s44, s58"); g("s_lshl_b32 s45, s71, 7"); g("s_add_u32 s44, s44, s45"); g("s_lshl_b32 s45, s71, 9"); g("s_add_u32 s45, s45, s58")
    ones = g.v(4, 4)
    for k in range(4): g(f"v_mov_b32 v{ones+k}, 0x3f803f80")
    if adl == 1: pfk_load(); abody(0, 0); abody(1, 0)
    g(f"v_mov_b32 v2, 0xff800000")
    g(f"ds_write_b32 v{vmx}, v2")
    g("v_mov_b32 v3, 0")
    g(f"ds_write_b32 v{vmx}, v3 offset:64")
    g.lwait0()
    g(f"s_mul_i32 {sT}, {sE}, 0x9E3779B1"); g(f"s_add_u32 {sT}, {sT}, 0x7F4A7C15")
    if cmb and fle == 2:
        g("s_lshl_b32 s58, s6, 6"); g("s_add_u32 s58, s58, s7"); g("s_lshl_b32 s58, s58, 5"); g("s_add_u32 s58, s58, s3"); g("s_lshl_b32 s58, s58, 2"); g(f"s_add_u32 s58, s58, {FLB}")
        g(f"v_mov_b32 v2, {sT}"); g("s_mov_b64 exec, 1")
        g("s_waitcnt vmcnt(8)")
        g(f"buffer_store_dword v2, v{vzA}, {WS}, s58 offen sc1")
        g("s_mov_b64 exec, -1")
    abody(2, 0); abody(3, 0)
    g(f"s_xor_b32 s58, {sRow}, 0x10000"); g("s_mov_b32 m0, s58"); g("s_add_u32 s33, s58, s57")
    abody(0, 1); abody(1, 1)
    g("s_waitcnt vmcnt(8)")
    g("s_barrier")
    for u in range(16): g.lds(f"ds_read_b128 {ar(4*u,4)}, v{vkq+(u&3)} offset:{(u>>2)*256}")
    def fla_store():
        if cmb:
            g("s_lshl_b32 s58, s6, 6"); g("s_add_u32 s58, s58, s7"); g("s_lshl_b32 s58, s58, 4"); g(f"s_add_u32 s58, s58, {FLA}")
            g(f"v_mov_b32 v2, {sT}"); g(f"s_cmp_eq_u32 {sW}, 0"); g("s_cselect_b64 exec, 1, 0")
            g(f"buffer_store_dword v2, v{vzA}, {WS}, s58 offen sc1")
            g("s_mov_b64 exec, -1")
    if flae == 1 and fle != 2: fla_store()
    if not noflag: g(f"buffer_load_dword v{vfl}, v{l16}, {WS}, s34 offen sc1")
    vhq, vl4 = g.v(), g.v()
    g(f"s_lshl_b32 s46, s5, 8"); g(f"s_add_u32 s46, s46, {HQ}"); g(f"v_lshlrev_b32 v{vl4}, 2, v1")
    if qae: g(f"buffer_load_dword v{vhq}, v{vl4}, {WS}, s46 offen sc1")
    abody(2, 1); abody(3, 1)
    def ffn_prefetch():
        if not fk: g(f"buffer_load_dword v254, v{vzA}, {WS}, s44 offen")
        if pff:
            if pff in (1, 3): g(f"buffer_load_dword v255, v{vf1}, s[60:63], s24 offen")
            if pff == 4:
                g("s_mov_b32 exec_hi, 0"); g(f"buffer_load_dword v255, v{vf1}, s[60:63], s24 offen"); g("s_mov_b32 exec_hi, -1")
            if pff in (1, 2): g(f"buffer_load_dword v255, v{vf2}, s[64:67], s25 offen")
    if pffe == 1: ffn_prefetch()
    for ks in range(2):
        for T in range(8):
            for hf in range(2):
                g.lds(f"ds_read_b64_tr_b16 {ar(128+(ks*8+T)*4+2*hf,2)}, v{vpv+2*T+hf} offset:{ks*32768}")
    for k in range(4): g(f"v_xor_b32 v{vkq+k}, 0x10000, v{vkq+k}")
    for k in range(16): g(f"v_xor_b32 v{vpv+k}, 0x10000, v{vpv+k}")
    g(f"s_waitcnt vmcnt({8 + (3 if pffe == 1 else 0)})")
    if not noflag:
        g(f"v_cmp_ne_u32 vcc, {sT}, v{vfl}")
        g("s_cbranch_vccnz L_Af1")
    g.label("L_Af1_x")
    g.stamp(11)
    qf = g.v(64, 4); chk = g.v()
    def qa_dma():
        for j in range(4): g(f"buffer_load_dwordx4 v{vqd}, {WS}, {sQAl} offen offset:{j*1024} sc1 lds")
    def qa_check():
        for j in range(4): g(f"ds_read_b128 {vr(qf+4*j,4)}, v{vqc} offset:{j*1024}")
        g.lwait0()
        g(f"v_max3_u32 v{chk}, v{qf+3}, v{qf+7}, v{qf+11}"); g(f"v_max_u32 v{chk}, v{chk}, v{qf+15}")
        g(f"v_cmp_eq_u32 vcc, -1, v{chk}")
    g(f"s_mov_b32 m0, {sQAm}")
    g(f"s_mov_b32 {sCnt}, 1")
    if hq:
        if qae:
            g(f"v_cmp_ne_u32 vcc, {sT}, v{vhq}")
            if spk:
                g("s_bcnt1_i32_b64 s58, vcc"); g(f"s_cmp_le_u32 s58, {spk}"); g("s_cselect_b64 vcc, 0, vcc")
            g("s_cbranch_vccnz L_Aq_l")
            qa_dma()
            g("s_waitcnt vmcnt(4)")
            g("s_branch L_Aq_m")
            g.label("L_Aq_l")
        g("s_waitcnt vmcnt(0)")
        g.label("L_Aq_m")
        g.stamp(5)
        for u in range(16): g.lds(f"ds_read_b128 {ar(64+4*u,4)}, v{vkq+(u&3)} offset:{(u>>2)*256}")
        if flae == 2: fla_store()
        if qae: g("s_cbranch_vccz L_Aq_n")
        hint_wait(g, "L_Ahq", 2, vl4, "s46", 0, sCnt)
        g(f"s_mov_b32 {sCnt}, 1")
        qa_dma()
        g.label("L_Aq_n")
    elif qal:
        g("s_waitcnt vmcnt(0)")
        qa_dma()
    else:
        qa_dma()
        g("s_waitcnt vmcnt(4)")
    if not hq:
        g.stamp(5)
        for u in range(16): g.lds(f"ds_read_b128 {ar(64+4*u,4)}, v{vkq+(u&3)} offset:{(u>>2)*256}")
    if not ty: g("s_barrier")
    if not hq:
        g("s_waitcnt vmcnt(0) lgkmcnt(8)")
        qa_check()
        g("s_cbranch_vccz L_Aq_1")
        qa_dma()
        g.label("L_Aq_1")
    def try_(ks, T, hf):
        g.lds(f"ds_read_b64_tr_b16 {ar(128+((ks+2)*8+T)*4+2*hf,2)}, v{vpv+2*T+hf} offset:{ks*32768}", ("ty", ks, T))
    if not ty:
        for ks in range(2):
            for T in range(8):
                for hf in range(2): try_(ks, T, hf)
    if not hq: g("s_cbranch_vccz L_Aq_x")
    g("s_branch L_Aq_c")
    g.label("L_Aq")
    if spk: hint_wait(g, "L_Ahq2", 2, vl4, "s46", 0, "s58")
    if qsl: g(f"s_sleep {qsl}")
    qa_dma()
    g.label("L_Aq_c")
    g(f"s_add_u32 {sCnt}, {sCnt}, 1"); g(f"s_cmp_gt_u32 {sCnt}, {SPIN}"); g("s_cbranch_scc1 L_Aq_y")
    g("s_waitcnt vmcnt(0) lgkmcnt(8)")
    save = list(g.lq)
    qa_check()
    g("s_cbranch_vccnz L_Aq")
    g.label("L_Aq_y")
    g("s_waitcnt vmcnt(0) lgkmcnt(0)")
    g.label("L_Aq_x")
    g.lq = []
    g.count(sCnt)
    g("s_barrier")
    g.stamp(6)
    SX = g.v(4, 4); SY = g.v(4, 4); O = g.v(32, 4); pfr = g.v(16, 4); LD = g.v(4, 4); pk = g.v(16, 4)
    EX = g.v(8, 4); STG = g.v(4, 4); mxv, t2 = g.v(), g.v()
    AHEAD = 10
    for u in range(AHEAD): g.lds(f"ds_read_b128 {vr(qf+4*u,4)}, v{vqr} offset:{u*1024}", ("q", u))
    if gate == 2:
        g(f"v_mov_b32 v{STG+2}, {sT}"); g(f"s_cmp_eq_u32 {sW}, 0"); g("s_cselect_b64 exec, 1, 0")
        g(f"buffer_store_dword v{STG+2}, v{vzA}, {WS}, s36 offen offset:32")
        g("s_mov_b64 exec, -1")
    if pfv:
        if pfv == 1: g("s_mov_b32 exec_lo, 0")
        g(f"global_load_dword v255, v6, s[68:69]")
        g("s_mov_b64 exec, -1")
    def xn_loads():
        for u in range(4): g(f"buffer_load_dwordx4 {vr(xbA+4*u,4)}, v{vxa}, {WS}, s39 offen offset:{u*128} sc1")
    if xnl == 0: xn_loads()
    if not pffe: ffn_prefetch()
    if pfo and pfoe: g(f"global_load_dword v255, v{vpo2}, s[28:29]")
    g(f"s_mov_b32 s56, {KSCALE:#x}")
    for u in range(16):
        g.lwait(("q", u))
        g(f"v_mfma_f32_16x16x32_bf16 {vr(SX,4)}, {ar(4*u,4)}, {vr(qf+4*u,4)}, {vr(SX,4) if u else 0}")
        if u + AHEAD < 16: g.lds(f"ds_read_b128 {vr(qf+4*(u+AHEAD),4)}, v{vqr} offset:{(u+AHEAD)*1024}", ("q", u + AHEAD))
    def my(u): g(f"v_mfma_f32_16x16x32_bf16 {vr(SY,4)}, {ar(64+4*u,4)}, {vr(qf+4*u,4)}, {vr(SY,4) if u else 0}")
    def pexp(H):
        for k in range(4): g(f"v_exp_f32 v{EX+4*H+k}, v{EX+4*H+k}")
    def pwrite(H):
        g(f"v_cvt_pk_bf16_f32 v{pk+2*H}, v{EX+4*H}, v{EX+4*H+2}"); g(f"v_cvt_pk_bf16_f32 v{pk+2*H+1}, v{EX+4*H+1}, v{EX+4*H+3}")
        g(f"ds_write2_b32 v{vpw+H}, v{pk+2*H}, v{pk+2*H+1} offset1:2")
    if ins: g.stamp(1)
    my(0); my(1); my(2)
    g("s_nop 4")
    g(f"v_max3_f32 v{mxv}, v{SX}, v{SX+1}, v{SX+2}")
    my(3)
    g(f"v_max_f32 v{mxv}, v{mxv}, v{SX+3}")
    g(f"ds_max_f32 v{vmx}, v{mxv}")
    my(4); my(5); my(6)
    g.lwait0()
    g("s_barrier")
    g(f"ds_read_b32 v{mxv}, v{vmx}")
    my(7); my(8); my(9)
    g.lwait0()
    g(f"v_mul_f32 v{STG}, s56, v{mxv}")
    my(10)
    for k in range(2): g(f"v_fma_f32 v{EX+k}, v{SX+k}, s56, -v{STG}")
    my(11)
    for k in range(2, 4): g(f"v_fma_f32 v{EX+k}, v{SX+k}, s56, -v{STG}")
    my(12)
    g(f"v_exp_f32 v{EX}, v{EX}")
    my(13)
    g(f"v_exp_f32 v{EX+1}, v{EX+1}")
    my(14)
    g(f"v_exp_f32 v{EX+2}, v{EX+2}")
    my(15)
    if ins: g.stamp(2)
    g(f"v_exp_f32 v{EX+3}, v{EX+3}")
    g(f"v_mov_b32 v{STG+2}, {sT}")
    pwrite(0)
    g(f"s_mov_b32 s57, {f2u(40.0):#x}")
    if hpos == -2:
        g("s_mov_b64 exec, 1")
        g(f"buffer_store_dword v{STG+2}, v{vzA}, {WS}, s37 offen offset:16")
        g("s_mov_b64 exec, -1")
    else: g("s_nop 1")
    for k in range(4): g(f"v_fma_f32 v{EX+4+k}, v{SY+k}, s56, -v{STG}")
    g(f"v_max3_f32 v{t2}, v{EX+4}, v{EX+5}, v{EX+6}")
    g(f"v_exp_f32 v{EX+4}, v{EX+4}")
    g(f"v_max_f32 v{t2}, v{t2}, v{EX+7}")
    g(f"v_exp_f32 v{EX+5}, v{EX+5}")
    g(f"v_cmp_lt_f32 vcc, s57, v{t2}")
    g(f"v_exp_f32 v{EX+6}, v{EX+6}")
    g(f"v_exp_f32 v{EX+7}, v{EX+7}")
    g("s_cbranch_vccnz L_Aovf")
    g.label("L_Aovf_x")
    pwrite(1)
    g.lwait0()
    g("s_barrier")
    g.stamp(7)
    def po_hint():
        g("s_mov_b64 exec, 1")
        g(f"buffer_store_dword v{STG+2}, v{vzA}, {WS}, s37 offen offset:16")
        g("s_mov_b64 exec, -1")
    if hpos == -1: po_hint()
    g.label("L_Apv")
    g.lds(f"ds_read_b32 v{t2}, v{vmx} offset:64", "ovf")
    for ks in range(4): g.lds(f"ds_read_b128 {vr(pfr+4*ks,4)}, v{vpr+(ks>>1)} offset:{(ks&1)*64}", ("p", ks))
    g.lwait("ovf")
    g(f"v_cmp_ne_u32 vcc, 0, v{t2}")
    g("s_cbranch_vccnz L_Aslow")
    g(f"s_cmp_lg_u32 {sW}, 3"); g("s_cbranch_scc1 L_Anol")
    save = list(g.lq)
    g.lwait(("p", 3))
    for ks in range(4): g(f"v_mfma_f32_16x16x32_bf16 {vr(LD,4)}, {vr(ones,4)}, {vr(pfr+4*ks,4)}, {vr(LD,4) if ks else 0}")
    g.label("L_Anol")
    if ins: g.stamp(3)
    g.lq = save
    def epi(b):
        for q in range(2):
            g(f"v_cvt_pk_bf16_f32 v{pk+4*b+2*q}, v{O+8*b+4*q}, v{O+8*b+4*q+1}")
            yield
            g(f"v_cvt_pk_bf16_f32 v{pk+4*b+2*q+1}, v{O+8*b+4*q+2}, v{O+8*b+4*q+3}")
            yield
        g(f"buffer_store_dwordx4 {vr(pk+4*b,4)}, v{vpo}, {WS}, {sPOs} offen offset:{b*128} sc1")
        if hint and b == hpos:
            g("s_mov_b64 exec, 1")
            g(f"buffer_store_dword v{STG+2}, v{vzA}, {WS}, s37 offen offset:16")
            g("s_mov_b64 exec, -1")
        yield
    def st_store():
        g(f"s_cmp_lg_u32 {sW}, 3"); g("s_cbranch_scc1 L_Anos")
        g(f"v_mov_b32 v{STG+1}, v{LD}")
        g("s_mov_b64 exec, 0xffff")
        g(f"buffer_store_dwordx4 {vr(STG,4)}, v{vst}, {WS}, {sSTs} offen sc1")
        if hint and not cmb:
            g("s_mov_b64 exec, 1")
            g(f"buffer_store_dword v{STG+2}, v{vzA}, {WS}, s36 offen")
        g("s_mov_b64 exec, -1")
        g.label("L_Anos")
    if ty:
        order = [(ks, T, hf) for b in range(4) for ks in range(2) for T in (2 * b, 2 * b + 1) for hf in range(2)]
        for k in range(4): try_(*order[k])
        nxt = 4
        for ks in range(2):
            g.lwait(("p", ks))
            for T in range(8):
                g(f"v_mfma_f32_16x16x32_bf16 {vr(O+4*T,4)}, {ar(128+(ks*8+T)*4,4)}, {vr(pfr+4*ks,4)}, {vr(O+4*T,4) if ks else 0}")
                for _ in range(2):
                    if nxt < 32: try_(*order[nxt]); nxt += 1
            if ks == 0: st_store()
        pend = None
        for b in range(4):
            cnt = 0
            for ks in (2, 3):
                for T in (2 * b, 2 * b + 1):
                    g.lwait(("ty", ks - 2, T))
                    g(f"v_mfma_f32_16x16x32_bf16 {vr(O+4*T,4)}, {ar(128+(ks*8+T)*4,4)}, {vr(pfr+4*ks,4)}, {vr(O+4*T,4)}")
                    cnt += 1
                    if b >= 2:
                        if b == 2 and cnt == 1: g("s_nop 1")
                        next(pend, None)
                        if cnt == 4: next(pend, None)
            if b >= 1: pend = epi(b - 1)
        g("s_nop 1")
        for _ in pend: pass
        for _ in epi(3): pass
    else:
        pend = None
        for b in range(4):
            cnt = 0
            for ks in range(4):
                if b == 0: g.lwait(("p", ks))
                for T in (2 * b, 2 * b + 1):
                    g(f"v_mfma_f32_16x16x32_bf16 {vr(O+4*T,4)}, {ar(128+(ks*8+T)*4,4)}, {vr(pfr+4*ks,4)}, {vr(O+4*T,4) if ks else 0}")
                    cnt += 1
                    if b == 0 and cnt == 8:
                        g(f"s_cmp_lg_u32 {sW}, 3"); g("s_cbranch_scc1 L_Anos")
                        g(f"v_mov_b32 v{STG+1}, v{LD}")
                        g("s_mov_b64 exec, 0xffff")
                        g(f"buffer_store_dwordx4 {vr(STG,4)}, v{vst}, {WS}, {sSTs} offen sc1")
                        if hint and not cmb:
                            g("s_mov_b64 exec, 1")
                            g(f"buffer_store_dword v{STG+2}, v{vzA}, {WS}, s36 offen")
                        g("s_mov_b64 exec, -1")
                        g.label("L_Anos")
                    if pend is not None and cnt >= 4:
                        if cnt == 4: g("s_nop 1")
                        next(pend, None)
            if pend is not None:
                for _ in pend: pass
            pend = epi(b)
        if ins: g.stamp(14)
        g("s_nop 4")
        for _ in pend: pass
    g.stamp(4)
    L_F1, L_F2 = 0, 0x4000
    xb = xbA; ta = qf + 16; w2f = qf + 32; hp = qf + 48; acc = O; Da = SX; hpv = LD; hlo = EX; hhi = EX + 2
    vw2 = vpv; vA = vpv + 8; vt1, vt2, vh, vop = vpv + 12, vpv + 13, vpv + 14, vpv + 15
    L_H = 0x8000
    if fk:
        g(f"v_lshrrev_b32 v2, 1, v1"); g(f"v_mul_u32_u24 v{vt1}, 2752, v2"); g(f"v_and_b32 v2, 1, v1"); g(f"v_lshlrev_b32 v2, 4, v2"); g(f"v_add_u32 v{vt1}, v2, v{vt1}")
        g(f"v_lshl_add_u32 v{vh}, v{gg}, 5, v2"); g(f"v_add_u32 v{vh}, {L_H}, v{vh}")
    else:
        g(f"v_lshrrev_b32 v2, 3, v1"); g(f"v_mul_u32_u24 v{vt1}, 2752, v2"); g(f"v_and_b32 v2, 7, v1"); g(f"v_lshl_add_u32 v{vt1}, v2, 4, v{vt1}")
        g(f"v_lshlrev_b32 v{vh}, 6, v2"); g(f"v_lshl_add_u32 v{vh}, v{gg}, 4, v{vh}")
    g(f"v_lshlrev_b32 v2, 1, v{gg}"); g(f"v_xor_b32 v2, v2, v{n}"); g(f"v_lshlrev_b32 v2, 4, v2"); g(f"v_lshl_add_u32 v{vA}, v{gg}, 10, v2"); g(f"v_xor_b32 v3, 0x80, v{vA}")
    g(f"v_add_u32 v{vA+1}, 3072, v3"); g(f"v_add_u32 v{vA+2}, 6144, v{vA}"); g(f"v_add_u32 v{vA+3}, 9216, v3")
    g(f"s_lshl_b32 s59, {sW}, 12"); g(f"s_lshl_b32 s58, {sHX}, 16"); g("s_add_u32 s59, s59, s58"); g("s_mov_b32 m0, s59")
    g("s_lshl2_add_u32 s25, s70, s71"); g("s_lshl_b32 s32, s25, 14"); g(f"s_lshl_b32 s33, {sW}, 8"); g("s_add_u32 s32, s32, s33")
    if poack: g("s_waitcnt vmcnt(0)")
    g.stamp(12)
    g("s_cmp_ge_u32 s70, 22"); g("s_cbranch_scc1 L_Anf1")
    if fk:
        if not pff: g(f"buffer_load_dword v255, v{vf1}, s[60:63], s24 offen")
        g(f"s_mul_i32 s24, {sW}, {128*2752}"); g("s_lshl_b32 s58, s25, 5"); g("s_add_u32 s24, s24, s58")
    if xnl == 1: xn_loads()
    for j in range(4):
        if j: g("s_add_u32 m0, m0, 0x400"); g(f"s_add_u32 s24, s24, {(32 if fk else 8)*2752}")
        g(f"buffer_load_dwordx4 v{vt1}, s[60:63], s24 offen lds")
    g(f"s_add_u32 m0, s59, {L_F2}"); g("s_nop 0")
    for j in range(4): g(f"buffer_load_dwordx4 v{vA+j}, s[64:67], s32 offen offset:{j*1024} lds")
    if pf2a:
        g("s_branch L_Anf1b")
    g.label("L_Anf1")
    if pf2a:
        g("s_cmp_lt_u32 s70, 64"); g("s_cbranch_scc1 L_Anf1b")
        g(f"s_mul_i32 s58, s5, 3"); g(f"s_add_u32 s58, s58, {sW}"); g("s_lshl2_add_u32 s58, s58, s71"); g("s_lshl_b32 s58, s58, 14")
        g(f"s_cmp_lt_u32 {sW}, 3"); g(f"s_cselect_b32 s58, s58, {OOB}"); g("s_add_u32 s59, s58, 0x2000")
        g(f"buffer_load_dword v255, v{vfo}, s[64:67], s58 offen"); g(f"buffer_load_dword v255, v{vfo}, s[64:67], s59 offen")
        g.label("L_Anf1b")
    if pfo and not pfoe: g(f"global_load_dword v255, v{vpo2}, s[28:29]")
    g("s_cmp_ge_u32 s70, 22"); g("s_cbranch_scc1 L_Anf2")
    g(f"v_lshl_add_u32 v{vt2}, v{gg}, 3, v{r}"); g(f"v_lshlrev_b32 v{vt2}, {5 if fk else 7}, v{vt2}"); g(f"v_lshl_add_u32 v{vt2}, v{c4}, 3, v{vt2}")
    g(f"s_lshl_b32 s58, {sW}, {12 if fk else 5}"); g(f"v_add_u32 v{vt2}, s58, v{vt2}"); g(f"s_lshl_b32 s58, {sHX}, 16"); g(f"v_add_u32 v{vt2}, s58, v{vt2}")
    g(f"v_and_b32 v2, 1, v{gg}"); g(f"v_lshl_or_b32 v2, v2, 2, v{r}"); g(f"v_lshlrev_b32 v2, 5, v2"); g(f"v_lshl_or_b32 v2, v{c4}, 3, v2")
    g(f"v_lshl_add_u32 v3, v{gg}, 2, v{r}"); g(f"v_lshlrev_b32 v3, 8, v3"); g(f"s_add_u32 s58, s59, {L_F2}"); g(f"v_add_u32 v3, s58, v3")
    for tl in range(8):
        g(f"v_xor_b32 v{vw2+tl}, {tl*32}, v2"); g(f"v_add_u32 v{vw2+tl}, v{vw2+tl}, v3")
    g(f"v_lshrrev_b32 v{vop}, 1, v1"); g(f"v_mul_u32_u24 v{vop}, {OPS}, v{vop}"); g(f"v_and_b32 v2, 1, v1"); g(f"v_lshl_or_b32 v{vop}, v2, 4, v{vop}")
    g("s_lshl_b32 s25, s25, 5"); g(f"s_mul_i32 s58, {sW}, {32*OPS}"); g("s_add_u32 s25, s25, s58"); g(f"s_add_u32 s25, s25, {OP + 128*32}")
    g(f"v_mov_b32 v{hpv+2}, {sT}")
    if opr: g(f"buffer_load_dword v254, v{vop}, {WS}, s25 offen")
    if not ins: g.stamp(1)
    g(f"s_waitcnt vmcnt({(5 if (pfo and not pfoe) else 4) + (1 if opr else 0)})")
    if not ins: g.stamp(2)
    if fk:
        for u in range(4):
            for hf in range(2): g.lds(f"ds_read_b64_tr_b16 {vr(ta+4*u+2*hf,2)}, v{vt2} offset:{u*1024+hf*128}", ("w1", u))
        g(f"s_lshl_b32 s58, {sW}, 7"); g(f"v_add_u32 v2, s58, v{vh}")
        for u in range(4):
            g.lwait(("w1", u))
            g(f"v_mfma_f32_16x16x32_bf16 {vr(Da,4)}, {vr(ta+4*u,4)}, {vr(xb+4*u,4)}, {vr(Da,4) if u else 0}")
        g(f"s_waitcnt vmcnt({(1 if (pfo and not pfoe) else 0) + (1 if opr else 0)})")
        for tl in range(8): g.lds(f"ds_read_b64_tr_b16 {vr(w2f+2*tl,2)}, v{vw2+tl}")
        g.lds(f"ds_write_b128 v2, {vr(Da,4)}")
        g.lwait0()
        g("s_barrier")
        g.stamp(14)
        for k in range(4): g.lds(f"ds_read_b128 {vr(ta+4*k,4)}, v{vh} offset:{k*128}")
        g.lwait0()
        for k in range(2):
            g(f"v_pk_add_f32 {vr(ta+2*k,2)}, {vr(ta+2*k,2)}, {vr(ta+4+2*k,2)}"); g(f"v_pk_add_f32 {vr(ta+8+2*k,2)}, {vr(ta+8+2*k,2)}, {vr(ta+12+2*k,2)}")
        for k in range(2): g(f"v_pk_add_f32 {vr(hp+2*k,2)}, {vr(ta+2*k,2)}, {vr(ta+8+2*k,2)}")
    else:
        g("s_barrier")
        if not ins: g.stamp(14)
        for u in range(4):
            for hf in range(2): g.lds(f"ds_read_b64_tr_b16 {vr(ta+4*u+2*hf,2)}, v{vt2} offset:{u*4096+hf*512}", ("w1", u))
        for u in range(4):
            g.lwait(("w1", u))
            g(f"v_mfma_f32_16x16x32_bf16 {vr(Da,4)}, {vr(ta+4*u,4)}, {vr(xb+4*u,4)}, {vr(Da,4) if u else 0}")
        g("s_mov_b32 exec_lo, 0x00030003"); g("s_mov_b32 exec_hi, 0x00030003")
        g("s_nop 5")
        g(f"v_cvt_pk_bf16_f32 v{hpv}, v{Da}, v{Da+1}"); g(f"v_cvt_pk_bf16_f32 v{hpv+1}, v{Da+2}, v{Da+3}")
        g(f"buffer_store_dwordx4 {vr(hpv,4)}, v{vh}, {WS}, s44 offen")
        g("s_mov_b64 exec, -1")
        def hp_restore():
            g("s_mov_b32 exec_lo, 0x00030003"); g("s_mov_b32 exec_hi, 0x00030003")
            g(f"buffer_store_dwordx4 {vr(hpv,4)}, v{vh}, {WS}, s44 offen sc1")
            g("s_mov_b64 exec, -1")
        g(f"s_mov_b32 {sCnt}, 0")
        g.label("L_Ah")
        g(f"s_cmp_lg_u32 {sCnt}, 6"); g("s_cbranch_scc1 L_Ah_n")
        hp_restore()
        g.label("L_Ah_n")
        g(f"buffer_load_dwordx3 {vr(hp+4,3)}, v{vh}, {WS}, s45 offen sc1")
        g(f"s_add_u32 {sCnt}, {sCnt}, 1"); g(f"s_cmp_gt_u32 {sCnt}, {SPIN}"); g("s_cbranch_scc1 L_Ah_x")
        g("s_waitcnt vmcnt(0)")
        g(f"v_cmp_ne_u32 vcc, {sT}, v{hp+6}")
        g("s_cbranch_vccnz L_Ah")
        g.label("L_Ah_x")
        g("s_waitcnt vmcnt(0)")
        if not ins: g.stamp(3)
        hp_restore()
        for tl in range(8): g.lds(f"ds_read_b64_tr_b16 {vr(w2f+2*tl,2)}, v{vw2+tl}")
        g(f"v_lshlrev_b32 v{hp}, 16, v{hp+4}"); g(f"v_and_b32 v{hp+1}, 0xffff0000, v{hp+4}")
        g(f"v_lshlrev_b32 v{hp+2}, 16, v{hp+5}"); g(f"v_and_b32 v{hp+3}, 0xffff0000, v{hp+5}")
        for k in range(4): g(f"v_add_f32_dpp v{hp+k}, v{hp+k}, v{hp+k} quad_perm:[2,3,0,1] {DPPF}")
        for k in range(4): g(f"v_add_f32_dpp v{hp+k}, v{hp+k}, v{hp+k} row_ror:4 {DPPF}")
    g(f"v_cvt_pk_bf16_f32 v{hp+4}, v{hp}, v{hp+1}"); g(f"v_cvt_pk_bf16_f32 v{hp+5}, v{hp+2}, v{hp+3}")
    g(f"v_lshlrev_b32 v{hp}, 16, v{hp+4}"); g(f"v_and_b32 v{hp+1}, 0xffff0000, v{hp+4}")
    g(f"v_lshlrev_b32 v{hp+2}, 16, v{hp+5}"); g(f"v_and_b32 v{hp+3}, 0xffff0000, v{hp+5}")
    for k in range(4): g(f"v_mul_f32 v{hp+8+k}, {f2u(-1.4426950408889634):#x}, v{hp+k}")
    for k in range(4): g(f"v_exp_f32 v{hp+8+k}, v{hp+8+k}")
    g("s_nop 0")
    for k in range(4): g(f"v_add_f32 v{hp+8+k}, 1.0, v{hp+8+k}")
    for k in range(4): g(f"v_rcp_f32 v{hp+8+k}, v{hp+8+k}")
    g("s_nop 0")
    for k in range(4): g(f"v_mul_f32 v{hp+k}, v{hp+k}, v{hp+8+k}")
    g(f"v_cvt_pk_bf16_f32 v{hp+4}, v{hp}, v{hp+1}"); g(f"v_cvt_pk_bf16_f32 v{hp+5}, v{hp+2}, v{hp+3}")
    g("s_mov_b32 s56, 0x00030003"); g("s_mov_b32 s57, s56"); g("s_lshl_b64 s[58:59], s[56:57], 8")
    for k in range(2):
        g(f"v_cndmask_b32 v{hlo+k}, 0, v{hp+4+k}, s[56:57]"); g(f"v_cndmask_b32 v{hhi+k}, 0, v{hp+4+k}, s[58:59]")
    g.lwait0()
    TLO = (0, 1, 4, 5); THI = (2, 3, 6, 7)
    for k in range(4): g(f"v_mfma_f32_16x16x16_bf16 {vr(acc+4*k,4)}, {vr(hlo,2)}, {vr(w2f+2*TLO[k],2)}, 0")
    for k in range(4): g(f"v_mfma_f32_16x16x16_bf16 {vr(acc+4*k,4)}, {vr(hhi,2)}, {vr(w2f+2*THI[k],2)}, {vr(acc+4*k,4)}")
    out_pack(acc, pk, pk + 4, hpv, vop, "s25")
    g.label("L_Anf2")
    if rfa:
        g(f"s_lshl2_add_u32 s58, {sRid}, s3"); g("s_lshl_b32 s58, s58, 3"); g(f"s_add_u32 s58, s58, {HW + 4}"); g("s_mov_b64 exec, 1")
        g(f"buffer_store_dword v{STG+2}, v{vzA}, {WS}, s58 offen")
        g("s_mov_b64 exec, -1")
    g.stamp(8)
    g(f"s_cmp_lg_u32 {sW}, 0"); g("s_cbranch_scc1 L_Aend0")
    op = qf
    g(f"s_mul_i32 s56, {sRid}, {OPS}"); g(f"s_add_u32 s56, s56, {OP}"); g("s_add_u32 s57, s56, 0x1000")
    g(f"buffer_load_ushort v{xr}, v{vro}, {X}, {sRo} offen")
    raw = op + 32
    g(f"v_mov_b32 v{raw+24}, 0"); g(f"v_mov_b32 v{raw+25}, 0"); g(f"v_mov_b32 v{raw+26}, {sT}")
    if hintr:
        if rall:
            if rfa:
                g(f"s_lshl_b32 s38, s5, 9"); g(f"s_add_u32 s38, s38, {HW}"); g(f"v_lshlrev_b32 v{vl4}, 3, v1"); g(f"s_mov_b32 s40, {sT}"); g(f"s_mov_b32 s41, {sT}")
                g(f"s_mov_b32 {sCnt}, 0")
                g.label("L_Rh")
                g(f"buffer_load_dwordx2 v[2:3], v{vl4}, {WS}, s38 offen sc1")
                g(f"s_add_u32 {sCnt}, {sCnt}, 1"); g(f"s_cmp_gt_u32 {sCnt}, HINT_LIMIT"); g("s_cbranch_scc1 L_Rh_x")
                g("s_waitcnt vmcnt(0)")
                g("v_cmp_ne_u64 vcc, s[40:41], v[2:3]")
                g("s_cbranch_vccnz L_Rh")
                g.label("L_Rh_x")
            else:
                g(f"s_lshl_b32 s38, s5, 8"); g(f"s_add_u32 s38, s38, {HW}")
                hint_wait(g, "L_Rh", 2, vl4, "s38", 0, sCnt)
        else: hint_wait(g, "L_Rh", 2, vzA, "s38", 0, sCnt)
    g(f"s_mov_b32 {sCnt}, 0")
    g.label("L_R")
    for j in range(7):
        if j == 6: g("s_mov_b32 exec_hi, 0xffff")
        g(f"buffer_load_dwordx3 {vr(raw+4*j,3)}, v{vj}, {WS}, {'s56' if j < 4 else 's57'} offen offset:{(j&3)*1024} sc1")
    g("s_mov_b32 exec_hi, -1")
    g(f"s_add_u32 {sCnt}, {sCnt}, 1"); g(f"s_cmp_gt_u32 {sCnt}, {SPIN}"); g("s_cbranch_scc1 L_R_x")
    for j in range(7):
        g(f"s_waitcnt vmcnt({6-j})")
        g(f"v_sad_u32 v{chk}, v{raw+2+4*j}, {sT}, {('v%d' % chk) if j else 0}")
        d = op + 4 * (j & 1) if j < 2 else op + 8
        for k in range(2):
            g(f"v_lshlrev_b32 v{d+2*k}, 16, v{raw+4*j+k}"); g(f"v_and_b32 v{d+2*k+1}, 0xffff0000, v{raw+4*j+k}")
        if j >= 2:
            for k in range(2): g(f"v_pk_add_f32 {vr(op+4*(j&1)+2*k,2)}, {vr(op+4*(j&1)+2*k,2)}, {vr(op+8+2*k,2)}")
    g(f"v_cmp_ne_u32 vcc, 0, v{chk}")
    g("s_cbranch_vccnz L_R")
    g.label("L_R_x")
    g.count(sCnt)
    g("s_waitcnt vmcnt(0)")
    g.stamp(9)
    for k in range(2): g(f"v_pk_add_f32 {vr(op+2*k,2)}, {vr(op+2*k,2)}, {vr(op+4+2*k,2)}")
    g(f"v_lshlrev_b32 v{xr}, 16, v{xr}")
    g("s_nop 1")
    g(f"v_permlane16_swap_b32 v{op}, v{op+1}"); g(f"v_permlane16_swap_b32 v{op+2}, v{op+3}")
    g("s_nop 0")
    g(f"v_add_f32 v{op}, v{op}, v{op+1}"); g(f"v_add_f32 v{op+2}, v{op+2}, v{op+3}")
    g("s_nop 1")
    g(f"v_permlane32_swap_b32 v{op}, v{op+2}")
    g("s_nop 0")
    g(f"v_add_f32 v{op}, v{op}, v{op+2}")
    for k in (2, 4, 8):
        g("s_nop 1"); g(f"v_add_f32_dpp v{op}, v{op}, v{op} row_ror:{k} {DPPF}")
    g(f"v_add_f32 v{op}, v{op}, v{xr}")
    g("s_mov_b32 exec_lo, 0x00030003"); g("s_mov_b32 exec_hi, 0x00030003")
    g(f"v_cvt_pk_bf16_f32 v{op}, v{op}, v{op}")
    g(f"buffer_store_short v{op}, v{vro}, {OUT}, {sRo} offen {('', 'sc1', 'sc0 sc1', 'nt')[osc]}")
    g(f"s_cmp_lg_u32 {sRid}, 0"); g("s_cbranch_scc1 L_Aend")
    g("s_mov_b64 exec, 1"); g(f"v_mov_b32 v2, {sT}"); g("v_mov_b32 v3, 0")
    g(f"buffer_store_dword v2, v3, {WS}, 0 offen sc1")
    g("s_branch L_Aend")
    g.label("L_Aend0")
    g.label("L_Aend")
    g.stamp(10)
    dump_stamps(g, "A")
    g("s_endpgm")
    g.label("L_Aovf")
    g(f"v_mov_b32 v{t2}, 1")
    g(f"ds_write_b32 v{vmx}, v{t2} offset:64")
    g("s_branch L_Aovf_x")
    g.label("L_Aslow")
    g(f"v_max3_f32 v{mxv}, v{SY}, v{SY+1}, v{SY+2}"); g(f"v_max_f32 v{mxv}, v{mxv}, v{SY+3}")
    g(f"ds_max_f32 v{vmx}, v{mxv}")
    g("s_waitcnt lgkmcnt(0)"); g("s_barrier")
    g(f"ds_read_b32 v{mxv}, v{vmx}"); g(f"v_mov_b32 v{t2}, 0"); g(f"ds_write_b32 v{vmx}, v{t2} offset:64")
    g("s_waitcnt lgkmcnt(0)")
    g(f"v_mul_f32 v{STG}, s56, v{mxv}")
    for k in range(8): g(f"v_fma_f32 v{EX+k}, v{SX+k}, s56, -v{STG}")
    pexp(0); pexp(1); g("s_nop 0")
    pwrite(0); pwrite(1)
    g("s_waitcnt lgkmcnt(0)"); g("s_barrier")
    g("s_branch L_Apv")
    flag_fallback(g, "L_Af1", vfl, l16, "s34", sCnt)
    g.label("L_end")
    body = "\n".join(g.L)
    tab = ""

    hdr = open("parallel_sum__compressed_kv_cla__dense_activation_silu__decode.s.ref").read().split("; Override launch")[0]
    return f"""{hdr}; @launch grid=(256,1,1) block=(256,1,1) lds={LDS_BYTES}
{DOC}.amdgcn_target "amdgcn-amd-amdhsa--gfx950"
.set HINT_LIMIT, 40
.text
.globl {KNAME}
.p2align 8
.type {KNAME},@function
{KNAME}:
{body}
    s_endpgm
{tab}.section .rodata,"a"
.p2align 6
.amdhsa_kernel {KNAME}
  .amdhsa_next_free_vgpr 512
  .amdhsa_next_free_sgpr 102
  .amdhsa_accum_offset 256
  .amdhsa_group_segment_fixed_size 0
  .amdhsa_kernarg_size 96
  .amdhsa_user_sgpr_count 2
  .amdhsa_user_sgpr_kernarg_segment_ptr 1
  .amdhsa_system_sgpr_workgroup_id_x 1
.end_amdhsa_kernel
"""

if __name__ == "__main__":
    dbg = 3 if "--debug3" in sys.argv else 2 if "--debug2" in sys.argv else (1 if "--debug" in sys.argv else 0)
    out = [a for a in sys.argv[1:] if not a.startswith("--")][0]
    kw = {}
    for a in sys.argv[1:]:
        if a.startswith("--hsleep="): HSLEEP = int(a.split("=")[1])
    for a in sys.argv[1:]:
        if a.startswith("--thr="): kw["thr"] = tuple(int(x) for x in a[6:].split(","))
        if a.startswith("--swap="): kw["swap"] = int(a[7:])
        for nm in ("touch", "pfk", "pfo", "pf2", "pfc", "noflag", "wdelay", "loc", "stw", "slp", "pad", "rslp", "p2t", "est", "pfoe", "hint", "qal", "hintr", "hsl", "dq", "wke", "qack", "qsl", "hq", "nts", "gate", "pff", "poack", "pfv", "wv1", "fgate", "rall", "pg", "wow", "gw", "xnl", "pffe", "cmb", "hre", "adl", "noclr", "fwait", "hqe", "nat", "opr", "qae", "fk", "wk2", "hpos", "pre0", "osc", "tlb", "pl", "flae", "dl", "hl", "spk", "ty", "fle", "pga", "pgh", "pf2a", "qcl", "clf", "gpk", "gk", "ins", "rfa", "h1a"):
            if a.startswith(f"--{nm}="): kw[nm] = int(a.split("=")[1])
    open(out, "w").write(build(dbg, **kw))
```
